```python
import torch

def _softmax(x, axis=-1):
    return torch.softmax(x, dim=axis)
def _gelu(x):
    return torch.nn.functional.gelu(x, approximate="tanh")
def _silu(x):
    return torch.nn.functional.silu(x)
def _sigmoid(x):
    return torch.sigmoid(x)
def _layernorm(x, axis=-1, eps=1e-5):
    m = x.mean(dim=axis, keepdim=True)
    v = x.var(dim=axis, keepdim=True, unbiased=False)
    return (x - m) / torch.sqrt(v + eps)
def _scatter_add(tgt, idx, src, axis=0):
    return tgt.clone().index_add_(axis, idx, src)
def _segment_sum(src, seg, n):
    out = torch.zeros((n,) + src.shape[1:], dtype=src.dtype)
    return out.index_add_(0, seg, src)
def _pad(x, pw):
    flat = tuple(v for pair in reversed(pw) for v in pair)
    return torch.nn.functional.pad(x, flat)

kernel_name = 'standalone__standard_2d_1d_3d_conv__vision'

def setup_inputs():

    _w = (lambda a: (lambda t: t.to(torch.bfloat16) if t.is_floating_point() else t)(torch.as_tensor(a)))
    H = W = 224
    C = 192
    K = 3
    return {
        "x": _w((lambda *s: torch.randn(*s, dtype=torch.bfloat16) * 0.05)(1, H, W, C)),
        "w": _w((lambda *s: torch.randn(*s, dtype=torch.bfloat16) * 0.05)(K, K, C, C)),
        "b": _w((lambda *s: torch.randn(*s, dtype=torch.bfloat16) * 0.05)(C)),
    }

def reference(x, w, b):
    B, H, W, Cin = x.shape
    K = w.shape[0]
    pl = (K - 1) // 2
    pr = K // 2
    xp = _pad(x, ((0, 0), (pl, pr), (pl, pr), (0, 0)))
    out = sum(
        torch.einsum('bhwc,cd->bhwd', xp[:, i:i+H, j:j+W, :], w[i, j])
        for i in range(K) for j in range(K)
    )
    return out + b[None, None, None, :]
```

```python
import sys, re
def cls(s):
    s = s.strip()
    if s.startswith("v_mfma"): return "X"
    if s.startswith("s_waitcnt"): return "W"
    if s.startswith("s_barrier"): return "B"
    if s.startswith("s_"): return "S"
    if s.startswith("ds_write_b64"): return "D"
    if s.startswith("ds_write_b32"): return "d"
    if s.startswith("ds_"): return "R"
    if s.startswith("buffer_") or s.startswith("global_"): return "M"
    if s.startswith("v_"): return "V"
    return "?"
def gapcost(seq):
    q = []
    for c in seq:
        if c == "W" and q and q[-1] == "W": continue
        q.append(c)
    cost = 4 * max(0, len(q) - 2)
    seenV = False; prevL = None
    for k, c in enumerate(q):
        if c in "MRDd" and seenV:
            cost += {"M": 8, "R": 8, "D": 12, "d": 12}[c]
        if c == "D":
            cost += 4
            if len(q) >= 2 and not seenV: cost += 4
        if c in "RDd" and prevL:
            cost += {"R": 4 if c == "R" else 0, "D": 12, "d": 12}[prevL]
        if c == "M" and k and q[k-1] == "M": cost += 8
        if c == "R" and k and q[k-1] == "B": cost += 4
        if c == "V": seenV = True
        if c in "RDd": prevL = c
    return cost
if __name__ == "__main__":
    lines = open(sys.argv[1]).read().split("\n")
    for lab, end in (("L_CONS:", "L_CN:"), ("L_CN:", "L_END:")):
        a = lines.index(lab); b = lines.index(end)
        seq = []; tot = []; cur = 0; started = False; hist = {}; mark = False
        for s in lines[a:b]:
            c = cls(s)
            if c == "X":
                if started:
                    g = gapcost(seq); cur += 16 + g
                    if g: hist["".join(seq)] = hist.get("".join(seq), 0) + g
                    if "B" in seq or mark: tot.append(cur); cur = 0
                started = True; seq = []; mark = False
            elif c != "?": seq.append(c)
            elif s.startswith("L_CK") and "rdy" in s and "spin" not in s: mark = True
        tot.append(cur)
        print(lab, tot, sum(tot))
        print("   ", sorted(hist.items(), key=lambda t: -t[1])[:25])
```

```python
import sys, os
sys.path.insert(0, os.path.dirname(os.path.abspath(__file__)))
from cost import gapcost

KNAME = "standalone__standard_2d_1d_3d_conv__vision_kernel"

DEF = dict(
    stamp=0, spin=4000, spinref=0, cst=-1, cev=8, pst=0,
    xf="", sf="sc1", uf="sc1",
    code_pf=1, w_pf=1,
    prio=0, slp=1,
    pro="beta",
    xs="w:1e,w:1o,j4:2e,j4:2o",
    dsp=4.5,
    ustep=6.33, ulead=10,
    lag=2,
    go=23,
    noatom=0, u_pf=0, pollp=1, pollat=-2, n1=1, y0at=0, gam=0, psl=2, order=2, wat=1, pat=3, rpf=1, rlead=0, wsp=10, pollw=0, w2pre=0, tr1at=4, wo=2, ulead0=0,
)

VSLOT = 22528
VHALF = 11264
VS = [0, VSLOT, 2 * VSLOT]
FLAGS = 3 * VSLOT
WRING = FLAGS + 512
WWAVE = 18432
OROW = 6400
OUT = WRING
XST = OUT + 12 * OROW
LDS_BYTES = XST + 4608
NWORK = 56

XBYTES = 224 * 224 * 384
WBYTES = 9 * 192 * 384
UBYTES = 24 * 36864

ORDERS = {
    2: [("A", 0, 0), ("A", 1, 0),
        ("B", 0, 0), ("B", 1, 0), ("B", 0, 1), ("B", 1, 1), ("B", 0, 2), ("B", 1, 2),
        ("A", 0, 1), ("A", 0, 2), ("A", 1, 1), ("A", 1, 2)],
    1: [("A", 0, 0), ("A", 1, 0), ("A", 0, 1), ("A", 1, 1),
        ("B", 0, 0), ("B", 1, 0), ("B", 0, 1), ("B", 1, 1), ("B", 0, 2), ("B", 1, 2),
        ("A", 0, 2), ("A", 1, 2)],
}
UNITS = list(ORDERS[2])


def step_info(s):
    kind, st, pair = UNITS[s >> 1]
    return kind, st, 2 * pair + (s & 1)


sX, sW, sO, sU, sB = 4, 8, 12, 16, 20
sDBG, sWS, sKA = 24, 26, 28
sWAVE, sL, sSTRIP, sROW0, sHASX, sES, sEROW = 36, 37, 38, 39, 40, 41, 42
sF0, sF1, sF2, sIDX = 43, 44, 45, 46
sT0, sT1, sT2, sT3 = 47, 48, 49, 50
sMASK, sRING, sOFF, sOFF2, sPW = 51, 52, 53, 54, 55
sPC, sCNT, sINV = 56, 58, 59
sPOLL, sPEND = 3, 56
sST = 60


class Em:
    def __init__(self, opt, parent=None):
        self.L = []
        self.lg = list(parent.lg) if parent else []
        self.vm = list(parent.vm) if parent else []
        self.opt = opt
        self.nst = parent.nst if parent else 0

    def I(self, s):
        self.L.append("    " + s)

    def label(self, s):
        self.L.append(s + ":")

    def lds(self, s, name=None):
        self.I(s)
        self.lg.append(name)

    def vmem(self, s, name=None):
        self.I(s)
        self.vm.append(name)

    def need(self, names):
        if isinstance(names, str):
            names = [names]
        w = []
        k = max([i for i, n in enumerate(self.vm) if n in names], default=-1)
        if k >= 0:
            n = min(len(self.vm) - 1 - k, 63)
            w.append(f"vmcnt({n})")
            self.vm = self.vm[len(self.vm) - n:] if n else []
        k = max([i for i, n in enumerate(self.lg) if n in names], default=-1)
        if k >= 0:
            n = min(len(self.lg) - 1 - k, 15)
            w.append(f"lgkmcnt({n})")
            self.lg = self.lg[len(self.lg) - n:] if n else []
        if w:
            self.I("s_waitcnt " + " ".join(w))

    def drain_lg(self):
        self.I("s_waitcnt lgkmcnt(0)")
        self.lg = []

    def drain_vm(self):
        self.I("s_waitcnt vmcnt(0)")
        self.vm = []

    def stamp(self):
        o = self.opt
        if o["stamp"] == 4 and self.nst != o["spinref"]:
            self.nst += 1
        elif o["stamp"]:
            r = sST + 2 * self.nst
            assert r + 1 < 102, "too many stamps"
            self.I(f"s_memrealtime s[{r}:{r+1}]" if o["stamp"] in (1, 4) else f"s_memtime s[{r}:{r+1}]")
            self.nst += 1

    def dump_stamps(self, role):
        o = self.opt
        if not o["stamp"]:
            return
        self.I("s_waitcnt vmcnt(0) lgkmcnt(0)")
        if o["stamp"] == 4:
            if o["spinref"] and role != "c":
                return
            lab = f"L_SPIN{id(self)}"
            self.label(lab)
            self.I(f"s_memrealtime s[{sT1}:{sT1+1}]")
            self.I("s_waitcnt lgkmcnt(0)")
            self.I(f"s_sub_u32 s{sT0}, s{sT1}, s{sST + 2*o['spinref']}")
            self.I(f"s_cmp_lt_u32 s{sT0}, {o['spin']}")
            self.I(f"s_cbranch_scc1 {lab}")
            return
        self.I(f"s_lshl_b32 s{sT0}, s2, 3")
        self.I(f"s_add_u32 s{sT0}, s{sT0}, s{sWAVE}")
        self.I(f"s_lshl_b32 s{sT0}, s{sT0}, 8")
        self.I(f"s_add_u32 s{sT0}, s{sT0}, 0x100000")
        self.I(f"v_mov_b32 v1, s{sT0}")
        for i in range(self.nst):
            self.I(f"v_mov_b32 v2, s{sST + 2*i}")
            self.I(f"global_store_dword v1, v2, s[{sWS}:{sWS+1}] offset:{4*i}")
        self.I(f"v_mov_b32 v2, {self.nst}")
        self.I(f"global_store_dword v1, v2, s[{sWS}:{sWS+1}] offset:252")


def vr(a, n=4):
    return f"v[{a}:{a+n-1}]"


def srd(e, s, lo, nbytes, bias=0):
    if bias:
        e.I(f"s_sub_u32 s{s}, s{lo}, {bias}")
        e.I(f"s_subb_u32 s{s+1}, s{lo+1}, 0")
    else:
        e.I(f"s_mov_b32 s{s}, s{lo}")
        e.I(f"s_mov_b32 s{s+1}, s{lo+1}")
    e.I(f"s_mov_b32 s{s+2}, {nbytes + bias}")
    e.I(f"s_mov_b32 s{s+3}, 0x20000")


def decode_main(e):
    I = e.I
    I(f"s_and_b32 s{sT0}, s2, 7")
    I(f"s_lshl_b32 s{sT0}, s{sT0}, 5")
    I(f"s_add_u32 s{sT0}, s{sT0}, s{sIDX}")
    I(f"s_mul_i32 s{sT0}, s{sT0}, 7")
    I(f"s_lshr_b32 s{sSTRIP}, s{sT0}, 8")
    I(f"s_and_b32 s{sT0}, s{sT0}, 255")
    I(f"s_mul_i32 s{sT0}, s{sT0}, 293")
    I(f"s_lshr_b32 s{sT0}, s{sT0}, 11")
    I(f"s_mul_i32 s{sROW0}, s{sT0}, 6")


def decode_extra(e):
    I = e.I
    I(f"s_and_b32 s{sT0}, s2, 7")
    I(f"s_mul_i32 s{sT0}, s{sT0}, 12")
    I(f"s_sub_u32 s{sT3}, s{sIDX}, 7")
    I(f"s_add_u32 s{sT0}, s{sT0}, s{sT3}")
    I(f"s_mul_i32 s{sT1}, s{sT0}, 21846")
    I(f"s_lshr_b32 s{sT1}, s{sT1}, 16")
    I(f"s_mul_i32 s{sT2}, s{sT1}, 3")
    I(f"s_sub_u32 s{sF0}, s{sT0}, s{sT2}")
    I(f"s_cmp_lt_u32 s{sT3}, 12")
    I(f"s_cselect_b32 s{sHASX}, 1, 0")
    I(f"s_cselect_b32 s{sF0}, s{sF0}, 0")
    I(f"s_cselect_b32 s{sT1}, s{sT1}, 0")
    I(f"s_lshl_b32 s{sES}, s{sT1}, 1")
    I(f"s_and_b32 s{sES}, s{sES}, 12")
    I(f"s_lshr_b32 s{sES}, 0x5310, s{sES}")
    I(f"s_and_b32 s{sES}, s{sES}, 15")
    I(f"s_and_b32 s{sEROW}, s{sT1}, 1")
    I(f"s_add_u32 s{sEROW}, s{sEROW}, 222")
    I(f"s_lshr_b32 s{sT3}, s{sT1}, 3")
    I(f"s_lshl_b32 s{sT3}, s{sT3}, 1")
    I(f"s_and_b32 s{sT2}, s{sT1}, 7")
    I(f"s_add_u32 s{sT2}, s{sT2}, 216")
    I(f"s_cmp_lt_u32 s{sT1}, 8")
    I(f"s_cselect_b32 s{sES}, s{sES}, s{sT3}")
    I(f"s_cselect_b32 s{sEROW}, s{sEROW}, s{sT2}")


def consumer_pro(e, opt):
    I = e.I
    vV, vV2, vT = 1, 2, 3
    vD = [4, 5, 6]
    vU = [7, 253, 254]
    t0, t1, t2, t3, t4 = 8, 9, 10, 11, 12
    sF = [sF0, sF1, sF2]
    decode_extra(e)
    I(f"s_add_u32 s{sF1}, s{sF0}, 1")
    I(f"s_cmp_eq_u32 s{sF1}, 3")
    I(f"s_cselect_b32 s{sF1}, 0, s{sF1}")
    I(f"s_add_u32 s{sF2}, s{sF1}, 1")
    I(f"s_cmp_eq_u32 s{sF2}, 3")
    I(f"s_cselect_b32 s{sF2}, 0, s{sF2}")
    I(f"v_lshrrev_b32 v{t0}, 4, v0")
    I(f"s_mul_i32 s{sT0}, s{sWAVE}, 96")
    I(f"v_lshlrev_b32 v{t4}, 3, v{t0}")
    I(f"v_add_u32 v{t4}, s{sT0}, v{t4}")
    for s in range(3):
        I(f"s_lshl_b32 s{sT1}, s{sF[s]}, 5")
        I(f"v_add_u32 v{13+s}, s{sT1}, v{t4}")
    if opt["w_pf"]:
        I(f"s_mul_i32 s{sT1}, s{sIDX}, 36")
        I(f"v_min_u32 v{t1}, 35, v0")
        I(f"v_add_u32 v{t1}, s{sT1}, v{t1}")
        I(f"v_mul_u32_u24 v{t2}, 10923, v{t1}")
        I(f"v_lshrrev_b32 v{t2}, 21, v{t2}")
        I(f"v_add_u32 v{t3}, 1, v{t2}")
        I(f"v_lshrrev_b32 v{t3}, 1, v{t3}")
        I(f"v_mul_u32_u24 v{t3}, 576, v{t3}")
        I(f"v_mul_u32_u24 v{t2}, 384, v{t2}")
        I(f"v_add3_u32 v{t1}, v{t1}, v{t2}, v{t3}")
        I(f"v_lshlrev_b32 v{t1}, 7, v{t1}")
        I(f"v_add_u32 v252, 2048, v{t1}")
    I("s_waitcnt lgkmcnt(0)")
    srd(e, sB, sKA + 4, 384)
    srd(e, sW, sKA + 2, WBYTES, 2048)
    srd(e, sU, sWS, UBYTES)
    if opt["w_pf"]:
        I(f"s_cmp_ge_u32 s{sWAVE}, 1")
        I("s_cbranch_scc1 L_NOWPF")
        I(f"buffer_load_dword v255, v252, s[{sW}:{sW+3}], 0 offen")
        e.label("L_NOWPF")
    if opt["code_pf"]:
        I(f"s_cmp_eq_u32 s{sWAVE}, 2")
        I("s_cbranch_scc0 L_NOCPF")
        I(f"s_getpc_b64 s[{sPC}:{sPC+1}]")
        e.label("L_PC0")
        I(f"s_sub_u32 s{sPC}, s{sPC}, L_PC0-{KNAME}")
        I(f"s_subb_u32 s{sPC+1}, s{sPC+1}, 0")
        I(f"s_mul_i32 s{sT1}, s{sIDX}, {opt['code_pf_lines']*128}")
        I(f"v_min_u32 v252, {opt['code_pf_lines']-1}, v0")
        I(f"v_lshl_add_u32 v252, v252, 7, s{sT1}")
        I(f"v_min_u32 v252, L_END-{KNAME}, v252")
        I(f"global_load_dword v255, v252, s[{sPC}:{sPC+1}]")
        e.label("L_NOCPF")
    for s in range(3):
        e.vmem(f"buffer_load_dwordx2 {vr(16+2*s, 2)}, v{13+s}, s[{sB}:{sB+3}], 0 offen", "bias")
    I(f"v_and_b32 v{t1}, 15, v0")
    I(f"v_xor_b32 v{t2}, v{t0}, v{t1}")
    I(f"v_lshl_add_u32 v{t2}, v{t0}, 4, v{t2}")
    I(f"v_lshlrev_b32 v{vV}, 4, v{t2}")
    I(f"v_add_u32 v{vV2}, 0x8000, v{vV}")
    I(f"s_mul_i32 s{sRING}, s{sWAVE}, {WWAVE}")
    I(f"s_add_u32 s{sRING}, s{sRING}, {WRING}")
    I(f"v_lshrrev_b32 v{t2}, 2, v0")
    I(f"v_mul_u32_u24 v{t2}, 96, v{t2}")
    I(f"v_and_b32 v{t3}, 3, v0")
    I(f"v_lshl_add_u32 v{t2}, v{t3}, 3, v{t2}")
    I(f"v_add_u32 v{vT}, s{sRING}, v{t2}")
    for d in range(3):
        I(f"v_add_u32 v{t1}, {64*d}, v0")
        I(f"v_mul_u32_u24 v{t2}, 43691, v{t1}")
        I(f"v_lshrrev_b32 v{t2}, 18, v{t2}")
        I(f"v_mul_u32_u24 v{t3}, 6, v{t2}")
        I(f"v_sub_u32 v{t1}, v{t1}, v{t3}")
        I(f"v_bfe_u32 v{t3}, v{t2}, 2, 2")
        I(f"v_lshlrev_b32 v{t3}, 3, v{t3}")
        I(f"v_lshrrev_b32 v{t4}, 4, v{t2}")
        I(f"v_lshl_add_u32 v{t3}, v{t4}, 2, v{t3}")
        I(f"v_and_b32 v{t2}, 3, v{t2}")
        I(f"v_add_u32 v{t2}, v{t2}, v{t3}")
        I(f"v_mul_u32_u24 v{t2}, 384, v{t2}")
        I(f"v_lshrrev_b32 v{t3}, 1, v{t1}")
        I(f"v_add_u32 v{t3}, s{sF0}, v{t3}")
        I(f"v_subrev_u32 v{t4}, 3, v{t3}")
        I(f"v_min_u32 v{t3}, v{t3}, v{t4}")
        I(f"v_lshl_add_u32 v{t2}, v{t3}, 5, v{t2}")
        I(f"v_and_b32 v{t1}, 1, v{t1}")
        I(f"v_lshl_add_u32 v{t2}, v{t1}, 4, v{t2}")
        I(f"v_add_u32 v{t2}, s{sT0}, v{t2}")
        I(f"v_add_u32 v{vD[d]}, {2048 - 1024*d}, v{t2}")
    I(f"s_mul_i32 s{sT1}, s{sWAVE}, 9216")
    for s in range(3):
        I(f"s_mul_i32 s{sT0}, s{sF[s]}, 3072")
        I(f"s_add_u32 s{sT0}, s{sT0}, s{sT1}")
        I(f"v_lshl_add_u32 v{vU[s]}, v0, 4, s{sT0}")
    I(f"s_cmp_eq_u32 s{sHASX}, 0")
    I("s_cbranch_scc1 L_CN")


def consumer(parent, opt, extra):
    e = Em(opt, parent)
    I = e.I
    vV, vV2, vT = 1, 2, 3
    vD = [4, 5, 6]
    vU = [7, 253, 254]
    vO = vD
    vOX, vFL, vONE, vCK = 3, 255, 252, 0
    VR = 8
    WB = [24, 60]
    ACC = 96
    acc = {}
    for m in range(6):
        for st in range(2):
            for s in range(3):
                acc[(m, st, s)] = ACC + 4 * ((m * 2 + st) * 3 + s)
    acc[("X", 0)] = 240
    acc[("X", 1)] = 244
    spare = [248]
    sF = [sF0, sF1, sF2]
    tag = "x" if extra else "n"

    def W(step, i, s):
        return WB[step & 1] + 4 * (i * 3 + s)

    def dma_ops(step, i):
        kind, st, c = step_info(step)
        slot = (step & 1) * 3 + i
        ops = [("S", lambda: I(f"s_add_u32 m0, s{sRING}, {slot*3072}")),
               ("S", lambda: I(f"s_mov_b32 s{sOFF2}, {(i*3+2*st)*73728 + c*12288}"))]
        for d in range(3):
            def f(d=d):
                e.need([f"w{step-2}_{i}"])
                e.vmem(f"buffer_load_dwordx4 v{vD[d]}, s[{sW}:{sW+3}], s{sOFF2} offen offset:{1024*d} lds", f"dma{step}_{i}")
            ops.append(("M", f))
        return ops

    def tr_ops(step, i):
        slot = (step & 1) * 3 + i
        ops = []
        for s in range(3):
            for h in range(2):
                def f(s=s, h=h):
                    e.need([f"dma{step}_{i}"])
                    e.lds(f"ds_read_b64_tr_b16 {vr(W(step, i, s) + 2*h, 2)}, v{vT} offset:{slot*3072 + h*1536 + s*32}", f"w{step}_{i}")
                ops.append(("WR" if s == 0 and h == 0 else "R", f))
        return ops

    def u_op(step, i, s):
        return ("M", lambda: e.vmem(f"buffer_load_dwordx4 {vr(W(step, i, s))}, v{vU[s]}, s[{sU}:{sU+3}], s{sOFF} offen offset:{1024*i} {opt['uf']}", f"w{step}_{i}"))

    def u_off(step):
        kind, st, c = step_info(step)
        pos = st if kind == "B" else 2 + st
        return ("S", lambda: I(f"s_mov_b32 s{sOFF}, {(pos*6+c)*36864}"))

    I(f"v_lshlrev_b32 v8, 3, v0")
    I(f"v_add_u32 v8, {FLAGS}, v8")
    I(f"v_mov_b32 v10, 0")
    I(f"v_mov_b32 v11, 0")
    I(f"ds_write_b64 v8, v[10:11]")
    I("s_waitcnt lgkmcnt(0)")
    e.stamp()
    I("s_barrier")
    for st_ in (0, 1):
        for i in range(3):
            for c, f in dma_ops(st_, i):
                f()
    e.need("bias")
    for s in range(3):
        a, b = acc[(5, 0, s)], acc[(5, 1, s)]
        I(f"v_lshlrev_b32 v{a}, 16, v{16+2*s}")
        I(f"v_and_b32 v{a+1}, s{sMASK}, v{16+2*s}")
        I(f"v_lshlrev_b32 v{a+2}, 16, v{17+2*s}")
        I(f"v_and_b32 v{a+3}, s{sMASK}, v{17+2*s}")
        for k in range(4):
            I(f"v_xor_b32 v{b+k}, s{sINV}, v{a+k}")
    for i in range(3):
        for c, f in tr_ops(0, i):
            f()
    if opt["w2pre"]:
        for i in range(3):
            for c, f in dma_ops(2, i):
                f()
    I(f"s_lshl_b32 s{sT0}, s{sWAVE}, 2")
    I(f"s_add_u32 s{sT0}, s{sT0}, {FLAGS}")
    I(f"v_mov_b32 v{vFL}, s{sT0}")
    I(f"v_mov_b32 v{vONE}, 1")
    if opt["prio"]:
        I(f"s_setprio {opt['prio']}")
    e.stamp()

    groups = []

    def g_row(step, r):
        st = step_info(step)[1]
        mf = []
        for i in (2, 1, 0):
            m = r - i
            if 0 <= m <= 5:
                for s in range(3):
                    mf.append(((m, st, s), i, s))
        return dict(step=step, row=r, mf=mf)

    def g_x(step, i):
        return dict(step=step, row=8 + i, mf=[(("X", step_info(step)[1]), i, 0)])

    for step in range(22):
        seq = [g_row(step, 0), g_row(step, 1), g_x(step, 0), g_row(step, 2), g_x(step, 1), g_row(step, 3),
               g_x(step, 2), g_row(step, 4), g_row(step, 5), g_row(step, 6), g_row(step, 7)]
        groups += [g for g in seq if extra or g["row"] < 8]
    lag = opt["lag"]
    for r in range(8 + lag):
        if r < 8:
            groups.append(g_row(22, r))
            if extra and 1 <= r <= 3:
                groups.append(g_x(22, r - 1))
        if r >= lag:
            groups.append(g_row(23, r - lag))
            if extra and 2 <= r - lag <= 4:
                groups.append(g_x(23, r - lag - 2))

    stream = []
    gstart = []
    for gi, g in enumerate(groups):
        gstart.append(len(stream))
        for (key, i, s) in g["mf"]:
            stream.append((gi, key, i, s))
    N = len(stream)
    gend = [gstart[k + 1] - 1 if k + 1 < len(groups) else N - 1 for k in range(len(groups))]
    step_start, step_end = {}, {}
    last_use, last_acc, first_acc, first_tap = {}, {}, {}, {}
    for gi, g in enumerate(groups):
        step_start.setdefault(g["step"], gstart[gi])
        step_end[g["step"]] = gend[gi]
    for n, (gi, key, i, s) in enumerate(stream):
        st = groups[gi]["step"]
        last_use[(st, i, s)] = n
        last_acc[(st, key)] = n
        first_acc.setdefault((st, key), n)
        first_tap.setdefault((st, i), n)
    SL = step_start[1] - step_start[0]

    fill = [[] for _ in range(N + 1)]
    cl = [""] * (N + 1)
    endw = [""] * (N + 1)
    for gi in range(1, len(groups)):
        endw[gstart[gi] - 1] = "W"
    for (st, i), n in first_tap.items():
        if n:
            endw[n - 1] = "W"

    def put(g, op):
        fill[g].append(op[1])
        cl[g] += op[0]

    def addcost(g, c, cur):
        base = cur.get(g, cl[g])
        return gapcost(base + c + endw[g]) - gapcost(base + endw[g])

    def place(g0, ops, deadline=None, per=2, strict=False):
        for budget in range(0, len(ops) + 1):
            cur = {}
            res = []
            g, n, left = g0, 0, budget
            for c, f in ops:
                free = 4 if c == "D" else 0
                while g < N:
                    if n < per:
                        ac = addcost(g, c, cur)
                        if ac <= free:
                            break
                        if left and ac <= free + 4:
                            left -= 1
                            break
                    g += 1
                    n = 0
                g = min(g, N)
                cur[g] = cur.get(g, cl[g]) + c
                res.append(g)
                n += 1
            if deadline is None or res[-1] <= deadline:
                break
        else:
            assert not strict, (g0, deadline, res[-1])
        for g, op in zip(res, ops):
            put(g, op)
        return res[-1]

    def vread(gi):
        g = groups[gi]
        u = g["step"] >> 1
        off = VS[u % 3] + (g["step"] & 1) * VHALF + g["row"] * 1024
        base = vV
        if off >= 0x8000:
            base, off = vV2, off - 0x8000
        r = VR + 4 * (gi % 4)
        return ("R", lambda: e.lds(f"ds_read_b128 {vr(r)}, v{base} offset:{off}", f"v{gi}"))

    first_of_unit = {}
    for gi, g in enumerate(groups):
        first_of_unit.setdefault(g["step"] >> 1, gi)
    def flag(k):
        return ("d", lambda: e.lds(f"ds_write_b32 v{vFL}, v{vONE} offset:{k*16}"))

    def ckread(off, name):
        return ("R", lambda: e.lds(f"ds_read_b32 v{vCK}, v{vV2} offset:{FLAGS - 0x8000 + off}", name))

    def check1(name):
        def f():
            e.need(name)
            I(f"v_readfirstlane_b32 s{sT0}, v{vCK}")
        return f

    def check(off, val, name, st=False):
        def f():
            lab = f"L_CK{tag}{name}"
            I(f"s_cmp_eq_u32 s{sT0}, {val}")
            I(f"s_cbranch_scc0 {lab}_spin")
            e.label(lab)
            if st and opt["cst"] < 0:
                e.stamp()
            cold.append(f"{lab}_spin:")
            cold.append(f"    ds_read_b32 v{vCK}, v{vV2} offset:{FLAGS - 0x8000 + off}")
            cold.append("    s_waitcnt lgkmcnt(0)")
            cold.append(f"    v_readfirstlane_b32 s{sT0}, v{vCK}")
            cold.append(f"    s_cmp_eq_u32 s{sT0}, {val}")
            cold.append(f"    s_cbranch_scc0 {lab}_spin")
            cold.append(f"    s_branch {lab}")
        return f

    cold = []
    bar_gap = {}
    for gi in range(4, len(groups)):
        put(gend[gi - 4], vread(gi))
    for u in range(1, 12):
        gi = first_of_unit[u]
        gp = gend[gi - 4]
        bar_gap[u] = gp - 1
        put(gp - 8, ckread(448 + 4 * u, f"rdy{u}"))
        put(gp - 2, ("WV", check1(f"rdy{u}")))
        put(gp - 1, ("SS", check(448 + 4 * u, 4, f"rdy{u}", True)))
        if u - 1 <= 8:
            place(gstart[gi - 1], [flag(16 + u - 1)])

    g = 0
    gtr1 = 0
    k = 0
    for step in ((3,) if opt["w2pre"] else (2, 3)):
        for i in range(3):
            if step == 3:
                gtr1 = place(max(gtr1, opt["tr1at"] + 8 * i), tr_ops(1, i), per=1) + 1
                g = max(g, gtr1 + 4)
            ops = dma_ops(step, i)
            g = place(max(g, int(k * opt["dsp"])), ops[:2])
            for d in range(3):
                g = place(max(g + 1, int(k * opt["dsp"]) + 1), [ops[2 + d]])
                k += 1
    place(g + 1, [flag(31)])
    for step in (2, 3):
        g = step_start[step - 1] + SL - 24
        for i in range(3):
            g = max(g, max(last_use[(step - 2, i, s)] for s in range(3)))
            g = place(g, tr_ops(step, i), per=1, deadline=first_tap[(step, i)] - 4) + 1

    gchk = step_start[3] - opt["ulead0"] - 3

    place(gchk - 10, [ckread(240, "uflag")])
    put(gchk - 1, ("WV", check1("uflag")))
    put(gchk, ("SS", check(240, 1, "uflag")))
    g = gchk + 1
    go_gap = None
    for step in range(4, 24):
        base = step_start[step - 1] - opt["ulead"]
        stp = opt["ustep"] * SL / 57
        if step == 4:
            base, stp = gchk + 2, 5
        if step == 23:
            base, stp = last_use[(21, 0, 0)], 2
        k = 0
        for i in range(3):
            for s in range(3):
                tgt = max(base + int(k * stp), last_use[(step - 2, i, s)], g)
                if k == 0:
                    g = place(max(g, tgt - 2), [u_off(step)])
                    tgt = max(tgt, g + 1)
                g = place(tgt, [u_op(step, i, s)]) + 1
                k += 1
        if step == opt["go"]:
            go_gap = g

    def bfly_ops(k0, k1, first):
        ops = []
        if first:
            o0, o1, md = "v_sub_f32_e64", "v_add_f32_e64", " div:2"
        else:
            o0, o1, md = "v_add_f32", "v_sub_f32", ""
        for k in range(4):
            ops.append(("V", lambda k=k: I(f"{o0} v{spare[0]+k}, v{acc[k0]+k}, v{acc[k1]+k}{md}")))
        for k in range(4):
            def f(k=k):
                I(f"{o1} v{acc[k1]+k}, v{acc[k0]+k}, v{acc[k1]+k}{md}")
                if k == 3:
                    acc[k0], spare[0] = spare[0], acc[k0]
            ops.append(("V", f))
        return ops

    order = [0, 1, "X", 2, 3, 4, 5] if extra else [0, 1, 2, 3, 4, 5]
    fb = [u for u in range(12) if UNITS[u][0] == "B"]
    y0last = 2 * max(u for u in range(12) if UNITS[u][1] == 0) + 1
    for last, first in ((2 * fb[0] - 1, True), (2 * fb[-1] + 1, False)):
        blocks = []
        for m in order:
            keys = [((m, 0, s), (m, 1, s)) for s in range(3)] if m != "X" else [(("X", 0), ("X", 1))]
            for (k0, k1) in keys:
                blocks.append((last_acc[(last, k1)] + 8, first_acc[(last + 1, k0)] - 3, k0, k1))
        dl = [b[1] for b in blocks]
        for k in range(len(dl) - 2, -1, -1):
            dl[k] = min(dl[k], dl[k + 1] - opt.get("bsp", 4))
        g = gchk + 1 if first else 0
        for (rdy, _, k0, k1), d in zip(blocks, dl):
            g = place(max(g, rdy), bfly_ops(k0, k1, first), deadline=d, per=3)
            assert g <= _, (last, k0, g, _)

    def oaddr():
        ops = []
        A = lambda s: ops.append((s[0].upper(), lambda: I(s)))
        t, q = vO[1], vO[2]
        A(f"v_lshrrev_b32 v{q}, 8, v{vV}")
        A(f"v_bfe_u32 v{t}, v{vV}, 4, 4")
        A(f"v_xor_b32 v{t}, v{t}, v{q}")
        A(f"v_lshlrev_b32 v{q}, 3, v{q}")
        A(f"s_lshl_b32 s{sT1}, s{sWAVE}, 5")
        A(f"s_add_u32 s{sT1}, s{sT1}, {XST}")
        A(f"v_mul_u32_u24 v{vOX}, 144, v{t}")
        A(f"v_add3_u32 v{vOX}, v{vOX}, v{q}, s{sT1}")
        A(f"v_mul_u32_u24 v{t}, 400, v{t}")
        A(f"v_add_u32 v{q}, v{t}, v{q}")
        A(f"s_mul_i32 s{sT1}, s{sWAVE}, 96")
        A(f"s_add_u32 s{sT1}, s{sT1}, {OUT}")
        for s in range(3):
            A(f"s_lshl_b32 s{sT2}, s{sF[s]}, 5")
            A(f"s_add_u32 s{sT2}, s{sT2}, s{sT1}")
            A(f"v_add_u32 v{vO[s]}, s{sT2}, v{q}")
        return ops
    place(step_start[10], oaddr())

    def epi_ops(key, addr, off):
        return [("V", lambda: I(f"v_cvt_pk_bf16_f32 v{acc[key]}, v{acc[key]}, v{acc[key]+1}")),
                ("V", lambda: I(f"v_cvt_pk_bf16_f32 v{acc[key]+1}, v{acc[key]+2}, v{acc[key]+3}")),
                ("D", lambda: e.lds(f"ds_write_b64 v{addr}, {vr(acc[key], 2)} offset:{off}"))]

    place(go_gap, [flag(14)])
    g = 0
    tail_nop = False
    for st, last in ((0, y0last), (1, 23)):
        if st == 0:
            g = last_acc[(y0last, (0, 0, 0))] + opt["y0at"]
        if st == 1:
            g = place(g, [("V", lambda s=s: I(f"v_add_u32 v{vO[s]}, {6*OROW}, v{vO[s]}")) for s in range(3)])
        for m in order:
            if m == "X":
                g = max(g, last_acc[(last, ("X", st))] + 8)
                g = place(g, epi_ops(("X", st), vOX, 2304 * st) + [flag(12 + st)])
                continue
            ops = []
            n = max(last_acc[(last, (m, st, s))] for s in range(3)) - 2
            if n + 8 > N:
                if not tail_nop:
                    put(N, ("S", lambda: I("s_nop 7")))
                    tail_nop = True
                g = N
            g = max(g, min(n + 8, N))
            o3 = [epi_ops((m, st, s), vO[s], m * OROW) for s in range(3)]
            ops = o3[0] + o3[1] + o3[2] + [flag(6 * st + m)]
            g = place(g, ops)

    if opt["cst"] >= 0:
        for k in range(15):
            g = step_start[opt["cst"]] + k * opt["cev"]
            if g < N:
                fill[g].append(e.stamp)
    ckread(448, "rdy0")[1]()
    check1("rdy0")()
    check(448, 4, "rdy0")()
    e.stamp()
    for gi in range(4):
        vread(gi)[1]()
    started = set()
    for n, (gi, key, i, s) in enumerate(stream):
        step = groups[gi]["step"]
        kind, st, c = step_info(step)
        e.need([f"v{gi}", f"w{step}_{i}"])
        d = acc[key]
        cc = d
        if step in (0, 2) and key not in started:
            started.add(key)
            cc = acc[(5, st, s)]
        I(f"v_mfma_f32_16x16x32_bf16 {vr(d)}, {vr(W(step, i, s))}, {vr(VR + 4*(gi % 4))}, {vr(cc)}")
        for f in fill[n]:
            f()
    e.stamp()
    for f in fill[N]:
        f()
    e.stamp()
    e.dump_stamps("c")
    I("s_endpgm")
    return e.L + cold


xA, xB, xC, eA, eB, eC = 1, 2, 3, 4, 5, 6
wE = [7, 8, 9, 10]
wX = [11, 12]
TMP = 13
OB = 26
RAW = 58
RAWX = 178


def PD(p, j):
    return RAW + 40 * p + 4 * j


def PX(p, j):
    return RAWX + 24 * p + 4 * j


def xload(e, p, j):
    a, off = (xA, 0) if j == 0 else ((xC, 0) if j == 9 else (xB, (j - 1) * 384))
    e.vmem(f"buffer_load_dwordx4 {vr(PD(p, j))}, v{a}, s[{sX}:{sX+3}], 0 offen offset:{off + 128*p} {e.opt['xf']}", f"x{p}_{j&1}")


def eload(e, p, j):
    a, off = (eA, 0) if j == 0 else ((eC, 0) if j == 5 else (eB, (j - 1) * 384))
    e.vmem(f"buffer_load_dwordx4 {vr(PX(p, j))}, v{a}, s[{sX}:{sX+3}], 0 offen offset:{off + 128*p} {e.opt['xf']}", f"e{p}_{j&1}")


PRE = VS[2]


def worker_pre(e, opt):
    I = e.I
    t1, t2, t3 = 14, 15, 16
    I(f"s_and_b32 s{sT0}, s2, 7")
    I(f"s_cmp_lt_u32 s{sIDX}, 6")
    I(f"s_cselect_b32 s{sT2}, s{sIDX}, s{sT0}")
    I(f"s_cselect_b32 s{sT0}, s{sT0}, 8")
    I(f"s_mul_i32 s{sT1}, s{sT0}, 11")
    I(f"s_lshr_b32 s{sT1}, s{sT1}, 5")
    I(f"s_mul_i32 s{sT3}, s{sT1}, 3")
    I(f"s_sub_u32 s{sT0}, s{sT0}, s{sT3}")
    I(f"s_lshl_b32 s{sT0}, s{sT0}, 2")
    I(f"s_add_u32 s{sT0}, s{sT0}, s{sPW}")
    I(f"s_mul_i32 s{sOFF}, s{sT1}, {3*73728}")
    I(f"s_mul_i32 s{sOFF2}, s{sT2}, 12288")
    I(f"s_add_u32 s{sOFF}, s{sOFF}, s{sOFF2}")
    I(f"s_lshl_b32 s{sOFF2}, s{sT0}, 5")
    I(f"s_add_u32 s{sOFF}, s{sOFF}, s{sOFF2}")
    I(f"v_bfe_u32 v{t1}, v0, 3, 2")
    I(f"v_lshlrev_b32 v{t1}, 3, v{t1}")
    I(f"v_lshrrev_b32 v{t2}, 5, v0")
    I(f"v_lshl_add_u32 v{t1}, v{t2}, 2, v{t1}")
    I(f"v_bfe_u32 v{t2}, v0, 1, 2")
    I(f"v_add_u32 v{t1}, v{t1}, v{t2}")
    I(f"v_mul_u32_u24 v{t1}, 384, v{t1}")
    I(f"v_and_b32 v{t2}, 1, v0")
    I(f"v_lshl_add_u32 v{eA}, v{t2}, 4, v{t1}")
    I(f"s_mul_i32 s{sRING}, s{sPW}, 3072")
    I(f"s_add_u32 s{sRING}, s{sRING}, {PRE}")
    I(f"s_mov_b32 m0, s{sRING}")
    I("s_waitcnt lgkmcnt(0)")
    srd(e, sW, sKA + 2, WBYTES)
    for j in range(3):
        e.vmem(f"buffer_load_dwordx4 v{eA}, s[{sW}:{sW+3}], s{sOFF} offen lds", "pre")
        if j < 2:
            I(f"s_add_u32 m0, s{sRING}, {1024*(j+1)}")
            I(f"s_add_u32 s{sOFF}, s{sOFF}, 73728")
    I(f"s_cmp_lt_u32 s{sT2}, 6")
    I(f"s_cselect_b32 s{sCNT}, 0, s{sINV}")
    I(f"s_mul_i32 s{sOFF}, s{sT2}, 36864")
    I(f"s_mul_i32 s{sT0}, s{sT0}, 3")
    I(f"s_add_u32 s{sT0}, s{sT0}, s{sT1}")
    I(f"s_lshl_b32 s{sT0}, s{sT0}, 10")
    I(f"s_add_u32 s{sOFF}, s{sOFF}, s{sT0}")
    I(f"s_or_b32 s{sOFF}, s{sOFF}, s{sCNT}")
    I(f"v_lshl_add_u32 v{eB}, v0, 4, s{sOFF}")


def producer_main(e, opt):
    I = e.I
    t0, t1, t2, t3 = 13, 14, 15, 16
    decode_main(e)
    I(f"v_and_b32 v{t0}, 3, v0")
    I(f"v_bfe_u32 v{t1}, v0, 2, 2")
    I(f"v_bfe_u32 v{t2}, v0, 4, 1")
    I(f"v_lshrrev_b32 v{wE[0]}, 5, v0")
    I(f"s_lshl_b32 s{sT0}, s{sPW}, 1")
    I(f"s_add_u32 s{sT0}, s{sT0}, s{sROW0}")
    I(f"s_mul_i32 s{sT0}, s{sT0}, 86016")
    I(f"s_mul_i32 s{sT1}, s{sSTRIP}, 12288")
    I(f"s_add_u32 s{sT0}, s{sT0}, s{sT1}")
    I(f"s_sub_u32 s{sT0}, s{sT0}, 86016")
    I(f"v_mul_u32_u24 v{t3}, 86016, v{t2}")
    I(f"v_lshl_add_u32 v{t3}, v{t0}, 4, v{t3}")
    I(f"v_lshl_add_u32 v{t3}, v{wE[0]}, 6, v{t3}")
    I(f"v_mul_u32_u24 v{xB}, 3072, v{t1}")
    I(f"v_add3_u32 v{xB}, v{xB}, v{t3}, s{sT0}")
    I(f"v_cmp_gt_i32 vcc, 0, v{xB}")
    I(f"v_lshl_add_u32 v{t3}, s{sSTRIP}, 2, v{t1}")
    I(f"v_mov_b32 v{xC}, s{sINV}")
    I(f"v_cndmask_b32 v{xB}, v{xB}, v{xC}, vcc")
    I(f"v_cmp_ne_u32 vcc, 0, v{t3}")
    I(f"v_subrev_u32 v{xA}, 384, v{xB}")
    I(f"v_add_u32 v{wE[1]}, 3072, v{xB}")
    I(f"v_cndmask_b32 v{xA}, v{xC}, v{xA}, vcc")
    I(f"v_cmp_ne_u32 vcc, 27, v{t3}")
    I("s_waitcnt lgkmcnt(0)")
    srd(e, sX, sKA, XBYTES)
    I(f"v_cndmask_b32 v{xC}, v{xC}, v{wE[1]}, vcc")
    for j in (0, 2, 4, 6, 8):
        xload(e, 0, j)


def producer(parent, opt, kind):
    e = Em(opt, parent)
    I = e.I
    t0, t1, t2, t3, t4 = 13, 14, 15, 16, 17
    X = kind == "x"
    G = RAWX
    if kind == "w":
        srd(e, sU, sWS, UBYTES)
        I(f"v_lshrrev_b32 v{eC}, 2, v0")
        I(f"v_lshlrev_b32 v{eC}, 5, v{eC}")
        I(f"v_lshl_add_u32 v{eC}, v{t0}, 3, v{eC}")
        I(f"v_add_u32 v{eC}, s{sRING}, v{eC}")
        if opt["pst"] == 2:
            e.stamp()
        e.need("pre")
        if opt["pst"] == 2:
            e.stamp()
        for j in range(3):
            for h in range(2):
                e.lds(f"ds_read_b64_tr_b16 {vr(G + 4*j + 2*h, 2)}, v{eC} offset:{1024*j + 512*h}", f"pt{j}")
        U = G + 12
        for j in (0, 2, 1):
            e.need(f"pt{j}")
            for k in range(4):
                I(f"v_lshlrev_b32 v{U + 8*j + 2*k}, 16, v{G + 4*j + k}")
                I(f"v_and_b32 v{U + 8*j + 2*k + 1}, s{sMASK}, v{G + 4*j + k}")
            if j == 2:
                for kk in range(8):
                    I(f"v_add_f32 v{U+kk}, v{U+kk}, v{U+16+kk}")
        for kk in range(8):
            I(f"v_sub_f32_e64 v{U+16+kk}, v{U+kk}, v{U+8+kk} div:2")
            I(f"v_add_f32_e64 v{U+kk}, v{U+kk}, v{U+8+kk} div:2")
        for k in range(4):
            I(f"v_cvt_pk_bf16_f32 v{G+36+k}, v{U+2*k}, v{U+2*k+1}")
            I(f"v_cvt_pk_bf16_f32 v{G+40+k}, v{U+16+2*k}, v{U+16+2*k+1}")
        for pos, r in ((0, G + 36), (1, G + 40), (2, G), (3, G + 8)):
            I(f"s_mov_b32 s{sOFF}, {pos*6*36864}")
            e.vmem(f"buffer_store_dwordx4 {vr(r)}, v{eB}, s[{sU}:{sU+3}], s{sOFF} offen sc1", "ust")
        if opt["pst"]:
            e.stamp()
    I(f"s_lshl_b32 s{sT0}, s{sPW}, 1")
    I(f"v_add_u32 v{t2}, s{sT0}, v{t2}")
    I(f"v_mul_u32_u24 v{wE[0]}, {VHALF}, v{wE[0]}")
    I(f"v_lshl_add_u32 v{wE[0]}, v{t2}, 10, v{wE[0]}")
    I(f"v_lshlrev_b32 v{t3}, 2, v{t1}")
    I(f"v_lshl_add_u32 v{t3}, v{t0}, 4, v{t3}")
    I(f"v_add_u32 v{t3}, v{t3}, v{t0}")
    I(f"v_lshl_add_u32 v{wE[0]}, v{t3}, 4, v{wE[0]}")
    for k in range(1, 4):
        I(f"v_xor_b32 v{wE[k]}, {16*k}, v{wE[0]}")
    decode_extra(e)
    srd(e, sO, sKA + 6, XBYTES)
    if X:
        I(f"v_bfe_u32 v{t1}, v0, 2, 1")
        I(f"v_lshlrev_b32 v{t1}, 1, v{t1}")
        I(f"v_bfe_u32 v{t2}, v0, 3, 1")
        I(f"v_bfe_u32 v{t3}, v0, 4, 1")
        I(f"v_lshlrev_b32 v{t3}, 2, v{t3}")
        I(f"v_or3_b32 v{t1}, v{t1}, v{t2}, v{t3}")
        I(f"s_add_u32 s{sT0}, s{sEROW}, s{sPW}")
        I(f"s_sub_u32 s{sT0}, s{sT0}, 1")
        I(f"s_mul_i32 s{sT1}, s{sT0}, 86016")
        I(f"s_cmp_lt_u32 s{sT0}, 224")
        I(f"s_cselect_b32 s{sT1}, s{sT1}, s{sINV}")
        I(f"s_lshl_b32 s{sT0}, s{sES}, 5")
        I(f"v_lshl_add_u32 v{t4}, v{t1}, 2, s{sT0}")
        I(f"v_mul_u32_u24 v{t2}, 384, v{t4}")
        I(f"v_lshl_add_u32 v{t2}, v{t0}, 4, v{t2}")
        I(f"v_lshrrev_b32 v{t3}, 5, v0")
        I(f"v_lshl_add_u32 v{t2}, v{t3}, 6, v{t2}")
        I(f"v_add_u32 v{eB}, s{sT1}, v{t2}")
        I(f"v_cmp_ne_u32 vcc, 0, v{t4}")
        I(f"v_subrev_u32 v{t2}, 384, v{eB}")
        I(f"v_mov_b32 v{eA}, s{sINV}")
        I(f"v_cndmask_b32 v{eA}, v{eA}, v{t2}, vcc")
        I(f"v_cmp_ne_u32 vcc, 220, v{t4}")
        I(f"v_add_u32 v{t2}, 1536, v{eB}")
        I(f"v_mov_b32 v{eC}, s{sINV}")
        I(f"v_cndmask_b32 v{eC}, v{eC}, v{t2}, vcc")
        for j in (0, 2, 4, 1, 3, 5):
            eload(e, 0, j)
        I(f"v_lshlrev_b32 v{t1}, 1, v{t1}")
        I(f"v_xor_b32 v{t1}, v{t1}, v{t0}")
        I(f"v_lshl_add_u32 v{t1}, v{t0}, 4, v{t1}")
        I(f"v_lshlrev_b32 v{t1}, 4, v{t1}")
        I(f"v_mul_u32_u24 v{t3}, {VHALF}, v{t3}")
        I(f"s_add_u32 s{sT0}, s{sPW}, 8")
        I(f"s_lshl_b32 s{sT0}, s{sT0}, 10")
        I(f"v_add3_u32 v{wX[0]}, v{t1}, v{t3}, s{sT0}")
        I(f"v_xor_b32 v{wX[1]}, 16, v{wX[0]}")
    else:
        I(f"s_cmp_eq_u32 s{sPW}, 3")
        I(f"s_cselect_b32 s{sPEND}, 1, 0")
        if opt["rpf"] == 1:
            I(f"s_mul_i32 s{sT0}, s{sIDX}, {18*128}")
            I(f"v_min_u32 v253, 17, v0")
            I(f"v_lshl_add_u32 v253, v253, 7, s{sT0}")
        elif opt["rpf"] == 2:
            I(f"s_sub_u32 s{sT0}, s{sIDX}, 12")
            I(f"s_cmp_lt_u32 s{sIDX}, 7")
            I(f"s_cselect_b32 s{sT0}, s{sIDX}, s{sT0}")
            I(f"s_mul_i32 s{sT1}, s{sT0}, 13")
            I(f"s_lshr_b32 s{sT1}, s{sT1}, 6")
            I(f"s_mul_i32 s{sT2}, s{sT1}, 5")
            I(f"s_sub_u32 s{sL}, s{sT0}, s{sT2}")
            I(f"s_cmp_eq_u32 s{sHASX}, 0")
            I(f"s_cselect_b32 s{sL}, s{sL}, 9")
            I(f"s_cmp_eq_u32 s{sPW}, 3")
            I(f"s_cselect_b32 s{sL}, s{sL}, 9")
            I(f"s_mul_i32 s{sT1}, s{sT1}, {144*128}")
            I(f"v_min_u32 v253, 47, v0")
            I(f"v_lshl_add_u32 v253, v253, 7, s{sT1}")
        I(f"v_mov_b32 v250, {FLAGS + 15*16}")
        if kind == "n":
            srd(e, sU, sWS, UBYTES)
    I(f"v_mov_b32 v251, 1")
    I(f"v_mov_b32 v252, {FLAGS}")

    def pollflag(idx, lab, slp, r=16):
        e.label(lab)
        I(f"ds_read_b128 {vr(r)}, v252 offset:{idx*16}")
        I("s_waitcnt lgkmcnt(0)")
        e.lg = []
        I(f"v_and_b32 v{r}, v{r}, v{r+1}")
        I(f"v_and_b32 v{r+2}, v{r+2}, v{r+3}")
        I(f"v_and_b32 v{r}, v{r}, v{r+2}")
        I("s_nop 0")
        I(f"v_readfirstlane_b32 s{sT0}, v{r}")
        I(f"s_cmp_eq_u32 s{sT0}, 1")
        I(f"s_cbranch_scc1 {lab}_ok")
        if slp:
            I(f"s_sleep {slp}")
        I(f"s_branch {lab}")
        e.label(lab + "_ok")

    def upf(t):
        if X or not opt["rpf"]:
            return
        k, st, p = UNITS[t]
        base = ((st if k == "B" else 2 + st) * 6 + 2 * p) * 36864
        lab = f"L_UP{kind}{t}"
        if opt["rpf"] == 1:
            I(f"s_cmp_eq_u32 s{sPW}, 3")
            I(f"s_cbranch_scc0 {lab}")
            I(f"s_mov_b32 s{sT1}, {base}")
            I(f"buffer_load_dword v254, v253, s[{sU}:{sU+3}], s{sT1} offen sc1")
        else:
            I(f"s_cmp_eq_u32 s{sL}, {t % 5}")
            I(f"s_cbranch_scc0 {lab}")
            for q in range(3):
                I(f"s_mov_b32 s{sT1}, {base + q*48*128}")
                I(f"buffer_load_dword v254, v253, s[{sU}:{sU+3}], s{sT1} offen sc1")
        e.label(lab)

    def waitfree(u, r=16):
        if u >= 3:
            pollflag(16 + u - 3, f"L_FR{kind}{u}", opt["psl"], r)
            if u + opt["rlead"] <= 11:
                upf(u + opt["rlead"])

    def ready(u):
        I("s_mov_b64 exec, 1")
        e.lds(f"ds_add_u32 v252, v251 offset:{448 + 4*u}")
        I("s_mov_b64 exec, -1")
        if not opt["pst"] or e.nst < 15:
            e.stamp()

    def xl(p, par):
        for j in range(par, 10, 2):
            xload(e, p, j)
        if X:
            for j in range(par, 6, 2):
                eload(e, p, j)

    xs = {}
    for item in (opt.get("xs" + kind) or opt["xs"]).split(","):
        when, what = item.split(":")
        xs.setdefault(when, []).append((int(what[0]), 0 if what[1] == "e" else 1))

    def xsched(when):
        for p, par in xs.get(when, []):
            xl(p, par)

    pend = []
    pace = [0, 0]

    def xpace(per, nvalu):
        for p, par in xs.get(f"{per}p", []):
            pend.extend([lambda j=j, p=p: xload(e, p, j) for j in range(par, 10, 2)])
            if X:
                pend.extend([lambda j=j, p=p: eload(e, p, j) for j in range(par, 6, 2)])
        if pend:
            pace[0] = max(1, nvalu // len(pend))
            pace[1] = 0

    def V(s):
        I(s)
        pace[1] += 1
        if pend and pace[1] % pace[0] == 0:
            pend.pop(0)()

    def later(f):
        if not opt["wsp"]:
            return f()
        if not pend:
            pace[0], pace[1] = opt["wsp"], 0
        pend.append(f)

    def flush():
        while pend:
            pend.pop(0)()

    def unp(dst, src):
        V(f"v_lshlrev_b32 v{dst}, 16, v{src}")
        V(f"v_and_b32 v{dst+1}, s{sMASK}, v{src}")

    def vwrite(addr, src, u):
        e.lds(f"ds_write_b128 v{addr}, {vr(src)} offset:{VS[u % 3]}")

    T16 = list(range(13, 26)) + [54, 55, 56]

    def chainA(D, n, par, neg, waddr, u, ob, wf=False):
        op = "v_subrev_f32" if neg else "v_sub_f32"
        A, B = T16[:8], T16[8:]

        def unp8(R, src):
            for k in range(4):
                V(f"v_lshlrev_b32 v{R[2*k]}, 16, v{src+k}")
                V(f"v_and_b32 v{R[2*k+1]}, s{sMASK}, v{src+k}")
        unp8(A, D(par))
        for j in range(n):
            unp8(B, D(par + 2 * j + 2))
            for k in range(8):
                V(f"{op} v{A[k]}, v{A[k]}, v{B[k]}")
            for k in range(4):
                V(f"v_cvt_pk_bf16_f32 v{ob + 4*(j & 1) + k}, v{A[2*k]}, v{A[2*k+1]}")
            if wf and j == 0:
                waitfree(u, 44)
            vwrite(waddr[j], ob + 4 * (j & 1), u)
            A, B = B, A

    def tA(u, main=True, ext=True):
        kind_, st, p = UNITS[u]
        neg = (u >= 4 and st == 1)
        if main:
            e.need(f"x{p}_{st}")
            if opt["pst"] and u <= 1:
                e.stamp()
            chainA(lambda j: PD(p, j), 4, st, neg, wE, u, OB, True)
        if X and ext:
            e.need(f"e{p}_{st}")
            chainA(lambda j: PX(p, j), 2, st, neg, wX, u, OB + 8)

    def pairB(d1, d2, o1, o2):
        for k0 in (0, 2):
            for k in (k0, k0 + 1):
                a = TMP + 6 * (k & 1)
                unp(a, d1 + k); unp(a + 2, d2 + k)
            for k in (k0, k0 + 1):
                a = TMP + 6 * (k & 1)
                b, s = a + 2, a + 4
                V(f"v_add_f32 v{s}, v{a}, v{b}"); V(f"v_add_f32 v{s+1}, v{a+1}, v{b+1}")
                V(f"v_sub_f32 v{a}, v{b}, v{a}"); V(f"v_sub_f32 v{a+1}, v{b+1}, v{a+1}")
            for k in (k0, k0 + 1):
                a = TMP + 6 * (k & 1)
                V(f"v_cvt_pk_bf16_f32 v{o1+k}, v{a+4}, v{a+5}")
                V(f"v_cvt_pk_bf16_f32 v{o2+k}, v{a}, v{a+1}")

    npoll = [0]

    def trypoll(final=False):
        if X:
            return
        n = npoll[0]
        npoll[0] += 1
        lab = f"L_PL{kind}{n}"
        I(f"s_cmp_eq_u32 s{sPEND}, 0")
        I(f"s_cbranch_scc1 {lab}_skip")
        if n == 0:
            I(f"s_load_dword s{sPOLL}, s[{sDBG}:{sDBG+1}], 0")
            e.label(lab + "_skip")
            return
        assert n == 1
        I("s_waitcnt lgkmcnt(0)")
        I(f"s_mov_b32 s{sCNT}, 0")
        I(f"v_mov_b32 v255, 0")
        e.label(lab)
        I(f"s_cmp_ge_u32 s{sPOLL}, {0 if opt['noatom'] else NWORK}")
        I(f"s_cbranch_scc1 {lab}_ok")
        I("s_sleep 6")
        I(f"global_load_dword v254, v255, s[{sDBG}:{sDBG+1}] sc1")
        I(f"s_add_u32 s{sCNT}, s{sCNT}, 1")
        I("s_waitcnt vmcnt(0)")
        I(f"v_readfirstlane_b32 s{sPOLL}, v254")
        I(f"s_cmp_lt_u32 s{sCNT}, 20000")
        I(f"s_cbranch_scc1 {lab}")
        e.label(lab + "_ok")
        if opt["pst"]:
            e.stamp()
            I(f"s_mov_b32 s{sST + 2*e.nst}, s{sCNT}")
            e.nst += 1
        I("ds_write_b32 v250, v251")
        I(f"s_mov_b32 s{sPEND}, 0")
        if opt["u_pf"]:
            I(f"s_mul_i32 s{sT0}, s{sIDX}, {216*128}")
            I(f"v_min_u32 v253, 53, v0")
            I(f"v_lshl_add_u32 v253, v253, 7, s{sT0}")
            for k in range(4):
                I(f"s_mov_b32 s{sT1}, {k*54*128}")
                I(f"buffer_load_dword v254, v253, s[{sU}:{sU+3}], s{sT1} offen sc1")
        e.label(lab + "_skip")

    def wpoint():
        pollflag(31, f"L_WI{kind}", opt["psl"], 20)
        xsched("w")

    def ppoint(k):
        if k == 0 and opt["pollw"]:
            if not X:
                I(f"s_cmp_eq_u32 s{sPEND}, 0")
                I(f"s_cbranch_scc1 L_PWAIT{kind}")
                pollflag(16, f"L_F0{kind}", opt["psl"], 20)
                e.label(f"L_PWAIT{kind}")
        trypoll()
        if k == 1:
            for t in range(2, 3 + opt["rlead"]):
                upf(t)

    def tB1(u):
        p = UNITS[u][2]
        e.need([f"x{p}_0", f"x{p}_1"])
        for ee in range(4):
            pairB(PD(p, 1 + 2 * ee), PD(p, 2 + 2 * ee), OB + 4 * (ee & 1), OB + 8 + 4 * ee)
            if ee == 0:
                waitfree(u)
            vwrite(wE[ee], OB + 4 * (ee & 1), u)
            if u == 2 and ee == opt["wat"]:
                wpoint()
            if u == 2 and ee == opt["pat"]:
                ppoint(0)
            if u == 2 and ee == min(opt["pat"] + 1, 3):
                ppoint(1)
        if X:
            e.need([f"e{p}_0", f"e{p}_1"])
            for ee in range(2):
                pairB(PX(p, 1 + 2 * ee), PX(p, 2 + 2 * ee), OB + 4 * ee, OB + 24 + 4 * ee)
                vwrite(wX[ee], OB + 4 * ee, u)
        ready(u)

    def tB2(u):
        waitfree(u + 1)
        xsched(f"f{u}")
        for ee in range(4):
            vwrite(wE[ee], OB + 8 + 4 * ee, u + 1)
        if X:
            for ee in range(2):
                vwrite(wX[ee], OB + 24 + 4 * ee, u + 1)
        ready(u + 1)

    n1 = 1 if X else opt["n1"]

    def bar():
        e.drain_lg()
        if not opt["pst"] or e.nst < 15:
            e.stamp()
        I("s_barrier")

    def signal():
        e.need("ust")
        if opt["pst"]:
            e.stamp()
        I(f"v_mov_b32 v{eA}, {FLAGS + 15*16 + 4}")
        I("s_mov_b64 exec, 1")
        I(f"ds_add_rtn_u32 v{eC}, v{eA}, v251")
        I("s_waitcnt lgkmcnt(0)")
        e.lg = []
        I(f"v_readfirstlane_b32 s{sT0}, v{eC}")
        I(f"s_cmp_eq_u32 s{sT0}, 3")
        I("s_cbranch_scc0 L_NOATOM")
        I(f"v_mov_b32 v{eA}, 0")
        if not opt["noatom"]:
            I(f"global_atomic_add v{eA}, v251, s[{sDBG}:{sDBG+1}] sc1")
        e.label("L_NOATOM")
        I("s_mov_b64 exec, -1")

    e.drain_lg()
    e.stamp()
    I("s_barrier")
    if kind == "w":
        signal()
        xl(0, 1)
    tA(0)
    ready(0)
    xsched("a0")
    tA(1)
    ready(1)
    xsched("a1")
    wdone = False
    for u in range(2, 12):
        k, st, p = UNITS[u]
        if k == "A":
            if u == 2:
                wpoint()
                ppoint(0)
                ppoint(1)
            tA(u)
            ready(u)
            xsched(f"a{u}")
        elif st == 0:
            tB1(u)
            xsched(f"j{u}")
            tB2(u)
            xsched(f"k{u}")
    if True:
        if True:
            rA, rB, gA, gB, vXL, vXG = 1, 2, 3, 4, 5, 6
            I(f"s_mul_i32 s{sT0}, s{sROW0}, 86016")
            I(f"s_mul_i32 s{sT1}, s{sSTRIP}, 12288")
            I(f"s_add_u32 s{sT0}, s{sT0}, s{sT1}")
            I(f"s_mul_i32 s{sT1}, s{sPW}, 3072")
            I(f"s_add_u32 s{sT0}, s{sT0}, s{sT1}")
            I(f"s_mul_i32 s{sT1}, s{sPW}, 1600")
            I(f"s_add_u32 s{sT1}, s{sT1}, {OUT}")
            for (r, gg, add) in ((rA, gA, 0), (rB, gB, 64)):
                I(f"v_add_u32 v{t0}, {add}, v0")
                I(f"v_min_u32 v{t0}, 95, v{t0}")
                I(f"v_mul_u32_u24 v{t1}, 10923, v{t0}")
                I(f"v_lshrrev_b32 v{t1}, 18, v{t1}")
                I(f"v_mul_u32_u24 v{t2}, 24, v{t1}")
                I(f"v_sub_u32 v{t2}, v{t0}, v{t2}")
                I(f"v_lshlrev_b32 v{t2}, 4, v{t2}")
                I(f"v_mul_u32_u24 v{t3}, 400, v{t1}")
                I(f"v_add3_u32 v{r}, v{t3}, v{t2}, s{sT1}")
                I(f"v_mul_u32_u24 v{t3}, 768, v{t1}")
                I(f"v_add3_u32 v{gg}, v{t3}, v{t2}, s{sT0}")
            I(f"v_cmp_gt_u32 vcc, 32, v0")
            I(f"v_mov_b32 v{t4}, s{sINV}")
            I(f"v_add_u32 v250, {6*OROW}, v{rA}")
            I(f"v_cndmask_b32 v{gB}, v{t4}, v{gB}, vcc")
            I(f"v_add_u32 v251, {6*OROW}, v{rB}")
            I(f"s_lshl_b32 s{sT0}, s{sPW}, 2")
            I(f"v_bfe_u32 v{t0}, v0, 3, 2")
            I(f"v_add_u32 v{t0}, s{sT0}, v{t0}")
            I(f"v_and_b32 v{t1}, 7, v0")
            I(f"v_mul_u32_u24 v{t2}, 144, v{t0}")
            I(f"v_lshl_add_u32 v{t2}, v{t1}, 4, v{t2}")
            I(f"v_add_u32 v{vXL}, {XST}, v{t2}")
            I(f"v_mul_u32_u24 v{t0}, 768, v{t0}")
            I(f"v_lshrrev_b32 v{t2}, 1, v{t1}")
            I(f"v_mul_u32_u24 v{t2}, 96, v{t2}")
            I(f"v_and_b32 v{t1}, 1, v{t1}")
            I(f"v_lshl_add_u32 v{t2}, v{t1}, 4, v{t2}")
            I(f"s_mul_i32 s{sT0}, s{sEROW}, 86016")
            I(f"s_mul_i32 s{sT1}, s{sES}, 12288")
            I(f"s_add_u32 s{sT0}, s{sT0}, s{sT1}")
            I(f"s_lshl_b32 s{sT1}, s{sF0}, 5")
            I(f"s_add_u32 s{sT0}, s{sT0}, s{sT1}")
            I(f"v_add3_u32 v{vXG}, v{t0}, v{t2}, s{sT0}")
            I(f"v_cndmask_b32 v{vXG}, v{t4}, v{vXG}, vcc")
    rA, rB, gA, gB, vXL, vXG = 1, 2, 3, 4, 5, 6
    sf = opt["sf"]
    nb = [0]

    def rowread(st, m, b):
        a0, a1 = (rA, rB) if st == 0 else (250, 251)
        I(f"ds_read_b128 {vr(b)}, v{a0} offset:{m*OROW}")
        I(f"ds_read_b128 {vr(b+4)}, v{a1} offset:{m*OROW}")

    def rowstore(st, m, b, w0=None, w1=None):
        I(f"s_mov_b32 s{sOFF}, {m*86016}")
        if w0: I(w0)
        I(f"buffer_store_dwordx4 {vr(b)}, v{gA}, s[{sO}:{sO+3}], s{sOFF} offen offset:{384*st} {sf}")
        if w1: I(w1)
        I(f"buffer_store_dwordx4 {vr(b+4)}, v{gB}, s[{sO}:{sO+3}], s{sOFF} offen offset:{384*st} {sf}")

    def xpart(st, b):
        if kind == "w":
            return
        if kind == "n":
            I(f"s_cmp_eq_u32 s{sHASX}, 0")
            I(f"s_cbranch_scc1 L_NOX{st}")
        pollflag(12 + st, f"L_F{kind}X{st}", opt["slp"])
        I(f"ds_read_b128 {vr(b)}, v{vXL} offset:{2304*st}")
        I("s_waitcnt lgkmcnt(0)")
        I(f"buffer_store_dwordx4 {vr(b)}, v{vXG}, s[{sO}:{sO+3}], 0 offen offset:{384*st}")
        if kind == "n":
            e.label(f"L_NOX{st}")

    pollflag(5, f"L_F{kind}0_5", opt["psl"])
    for m in range(6):
        rowread(0, m, 28 + 8 * m)
    pollflag(14, f"L_F{kind}GO", opt["slp"])
    if not opt["pst"]:
        e.stamp()
    for m in range(6):
        rowstore(0, m, 28 + 8 * m)
    xpart(0, 76)
    for m in [0, 1, "X", 2, 3, 4, 5]:
        if m == "X":
            xpart(1, 80)
            continue
        b = 84 + 8 * m
        pollflag(6 + m, f"L_F{kind}1_{m}", opt["slp"])
        if m in (0, 5) and not opt["pst"]:
            e.stamp()
        rowread(1, m, b)
        rowstore(1, m, b, "s_waitcnt lgkmcnt(1)", "s_waitcnt lgkmcnt(0)")
    e.stamp()
    if opt["stamp"]:
        I("s_waitcnt vmcnt(0)")
        e.stamp()
    e.dump_stamps("p")
    I("s_endpgm")
    return e.L


def generate(**kw):
    opt = dict(DEF)
    opt.update(kw)
    opt["code_pf_lines"] = 18
    UNITS[:] = ORDERS[opt["order"]]
    L = []
    L.append(f"; @launch grid=(256,1,1) block=(512,1,1) lds={LDS_BYTES}")
    L.append('.amdgcn_target "amdgcn-amd-amdhsa--gfx950"')
    L.append(".text")
    L.append(f".globl {KNAME}")
    L.append(".p2align 8")
    L.append(f".type {KNAME},@function")
    L.append(f"{KNAME}:")
    e = Em(opt)
    I = e.I
    e.stamp()
    I(f"s_load_dwordx8 s[{sKA}:{sKA+7}], s[0:1], 0")
    I(f"s_load_dwordx4 s[{sDBG}:{sDBG+3}], s[0:1], 32")
    I("v_lshrrev_b32 v1, 6, v0")
    I("s_cmp_ge_u32 s2, 256")
    I("s_cbranch_scc1 L_END")
    I(f"v_readfirstlane_b32 s{sWAVE}, v1")
    I("v_and_b32 v0, 63, v0")
    I(f"s_mov_b32 s{sMASK}, 0xffff0000")
    I(f"s_mov_b32 s{sINV}, 0x80000000")
    I(f"s_lshr_b32 s{sIDX}, s2, 3")
    I(f"s_cmp_lt_u32 s{sWAVE}, 4")
    I("s_cbranch_scc1 L_CONS")
    I(f"s_sub_u32 s{sPW}, s{sWAVE}, 4")
    I(f"s_cmp_lt_u32 s{sIDX}, 7")
    I("s_cbranch_scc1 L_PW")
    L += e.L
    epw = Em(opt, e)
    worker_pre(epw, opt)
    producer_main(epw, opt)
    ep = Em(opt, e)
    producer_main(ep, opt)
    for j in (1, 3, 5, 7, 9):
        xload(ep, 0, j)
    ep.I(f"s_cmp_ge_u32 s{sIDX}, 19")
    ep.I("s_cbranch_scc1 L_PN")
    ep.I(f"s_cmp_eq_u32 s{sPW}, 3")
    ep.I("s_cbranch_scc1 L_PN")
    L += ep.L
    L += producer(ep, opt, "x")
    L.append(".p2align 6")
    L.append("L_PN:")
    L += producer(ep, opt, "n")
    L.append(".p2align 6")
    L.append("L_PW:")
    L += epw.L
    L += producer(epw, opt, "w")
    L.append(".p2align 6")
    L.append("L_CONS:")
    ec = Em(opt, e)
    consumer_pro(ec, opt)
    L += ec.L
    L += consumer(ec, opt, True)
    L.append(".p2align 6")
    L.append("L_CN:")
    L += consumer(ec, opt, False)
    L.append("L_END:")
    L.append("    s_endpgm")
    L.append('.section .rodata,"a"')
    L.append(".p2align 6")
    L.append(f".amdhsa_kernel {KNAME}")
    for d in ("next_free_vgpr 256", "next_free_sgpr 102", "accum_offset 256", "group_segment_fixed_size 0",
              "kernarg_size 48", "user_sgpr_count 2", "user_sgpr_kernarg_segment_ptr 1",
              "system_sgpr_workgroup_id_x 1", "ieee_mode 0", "float_denorm_mode_32 1"):
        L.append("  .amdhsa_" + d)
    L.append(".end_amdhsa_kernel")
    return "\n".join(L) + "\n"


if __name__ == "__main__":
    out = sys.argv[1]
    kw = {}
    for a in sys.argv[2:]:
        k, v = a.split("=", 1)
        try:
            kw[k] = int(v)
        except ValueError:
            try:
                kw[k] = float(v)
            except ValueError:
                kw[k] = v.replace("+", " ")
    open(out, "w").write(generate(**kw))
```

```python
import sys, os
sys.path.insert(0, os.path.dirname(os.path.abspath(__file__)))
from cost import gapcost

KNAME = "standalone__standard_2d_1d_3d_conv__vision_kernel"

DEF = dict(
    stamp=0, spin=4000, spinref=0, cst=-1, cev=8, pst=0,
    xf="", sf="sc1", uf="sc1",
    code_pf=1, w_pf=1,
    prio=0, slp=1,
    pro="beta",
    xs="w:1e,w:1o,4p:2e,4p:2o",
    dsp=4.5,
    ustep=3, ulead=12,
    lag=2,
    go=23,
    noatom=0, u_pf=0, pollp=1, pollat=-2, n1=1, y0at=0, gam=0, psl=2, epf=2, xo=1, w1late=0, sfl='sc1', nlast=0, slpl=1, ustep0=5, order=2, wat=1, pat=3, rpf=1, rlead=0, wsp=10, pollw=0, w2pre=0, tr1at=4, wo=2, ulead0=0,
)

VSLOT = 22528
VHALF = 11264
VS = [0, VSLOT, 2 * VSLOT]
FLAGS = 3 * VSLOT
WRING = FLAGS + 512
WWAVE = 18432
OROW = 6400
OUT = WRING
XST = OUT + 12 * OROW
LDS_BYTES = XST + 4608
NWORK = 56
CS = 11776

XBYTES = 224 * 224 * 384
WBYTES = 9 * 192 * 384
UBYTES = 24 * 36864

ORDERS = {
    2: [("A", 0, 0), ("A", 1, 0),
        ("B", 0, 0), ("B", 1, 0), ("B", 0, 1), ("B", 1, 1), ("B", 0, 2), ("B", 1, 2),
        ("A", 0, 1), ("A", 0, 2), ("A", 1, 1), ("A", 1, 2)],
    1: [("A", 0, 0), ("A", 1, 0), ("A", 0, 1), ("A", 1, 1),
        ("B", 0, 0), ("B", 1, 0), ("B", 0, 1), ("B", 1, 1), ("B", 0, 2), ("B", 1, 2),
        ("A", 0, 2), ("A", 1, 2)],
}
UNITS = list(ORDERS[2])


def step_info(s):
    kind, st, pair = UNITS[s >> 1]
    return kind, st, 2 * pair + (s & 1)


sX, sW, sO, sU, sB = 4, 8, 12, 16, 20
sDBG, sWS, sKA = 24, 26, 28
sWAVE, sL, sSTRIP, sROW0, sHASX, sES, sEROW = 36, 37, 38, 39, 40, 41, 42
sF0, sF1, sF2, sIDX = 43, 44, 45, 46
sT0, sT1, sT2, sT3 = 47, 48, 49, 50
sMASK, sRING, sOFF, sOFF2, sPW = 51, 52, 53, 54, 55
sPC, sCNT, sINV = 56, 58, 59
sPOLL, sPEND = 3, 56
sST = 60


class Em:
    def __init__(self, opt, parent=None):
        self.L = []
        self.lg = list(parent.lg) if parent else []
        self.vm = list(parent.vm) if parent else []
        self.opt = opt
        self.nst = parent.nst if parent else 0

    def I(self, s):
        self.L.append("    " + s)

    def label(self, s):
        self.L.append(s + ":")

    def lds(self, s, name=None):
        self.I(s)
        self.lg.append(name)

    def vmem(self, s, name=None):
        self.I(s)
        self.vm.append(name)

    def need(self, names):
        if isinstance(names, str):
            names = [names]
        w = []
        k = max([i for i, n in enumerate(self.vm) if n in names], default=-1)
        if k >= 0:
            n = min(len(self.vm) - 1 - k, 63)
            w.append(f"vmcnt({n})")
            self.vm = self.vm[len(self.vm) - n:] if n else []
        k = max([i for i, n in enumerate(self.lg) if n in names], default=-1)
        if k >= 0:
            n = min(len(self.lg) - 1 - k, 15)
            w.append(f"lgkmcnt({n})")
            self.lg = self.lg[len(self.lg) - n:] if n else []
        if w:
            self.I("s_waitcnt " + " ".join(w))

    def drain_lg(self):
        self.I("s_waitcnt lgkmcnt(0)")
        self.lg = []

    def drain_vm(self):
        self.I("s_waitcnt vmcnt(0)")
        self.vm = []

    def stamp(self):
        o = self.opt
        if o["stamp"] == 4 and self.nst != o["spinref"]:
            self.nst += 1
        elif o["stamp"]:
            r = sST + 2 * self.nst
            assert r + 1 < 102, "too many stamps"
            self.I(f"s_memrealtime s[{r}:{r+1}]" if o["stamp"] in (1, 4) else f"s_memtime s[{r}:{r+1}]")
            self.nst += 1

    def dump_stamps(self, role):
        o = self.opt
        if not o["stamp"]:
            return
        self.I("s_waitcnt vmcnt(0) lgkmcnt(0)")
        if o["stamp"] == 4:
            if o["spinref"] and role != "c":
                return
            lab = f"L_SPIN{id(self)}"
            self.label(lab)
            self.I(f"s_memrealtime s[{sT1}:{sT1+1}]")
            self.I("s_waitcnt lgkmcnt(0)")
            self.I(f"s_sub_u32 s{sT0}, s{sT1}, s{sST + 2*o['spinref']}")
            self.I(f"s_cmp_lt_u32 s{sT0}, {o['spin']}")
            self.I(f"s_cbranch_scc1 {lab}")
            return
        self.I(f"s_lshl_b32 s{sT0}, s2, 3")
        self.I(f"s_add_u32 s{sT0}, s{sT0}, s{sWAVE}")
        self.I(f"s_lshl_b32 s{sT0}, s{sT0}, 8")
        self.I(f"s_add_u32 s{sT0}, s{sT0}, 0x100000")
        self.I(f"v_mov_b32 v1, s{sT0}")
        for i in range(self.nst):
            self.I(f"v_mov_b32 v2, s{sST + 2*i}")
            self.I(f"global_store_dword v1, v2, s[{sWS}:{sWS+1}] offset:{4*i}")
        self.I(f"v_mov_b32 v2, {self.nst}")
        self.I(f"global_store_dword v1, v2, s[{sWS}:{sWS+1}] offset:252")


def vr(a, n=4):
    return f"v[{a}:{a+n-1}]"


def srd(e, s, lo, nbytes, bias=0):
    if bias:
        e.I(f"s_sub_u32 s{s}, s{lo}, {bias}")
        e.I(f"s_subb_u32 s{s+1}, s{lo+1}, 0")
    else:
        e.I(f"s_mov_b32 s{s}, s{lo}")
        e.I(f"s_mov_b32 s{s+1}, s{lo+1}")
    e.I(f"s_mov_b32 s{s+2}, {nbytes + bias}")
    e.I(f"s_mov_b32 s{s+3}, 0x20000")


def decode_main(e):
    I = e.I
    I(f"s_and_b32 s{sT0}, s2, 7")
    I(f"s_lshl_b32 s{sT0}, s{sT0}, 5")
    I(f"s_add_u32 s{sT0}, s{sT0}, s{sIDX}")
    I(f"s_mul_i32 s{sT0}, s{sT0}, 7")
    I(f"s_lshr_b32 s{sSTRIP}, s{sT0}, 8")
    I(f"s_and_b32 s{sT0}, s{sT0}, 255")
    I(f"s_mul_i32 s{sT0}, s{sT0}, 293")
    I(f"s_lshr_b32 s{sT0}, s{sT0}, 11")
    I(f"s_mul_i32 s{sROW0}, s{sT0}, 6")


def decode_extra(e):
    I = e.I
    I(f"s_and_b32 s{sT0}, s2, 7")
    I(f"s_mul_i32 s{sT0}, s{sT0}, 12")
    I(f"s_sub_u32 s{sT3}, s{sIDX}, 7")
    I(f"s_add_u32 s{sT0}, s{sT0}, s{sT3}")
    I(f"s_mul_i32 s{sT1}, s{sT0}, 21846")
    I(f"s_lshr_b32 s{sT1}, s{sT1}, 16")
    I(f"s_mul_i32 s{sT2}, s{sT1}, 3")
    I(f"s_sub_u32 s{sF0}, s{sT0}, s{sT2}")
    I(f"s_cmp_lt_u32 s{sT3}, 12")
    I(f"s_cselect_b32 s{sHASX}, 1, 0")
    I(f"s_cselect_b32 s{sF0}, s{sF0}, 0")
    I(f"s_cselect_b32 s{sT1}, s{sT1}, 0")
    I(f"s_lshl_b32 s{sES}, s{sT1}, 1")
    I(f"s_and_b32 s{sES}, s{sES}, 12")
    I(f"s_lshr_b32 s{sES}, 0x5310, s{sES}")
    I(f"s_and_b32 s{sES}, s{sES}, 15")
    I(f"s_and_b32 s{sEROW}, s{sT1}, 1")
    I(f"s_add_u32 s{sEROW}, s{sEROW}, 222")
    I(f"s_lshr_b32 s{sT3}, s{sT1}, 3")
    I(f"s_lshl_b32 s{sT3}, s{sT3}, 1")
    I(f"s_and_b32 s{sT2}, s{sT1}, 7")
    I(f"s_add_u32 s{sT2}, s{sT2}, 216")
    I(f"s_cmp_lt_u32 s{sT1}, 8")
    I(f"s_cselect_b32 s{sES}, s{sES}, s{sT3}")
    I(f"s_cselect_b32 s{sEROW}, s{sEROW}, s{sT2}")


def consumer_pro(e, opt):
    I = e.I
    vV, vV2, vT = 1, 2, 3
    vD = [4, 5, 6]
    vU = [7, 253, 254]
    t0, t1, t2, t3, t4 = 8, 9, 10, 11, 12
    sF = [sF0, sF1, sF2]
    decode_extra(e)
    I(f"s_add_u32 s{sF1}, s{sF0}, 1")
    I(f"s_cmp_eq_u32 s{sF1}, 3")
    I(f"s_cselect_b32 s{sF1}, 0, s{sF1}")
    I(f"s_add_u32 s{sF2}, s{sF1}, 1")
    I(f"s_cmp_eq_u32 s{sF2}, 3")
    I(f"s_cselect_b32 s{sF2}, 0, s{sF2}")
    I(f"v_lshrrev_b32 v{t0}, 4, v0")
    I(f"s_mul_i32 s{sT0}, s{sWAVE}, 96")
    I(f"v_lshlrev_b32 v{t4}, 3, v{t0}")
    I(f"v_add_u32 v{t4}, s{sT0}, v{t4}")
    for s in range(3):
        I(f"s_lshl_b32 s{sT1}, s{sF[s]}, 5")
        I(f"v_add_u32 v{13+s}, s{sT1}, v{t4}")
    if opt["w_pf"]:
        I(f"s_mul_i32 s{sT1}, s{sIDX}, 36")
        I(f"v_min_u32 v{t1}, 35, v0")
        I(f"v_add_u32 v{t1}, s{sT1}, v{t1}")
        I(f"v_mul_u32_u24 v{t2}, 10923, v{t1}")
        I(f"v_lshrrev_b32 v{t2}, 21, v{t2}")
        I(f"v_add_u32 v{t3}, 1, v{t2}")
        I(f"v_lshrrev_b32 v{t3}, 1, v{t3}")
        I(f"v_mul_u32_u24 v{t3}, 576, v{t3}")
        I(f"v_mul_u32_u24 v{t2}, 384, v{t2}")
        I(f"v_add3_u32 v{t1}, v{t1}, v{t2}, v{t3}")
        I(f"v_lshlrev_b32 v{t1}, 7, v{t1}")
        I(f"v_add_u32 v252, 2048, v{t1}")
    I("s_waitcnt lgkmcnt(0)")
    srd(e, sB, sKA + 4, 384)
    srd(e, sW, sKA + 2, WBYTES, 2048)
    srd(e, sU, sWS, UBYTES)
    if opt["w_pf"]:
        I(f"s_cmp_ge_u32 s{sWAVE}, 1")
        I("s_cbranch_scc1 L_NOWPF")
        I(f"buffer_load_dword v255, v252, s[{sW}:{sW+3}], 0 offen")
        e.label("L_NOWPF")
    if opt["code_pf"]:
        I(f"s_cmp_eq_u32 s{sWAVE}, 2")
        I("s_cbranch_scc0 L_NOCPF")
        I(f"s_getpc_b64 s[{sPC}:{sPC+1}]")
        e.label("L_PC0")
        I(f"s_sub_u32 s{sPC}, s{sPC}, L_PC0-{KNAME}")
        I(f"s_subb_u32 s{sPC+1}, s{sPC+1}, 0")
        I(f"s_mul_i32 s{sT1}, s{sIDX}, {opt['code_pf_lines']*128}")
        I(f"v_min_u32 v252, {opt['code_pf_lines']-1}, v0")
        I(f"v_lshl_add_u32 v252, v252, 7, s{sT1}")
        I(f"v_min_u32 v252, L_END-{KNAME}, v252")
        I(f"global_load_dword v255, v252, s[{sPC}:{sPC+1}]")
        e.label("L_NOCPF")
    for s in range(3):
        e.vmem(f"buffer_load_dwordx2 {vr(16+2*s, 2)}, v{13+s}, s[{sB}:{sB+3}], 0 offen", "bias")
    I(f"v_and_b32 v{t1}, 15, v0")
    I(f"v_xor_b32 v{t2}, v{t0}, v{t1}")
    I(f"v_lshl_add_u32 v{t2}, v{t0}, 4, v{t2}")
    I(f"v_lshlrev_b32 v{vV}, 4, v{t2}")
    I(f"v_add_u32 v{vV2}, 0x8000, v{vV}")
    I(f"s_mul_i32 s{sRING}, s{sWAVE}, {WWAVE}")
    I(f"s_add_u32 s{sRING}, s{sRING}, {WRING}")
    I(f"v_lshrrev_b32 v{t2}, 2, v0")
    I(f"v_mul_u32_u24 v{t2}, 96, v{t2}")
    I(f"v_and_b32 v{t3}, 3, v0")
    I(f"v_lshl_add_u32 v{t2}, v{t3}, 3, v{t2}")
    I(f"v_add_u32 v{vT}, s{sRING}, v{t2}")
    for d in range(3):
        I(f"v_add_u32 v{t1}, {64*d}, v0")
        I(f"v_mul_u32_u24 v{t2}, 43691, v{t1}")
        I(f"v_lshrrev_b32 v{t2}, 18, v{t2}")
        I(f"v_mul_u32_u24 v{t3}, 6, v{t2}")
        I(f"v_sub_u32 v{t1}, v{t1}, v{t3}")
        I(f"v_bfe_u32 v{t3}, v{t2}, 2, 2")
        I(f"v_lshlrev_b32 v{t3}, 3, v{t3}")
        I(f"v_lshrrev_b32 v{t4}, 4, v{t2}")
        I(f"v_lshl_add_u32 v{t3}, v{t4}, 2, v{t3}")
        I(f"v_and_b32 v{t2}, 3, v{t2}")
        I(f"v_add_u32 v{t2}, v{t2}, v{t3}")
        I(f"v_mul_u32_u24 v{t2}, 384, v{t2}")
        I(f"v_lshrrev_b32 v{t3}, 1, v{t1}")
        I(f"v_add_u32 v{t3}, s{sF0}, v{t3}")
        I(f"v_subrev_u32 v{t4}, 3, v{t3}")
        I(f"v_min_u32 v{t3}, v{t3}, v{t4}")
        I(f"v_lshl_add_u32 v{t2}, v{t3}, 5, v{t2}")
        I(f"v_and_b32 v{t1}, 1, v{t1}")
        I(f"v_lshl_add_u32 v{t2}, v{t1}, 4, v{t2}")
        I(f"v_add_u32 v{t2}, s{sT0}, v{t2}")
        I(f"v_add_u32 v{vD[d]}, {2048 - 1024*d}, v{t2}")
    I(f"s_mul_i32 s{sT1}, s{sWAVE}, 9216")
    for s in range(3):
        I(f"s_mul_i32 s{sT0}, s{sF[s]}, 3072")
        I(f"s_add_u32 s{sT0}, s{sT0}, s{sT1}")
        I(f"v_lshl_add_u32 v{vU[s]}, v0, 4, s{sT0}")
    I(f"s_cmp_eq_u32 s{sHASX}, 0")
    I("s_cbranch_scc1 L_CN")


def consumer(parent, opt, extra):
    e = Em(opt, parent)
    I = e.I
    vV, vV2, vT = 1, 2, 3
    vD = [4, 5, 6]
    vU = [7, 253, 254]
    vO = vD
    vOX, vFL, vONE, vCK = 3, 255, 252, 0
    VR = 8
    WB = [24, 60]
    ACC = 96
    acc = {}
    for m in range(6):
        for st in range(2):
            for s in range(3):
                acc[(m, st, s)] = ACC + 4 * ((m * 2 + st) * 3 + s)
    acc[("X", 0)] = 240
    acc[("X", 1)] = 244
    spare = [248]
    sF = [sF0, sF1, sF2]
    tag = "x" if extra else "n"

    def W(step, i, s):
        return WB[step & 1] + 4 * (i * 3 + s)

    def dma_ops(step, i):
        kind, st, c = step_info(step)
        slot = (step & 1) * 3 + i
        ops = [("S", lambda: I(f"s_add_u32 m0, s{sRING}, {slot*3072}")),
               ("S", lambda: I(f"s_mov_b32 s{sOFF2}, {(i*3+2*st)*73728 + c*12288}"))]
        for d in range(3):
            def f(d=d):
                e.need([f"w{step-2}_{i}"])
                e.vmem(f"buffer_load_dwordx4 v{vD[d]}, s[{sW}:{sW+3}], s{sOFF2} offen offset:{1024*d} lds", f"dma{step}_{i}")
            ops.append(("M", f))
        return ops

    def tr_ops(step, i):
        slot = (step & 1) * 3 + i
        ops = []
        for s in range(3):
            for h in range(2):
                def f(s=s, h=h):
                    e.need([f"dma{step}_{i}"])
                    e.lds(f"ds_read_b64_tr_b16 {vr(W(step, i, s) + 2*h, 2)}, v{vT} offset:{slot*3072 + h*1536 + s*32}", f"w{step}_{i}")
                ops.append(("WR" if s == 0 and h == 0 else "R", f))
        return ops

    def u_op(step, i, s):
        return ("M", lambda: e.vmem(f"buffer_load_dwordx4 {vr(W(step, i, s))}, v{vU[s]}, s[{sU}:{sU+3}], s{sOFF} offen offset:{1024*i} {opt['uf']}", f"w{step}_{i}"))

    def u_off(step):
        kind, st, c = step_info(step)
        pos = st if kind == "B" else 2 + st
        return ("S", lambda: I(f"s_mov_b32 s{sOFF}, {(pos*6+c)*36864}"))

    I(f"v_lshlrev_b32 v8, 3, v0")
    I(f"v_add_u32 v8, {FLAGS}, v8")
    I(f"v_mov_b32 v10, 0")
    I(f"v_mov_b32 v11, 0")
    I(f"ds_write_b64 v8, v[10:11]")
    I("s_waitcnt lgkmcnt(0)")
    e.stamp()
    I("s_barrier")
    for i in range(3):
        for c, f in dma_ops(0, i):
            f()
    w1late = opt["w1late"] == 2 or (opt["w1late"] == 1 and not extra)
    if not w1late:
        for i in range(3):
            for c, f in dma_ops(1, i):
                f()
    e.need("bias")
    for s in range(3):
        a, b = acc[(5, 0, s)], acc[(5, 1, s)]
        I(f"v_lshlrev_b32 v{a}, 16, v{16+2*s}")
        I(f"v_and_b32 v{a+1}, s{sMASK}, v{16+2*s}")
        I(f"v_lshlrev_b32 v{a+2}, 16, v{17+2*s}")
        I(f"v_and_b32 v{a+3}, s{sMASK}, v{17+2*s}")
        for k in range(4):
            I(f"v_xor_b32 v{b+k}, s{sINV}, v{a+k}")
    for i in range(3):
        for c, f in tr_ops(0, i):
            f()
    if w1late:
        for i in range(3):
            for c, f in dma_ops(1, i):
                f()
    if opt["w2pre"]:
        for i in range(3):
            for c, f in dma_ops(2, i):
                f()
    I(f"s_lshl_b32 s{sT0}, s{sWAVE}, 2")
    I(f"s_add_u32 s{sT0}, s{sT0}, {FLAGS}")
    I(f"v_mov_b32 v{vFL}, s{sT0}")
    I(f"v_mov_b32 v{vONE}, 1")
    if opt["prio"]:
        I(f"s_setprio {opt['prio']}")
    e.stamp()

    groups = []

    def g_row(step, r):
        st = step_info(step)[1]
        mf = []
        for i in (2, 1, 0):
            m = r - i
            if 0 <= m <= 5:
                for s in range(3):
                    mf.append(((m, st, s), i, s))
        return dict(step=step, row=r, mf=mf)

    def g_x(step, i):
        return dict(step=step, row=8 + i, mf=[(("X", step_info(step)[1]), i, 0)])

    for step in range(22):
        seq = [g_row(step, 0), g_row(step, 1), g_x(step, 0), g_row(step, 2), g_x(step, 1), g_row(step, 3),
               g_x(step, 2), g_row(step, 4), g_row(step, 5), g_row(step, 6), g_row(step, 7)]
        groups += [g for g in seq if extra or g["row"] < 8]
    lag = opt["lag"]
    for r in range(8 + lag):
        if r < 8:
            groups.append(g_row(22, r))
            if extra and 1 <= r <= 3:
                groups.append(g_x(22, r - 1))
        if r >= lag:
            groups.append(g_row(23, r - lag))
            if extra and 2 <= r - lag <= 4:
                groups.append(g_x(23, r - lag - 2))

    stream = []
    gstart = []
    for gi, g in enumerate(groups):
        gstart.append(len(stream))
        for (key, i, s) in g["mf"]:
            stream.append((gi, key, i, s))
    N = len(stream)
    gend = [gstart[k + 1] - 1 if k + 1 < len(groups) else N - 1 for k in range(len(groups))]
    step_start, step_end = {}, {}
    last_use, last_acc, first_acc, first_tap = {}, {}, {}, {}
    for gi, g in enumerate(groups):
        step_start.setdefault(g["step"], gstart[gi])
        step_end[g["step"]] = gend[gi]
    for n, (gi, key, i, s) in enumerate(stream):
        st = groups[gi]["step"]
        last_use[(st, i, s)] = n
        last_acc[(st, key)] = n
        first_acc.setdefault((st, key), n)
        first_tap.setdefault((st, i), n)
    SL = step_start[1] - step_start[0]

    fill = [[] for _ in range(N + 1)]
    cl = [""] * (N + 1)
    endw = [""] * (N + 1)
    for gi in range(1, len(groups)):
        endw[gstart[gi] - 1] = "W"
    for (st, i), n in first_tap.items():
        if n:
            endw[n - 1] = "W"

    def put(g, op):
        fill[g].append(op[1])
        cl[g] += op[0]

    def addcost(g, c, cur):
        base = cur.get(g, cl[g])
        return gapcost(base + c + endw[g]) - gapcost(base + endw[g])

    def place(g0, ops, deadline=None, per=2, strict=False):
        for budget in range(0, len(ops) + 1):
            cur = {}
            res = []
            g, n, left = g0, 0, budget
            for c, f in ops:
                free = 4 if c == "D" else 0
                while g < N:
                    if n < per:
                        ac = addcost(g, c, cur)
                        if ac <= free:
                            break
                        if left and ac <= free + 4:
                            left -= 1
                            break
                    g += 1
                    n = 0
                g = min(g, N)
                cur[g] = cur.get(g, cl[g]) + c
                res.append(g)
                n += 1
            if deadline is None or res[-1] <= deadline:
                break
        else:
            assert not strict, (g0, deadline, res[-1])
        for g, op in zip(res, ops):
            put(g, op)
        return res[-1]

    def vread(gi):
        g = groups[gi]
        u = g["step"] >> 1
        off = VS[u % 3] + (g["step"] & 1) * VHALF + g["row"] * 1024
        base = vV
        if off >= 0x8000:
            base, off = vV2, off - 0x8000
        r = VR + 4 * (gi % 4)
        return ("R", lambda: e.lds(f"ds_read_b128 {vr(r)}, v{base} offset:{off}", f"v{gi}"))

    first_of_unit = {}
    for gi, g in enumerate(groups):
        first_of_unit.setdefault(g["step"] >> 1, gi)
    def flag(k):
        return ("d", lambda: e.lds(f"ds_write_b32 v{vFL}, v{vONE} offset:{k*16}"))

    def ckread(off, name):
        return ("R", lambda: e.lds(f"ds_read_b32 v{vCK}, v{vV2} offset:{FLAGS - 0x8000 + off}", name))

    def check1(name):
        def f():
            e.need(name)
            I(f"v_readfirstlane_b32 s{sT0}, v{vCK}")
        return f

    def check(off, val, name, st=False):
        def f():
            lab = f"L_CK{tag}{name}"
            I(f"s_cmp_eq_u32 s{sT0}, {val}")
            I(f"s_cbranch_scc0 {lab}_spin")
            e.label(lab)
            if st and opt["cst"] < 0:
                e.stamp()
            cold.append(f"{lab}_spin:")
            cold.append(f"    ds_read_b32 v{vCK}, v{vV2} offset:{FLAGS - 0x8000 + off}")
            cold.append("    s_waitcnt lgkmcnt(0)")
            cold.append(f"    v_readfirstlane_b32 s{sT0}, v{vCK}")
            cold.append(f"    s_cmp_eq_u32 s{sT0}, {val}")
            cold.append(f"    s_cbranch_scc0 {lab}_spin")
            cold.append(f"    s_branch {lab}")
        return f

    cold = []
    bar_gap = {}
    for gi in range(4, len(groups)):
        put(gend[gi - 4], vread(gi))
    for u in range(1, 12):
        gi = first_of_unit[u]
        gp = gend[gi - 4]
        bar_gap[u] = gp - 1
        put(gp - 8, ckread(448 + 4 * u, f"rdy{u}"))
        put(gp - 2, ("WV", check1(f"rdy{u}")))
        put(gp - 1, ("SS", check(448 + 4 * u, 4, f"rdy{u}", True)))
        if u - 1 <= 8:
            place(gstart[gi - 1], [flag(16 + u - 1)])

    g = 0
    gtr1 = 0
    k = 0
    for step in ((3,) if opt["w2pre"] else (2, 3)):
        for i in range(3):
            if step == 3:
                gtr1 = place(max(gtr1, opt["tr1at"] + (14 if w1late else 0) + 8 * i), tr_ops(1, i), per=1) + 1
                g = max(g, gtr1 + 4)
            ops = dma_ops(step, i)
            g = place(max(g, int(k * opt["dsp"])), ops[:2])
            for d in range(3):
                g = place(max(g + 1, int(k * opt["dsp"]) + 1), [ops[2 + d]])
                k += 1
    place(g + 1, [flag(31)])
    for step in (2, 3):
        g = step_start[step - 1] + SL - 24
        for i in range(3):
            g = max(g, max(last_use[(step - 2, i, s)] for s in range(3)))
            g = place(g, tr_ops(step, i), per=1, deadline=first_tap[(step, i)] - 4) + 1

    gchk = step_start[3] - opt["ulead0"] - 3

    place(gchk - 10, [ckread(240, "uflag")])
    put(gchk - 1, ("WV", check1("uflag")))
    put(gchk, ("SS", check(240, 1, "uflag")))
    g = gchk + 1
    go_gap = None
    for step in range(4, 24):
        base = step_start[step - 1] - opt["ulead"]
        stp = opt["ustep"] * SL / 57
        if step == 4:
            base, stp = gchk + 2, opt["ustep0"]
        if step == 23:
            base, stp = last_use[(21, 0, 0)], 2
        k = 0
        for i in range(3):
            for s in range(3):
                tgt = max(base + int(k * stp), last_use[(step - 2, i, s)], g)
                if k == 0:
                    g = place(max(g, tgt - 2), [u_off(step)])
                    tgt = max(tgt, g + 1)
                g = place(tgt, [u_op(step, i, s)]) + 1
                k += 1
        if step == opt["go"]:
            go_gap = g

    def bfly_ops(k0, k1, first):
        ops = []
        if first:
            o0, o1, md = "v_sub_f32_e64", "v_add_f32_e64", " div:2"
        else:
            o0, o1, md = "v_add_f32", "v_sub_f32", ""
        for k in range(4):
            ops.append(("V", lambda k=k: I(f"{o0} v{spare[0]+k}, v{acc[k0]+k}, v{acc[k1]+k}{md}")))
        for k in range(4):
            def f(k=k):
                I(f"{o1} v{acc[k1]+k}, v{acc[k0]+k}, v{acc[k1]+k}{md}")
                if k == 3:
                    acc[k0], spare[0] = spare[0], acc[k0]
            ops.append(("V", f))
        return ops

    order = [0, 1, "X", 2, 3, 4, 5] if extra else [0, 1, 2, 3, 4, 5]
    fb = [u for u in range(12) if UNITS[u][0] == "B"]
    y0last = 2 * max(u for u in range(12) if UNITS[u][1] == 0) + 1
    for last, first in ((2 * fb[0] - 1, True), (2 * fb[-1] + 1, False)):
        blocks = []
        for m in order:
            keys = [((m, 0, s), (m, 1, s)) for s in range(3)] if m != "X" else [(("X", 0), ("X", 1))]
            for (k0, k1) in keys:
                blocks.append((last_acc[(last, k1)] + 8, first_acc[(last + 1, k0)] - 3, k0, k1))
        dl = [b[1] for b in blocks]
        for k in range(len(dl) - 2, -1, -1):
            dl[k] = min(dl[k], dl[k + 1] - opt.get("bsp", 4))
        g = gchk + 1 if first else 0
        for (rdy, _, k0, k1), d in zip(blocks, dl):
            g = place(max(g, rdy), bfly_ops(k0, k1, first), deadline=d, per=3)
            assert g <= _, (last, k0, g, _)

    def oaddr():
        ops = []
        A = lambda s: ops.append((s[0].upper(), lambda: I(s)))
        t, q = vO[1], vO[2]
        A(f"v_lshrrev_b32 v{q}, 8, v{vV}")
        A(f"v_bfe_u32 v{t}, v{vV}, 4, 4")
        A(f"v_xor_b32 v{t}, v{t}, v{q}")
        A(f"v_lshlrev_b32 v{q}, 3, v{q}")
        A(f"s_lshl_b32 s{sT1}, s{sWAVE}, 5")
        A(f"s_add_u32 s{sT1}, s{sT1}, {XST}")
        A(f"v_mul_u32_u24 v{vOX}, 144, v{t}")
        A(f"v_add3_u32 v{vOX}, v{vOX}, v{q}, s{sT1}")
        A(f"v_mul_u32_u24 v{t}, 400, v{t}")
        A(f"v_add_u32 v{q}, v{t}, v{q}")
        A(f"s_mul_i32 s{sT1}, s{sWAVE}, 96")
        A(f"s_add_u32 s{sT1}, s{sT1}, {OUT}")
        for s in range(3):
            A(f"s_lshl_b32 s{sT2}, s{sF[s]}, 5")
            A(f"s_add_u32 s{sT2}, s{sT2}, s{sT1}")
            A(f"v_add_u32 v{vO[s]}, s{sT2}, v{q}")
        return ops
    place(step_start[10], oaddr())

    def epi_ops(key, addr, off):
        return [("V", lambda: I(f"v_cvt_pk_bf16_f32 v{acc[key]}, v{acc[key]}, v{acc[key]+1}")),
                ("V", lambda: I(f"v_cvt_pk_bf16_f32 v{acc[key]+1}, v{acc[key]+2}, v{acc[key]+3}")),
                ("D", lambda: e.lds(f"ds_write_b64 v{addr}, {vr(acc[key], 2)} offset:{off}"))]

    place(go_gap, [flag(14)])
    g = 0
    tail_nop = False
    for st, last in ((0, y0last), (1, 23)):
        if st == 0:
            g = last_acc[(y0last, (0, 0, 0))] + opt["y0at"]
        if st == 1:
            g = place(g, [("V", lambda s=s: I(f"v_add_u32 v{vO[s]}, {6*OROW}, v{vO[s]}")) for s in range(3)])
        for m in order:
            if m == "X":
                g = max(g, last_acc[(last, ("X", st))] + 8)
                g = place(g, epi_ops(("X", st), vOX, 2304 * st) + [flag(12 + st)])
                continue
            ops = []
            n = max(last_acc[(last, (m, st, s))] for s in range(3)) - 2
            if n + 8 > N:
                if not tail_nop:
                    put(N, ("S", lambda: I("s_nop 7")))
                    tail_nop = True
                g = N
            g = max(g, min(n + 8, N))
            o3 = [epi_ops((m, st, s), vO[s], m * OROW) for s in range(3)]
            ops = o3[0] + o3[1] + o3[2] + [flag(6 * st + m)]
            g = place(g, ops)

    if opt["cst"] >= 0:
        for k in range(15):
            g = step_start[opt["cst"]] + k * opt["cev"]
            if g < N:
                fill[g].append(e.stamp)
    ckread(448, "rdy0")[1]()
    check1("rdy0")()
    check(448, 4, "rdy0")()
    e.stamp()
    for gi in range(4):
        vread(gi)[1]()
    started = set()
    for n, (gi, key, i, s) in enumerate(stream):
        step = groups[gi]["step"]
        kind, st, c = step_info(step)
        e.need([f"v{gi}", f"w{step}_{i}"])
        d = acc[key]
        cc = d
        if step in (0, 2) and key not in started:
            started.add(key)
            cc = acc[(5, st, s)]
        I(f"v_mfma_f32_16x16x32_bf16 {vr(d)}, {vr(W(step, i, s))}, {vr(VR + 4*(gi % 4))}, {vr(cc)}")
        for f in fill[n]:
            f()
    e.stamp()
    for f in fill[N]:
        f()
    e.stamp()
    e.dump_stamps("c")
    I("s_endpgm")
    return e.L + cold


xA, xB, xC, eA, eB, eC = 1, 2, 3, 4, 5, 6
wE = [7, 8, 9, 10]
wX = [11, 12]
TMP = 13
OB = 26
RAW = 58
RAWX = 178


def PD(p, j):
    return RAW + 40 * p + 4 * j


def PX(p, j):
    return RAWX + 24 * p + 4 * j


def xload(e, p, j):
    a, off = (xA, 0) if j == 0 else ((xC, 0) if j == 9 else (xB, (j - 1) * 384))
    e.vmem(f"buffer_load_dwordx4 {vr(PD(p, j))}, v{a}, s[{sX}:{sX+3}], 0 offen offset:{off + 128*p} {e.opt['xf']}", f"x{p}_{j&1}")


def eload(e, p, j):
    a, off = (eA, 0) if j == 0 else ((eC, 0) if j == 5 else (eB, (j - 1) * 384))
    e.vmem(f"buffer_load_dwordx4 {vr(PX(p, j))}, v{a}, s[{sX}:{sX+3}], 0 offen offset:{off + 128*p} {e.opt['xf']}", f"e{p}_{j&1}")


PRE = VS[2]


def worker_pre(e, opt):
    I = e.I
    t1, t2, t3 = 14, 15, 16
    I(f"s_and_b32 s{sT0}, s2, 7")
    I(f"s_cmp_lt_u32 s{sIDX}, 6")
    I(f"s_cselect_b32 s{sT2}, s{sIDX}, s{sT0}")
    I(f"s_cselect_b32 s{sT0}, s{sT0}, 8")
    I(f"s_mul_i32 s{sT1}, s{sT0}, 11")
    I(f"s_lshr_b32 s{sT1}, s{sT1}, 5")
    I(f"s_mul_i32 s{sT3}, s{sT1}, 3")
    I(f"s_sub_u32 s{sT0}, s{sT0}, s{sT3}")
    I(f"s_lshl_b32 s{sT0}, s{sT0}, 2")
    I(f"s_add_u32 s{sT0}, s{sT0}, s{sPW}")
    I(f"s_mul_i32 s{sOFF}, s{sT1}, {3*73728}")
    I(f"s_mul_i32 s{sOFF2}, s{sT2}, 12288")
    I(f"s_add_u32 s{sOFF}, s{sOFF}, s{sOFF2}")
    I(f"s_lshl_b32 s{sOFF2}, s{sT0}, 5")
    I(f"s_add_u32 s{sOFF}, s{sOFF}, s{sOFF2}")
    I(f"v_bfe_u32 v{t1}, v0, 3, 2")
    I(f"v_lshlrev_b32 v{t1}, 3, v{t1}")
    I(f"v_lshrrev_b32 v{t2}, 5, v0")
    I(f"v_lshl_add_u32 v{t1}, v{t2}, 2, v{t1}")
    I(f"v_bfe_u32 v{t2}, v0, 1, 2")
    I(f"v_add_u32 v{t1}, v{t1}, v{t2}")
    I(f"v_mul_u32_u24 v{t1}, 384, v{t1}")
    I(f"v_and_b32 v{t2}, 1, v0")
    I(f"v_lshl_add_u32 v{eA}, v{t2}, 4, v{t1}")
    I(f"s_mul_i32 s{sRING}, s{sPW}, 3072")
    I(f"s_add_u32 s{sRING}, s{sRING}, {PRE}")
    I(f"s_mov_b32 m0, s{sRING}")
    I("s_waitcnt lgkmcnt(0)")
    srd(e, sW, sKA + 2, WBYTES)
    for j in range(3):
        e.vmem(f"buffer_load_dwordx4 v{eA}, s[{sW}:{sW+3}], s{sOFF} offen lds", "pre")
        if j < 2:
            I(f"s_add_u32 m0, s{sRING}, {1024*(j+1)}")
            I(f"s_add_u32 s{sOFF}, s{sOFF}, 73728")
    I(f"s_cmp_lt_u32 s{sT2}, 6")
    I(f"s_cselect_b32 s{sCNT}, 0, s{sINV}")
    I(f"s_mul_i32 s{sOFF}, s{sT2}, 36864")
    I(f"s_mul_i32 s{sT0}, s{sT0}, 3")
    I(f"s_add_u32 s{sT0}, s{sT0}, s{sT1}")
    I(f"s_lshl_b32 s{sT0}, s{sT0}, 10")
    I(f"s_add_u32 s{sOFF}, s{sOFF}, s{sT0}")
    I(f"s_or_b32 s{sOFF}, s{sOFF}, s{sCNT}")
    I(f"v_lshl_add_u32 v{eB}, v0, 4, s{sOFF}")


def producer_main(e, opt):
    I = e.I
    t0, t1, t2, t3 = 13, 14, 15, 16
    decode_main(e)
    I(f"v_and_b32 v{t0}, 3, v0")
    I(f"v_bfe_u32 v{t1}, v0, 2, 2")
    I(f"v_bfe_u32 v{t2}, v0, 4, 1")
    I(f"v_lshrrev_b32 v{wE[0]}, 5, v0")
    I(f"s_lshl_b32 s{sT0}, s{sPW}, 1")
    I(f"s_add_u32 s{sT0}, s{sT0}, s{sROW0}")
    I(f"s_mul_i32 s{sT0}, s{sT0}, 86016")
    I(f"s_mul_i32 s{sT1}, s{sSTRIP}, 12288")
    I(f"s_add_u32 s{sT0}, s{sT0}, s{sT1}")
    I(f"s_sub_u32 s{sT0}, s{sT0}, 86016")
    I(f"v_mul_u32_u24 v{t3}, 86016, v{t2}")
    I(f"v_lshl_add_u32 v{t3}, v{t0}, 4, v{t3}")
    I(f"v_lshl_add_u32 v{t3}, v{wE[0]}, 6, v{t3}")
    I(f"v_mul_u32_u24 v{xB}, 3072, v{t1}")
    I(f"v_add3_u32 v{xB}, v{xB}, v{t3}, s{sT0}")
    I(f"v_cmp_gt_i32 vcc, 0, v{xB}")
    I(f"v_lshl_add_u32 v{t3}, s{sSTRIP}, 2, v{t1}")
    I(f"v_mov_b32 v{xC}, s{sINV}")
    I(f"v_cndmask_b32 v{xB}, v{xB}, v{xC}, vcc")
    I(f"v_cmp_ne_u32 vcc, 0, v{t3}")
    I(f"v_subrev_u32 v{xA}, 384, v{xB}")
    I(f"v_add_u32 v{wE[1]}, 3072, v{xB}")
    I(f"v_cndmask_b32 v{xA}, v{xC}, v{xA}, vcc")
    I(f"v_cmp_ne_u32 vcc, 27, v{t3}")
    I("s_waitcnt lgkmcnt(0)")
    srd(e, sX, sKA, XBYTES)
    I(f"v_cndmask_b32 v{xC}, v{xC}, v{wE[1]}, vcc")
    for j in (0, 2, 4, 6, 8):
        xload(e, 0, j)


def producer(parent, opt, kind):
    e = Em(opt, parent)
    I = e.I
    t0, t1, t2, t3, t4 = 13, 14, 15, 16, 17
    X = kind == "x"
    G = RAWX
    if kind == "w":
        srd(e, sU, sWS, UBYTES)
        I(f"v_lshrrev_b32 v{eC}, 2, v0")
        I(f"v_lshlrev_b32 v{eC}, 5, v{eC}")
        I(f"v_lshl_add_u32 v{eC}, v{t0}, 3, v{eC}")
        I(f"v_add_u32 v{eC}, s{sRING}, v{eC}")
        if opt["pst"] == 2:
            e.stamp()
        e.need("pre")
        if opt["pst"] == 2:
            e.stamp()
        for j in range(3):
            for h in range(2):
                e.lds(f"ds_read_b64_tr_b16 {vr(G + 4*j + 2*h, 2)}, v{eC} offset:{1024*j + 512*h}", f"pt{j}")
        U = G + 12
        for j in (0, 2, 1):
            e.need(f"pt{j}")
            for k in range(4):
                I(f"v_lshlrev_b32 v{U + 8*j + 2*k}, 16, v{G + 4*j + k}")
                I(f"v_and_b32 v{U + 8*j + 2*k + 1}, s{sMASK}, v{G + 4*j + k}")
            if j == 2:
                for kk in range(8):
                    I(f"v_add_f32 v{U+kk}, v{U+kk}, v{U+16+kk}")
        for kk in range(8):
            I(f"v_sub_f32_e64 v{U+16+kk}, v{U+kk}, v{U+8+kk} div:2")
            I(f"v_add_f32_e64 v{U+kk}, v{U+kk}, v{U+8+kk} div:2")
        for k in range(4):
            I(f"v_cvt_pk_bf16_f32 v{G+36+k}, v{U+2*k}, v{U+2*k+1}")
            I(f"v_cvt_pk_bf16_f32 v{G+40+k}, v{U+16+2*k}, v{U+16+2*k+1}")
        for pos, r in ((0, G + 36), (1, G + 40), (2, G), (3, G + 8)):
            I(f"s_mov_b32 s{sOFF}, {pos*6*36864}")
            e.vmem(f"buffer_store_dwordx4 {vr(r)}, v{eB}, s[{sU}:{sU+3}], s{sOFF} offen sc1", "ust")
        if opt["pst"]:
            e.stamp()
    if kind == "n" and opt["xo"]:
        for j in (1, 3, 5, 7, 9):
            xload(e, 0, j)
    I(f"s_lshl_b32 s{sT0}, s{sPW}, 1")
    I(f"v_add_u32 v{t2}, s{sT0}, v{t2}")
    I(f"v_mul_u32_u24 v{wE[0]}, {VHALF}, v{wE[0]}")
    I(f"v_lshl_add_u32 v{wE[0]}, v{t2}, 10, v{wE[0]}")
    I(f"v_lshlrev_b32 v{t3}, 2, v{t1}")
    I(f"v_lshl_add_u32 v{t3}, v{t0}, 4, v{t3}")
    I(f"v_add_u32 v{t3}, v{t3}, v{t0}")
    I(f"v_lshl_add_u32 v{wE[0]}, v{t3}, 4, v{wE[0]}")
    for k in range(1, 4):
        I(f"v_xor_b32 v{wE[k]}, {16*k}, v{wE[0]}")
    decode_extra(e)
    srd(e, sO, sKA + 6, XBYTES)
    if X:
        I(f"v_bfe_u32 v{t1}, v0, 2, 1")
        I(f"v_lshlrev_b32 v{t1}, 1, v{t1}")
        I(f"v_bfe_u32 v{t2}, v0, 3, 1")
        I(f"v_bfe_u32 v{t3}, v0, 4, 1")
        I(f"v_lshlrev_b32 v{t3}, 2, v{t3}")
        I(f"v_or3_b32 v{t1}, v{t1}, v{t2}, v{t3}")
        I(f"s_add_u32 s{sT0}, s{sEROW}, s{sPW}")
        I(f"s_sub_u32 s{sT0}, s{sT0}, 1")
        I(f"s_mul_i32 s{sT1}, s{sT0}, 86016")
        I(f"s_cmp_lt_u32 s{sT0}, 224")
        I(f"s_cselect_b32 s{sT1}, s{sT1}, s{sINV}")
        I(f"s_lshl_b32 s{sT0}, s{sES}, 5")
        I(f"v_lshl_add_u32 v{t4}, v{t1}, 2, s{sT0}")
        I(f"v_mul_u32_u24 v{t2}, 384, v{t4}")
        I(f"v_lshl_add_u32 v{t2}, v{t0}, 4, v{t2}")
        I(f"v_lshrrev_b32 v{t3}, 5, v0")
        I(f"v_lshl_add_u32 v{t2}, v{t3}, 6, v{t2}")
        I(f"v_add_u32 v{eB}, s{sT1}, v{t2}")
        I(f"v_cmp_ne_u32 vcc, 0, v{t4}")
        I(f"v_subrev_u32 v{t2}, 384, v{eB}")
        I(f"v_mov_b32 v{eA}, s{sINV}")
        I(f"v_cndmask_b32 v{eA}, v{eA}, v{t2}, vcc")
        I(f"v_cmp_ne_u32 vcc, 220, v{t4}")
        I(f"v_add_u32 v{t2}, 1536, v{eB}")
        I(f"v_mov_b32 v{eC}, s{sINV}")
        I(f"v_cndmask_b32 v{eC}, v{eC}, v{t2}, vcc")
        for j in (0, 2, 4):
            eload(e, 0, j)
        if opt["xo"]:
            for j in (1, 3, 5, 7, 9):
                xload(e, 0, j)
        for j in (1, 3, 5):
            eload(e, 0, j)
        I(f"v_lshlrev_b32 v{t1}, 1, v{t1}")
        I(f"v_xor_b32 v{t1}, v{t1}, v{t0}")
        I(f"v_lshl_add_u32 v{t1}, v{t0}, 4, v{t1}")
        I(f"v_lshlrev_b32 v{t1}, 4, v{t1}")
        I(f"v_mul_u32_u24 v{t3}, {VHALF}, v{t3}")
        I(f"s_add_u32 s{sT0}, s{sPW}, 8")
        I(f"s_lshl_b32 s{sT0}, s{sT0}, 10")
        I(f"v_add3_u32 v{wX[0]}, v{t1}, v{t3}, s{sT0}")
        I(f"v_xor_b32 v{wX[1]}, 16, v{wX[0]}")
    else:
        I(f"s_cmp_eq_u32 s{sPW}, 3")
        I(f"s_cselect_b32 s{sPEND}, 1, 0")
        if opt["rpf"] == 1:
            I(f"s_mul_i32 s{sT0}, s{sIDX}, {18*128}")
            I(f"v_min_u32 v253, 17, v0")
            I(f"v_lshl_add_u32 v253, v253, 7, s{sT0}")
        elif opt["rpf"] == 2:
            I(f"s_sub_u32 s{sT0}, s{sIDX}, 12")
            I(f"s_cmp_lt_u32 s{sIDX}, 7")
            I(f"s_cselect_b32 s{sT0}, s{sIDX}, s{sT0}")
            I(f"s_mul_i32 s{sT1}, s{sT0}, 13")
            I(f"s_lshr_b32 s{sT1}, s{sT1}, 6")
            I(f"s_mul_i32 s{sT2}, s{sT1}, 5")
            I(f"s_sub_u32 s{sL}, s{sT0}, s{sT2}")
            I(f"s_cmp_eq_u32 s{sHASX}, 0")
            I(f"s_cselect_b32 s{sL}, s{sL}, 9")
            I(f"s_cmp_eq_u32 s{sPW}, 3")
            I(f"s_cselect_b32 s{sL}, s{sL}, 9")
            I(f"s_mul_i32 s{sT1}, s{sT1}, {144*128}")
            I(f"v_min_u32 v253, 47, v0")
            I(f"v_lshl_add_u32 v253, v253, 7, s{sT1}")
        I(f"v_mov_b32 v250, {FLAGS + 15*16}")
        if kind == "n":
            srd(e, sU, sWS, UBYTES)
    I(f"v_mov_b32 v251, 1")
    I(f"v_mov_b32 v252, {FLAGS}")

    def pollflag(idx, lab, slp, r=16):
        e.label(lab)
        I(f"ds_read_b128 {vr(r)}, v252 offset:{idx*16}")
        I("s_waitcnt lgkmcnt(0)")
        e.lg = []
        I(f"v_and_b32 v{r}, v{r}, v{r+1}")
        I(f"v_and_b32 v{r+2}, v{r+2}, v{r+3}")
        I(f"v_and_b32 v{r}, v{r}, v{r+2}")
        I("s_nop 0")
        I(f"v_readfirstlane_b32 s{sT0}, v{r}")
        I(f"s_cmp_eq_u32 s{sT0}, 1")
        I(f"s_cbranch_scc1 {lab}_ok")
        if slp:
            I(f"s_sleep {slp}")
        I(f"s_branch {lab}")
        e.label(lab + "_ok")

    def upf(t):
        if X or not opt["rpf"]:
            return
        k, st, p = UNITS[t]
        base = ((st if k == "B" else 2 + st) * 6 + 2 * p) * 36864
        lab = f"L_UP{kind}{t}"
        if opt["rpf"] == 1:
            I(f"s_cmp_eq_u32 s{sPW}, 3")
            I(f"s_cbranch_scc0 {lab}")
            I(f"s_mov_b32 s{sT1}, {base}")
            I(f"buffer_load_dword v254, v253, s[{sU}:{sU+3}], s{sT1} offen sc1")
        else:
            I(f"s_cmp_eq_u32 s{sL}, {t % 5}")
            I(f"s_cbranch_scc0 {lab}")
            for q in range(3):
                I(f"s_mov_b32 s{sT1}, {base + q*48*128}")
                I(f"buffer_load_dword v254, v253, s[{sU}:{sU+3}], s{sT1} offen sc1")
        e.label(lab)

    def waitfree(u, r=16):
        if u >= 3:
            pollflag(16 + u - 3, f"L_FR{kind}{u}", opt["psl"], r)
            if u + opt["rlead"] <= 11:
                upf(u + opt["rlead"])

    def ready(u):
        I("s_mov_b64 exec, 1")
        e.lds(f"ds_add_u32 v252, v251 offset:{448 + 4*u}")
        I("s_mov_b64 exec, -1")
        if not opt["pst"] or e.nst < 15:
            e.stamp()

    def xl(p, par):
        for j in range(par, 10, 2):
            xload(e, p, j)
        if X:
            for j in range(par, 6, 2):
                eload(e, p, j)

    def parse(t):
        d = {}
        for item in t.split(","):
            when, what = item.split(":")
            d.setdefault(when, []).append((int(what[0]), 0 if what[1] == "e" else 1))
        return d
    xsX = parse(opt.get("xsx") or opt["xs"])
    xsN = parse(opt["xs"])
    xs = xsX if X else xsN
    seen = set()

    def xsched(when):
        if kind != "n":
            for p, par in xs.get(when, []):
                xl(p, par)
            return
        a, b = xsX.get(when, []), xsN.get(when, [])
        for it in a + [t for t in b if t not in a]:
            both = it in a and it in b
            if not both:
                lab = f"L_XS{when}_{it[0]}{it[1]}"
                I(f"s_cmp_eq_u32 s{sHASX}, {1 if it in a else 0}")
                I(f"s_cbranch_scc0 {lab}")
            keep = list(e.vm)
            xl(*it)
            if not both:
                e.label(lab)
                if it not in seen:
                    e.vm = keep
                seen.add(it)

    pend = []
    pace = [0, 0]

    def xpace(per, nvalu):
        for p, par in xs.get(f"{per}p", []):
            pend.extend([lambda j=j, p=p: xload(e, p, j) for j in range(par, 10, 2)])
            if X:
                pend.extend([lambda j=j, p=p: eload(e, p, j) for j in range(par, 6, 2)])
        if pend:
            pace[0] = max(1, nvalu // len(pend))
            pace[1] = 0

    def V(s):
        I(s)
        pace[1] += 1
        if pend and pace[1] % pace[0] == 0:
            pend.pop(0)()

    def later(f):
        if not opt["wsp"]:
            return f()
        if not pend:
            pace[0], pace[1] = opt["wsp"], 0
        pend.append(f)

    def flush():
        while pend:
            pend.pop(0)()

    def unp(dst, src):
        V(f"v_lshlrev_b32 v{dst}, 16, v{src}")
        V(f"v_and_b32 v{dst+1}, s{sMASK}, v{src}")

    def vwrite(addr, src, u):
        e.lds(f"ds_write_b128 v{addr}, {vr(src)} offset:{VS[u % 3]}")

    T16 = list(range(13, 26)) + [54, 55, 56]

    def chainA(D, n, par, neg, waddr, u, ob, wf=False):
        op = "v_subrev_f32" if neg else "v_sub_f32"
        A, B = T16[:8], T16[8:]

        def unp8(R, src):
            for k in range(4):
                V(f"v_lshlrev_b32 v{R[2*k]}, 16, v{src+k}")
                V(f"v_and_b32 v{R[2*k+1]}, s{sMASK}, v{src+k}")
        unp8(A, D(par))
        for j in range(n):
            unp8(B, D(par + 2 * j + 2))
            for k in range(8):
                V(f"{op} v{A[k]}, v{A[k]}, v{B[k]}")
            for k in range(4):
                V(f"v_cvt_pk_bf16_f32 v{ob + 4*(j & 1) + k}, v{A[2*k]}, v{A[2*k+1]}")
            if wf and j == 0:
                waitfree(u, 44)
            vwrite(waddr[j], ob + 4 * (j & 1), u)
            A, B = B, A

    def tA(u, main=True, ext=True):
        kind_, st, p = UNITS[u]
        neg = (u >= 4 and st == 1)
        if main:
            e.need(f"x{p}_{st}")
            if opt["pst"] and u <= 1:
                e.stamp()
            chainA(lambda j: PD(p, j), 4, st, neg, wE, u, OB, True)
        if X and ext:
            e.need(f"e{p}_{st}")
            chainA(lambda j: PX(p, j), 2, st, neg, wX, u, OB + 8)

    def pairB(d1, d2, o1, o2):
        for k0 in (0, 2):
            for k in (k0, k0 + 1):
                a = TMP + 6 * (k & 1)
                unp(a, d1 + k); unp(a + 2, d2 + k)
            for k in (k0, k0 + 1):
                a = TMP + 6 * (k & 1)
                b, s = a + 2, a + 4
                V(f"v_add_f32 v{s}, v{a}, v{b}"); V(f"v_add_f32 v{s+1}, v{a+1}, v{b+1}")
                V(f"v_sub_f32 v{a}, v{b}, v{a}"); V(f"v_sub_f32 v{a+1}, v{b+1}, v{a+1}")
            for k in (k0, k0 + 1):
                a = TMP + 6 * (k & 1)
                V(f"v_cvt_pk_bf16_f32 v{o1+k}, v{a+4}, v{a+5}")
                V(f"v_cvt_pk_bf16_f32 v{o2+k}, v{a}, v{a+1}")

    npoll = [0]

    def trypoll(final=False):
        if X:
            return
        n = npoll[0]
        npoll[0] += 1
        lab = f"L_PL{kind}{n}"
        I(f"s_cmp_eq_u32 s{sPEND}, 0")
        I(f"s_cbranch_scc1 {lab}_skip")
        if n == 0:
            I(f"s_load_dword s{sPOLL}, s[{sDBG}:{sDBG+1}], 0")
            e.label(lab + "_skip")
            return
        assert n == 1
        I("s_waitcnt lgkmcnt(0)")
        I(f"s_mov_b32 s{sCNT}, 0")
        I(f"v_mov_b32 v255, 0")
        e.label(lab)
        I(f"s_cmp_ge_u32 s{sPOLL}, {0 if opt['noatom'] else NWORK}")
        I(f"s_cbranch_scc1 {lab}_ok")
        I("s_sleep 6")
        I(f"global_load_dword v254, v255, s[{sDBG}:{sDBG+1}] sc1")
        I(f"s_add_u32 s{sCNT}, s{sCNT}, 1")
        I("s_waitcnt vmcnt(0)")
        I(f"v_readfirstlane_b32 s{sPOLL}, v254")
        I(f"s_cmp_lt_u32 s{sCNT}, 20000")
        I(f"s_cbranch_scc1 {lab}")
        e.label(lab + "_ok")
        if opt["pst"]:
            e.stamp()
            I(f"s_mov_b32 s{sST + 2*e.nst}, s{sCNT}")
            e.nst += 1
        I("ds_write_b32 v250, v251")
        I(f"s_mov_b32 s{sPEND}, 0")
        if opt["u_pf"]:
            I(f"s_mul_i32 s{sT0}, s{sIDX}, {216*128}")
            I(f"v_min_u32 v253, 53, v0")
            I(f"v_lshl_add_u32 v253, v253, 7, s{sT0}")
            for k in range(4):
                I(f"s_mov_b32 s{sT1}, {k*54*128}")
                I(f"buffer_load_dword v254, v253, s[{sU}:{sU+3}], s{sT1} offen sc1")
        e.label(lab + "_skip")

    def wpoint():
        pollflag(31, f"L_WI{kind}", opt["psl"], 20)
        xsched("w")

    def ppoint(k):
        if k == 0 and opt["pollw"]:
            if not X:
                I(f"s_cmp_eq_u32 s{sPEND}, 0")
                I(f"s_cbranch_scc1 L_PWAIT{kind}")
                pollflag(16, f"L_F0{kind}", opt["psl"], 20)
                e.label(f"L_PWAIT{kind}")
        trypoll()
        if k == 1:
            for t in range(2, 3 + opt["rlead"]):
                upf(t)

    def tB1(u):
        p = UNITS[u][2]
        e.need([f"x{p}_0", f"x{p}_1"] + ([f"e{p}_0", f"e{p}_1"] if X else []))
        for ee in range(4):
            pairB(PD(p, 1 + 2 * ee), PD(p, 2 + 2 * ee), OB + 4 * (ee & 1), OB + 8 + 4 * ee)
            if ee == 0:
                waitfree(u)
                xpace(u, 200 if X else 120)
            vwrite(wE[ee], OB + 4 * (ee & 1), u)
            if u == 2 and ee == opt["wat"]:
                wpoint()
            if u == 2 and ee == opt["pat"]:
                ppoint(0)
            if u == 2 and ee == min(opt["pat"] + 1, 3):
                ppoint(1)
        if X:
            e.need([f"e{p}_0", f"e{p}_1"])
            for ee in range(2):
                pairB(PX(p, 1 + 2 * ee), PX(p, 2 + 2 * ee), OB + 4 * ee, OB + 24 + 4 * ee)
                vwrite(wX[ee], OB + 4 * ee, u)
        flush()
        ready(u)

    def tB2(u):
        waitfree(u + 1)
        xsched(f"f{u}")
        for ee in range(4):
            vwrite(wE[ee], OB + 8 + 4 * ee, u + 1)
        if X:
            for ee in range(2):
                vwrite(wX[ee], OB + 24 + 4 * ee, u + 1)
        ready(u + 1)

    n1 = 1 if X else opt["n1"]

    def bar():
        e.drain_lg()
        if not opt["pst"] or e.nst < 15:
            e.stamp()
        I("s_barrier")

    def signal():
        e.need("ust")
        if opt["pst"]:
            e.stamp()
        I(f"v_mov_b32 v{eA}, {FLAGS + 15*16 + 4}")
        I("s_mov_b64 exec, 1")
        I(f"ds_add_rtn_u32 v{eC}, v{eA}, v251")
        I("s_waitcnt lgkmcnt(0)")
        e.lg = []
        I(f"v_readfirstlane_b32 s{sT0}, v{eC}")
        I(f"s_cmp_eq_u32 s{sT0}, 3")
        I("s_cbranch_scc0 L_NOATOM")
        I(f"v_mov_b32 v{eA}, 0")
        if not opt["noatom"]:
            I(f"global_atomic_add v{eA}, v251, s[{sDBG}:{sDBG+1}] sc1")
        e.label("L_NOATOM")
        I("s_mov_b64 exec, -1")

    e.drain_lg()
    e.stamp()
    I("s_barrier")
    if kind == "w":
        signal()
        xl(0, 1)
    tA(0)
    ready(0)
    xsched("a0")
    tA(1)
    ready(1)
    xsched("a1")
    wdone = False
    for u in range(2, 12):
        k, st, p = UNITS[u]
        if k == "A":
            if u == 2:
                wpoint()
                ppoint(0)
                ppoint(1)
            tA(u)
            ready(u)
            xsched(f"a{u}")
        elif st == 0:
            tB1(u)
            xsched(f"j{u}")
            tB2(u)
            xsched(f"k{u}")
    if True:
        if True:
            rA, rB, gA, gB, vXL, vXG = 1, 2, 3, 4, 5, 6
            I(f"s_mul_i32 s{sT0}, s{sROW0}, 86016")
            I(f"s_mul_i32 s{sT1}, s{sSTRIP}, 12288")
            I(f"s_add_u32 s{sT0}, s{sT0}, s{sT1}")
            I(f"s_mul_i32 s{sT1}, s{sPW}, 3072")
            I(f"s_add_u32 s{sT0}, s{sT0}, s{sT1}")
            I(f"s_mul_i32 s{sT1}, s{sPW}, 1600")
            I(f"s_add_u32 s{sT1}, s{sT1}, {OUT}")
            for (r, gg, add) in ((rA, gA, 0), (rB, gB, 64)):
                I(f"v_add_u32 v{t0}, {add}, v0")
                I(f"v_min_u32 v{t0}, 95, v{t0}")
                I(f"v_mul_u32_u24 v{t1}, 10923, v{t0}")
                I(f"v_lshrrev_b32 v{t1}, 18, v{t1}")
                I(f"v_mul_u32_u24 v{t2}, 24, v{t1}")
                I(f"v_sub_u32 v{t2}, v{t0}, v{t2}")
                I(f"v_lshlrev_b32 v{t2}, 4, v{t2}")
                I(f"v_mul_u32_u24 v{t3}, 400, v{t1}")
                I(f"v_add3_u32 v{r}, v{t3}, v{t2}, s{sT1}")
                I(f"v_mul_u32_u24 v{t3}, 768, v{t1}")
                I(f"v_add3_u32 v{gg}, v{t3}, v{t2}, s{sT0}")
            I(f"v_cmp_gt_u32 vcc, 32, v0")
            I(f"v_mov_b32 v{t4}, s{sINV}")
            I(f"v_add_u32 v250, {6*OROW}, v{rA}")
            I(f"v_cndmask_b32 v{gB}, v{t4}, v{gB}, vcc")
            I(f"v_add_u32 v251, {6*OROW}, v{rB}")
            I(f"s_lshl_b32 s{sT0}, s{sPW}, 2")
            I(f"v_bfe_u32 v{t0}, v0, 3, 2")
            I(f"v_add_u32 v{t0}, s{sT0}, v{t0}")
            I(f"v_and_b32 v{t1}, 7, v0")
            I(f"v_mul_u32_u24 v{t2}, 144, v{t0}")
            I(f"v_lshl_add_u32 v{t2}, v{t1}, 4, v{t2}")
            I(f"v_add_u32 v{vXL}, {XST}, v{t2}")
            I(f"v_mul_u32_u24 v{t0}, 768, v{t0}")
            I(f"v_lshrrev_b32 v{t2}, 1, v{t1}")
            I(f"v_mul_u32_u24 v{t2}, 96, v{t2}")
            I(f"v_and_b32 v{t1}, 1, v{t1}")
            I(f"v_lshl_add_u32 v{t2}, v{t1}, 4, v{t2}")
            I(f"s_mul_i32 s{sT0}, s{sEROW}, 86016")
            I(f"s_mul_i32 s{sT1}, s{sES}, 12288")
            I(f"s_add_u32 s{sT0}, s{sT0}, s{sT1}")
            I(f"s_lshl_b32 s{sT1}, s{sF0}, 5")
            I(f"s_add_u32 s{sT0}, s{sT0}, s{sT1}")
            I(f"v_add3_u32 v{vXG}, v{t0}, v{t2}, s{sT0}")
            I(f"v_cndmask_b32 v{vXG}, v{t4}, v{vXG}, vcc")
    rA, rB, gA, gB, vXL, vXG = 1, 2, 3, 4, 5, 6
    sf = opt["sf"]
    nb = [0]

    def rowread(st, m, b):
        a0, a1 = (rA, rB) if st == 0 else (250, 251)
        I(f"ds_read_b128 {vr(b)}, v{a0} offset:{m*OROW}")
        I(f"ds_read_b128 {vr(b+4)}, v{a1} offset:{m*OROW}")

    def rowstore(st, m, b, w0=None, w1=None):
        sf = opt["sfl"] if st == 1 and m >= 6 - opt["nlast"] else opt["sf"]
        I(f"s_mov_b32 s{sOFF}, {m*86016}")
        if w0: I(w0)
        I(f"buffer_store_dwordx4 {vr(b)}, v{gA}, s[{sO}:{sO+3}], s{sOFF} offen offset:{384*st} {sf}")
        if w1: I(w1)
        I(f"buffer_store_dwordx4 {vr(b+4)}, v{gB}, s[{sO}:{sO+3}], s{sOFF} offen offset:{384*st} {sf}")

    def xpart(st, b):
        if kind == "w":
            return
        if kind == "n":
            I(f"s_cmp_eq_u32 s{sHASX}, 0")
            I(f"s_cbranch_scc1 L_NOX{st}")
        pollflag(12 + st, f"L_F{kind}X{st}", opt["slp"])
        I(f"ds_read_b128 {vr(b)}, v{vXL} offset:{2304*st}")
        I("s_waitcnt lgkmcnt(0)")
        I(f"buffer_store_dwordx4 {vr(b)}, v{vXG}, s[{sO}:{sO+3}], 0 offen offset:{384*st}")
        if kind == "n":
            e.label(f"L_NOX{st}")

    pollflag(5, f"L_F{kind}0_5", opt["psl"])
    for m in range(6):
        rowread(0, m, 28 + 8 * m)
    pollflag(14, f"L_F{kind}GO", opt["slp"])
    if not opt["pst"]:
        e.stamp()
    for m in range(6):
        rowstore(0, m, 28 + 8 * m)
    xpart(0, 76)
    for m in [0, 1, "X", 2, 3, 4, 5]:
        if m == "X":
            xpart(1, 80)
            continue
        b = 84 + 8 * m
        pollflag(6 + m, f"L_F{kind}1_{m}", opt["slp"] if m < 4 else opt["slpl"])
        if m in (0, 5) and not opt["pst"]:
            e.stamp()
        rowread(1, m, b)
        rowstore(1, m, b, "s_waitcnt lgkmcnt(1)", "s_waitcnt lgkmcnt(0)")
    e.stamp()
    if opt["stamp"]:
        I("s_waitcnt vmcnt(0)")
        e.stamp()
    e.dump_stamps("p")
    I("s_endpgm")
    return e.L


def generate(**kw):
    opt = dict(DEF)
    opt.update(kw)
    opt["code_pf_lines"] = 18
    UNITS[:] = ORDERS[opt["order"]]
    L = []
    L.append(f"; @launch grid=(256,1,1) block=(512,1,1) lds={LDS_BYTES}")
    L.append('.amdgcn_target "amdgcn-amd-amdhsa--gfx950"')
    L.append(".text")
    L.append(f".globl {KNAME}")
    L.append(".p2align 8")
    L.append(f".type {KNAME},@function")
    L.append(f"{KNAME}:")
    e = Em(opt)
    I = e.I
    e.stamp()
    I(f"s_load_dwordx8 s[{sKA}:{sKA+7}], s[0:1], 0")
    I(f"s_load_dwordx4 s[{sDBG}:{sDBG+3}], s[0:1], 32")
    I("v_lshrrev_b32 v1, 6, v0")
    I("s_cmp_ge_u32 s2, 256")
    I("s_cbranch_scc1 L_END")
    I(f"v_readfirstlane_b32 s{sWAVE}, v1")
    I("v_and_b32 v0, 63, v0")
    if opt["epf"]:
        R = opt["epf"]
        I(f"s_getpc_b64 s[{sPC}:{sPC+1}]")
        I(f"s_bfe_u32 s{sT0}, s2, {3 | ((R.bit_length() - 1) << 16)}")
        I(f"v_min_u32 v2, {24 // R - 1}, v0")
        I(f"v_lshl_add_u32 v2, v2, {R.bit_length() - 1}, s{sT0}")
        I(f"v_mul_u32_u24 v1, {CS}, v1")
        I(f"v_lshl_add_u32 v2, v2, 7, v1")
        I(f"v_min_u32 v2, L_END-{KNAME}-256, v2")
        e.vmem(f"global_load_dword v255, v2, s[{sPC}:{sPC+1}]", "epf")
    I(f"s_mov_b32 s{sMASK}, 0xffff0000")
    I(f"s_mov_b32 s{sINV}, 0x80000000")
    I(f"s_lshr_b32 s{sIDX}, s2, 3")
    I(f"s_cmp_lt_u32 s{sWAVE}, 4")
    I("s_cbranch_scc1 L_CONS")
    I(f"s_sub_u32 s{sPW}, s{sWAVE}, 4")
    I(f"s_cmp_lt_u32 s{sIDX}, 7")
    I("s_cbranch_scc1 L_PW")
    L += e.L
    epw = Em(opt, e)
    worker_pre(epw, opt)
    producer_main(epw, opt)
    ep = Em(opt, e)
    producer_main(ep, opt)
    if not opt["xo"]:
        for j in (1, 3, 5, 7, 9):
            xload(ep, 0, j)
    ep.I(f"s_cmp_ge_u32 s{sIDX}, 19")
    ep.I("s_cbranch_scc1 L_PN")
    ep.I(f"s_cmp_eq_u32 s{sPW}, 3")
    ep.I("s_cbranch_scc1 L_PN")
    L += ep.L
    L += producer(ep, opt, "x")
    L.append(f".org {KNAME} + {1 * CS}, 0" if opt["epf"] else ".p2align 6")
    L.append("L_PN:")
    L += producer(ep, opt, "n")
    L.append(f".org {KNAME} + {2 * CS}, 0" if opt["epf"] else ".p2align 6")
    L.append("L_PW:")
    L += epw.L
    L += producer(epw, opt, "w")
    L.append(f".org {KNAME} + {3 * CS}, 0" if opt["epf"] else ".p2align 6")
    L.append("L_CONS:")
    ec = Em(opt, e)
    consumer_pro(ec, opt)
    L += ec.L
    L += consumer(ec, opt, True)
    L.append(f".org {KNAME} + {5 * CS}, 0" if opt["epf"] else ".p2align 6")
    L.append("L_CN:")
    L += consumer(ec, opt, False)
    L.append("L_END:")
    L.append("    s_endpgm")
    L.append('.section .rodata,"a"')
    L.append(".p2align 6")
    L.append(f".amdhsa_kernel {KNAME}")
    for d in ("next_free_vgpr 256", "next_free_sgpr 102", "accum_offset 256", "group_segment_fixed_size 0",
              "kernarg_size 48", "user_sgpr_count 2", "user_sgpr_kernarg_segment_ptr 1",
              "system_sgpr_workgroup_id_x 1", "ieee_mode 0", "float_denorm_mode_32 1"):
        L.append("  .amdhsa_" + d)
    L.append(".end_amdhsa_kernel")
    return "\n".join(L) + "\n"


if __name__ == "__main__":
    out = sys.argv[1]
    kw = {}
    for a in sys.argv[2:]:
        k, v = a.split("=", 1)
        try:
            kw[k] = int(v)
        except ValueError:
            try:
                kw[k] = float(v)
            except ValueError:
                kw[k] = v.replace("+", " ")
    open(out, "w").write(generate(**kw))
```

```python
import sys, os
sys.path.insert(0, os.path.dirname(os.path.abspath(__file__)))
from cost import gapcost

KNAME = "standalone__standard_2d_1d_3d_conv__vision_kernel"

DEF = dict(
    stamp=0, spin=4000, spinref=0, cst=-1, cev=8, pst=0,
    xf="", sf="nt", uf="sc1",
    code_pf=1, w_pf=1,
    prio=0, slp=1,
    pro="beta",
    xs="w:1e,w:1o,4p:2e,4p:2o",
    dsp=4.5,
    ustep=3, ulead=12,
    lag=2,
    go=23,
    noatom=0, u_pf=0, pollp=1, pollat=-2, n1=1, y0at=0, gam=0, psl=2, epf=2, xo=1, w1late=0, otlb=2, aord=0, rsh=0, trd=9, d_now=0, d_nov=0, d_nou=0, sfl='sc1', nlast=0, slpl=0, ustep0=5, order=2, wat=1, pat=3, rpf=1, rlead=0, wsp=10, pollw=0, w2pre=0, tr1at=4, wo=2, ulead0=0,
)

VSLOT = 22528
VHALF = 11264
VS = [0, VSLOT, 2 * VSLOT]
FLAGS = 3 * VSLOT
WRING = FLAGS + 512
WWAVE = 18432
OROW = 6400
OUT = WRING
XST = OUT + 12 * OROW
LDS_BYTES = XST + 4608
NWORK = 56
CS = 11776

XBYTES = 224 * 224 * 384
WBYTES = 9 * 192 * 384
UBYTES = 24 * 36864

ORDERS = {
    2: [("A", 0, 0), ("A", 1, 0),
        ("B", 0, 0), ("B", 1, 0), ("B", 0, 1), ("B", 1, 1), ("B", 0, 2), ("B", 1, 2),
        ("A", 0, 1), ("A", 0, 2), ("A", 1, 1), ("A", 1, 2)],
    1: [("A", 0, 0), ("A", 1, 0), ("A", 0, 1), ("A", 1, 1),
        ("B", 0, 0), ("B", 1, 0), ("B", 0, 1), ("B", 1, 1), ("B", 0, 2), ("B", 1, 2),
        ("A", 0, 2), ("A", 1, 2)],
}
UNITS = list(ORDERS[2])


def step_info(s):
    kind, st, pair = UNITS[s >> 1]
    return kind, st, 2 * pair + (s & 1)


sX, sW, sO, sU, sB = 4, 8, 12, 16, 20
sDBG, sWS, sKA = 24, 26, 28
sWAVE, sL, sSTRIP, sROW0, sHASX, sES, sEROW = 36, 37, 38, 39, 40, 41, 42
sF0, sF1, sF2, sIDX = 43, 44, 45, 46
sT0, sT1, sT2, sT3 = 47, 48, 49, 50
sMASK, sRING, sOFF, sOFF2, sPW = 51, 52, 53, 54, 55
sPC, sCNT, sINV = 56, 58, 59
sPOLL, sPEND = 3, 56
sST = 60


class Em:
    def __init__(self, opt, parent=None):
        self.L = []
        self.lg = list(parent.lg) if parent else []
        self.vm = list(parent.vm) if parent else []
        self.opt = opt
        self.nst = parent.nst if parent else 0

    def I(self, s):
        self.L.append("    " + s)

    def label(self, s):
        self.L.append(s + ":")

    def lds(self, s, name=None):
        self.I(s)
        self.lg.append(name)

    def vmem(self, s, name=None):
        self.I(s)
        self.vm.append(name)

    def need(self, names):
        if isinstance(names, str):
            names = [names]
        w = []
        k = max([i for i, n in enumerate(self.vm) if n in names], default=-1)
        if k >= 0:
            n = min(len(self.vm) - 1 - k, 63)
            w.append(f"vmcnt({n})")
            self.vm = self.vm[len(self.vm) - n:] if n else []
        k = max([i for i, n in enumerate(self.lg) if n in names], default=-1)
        if k >= 0:
            n = min(len(self.lg) - 1 - k, 15)
            w.append(f"lgkmcnt({n})")
            self.lg = self.lg[len(self.lg) - n:] if n else []
        if w:
            self.I("s_waitcnt " + " ".join(w))

    def drain_lg(self):
        self.I("s_waitcnt lgkmcnt(0)")
        self.lg = []

    def drain_vm(self):
        self.I("s_waitcnt vmcnt(0)")
        self.vm = []

    def stamp(self):
        o = self.opt
        if o["stamp"] == 4 and self.nst != o["spinref"]:
            self.nst += 1
        elif o["stamp"]:
            r = sST + 2 * self.nst
            assert r + 1 < 102, "too many stamps"
            self.I(f"s_memrealtime s[{r}:{r+1}]" if o["stamp"] in (1, 4) else f"s_memtime s[{r}:{r+1}]")
            self.nst += 1

    def dump_stamps(self, role):
        o = self.opt
        if not o["stamp"]:
            return
        self.I("s_waitcnt vmcnt(0) lgkmcnt(0)")
        if o["stamp"] == 4:
            if o["spinref"] and role != "c":
                return
            lab = f"L_SPIN{id(self)}"
            self.label(lab)
            self.I(f"s_memrealtime s[{sT1}:{sT1+1}]")
            self.I("s_waitcnt lgkmcnt(0)")
            self.I(f"s_sub_u32 s{sT0}, s{sT1}, s{sST + 2*o['spinref']}")
            self.I(f"s_cmp_lt_u32 s{sT0}, {o['spin']}")
            self.I(f"s_cbranch_scc1 {lab}")
            return
        self.I(f"s_lshl_b32 s{sT0}, s2, 3")
        self.I(f"s_add_u32 s{sT0}, s{sT0}, s{sWAVE}")
        self.I(f"s_lshl_b32 s{sT0}, s{sT0}, 8")
        self.I(f"s_add_u32 s{sT0}, s{sT0}, 0x100000")
        self.I(f"v_mov_b32 v1, s{sT0}")
        for i in range(self.nst):
            self.I(f"v_mov_b32 v2, s{sST + 2*i}")
            self.I(f"global_store_dword v1, v2, s[{sWS}:{sWS+1}] offset:{4*i}")
        self.I(f"v_mov_b32 v2, {self.nst}")
        self.I(f"global_store_dword v1, v2, s[{sWS}:{sWS+1}] offset:252")


def vr(a, n=4):
    return f"v[{a}:{a+n-1}]"


def srd(e, s, lo, nbytes, bias=0):
    if bias:
        e.I(f"s_sub_u32 s{s}, s{lo}, {bias}")
        e.I(f"s_subb_u32 s{s+1}, s{lo+1}, 0")
    else:
        e.I(f"s_mov_b32 s{s}, s{lo}")
        e.I(f"s_mov_b32 s{s+1}, s{lo+1}")
    e.I(f"s_mov_b32 s{s+2}, {nbytes + bias}")
    e.I(f"s_mov_b32 s{s+3}, 0x20000")


def decode_main(e):
    I = e.I
    I(f"s_and_b32 s{sT0}, s2, 7")
    I(f"s_lshl_b32 s{sT0}, s{sT0}, 5")
    I(f"s_add_u32 s{sT0}, s{sT0}, s{sIDX}")
    I(f"s_mul_i32 s{sT0}, s{sT0}, 7")
    I(f"s_lshr_b32 s{sSTRIP}, s{sT0}, 8")
    I(f"s_and_b32 s{sT0}, s{sT0}, 255")
    I(f"s_mul_i32 s{sT0}, s{sT0}, 293")
    I(f"s_lshr_b32 s{sT0}, s{sT0}, 11")
    I(f"s_mul_i32 s{sROW0}, s{sT0}, 6")


def decode_extra(e):
    I = e.I
    I(f"s_and_b32 s{sT0}, s2, 7")
    I(f"s_mul_i32 s{sT0}, s{sT0}, 12")
    I(f"s_sub_u32 s{sT3}, s{sIDX}, 7")
    I(f"s_add_u32 s{sT0}, s{sT0}, s{sT3}")
    I(f"s_mul_i32 s{sT1}, s{sT0}, 21846")
    I(f"s_lshr_b32 s{sT1}, s{sT1}, 16")
    I(f"s_mul_i32 s{sT2}, s{sT1}, 3")
    I(f"s_sub_u32 s{sF0}, s{sT0}, s{sT2}")
    I(f"s_cmp_lt_u32 s{sT3}, 12")
    I(f"s_cselect_b32 s{sHASX}, 1, 0")
    I(f"s_cselect_b32 s{sF0}, s{sF0}, 0")
    I(f"s_cselect_b32 s{sT1}, s{sT1}, 0")
    I(f"s_lshl_b32 s{sES}, s{sT1}, 1")
    I(f"s_and_b32 s{sES}, s{sES}, 12")
    I(f"s_lshr_b32 s{sES}, 0x5310, s{sES}")
    I(f"s_and_b32 s{sES}, s{sES}, 15")
    I(f"s_and_b32 s{sEROW}, s{sT1}, 1")
    I(f"s_add_u32 s{sEROW}, s{sEROW}, 222")
    I(f"s_lshr_b32 s{sT3}, s{sT1}, 3")
    I(f"s_lshl_b32 s{sT3}, s{sT3}, 1")
    I(f"s_and_b32 s{sT2}, s{sT1}, 7")
    I(f"s_add_u32 s{sT2}, s{sT2}, 216")
    I(f"s_cmp_lt_u32 s{sT1}, 8")
    I(f"s_cselect_b32 s{sES}, s{sES}, s{sT3}")
    I(f"s_cselect_b32 s{sEROW}, s{sEROW}, s{sT2}")


def consumer_pro(e, opt):
    I = e.I
    vV, vV2, vT = 1, 2, 3
    vD = [4, 5, 6]
    vU = [7, 253, 254]
    t0, t1, t2, t3, t4 = 8, 9, 10, 11, 12
    sF = [sF0, sF1, sF2]
    decode_extra(e)
    I(f"s_add_u32 s{sF1}, s{sF0}, 1")
    I(f"s_cmp_eq_u32 s{sF1}, 3")
    I(f"s_cselect_b32 s{sF1}, 0, s{sF1}")
    I(f"s_add_u32 s{sF2}, s{sF1}, 1")
    I(f"s_cmp_eq_u32 s{sF2}, 3")
    I(f"s_cselect_b32 s{sF2}, 0, s{sF2}")
    I(f"v_lshrrev_b32 v{t0}, 4, v0")
    I(f"s_mul_i32 s{sT0}, s{sWAVE}, 96")
    I(f"v_lshlrev_b32 v{t4}, 3, v{t0}")
    I(f"v_add_u32 v{t4}, s{sT0}, v{t4}")
    for s in range(3):
        I(f"s_lshl_b32 s{sT1}, s{sF[s]}, 5")
        I(f"v_add_u32 v{13+s}, s{sT1}, v{t4}")
    if opt["w_pf"]:
        I(f"s_mul_i32 s{sT1}, s{sIDX}, 36")
        I(f"v_min_u32 v{t1}, 35, v0")
        I(f"v_add_u32 v{t1}, s{sT1}, v{t1}")
        I(f"v_mul_u32_u24 v{t2}, 10923, v{t1}")
        I(f"v_lshrrev_b32 v{t2}, 21, v{t2}")
        I(f"v_add_u32 v{t3}, 1, v{t2}")
        I(f"v_lshrrev_b32 v{t3}, 1, v{t3}")
        I(f"v_mul_u32_u24 v{t3}, 576, v{t3}")
        I(f"v_mul_u32_u24 v{t2}, 384, v{t2}")
        I(f"v_add3_u32 v{t1}, v{t1}, v{t2}, v{t3}")
        I(f"v_lshlrev_b32 v{t1}, 7, v{t1}")
        I(f"v_add_u32 v252, 2048, v{t1}")
    I("s_waitcnt lgkmcnt(0)")
    srd(e, sB, sKA + 4, 384)
    srd(e, sW, sKA + 2, WBYTES, 2048)
    srd(e, sU, sWS, UBYTES)
    if opt["w_pf"]:
        I(f"s_cmp_ge_u32 s{sWAVE}, 1")
        I("s_cbranch_scc1 L_NOWPF")
        I(f"buffer_load_dword v255, v252, s[{sW}:{sW+3}], 0 offen")
        e.label("L_NOWPF")
    if opt["code_pf"]:
        I(f"s_cmp_eq_u32 s{sWAVE}, 2")
        I("s_cbranch_scc0 L_NOCPF")
        I(f"s_getpc_b64 s[{sPC}:{sPC+1}]")
        e.label("L_PC0")
        I(f"s_sub_u32 s{sPC}, s{sPC}, L_PC0-{KNAME}")
        I(f"s_subb_u32 s{sPC+1}, s{sPC+1}, 0")
        I(f"s_mul_i32 s{sT1}, s{sIDX}, {opt['code_pf_lines']*128}")
        I(f"v_min_u32 v252, {opt['code_pf_lines']-1}, v0")
        I(f"v_lshl_add_u32 v252, v252, 7, s{sT1}")
        I(f"v_min_u32 v252, L_END-{KNAME}, v252")
        I(f"global_load_dword v255, v252, s[{sPC}:{sPC+1}]")
        e.label("L_NOCPF")
    for s in range(3):
        e.vmem(f"buffer_load_dwordx2 {vr(16+2*s, 2)}, v{13+s}, s[{sB}:{sB+3}], 0 offen", "bias")
    I(f"v_and_b32 v{t1}, 15, v0")
    I(f"v_xor_b32 v{t2}, v{t0}, v{t1}")
    I(f"v_lshl_add_u32 v{t2}, v{t0}, 4, v{t2}")
    I(f"v_lshlrev_b32 v{vV}, 4, v{t2}")
    I(f"v_add_u32 v{vV2}, 0x8000, v{vV}")
    I(f"s_mul_i32 s{sRING}, s{sWAVE}, {WWAVE}")
    I(f"s_add_u32 s{sRING}, s{sRING}, {WRING}")
    I(f"v_lshrrev_b32 v{t2}, 2, v0")
    I(f"v_mul_u32_u24 v{t2}, 96, v{t2}")
    I(f"v_and_b32 v{t3}, 3, v0")
    I(f"v_lshl_add_u32 v{t2}, v{t3}, 3, v{t2}")
    I(f"v_add_u32 v{vT}, s{sRING}, v{t2}")
    for d in range(3):
        I(f"v_add_u32 v{t1}, {64*d}, v0")
        I(f"v_mul_u32_u24 v{t2}, 43691, v{t1}")
        I(f"v_lshrrev_b32 v{t2}, 18, v{t2}")
        I(f"v_mul_u32_u24 v{t3}, 6, v{t2}")
        I(f"v_sub_u32 v{t1}, v{t1}, v{t3}")
        I(f"v_bfe_u32 v{t3}, v{t2}, 2, 2")
        I(f"v_lshlrev_b32 v{t3}, 3, v{t3}")
        I(f"v_lshrrev_b32 v{t4}, 4, v{t2}")
        I(f"v_lshl_add_u32 v{t3}, v{t4}, 2, v{t3}")
        I(f"v_and_b32 v{t2}, 3, v{t2}")
        I(f"v_add_u32 v{t2}, v{t2}, v{t3}")
        I(f"v_mul_u32_u24 v{t2}, 384, v{t2}")
        I(f"v_lshrrev_b32 v{t3}, 1, v{t1}")
        I(f"v_add_u32 v{t3}, s{sF0}, v{t3}")
        I(f"v_subrev_u32 v{t4}, 3, v{t3}")
        I(f"v_min_u32 v{t3}, v{t3}, v{t4}")
        I(f"v_lshl_add_u32 v{t2}, v{t3}, 5, v{t2}")
        I(f"v_and_b32 v{t1}, 1, v{t1}")
        I(f"v_lshl_add_u32 v{t2}, v{t1}, 4, v{t2}")
        I(f"v_add_u32 v{t2}, s{sT0}, v{t2}")
        I(f"v_add_u32 v{vD[d]}, {2048 - 1024*d}, v{t2}")
    I(f"s_mul_i32 s{sT1}, s{sWAVE}, 9216")
    for s in range(3):
        I(f"s_mul_i32 s{sT0}, s{sF[s]}, 3072")
        I(f"s_add_u32 s{sT0}, s{sT0}, s{sT1}")
        I(f"v_lshl_add_u32 v{vU[s]}, v0, 4, s{sT0}")
    I(f"s_cmp_eq_u32 s{sHASX}, 0")
    I("s_cbranch_scc1 L_CN")


def consumer(parent, opt, extra):
    e = Em(opt, parent)
    I = e.I
    vV, vV2, vT = 1, 2, 3
    vD = [4, 5, 6]
    vU = [7, 253, 254]
    vO = vD
    vOX, vFL, vONE, vCK = 3, 255, 252, 0
    VR = 8
    WB = [24, 60]
    ACC = 96
    acc = {}
    for m in range(6):
        for st in range(2):
            for s in range(3):
                acc[(m, st, s)] = ACC + 4 * ((m * 2 + st) * 3 + s)
    acc[("X", 0)] = 240
    acc[("X", 1)] = 244
    spare = [248]
    sF = [sF0, sF1, sF2]
    tag = "x" if extra else "n"

    def W(step, i, s):
        return WB[step & 1] + 4 * (i * 3 + s)

    def dma_ops(step, i):
        kind, st, c = step_info(step)
        slot = (step & 1) * 3 + i
        ops = [("S", lambda: I(f"s_add_u32 m0, s{sRING}, {slot*3072}")),
               ("S", lambda: I(f"s_mov_b32 s{sOFF2}, {(i*3+2*st)*73728 + c*12288}"))]
        for d in range(3):
            def f(d=d):
                e.need([f"w{step-2}_{i}"])
                e.vmem(f"buffer_load_dwordx4 v{vD[d]}, s[{sW}:{sW+3}], s{sOFF2} offen offset:{1024*d} lds", f"dma{step}_{i}")
            ops.append(("M", f))
        return ops

    def tr_ops(step, i):
        slot = (step & 1) * 3 + i
        ops = []
        for s in range(3):
            for h in range(2):
                def f(s=s, h=h):
                    e.need([f"dma{step}_{i}"])
                    e.lds(f"ds_read_b64_tr_b16 {vr(W(step, i, s) + 2*h, 2)}, v{vT} offset:{slot*3072 + h*1536 + s*32}", f"w{step}_{i}")
                ops.append(("WR" if s == 0 and h == 0 else "R", f))
        return ops

    def u_op(step, i, s):
        if opt["d_nou"] and step > 9:
            return ("S", lambda: I("s_nop 0"))
        return ("M", lambda: e.vmem(f"buffer_load_dwordx4 {vr(W(step, i, s))}, v{vU[s]}, s[{sU}:{sU+3}], s{sOFF} offen offset:{1024*i} {opt['uf']}", f"w{step}_{i}"))

    def u_off(step):
        kind, st, c = step_info(step)
        pos = st if kind == "B" else 2 + st
        return ("S", lambda: I(f"s_mov_b32 s{sOFF}, {(pos*6+c)*36864}"))

    I(f"v_lshlrev_b32 v8, 3, v0")
    I(f"v_add_u32 v8, {FLAGS}, v8")
    I(f"v_mov_b32 v10, 0")
    I(f"v_mov_b32 v11, 0")
    I(f"ds_write_b64 v8, v[10:11]")
    I("s_waitcnt lgkmcnt(0)")
    e.stamp()
    I("s_barrier")
    for i in range(3):
        for c, f in dma_ops(0, i):
            f()
    if opt["pro"] == "alpha":
        I("s_barrier")
    w1late = opt["w1late"] == 2 or (opt["w1late"] == 1 and not extra)
    if not w1late:
        for i in range(3):
            for c, f in dma_ops(1, i):
                f()
    e.need("bias")
    for s in range(3):
        a, b = acc[(5, 0, s)], acc[(5, 1, s)]
        I(f"v_lshlrev_b32 v{a}, 16, v{16+2*s}")
        I(f"v_and_b32 v{a+1}, s{sMASK}, v{16+2*s}")
        I(f"v_lshlrev_b32 v{a+2}, 16, v{17+2*s}")
        I(f"v_and_b32 v{a+3}, s{sMASK}, v{17+2*s}")
        for k in range(4):
            I(f"v_xor_b32 v{b+k}, s{sINV}, v{a+k}")
    for i in range(3):
        for c, f in tr_ops(0, i):
            f()
    if w1late:
        for i in range(3):
            for c, f in dma_ops(1, i):
                f()
    if opt["w2pre"]:
        for i in range(3):
            for c, f in dma_ops(2, i):
                f()
    I(f"s_lshl_b32 s{sT0}, s{sWAVE}, 2")
    I(f"s_add_u32 s{sT0}, s{sT0}, {FLAGS}")
    I(f"v_mov_b32 v{vFL}, s{sT0}")
    I(f"v_mov_b32 v{vONE}, 1")
    if opt["prio"]:
        I(f"s_setprio {opt['prio']}")
    e.stamp()

    groups = []

    def g_row(step, r):
        st = step_info(step)[1]
        mf = []
        for i in (2, 1, 0):
            m = r - i
            if 0 <= m <= 5:
                for s in range(3):
                    mf.append(((m, st, s), i, s))
        return dict(step=step, row=r, mf=mf)

    def g_x(step, i):
        return dict(step=step, row=8 + i, mf=[(("X", step_info(step)[1]), i, 0)])

    for step in range(22):
        seq = [g_row(step, 0), g_row(step, 1), g_x(step, 0), g_row(step, 2), g_x(step, 1), g_row(step, 3),
               g_x(step, 2), g_row(step, 4), g_row(step, 5), g_row(step, 6), g_row(step, 7)]
        groups += [g for g in seq if extra or g["row"] < 8]
    lag = opt["lag"]
    for r in range(8 + lag):
        if r < 8:
            groups.append(g_row(22, r))
            if extra and 1 <= r <= 3:
                groups.append(g_x(22, r - 1))
        if r >= lag:
            groups.append(g_row(23, r - lag))
            if extra and 2 <= r - lag <= 4:
                groups.append(g_x(23, r - lag - 2))

    stream = []
    gstart = []
    for gi, g in enumerate(groups):
        gstart.append(len(stream))
        for (key, i, s) in g["mf"]:
            stream.append((gi, key, i, s))
    N = len(stream)
    gend = [gstart[k + 1] - 1 if k + 1 < len(groups) else N - 1 for k in range(len(groups))]
    step_start, step_end = {}, {}
    last_use, last_acc, first_acc, first_tap = {}, {}, {}, {}
    for gi, g in enumerate(groups):
        step_start.setdefault(g["step"], gstart[gi])
        step_end[g["step"]] = gend[gi]
    for n, (gi, key, i, s) in enumerate(stream):
        st = groups[gi]["step"]
        last_use[(st, i, s)] = n
        last_acc[(st, key)] = n
        first_acc.setdefault((st, key), n)
        first_tap.setdefault((st, i), n)
    SL = step_start[1] - step_start[0]

    fill = [[] for _ in range(N + 1)]
    cl = [""] * (N + 1)
    endw = [""] * (N + 1)
    for gi in range(1, len(groups)):
        endw[gstart[gi] - 1] = "W"
    for (st, i), n in first_tap.items():
        if n:
            endw[n - 1] = "W"

    def put(g, op):
        fill[g].append(op[1])
        cl[g] += op[0]

    def addcost(g, c, cur):
        base = cur.get(g, cl[g])
        return gapcost(base + c + endw[g]) - gapcost(base + endw[g])

    def place(g0, ops, deadline=None, per=2, strict=False):
        for budget in range(0, len(ops) + 1):
            cur = {}
            res = []
            g, n, left = g0, 0, budget
            for c, f in ops:
                free = 4 if c == "D" else 0
                while g < N:
                    if n < per:
                        ac = addcost(g, c, cur)
                        if ac <= free:
                            break
                        if left and ac <= free + 4:
                            left -= 1
                            break
                    g += 1
                    n = 0
                g = min(g, N)
                cur[g] = cur.get(g, cl[g]) + c
                res.append(g)
                n += 1
            if deadline is None or res[-1] <= deadline:
                break
        else:
            assert not strict, (g0, deadline, res[-1])
        for g, op in zip(res, ops):
            put(g, op)
        return res[-1]

    def vread(gi):
        g = groups[gi]
        u = g["step"] >> 1
        off = VS[u % 3] + (g["step"] & 1) * VHALF + g["row"] * 1024
        base = vV
        if off >= 0x8000:
            base, off = vV2, off - 0x8000
        r = VR + 4 * (gi % 4)
        return ("R", lambda: e.lds(f"ds_read_b128 {vr(r)}, v{base} offset:{off}", f"v{gi}"))

    first_of_unit = {}
    for gi, g in enumerate(groups):
        first_of_unit.setdefault(g["step"] >> 1, gi)
    def flag(k):
        return ("d", lambda: e.lds(f"ds_write_b32 v{vFL}, v{vONE} offset:{k*16}"))

    def ckread(off, name):
        return ("R", lambda: e.lds(f"ds_read_b32 v{vCK}, v{vV2} offset:{FLAGS - 0x8000 + off}", name))

    def check1(name):
        def f():
            e.need(name)
            I(f"v_readfirstlane_b32 s{sT0}, v{vCK}")
        return f

    def check(off, val, name, st=False):
        def f():
            lab = f"L_CK{tag}{name}"
            I(f"s_cmp_eq_u32 s{sT0}, {val}")
            I(f"s_cbranch_scc0 {lab}_spin")
            e.label(lab)
            if st and opt["cst"] < 0:
                e.stamp()
            cold.append(f"{lab}_spin:")
            cold.append(f"    ds_read_b32 v{vCK}, v{vV2} offset:{FLAGS - 0x8000 + off}")
            cold.append("    s_waitcnt lgkmcnt(0)")
            cold.append(f"    v_readfirstlane_b32 s{sT0}, v{vCK}")
            cold.append(f"    s_cmp_eq_u32 s{sT0}, {val}")
            cold.append(f"    s_cbranch_scc0 {lab}_spin")
            cold.append(f"    s_branch {lab}")
        return f

    cold = []
    bar_gap = {}
    rpos = {}
    for gi in range(4, len(groups)):
        g = gend[gi - 4]
        if opt["rsh"] and len(groups[gi - 3]["mf"]) > 1 and g - 0 >= rpos.get(gi - 1, -1):
            g += 1
        g = max(g, rpos.get(gi - 1, -1) + 1)
        rpos[gi] = g
        put(g, vread(gi))
    for u in range(1, 12):
        gi = first_of_unit[u]
        gp = gend[gi - 4]
        bar_gap[u] = gp - 1
        put(gp - 2, ("WV", check1(f"rdy{u}")))
        put(gp - 1, ("SS", check(448 + 4 * u, 4, f"rdy{u}", True)))
        gq = gp - (7 if opt["rsh"] else 8)
        assert place(gq, [ckread(448 + 4 * u, f"rdy{u}")]) < gp - 4
        if u - 1 <= 8:
            place(gstart[gi - 1], [flag(16 + u - 1)])

    g = 0
    gtr1 = 0
    k = 0
    for step in ((3,) if opt["w2pre"] else (2, 3)):
        for i in range(3):
            if step == 3:
                gtr1 = place(max(gtr1, opt["tr1at"] + (14 if w1late else 0) + 8 * i), tr_ops(1, i), per=1) + 1
                g = max(g, gtr1 + opt['trd'])
            ops = dma_ops(step, i)
            g = place(max(g, int(k * opt["dsp"])), ops[:2])
            for d in range(3):
                g = place(max(g + 1, int(k * opt["dsp"]) + 1), [ops[2 + d]])
                k += 1
    place(g + 1, [flag(31)])
    for step in (2, 3):
        g = step_start[step - 1] + SL - 24
        for i in range(3):
            g = max(g, max(last_use[(step - 2, i, s)] for s in range(3)))
            g = place(g, tr_ops(step, i), per=1, deadline=first_tap[(step, i)] - 4) + 1

    gchk = step_start[3] - opt["ulead0"] - 3

    place(gchk - 10, [ckread(240, "uflag")])
    put(gchk - 1, ("WV", check1("uflag")))
    put(gchk, ("SS", check(240, 1, "uflag")))
    g = gchk + 1
    go_gap = None
    for step in range(4, 24):
        base = step_start[step - 1] - opt["ulead"]
        stp = opt["ustep"] * SL / 57
        if step == 4:
            base, stp = gchk + 2, opt["ustep0"]
        if step == 23:
            base, stp = last_use[(21, 0, 0)], 2
        k = 0
        for i in range(3):
            for s in range(3):
                tgt = max(base + int(k * stp), last_use[(step - 2, i, s)], g)
                if k == 0:
                    g = place(max(g, tgt - 2), [u_off(step)])
                    tgt = max(tgt, g + 1)
                g = place(tgt, [u_op(step, i, s)]) + 1
                k += 1
        if step == opt["go"]:
            go_gap = g

    def bfly_ops(k0, k1, first):
        ops = []
        if first:
            o0, o1, md = "v_sub_f32_e64", "v_add_f32_e64", " div:2"
        else:
            o0, o1, md = "v_add_f32", "v_sub_f32", ""
        for k in range(4):
            ops.append(("V", lambda k=k: I(f"{o0} v{spare[0]+k}, v{acc[k0]+k}, v{acc[k1]+k}{md}")))
        for k in range(4):
            def f(k=k):
                I(f"{o1} v{acc[k1]+k}, v{acc[k0]+k}, v{acc[k1]+k}{md}")
                if k == 3:
                    acc[k0], spare[0] = spare[0], acc[k0]
            ops.append(("V", f))
        return ops

    order = [0, 1, "X", 2, 3, 4, 5] if extra else [0, 1, 2, 3, 4, 5]
    fb = [u for u in range(12) if UNITS[u][0] == "B"]
    y0last = 2 * max(u for u in range(12) if UNITS[u][1] == 0) + 1
    for last, first in ((2 * fb[0] - 1, True), (2 * fb[-1] + 1, False)):
        blocks = []
        for m in order:
            keys = [((m, 0, s), (m, 1, s)) for s in range(3)] if m != "X" else [(("X", 0), ("X", 1))]
            for (k0, k1) in keys:
                blocks.append((last_acc[(last, k1)] + 8, first_acc[(last + 1, k0)] - 3, k0, k1))
        dl = [b[1] for b in blocks]
        for k in range(len(dl) - 2, -1, -1):
            dl[k] = min(dl[k], dl[k + 1] - opt.get("bsp", 4))
        g = 0
        for (rdy, _, k0, k1), d in zip(blocks, dl):
            g = place(max(g, rdy), bfly_ops(k0, k1, first), deadline=d, per=3)
            assert g <= _, (last, k0, g, _)

    def oaddr():
        ops = []
        A = lambda s: ops.append((s[0].upper(), lambda: I(s)))
        t, q = vO[1], vO[2]
        A(f"v_lshrrev_b32 v{q}, 8, v{vV}")
        A(f"v_bfe_u32 v{t}, v{vV}, 4, 4")
        A(f"v_xor_b32 v{t}, v{t}, v{q}")
        A(f"v_lshlrev_b32 v{q}, 3, v{q}")
        A(f"s_lshl_b32 s{sT1}, s{sWAVE}, 5")
        A(f"s_add_u32 s{sT1}, s{sT1}, {XST}")
        A(f"v_mul_u32_u24 v{vOX}, 144, v{t}")
        A(f"v_add3_u32 v{vOX}, v{vOX}, v{q}, s{sT1}")
        A(f"v_mul_u32_u24 v{t}, 400, v{t}")
        A(f"v_add_u32 v{q}, v{t}, v{q}")
        A(f"s_mul_i32 s{sT1}, s{sWAVE}, 96")
        A(f"s_add_u32 s{sT1}, s{sT1}, {OUT}")
        for s in range(3):
            A(f"s_lshl_b32 s{sT2}, s{sF[s]}, 5")
            A(f"s_add_u32 s{sT2}, s{sT2}, s{sT1}")
            A(f"v_add_u32 v{vO[s]}, s{sT2}, v{q}")
        return ops
    place(step_start[10], oaddr())

    def epi_ops(key, addr, off):
        return [("V", lambda: I(f"v_cvt_pk_bf16_f32 v{acc[key]}, v{acc[key]}, v{acc[key]+1}")),
                ("V", lambda: I(f"v_cvt_pk_bf16_f32 v{acc[key]+1}, v{acc[key]+2}, v{acc[key]+3}")),
                ("D", lambda: e.lds(f"ds_write_b64 v{addr}, {vr(acc[key], 2)} offset:{off}"))]

    place(go_gap, [flag(14)])
    g = 0
    tail_nop = False
    for st, last in ((0, y0last), (1, 23)):
        if st == 0:
            g = last_acc[(y0last, (0, 0, 0))] + opt["y0at"]
        if st == 1:
            g = place(g, [("V", lambda s=s: I(f"v_add_u32 v{vO[s]}, {6*OROW}, v{vO[s]}")) for s in range(3)])
        for m in order:
            if m == "X":
                g = max(g, last_acc[(last, ("X", st))] + 8)
                g = place(g, epi_ops(("X", st), vOX, 2304 * st) + [flag(12 + st)])
                continue
            ops = []
            n = max(last_acc[(last, (m, st, s))] for s in range(3)) - 2
            if n + 8 > N:
                if not tail_nop:
                    put(N, ("S", lambda: I("s_nop 7")))
                    tail_nop = True
                g = N
            g = max(g, min(n + 8, N))
            o3 = [epi_ops((m, st, s), vO[s], m * OROW) for s in range(3)]
            ops = o3[0] + o3[1] + o3[2] + [flag(6 * st + m)]
            g = place(g, ops)

    if opt["cst"] >= 0:
        for k in range(15):
            g = step_start[opt["cst"]] + k * opt["cev"]
            if g < N:
                fill[g].append(e.stamp)
    ckread(448, "rdy0")[1]()
    check1("rdy0")()
    check(448, 4, "rdy0")()
    e.stamp()
    for gi in range(4):
        vread(gi)[1]()
    started = set()
    for n, (gi, key, i, s) in enumerate(stream):
        step = groups[gi]["step"]
        kind, st, c = step_info(step)
        e.need([f"v{gi}", f"w{step}_{i}"])
        d = acc[key]
        cc = d
        if step in (0, 2) and key not in started:
            started.add(key)
            cc = acc[(5, st, s)]
        I(f"v_mfma_f32_16x16x32_bf16 {vr(d)}, {vr(W(step, i, s))}, {vr(VR + 4*(gi % 4))}, {vr(cc)}")
        for f in fill[n]:
            f()
    e.stamp()
    for f in fill[N]:
        f()
    e.stamp()
    e.dump_stamps("c")
    I("s_endpgm")
    return e.L + cold


xA, xB, xC, eA, eB, eC = 1, 2, 3, 4, 5, 6
wE = [7, 8, 9, 10]
wX = [11, 12]
TMP = 13
OB = 26
RAW = 58
RAWX = 178


def PD(p, j):
    return RAW + 40 * p + 4 * j


def PX(p, j):
    return RAWX + 24 * p + 4 * j


def xload(e, p, j):
    a, off = (xA, 0) if j == 0 else ((xC, 0) if j == 9 else (xB, (j - 1) * 384))
    e.vmem(f"buffer_load_dwordx4 {vr(PD(p, j))}, v{a}, s[{sX}:{sX+3}], 0 offen offset:{off + 128*p} {e.opt['xf']}", f"x{p}_{j&1}")


def eload(e, p, j):
    a, off = (eA, 0) if j == 0 else ((eC, 0) if j == 5 else (eB, (j - 1) * 384))
    e.vmem(f"buffer_load_dwordx4 {vr(PX(p, j))}, v{a}, s[{sX}:{sX+3}], 0 offen offset:{off + 128*p} {e.opt['xf']}", f"e{p}_{j&1}")


PRE = VS[2]


def worker_pre(e, opt):
    I = e.I
    t1, t2, t3 = 14, 15, 16
    I(f"s_and_b32 s{sT0}, s2, 7")
    I(f"s_cmp_lt_u32 s{sIDX}, 6")
    I(f"s_cselect_b32 s{sT2}, s{sIDX}, s{sT0}")
    I(f"s_cselect_b32 s{sT0}, s{sT0}, 8")
    I(f"s_mul_i32 s{sT1}, s{sT0}, 11")
    I(f"s_lshr_b32 s{sT1}, s{sT1}, 5")
    I(f"s_mul_i32 s{sT3}, s{sT1}, 3")
    I(f"s_sub_u32 s{sT0}, s{sT0}, s{sT3}")
    I(f"s_lshl_b32 s{sT0}, s{sT0}, 2")
    I(f"s_add_u32 s{sT0}, s{sT0}, s{sPW}")
    I(f"s_mul_i32 s{sOFF}, s{sT1}, {3*73728}")
    I(f"s_mul_i32 s{sOFF2}, s{sT2}, 12288")
    I(f"s_add_u32 s{sOFF}, s{sOFF}, s{sOFF2}")
    I(f"s_lshl_b32 s{sOFF2}, s{sT0}, 5")
    I(f"s_add_u32 s{sOFF}, s{sOFF}, s{sOFF2}")
    I(f"v_bfe_u32 v{t1}, v0, 3, 2")
    I(f"v_lshlrev_b32 v{t1}, 3, v{t1}")
    I(f"v_lshrrev_b32 v{t2}, 5, v0")
    I(f"v_lshl_add_u32 v{t1}, v{t2}, 2, v{t1}")
    I(f"v_bfe_u32 v{t2}, v0, 1, 2")
    I(f"v_add_u32 v{t1}, v{t1}, v{t2}")
    I(f"v_mul_u32_u24 v{t1}, 384, v{t1}")
    I(f"v_and_b32 v{t2}, 1, v0")
    I(f"v_lshl_add_u32 v{eA}, v{t2}, 4, v{t1}")
    I(f"s_mul_i32 s{sRING}, s{sPW}, 3072")
    I(f"s_add_u32 s{sRING}, s{sRING}, {PRE}")
    I(f"s_mov_b32 m0, s{sRING}")
    I("s_waitcnt lgkmcnt(0)")
    srd(e, sW, sKA + 2, WBYTES)
    for j in range(3):
        e.vmem(f"buffer_load_dwordx4 v{eA}, s[{sW}:{sW+3}], s{sOFF} offen lds", "pre")
        if j < 2:
            I(f"s_add_u32 m0, s{sRING}, {1024*(j+1)}")
            I(f"s_add_u32 s{sOFF}, s{sOFF}, 73728")
    I(f"s_cmp_lt_u32 s{sT2}, 6")
    I(f"s_cselect_b32 s{sCNT}, 0, s{sINV}")
    I(f"s_mul_i32 s{sOFF}, s{sT2}, 36864")
    I(f"s_mul_i32 s{sT0}, s{sT0}, 3")
    I(f"s_add_u32 s{sT0}, s{sT0}, s{sT1}")
    I(f"s_lshl_b32 s{sT0}, s{sT0}, 10")
    I(f"s_add_u32 s{sOFF}, s{sOFF}, s{sT0}")
    I(f"s_or_b32 s{sOFF}, s{sOFF}, s{sCNT}")
    I(f"v_lshl_add_u32 v{eB}, v0, 4, s{sOFF}")


def producer_main(e, opt):
    I = e.I
    t0, t1, t2, t3 = 13, 14, 15, 16
    decode_main(e)
    I(f"v_and_b32 v{t0}, 3, v0")
    I(f"v_bfe_u32 v{t1}, v0, 2, 2")
    I(f"v_bfe_u32 v{t2}, v0, 4, 1")
    I(f"v_lshrrev_b32 v{wE[0]}, 5, v0")
    I(f"s_lshl_b32 s{sT0}, s{sPW}, 1")
    I(f"s_add_u32 s{sT0}, s{sT0}, s{sROW0}")
    I(f"s_mul_i32 s{sT0}, s{sT0}, 86016")
    I(f"s_mul_i32 s{sT1}, s{sSTRIP}, 12288")
    I(f"s_add_u32 s{sT0}, s{sT0}, s{sT1}")
    I(f"s_sub_u32 s{sT0}, s{sT0}, 86016")
    I(f"v_mul_u32_u24 v{t3}, 86016, v{t2}")
    I(f"v_lshl_add_u32 v{t3}, v{t0}, 4, v{t3}")
    I(f"v_lshl_add_u32 v{t3}, v{wE[0]}, 6, v{t3}")
    I(f"v_mul_u32_u24 v{xB}, 3072, v{t1}")
    I(f"v_add3_u32 v{xB}, v{xB}, v{t3}, s{sT0}")
    I(f"v_cmp_gt_i32 vcc, 0, v{xB}")
    I(f"v_lshl_add_u32 v{t3}, s{sSTRIP}, 2, v{t1}")
    I(f"v_mov_b32 v{xC}, s{sINV}")
    I(f"v_cndmask_b32 v{xB}, v{xB}, v{xC}, vcc")
    I(f"v_cmp_ne_u32 vcc, 0, v{t3}")
    I(f"v_subrev_u32 v{xA}, 384, v{xB}")
    I(f"v_add_u32 v{wE[1]}, 3072, v{xB}")
    I(f"v_cndmask_b32 v{xA}, v{xC}, v{xA}, vcc")
    I(f"v_cmp_ne_u32 vcc, 27, v{t3}")
    I("s_waitcnt lgkmcnt(0)")
    srd(e, sX, sKA, XBYTES)
    I(f"v_cndmask_b32 v{xC}, v{xC}, v{wE[1]}, vcc")
    for j in (0, 2, 4, 6, 8):
        xload(e, 0, j)


def producer(parent, opt, kind):
    e = Em(opt, parent)
    I = e.I
    t0, t1, t2, t3, t4 = 13, 14, 15, 16, 17
    X = kind == "x"
    G = RAWX
    if kind == "w":
        srd(e, sU, sWS, UBYTES)
        I(f"v_lshrrev_b32 v{eC}, 2, v0")
        I(f"v_lshlrev_b32 v{eC}, 5, v{eC}")
        I(f"v_lshl_add_u32 v{eC}, v{t0}, 3, v{eC}")
        I(f"v_add_u32 v{eC}, s{sRING}, v{eC}")
        if opt["pst"] == 2:
            e.stamp()
        e.need("pre")
        if opt["pst"] == 2:
            e.stamp()
        for j in range(3):
            for h in range(2):
                e.lds(f"ds_read_b64_tr_b16 {vr(G + 4*j + 2*h, 2)}, v{eC} offset:{1024*j + 512*h}", f"pt{j}")
        U = G + 12
        for j in (0, 2, 1):
            e.need(f"pt{j}")
            for k in range(4):
                I(f"v_lshlrev_b32 v{U + 8*j + 2*k}, 16, v{G + 4*j + k}")
                I(f"v_and_b32 v{U + 8*j + 2*k + 1}, s{sMASK}, v{G + 4*j + k}")
            if j == 2:
                for kk in range(8):
                    I(f"v_add_f32 v{U+kk}, v{U+kk}, v{U+16+kk}")
        for kk in range(8):
            I(f"v_sub_f32_e64 v{U+16+kk}, v{U+kk}, v{U+8+kk} div:2")
            I(f"v_add_f32_e64 v{U+kk}, v{U+kk}, v{U+8+kk} div:2")
        for k in range(4):
            I(f"v_cvt_pk_bf16_f32 v{G+36+k}, v{U+2*k}, v{U+2*k+1}")
            I(f"v_cvt_pk_bf16_f32 v{G+40+k}, v{U+16+2*k}, v{U+16+2*k+1}")
        for pos, r in ((0, G + 36), (1, G + 40), (2, G), (3, G + 8)):
            I(f"s_mov_b32 s{sOFF}, {pos*6*36864}")
            e.vmem(f"buffer_store_dwordx4 {vr(r)}, v{eB}, s[{sU}:{sU+3}], s{sOFF} offen sc1", "ust")
        if opt["pst"]:
            e.stamp()
    if kind == "n" and opt["xo"] and opt["pro"] != "alpha":
        for j in (1, 3, 5, 7, 9):
            xload(e, 0, j)
    I(f"s_lshl_b32 s{sT0}, s{sPW}, 1")
    I(f"v_add_u32 v{t2}, s{sT0}, v{t2}")
    I(f"v_mul_u32_u24 v{wE[0]}, {VHALF}, v{wE[0]}")
    I(f"v_lshl_add_u32 v{wE[0]}, v{t2}, 10, v{wE[0]}")
    I(f"v_lshlrev_b32 v{t3}, 2, v{t1}")
    I(f"v_lshl_add_u32 v{t3}, v{t0}, 4, v{t3}")
    I(f"v_add_u32 v{t3}, v{t3}, v{t0}")
    I(f"v_lshl_add_u32 v{wE[0]}, v{t3}, 4, v{wE[0]}")
    for k in range(1, 4):
        I(f"v_xor_b32 v{wE[k]}, {16*k}, v{wE[0]}")
    decode_extra(e)
    srd(e, sO, sKA + 6, XBYTES)
    if X:
        I(f"v_bfe_u32 v{t1}, v0, 2, 1")
        I(f"v_lshlrev_b32 v{t1}, 1, v{t1}")
        I(f"v_bfe_u32 v{t2}, v0, 3, 1")
        I(f"v_bfe_u32 v{t3}, v0, 4, 1")
        I(f"v_lshlrev_b32 v{t3}, 2, v{t3}")
        I(f"v_or3_b32 v{t1}, v{t1}, v{t2}, v{t3}")
        I(f"s_add_u32 s{sT0}, s{sEROW}, s{sPW}")
        I(f"s_sub_u32 s{sT0}, s{sT0}, 1")
        I(f"s_mul_i32 s{sT1}, s{sT0}, 86016")
        I(f"s_cmp_lt_u32 s{sT0}, 224")
        I(f"s_cselect_b32 s{sT1}, s{sT1}, s{sINV}")
        I(f"s_lshl_b32 s{sT0}, s{sES}, 5")
        I(f"v_lshl_add_u32 v{t4}, v{t1}, 2, s{sT0}")
        I(f"v_mul_u32_u24 v{t2}, 384, v{t4}")
        I(f"v_lshl_add_u32 v{t2}, v{t0}, 4, v{t2}")
        I(f"v_lshrrev_b32 v{t3}, 5, v0")
        I(f"v_lshl_add_u32 v{t2}, v{t3}, 6, v{t2}")
        I(f"v_add_u32 v{eB}, s{sT1}, v{t2}")
        I(f"v_cmp_ne_u32 vcc, 0, v{t4}")
        I(f"v_subrev_u32 v{t2}, 384, v{eB}")
        I(f"v_mov_b32 v{eA}, s{sINV}")
        I(f"v_cndmask_b32 v{eA}, v{eA}, v{t2}, vcc")
        I(f"v_cmp_ne_u32 vcc, 220, v{t4}")
        I(f"v_add_u32 v{t2}, 1536, v{eB}")
        I(f"v_mov_b32 v{eC}, s{sINV}")
        I(f"v_cndmask_b32 v{eC}, v{eC}, v{t2}, vcc")
        for j in (0, 2, 4):
            eload(e, 0, j)
        if opt["pro"] != "alpha":
            if opt["xo"]:
                for j in (1, 3, 5, 7, 9):
                    xload(e, 0, j)
            for j in (1, 3, 5):
                eload(e, 0, j)
        I(f"v_lshlrev_b32 v{t1}, 1, v{t1}")
        I(f"v_xor_b32 v{t1}, v{t1}, v{t0}")
        I(f"v_lshl_add_u32 v{t1}, v{t0}, 4, v{t1}")
        I(f"v_lshlrev_b32 v{t1}, 4, v{t1}")
        I(f"v_mul_u32_u24 v{t3}, {VHALF}, v{t3}")
        I(f"s_add_u32 s{sT0}, s{sPW}, 8")
        I(f"s_lshl_b32 s{sT0}, s{sT0}, 10")
        I(f"v_add3_u32 v{wX[0]}, v{t1}, v{t3}, s{sT0}")
        I(f"v_xor_b32 v{wX[1]}, 16, v{wX[0]}")
    else:
        I(f"s_cmp_eq_u32 s{sPW}, 3")
        I(f"s_cselect_b32 s{sPEND}, 1, 0")
        if opt["rpf"] == 1:
            I(f"s_mul_i32 s{sT0}, s{sIDX}, {18*128}")
            I(f"v_min_u32 v253, 17, v0")
            I(f"v_lshl_add_u32 v253, v253, 7, s{sT0}")
        elif opt["rpf"] == 2:
            I(f"s_sub_u32 s{sT0}, s{sIDX}, 12")
            I(f"s_cmp_lt_u32 s{sIDX}, 7")
            I(f"s_cselect_b32 s{sT0}, s{sIDX}, s{sT0}")
            I(f"s_mul_i32 s{sT1}, s{sT0}, 13")
            I(f"s_lshr_b32 s{sT1}, s{sT1}, 6")
            I(f"s_mul_i32 s{sT2}, s{sT1}, 5")
            I(f"s_sub_u32 s{sL}, s{sT0}, s{sT2}")
            I(f"s_cmp_eq_u32 s{sHASX}, 0")
            I(f"s_cselect_b32 s{sL}, s{sL}, 9")
            I(f"s_cmp_eq_u32 s{sPW}, 3")
            I(f"s_cselect_b32 s{sL}, s{sL}, 9")
            I(f"s_mul_i32 s{sT1}, s{sT1}, {144*128}")
            I(f"v_min_u32 v253, 47, v0")
            I(f"v_lshl_add_u32 v253, v253, 7, s{sT1}")
        I(f"v_mov_b32 v250, {FLAGS + 15*16}")
        if kind == "n":
            srd(e, sU, sWS, UBYTES)
    I(f"v_mov_b32 v251, 1")
    I(f"v_mov_b32 v252, {FLAGS}")

    def pollflag(idx, lab, slp, r=16):
        e.label(lab)
        I(f"ds_read_b128 {vr(r)}, v252 offset:{idx*16}")
        I("s_waitcnt lgkmcnt(0)")
        e.lg = []
        I(f"v_and_b32 v{r}, v{r}, v{r+1}")
        I(f"v_and_b32 v{r+2}, v{r+2}, v{r+3}")
        I(f"v_and_b32 v{r}, v{r}, v{r+2}")
        I("s_nop 0")
        I(f"v_readfirstlane_b32 s{sT0}, v{r}")
        I(f"s_cmp_eq_u32 s{sT0}, 1")
        I(f"s_cbranch_scc1 {lab}_ok")
        if slp:
            I(f"s_sleep {slp}")
        I(f"s_branch {lab}")
        e.label(lab + "_ok")

    def upf(t):
        if X or not opt["rpf"]:
            return
        k, st, p = UNITS[t]
        base = ((st if k == "B" else 2 + st) * 6 + 2 * p) * 36864
        lab = f"L_UP{kind}{t}"
        if opt["rpf"] == 1:
            I(f"s_cmp_eq_u32 s{sPW}, 3")
            I(f"s_cbranch_scc0 {lab}")
            I(f"s_mov_b32 s{sT1}, {base}")
            I(f"buffer_load_dword v254, v253, s[{sU}:{sU+3}], s{sT1} offen sc1")
        else:
            I(f"s_cmp_eq_u32 s{sL}, {t % 5}")
            I(f"s_cbranch_scc0 {lab}")
            for q in range(3):
                I(f"s_mov_b32 s{sT1}, {base + q*48*128}")
                I(f"buffer_load_dword v254, v253, s[{sU}:{sU+3}], s{sT1} offen sc1")
        e.label(lab)

    def waitfree(u, r=16):
        if u >= 3:
            pollflag(16 + u - 3, f"L_FR{kind}{u}", opt["psl"], r)
            if u + opt["rlead"] <= 11:
                upf(u + opt["rlead"])

    def ready(u):
        I("s_mov_b64 exec, 1")
        e.lds(f"ds_add_u32 v252, v251 offset:{448 + 4*u}")
        I("s_mov_b64 exec, -1")
        if not opt["pst"] or e.nst < 15:
            e.stamp()

    def xl(p, par):
        for j in range(par, 10, 2):
            xload(e, p, j)
        if X:
            for j in range(par, 6, 2):
                eload(e, p, j)

    def parse(t):
        d = {}
        for item in t.split(","):
            when, what = item.split(":")
            d.setdefault(when, []).append((int(what[0]), 0 if what[1] == "e" else 1))
        return d
    xsX = parse(opt.get("xsx") or opt["xs"])
    xsN = parse(opt["xs"])
    xs = xsX if X else xsN
    seen = set()

    def xsched(when):
        if kind != "n":
            for p, par in xs.get(when, []):
                xl(p, par)
            return
        a, b = xsX.get(when, []), xsN.get(when, [])
        for it in a + [t for t in b if t not in a]:
            both = it in a and it in b
            if not both:
                lab = f"L_XS{when}_{it[0]}{it[1]}"
                I(f"s_cmp_eq_u32 s{sHASX}, {1 if it in a else 0}")
                I(f"s_cbranch_scc0 {lab}")
            keep = list(e.vm)
            xl(*it)
            if not both:
                e.label(lab)
                if it not in seen:
                    e.vm = keep
                seen.add(it)

    pend = []
    novalu = [False]
    pace = [0, 0]

    def xpace(per, nvalu):
        for p, par in xs.get(f"{per}p", []):
            pend.extend([lambda j=j, p=p: xload(e, p, j) for j in range(par, 10, 2)])
            if X:
                pend.extend([lambda j=j, p=p: eload(e, p, j) for j in range(par, 6, 2)])
        if pend:
            pace[0] = max(1, nvalu // len(pend))
            pace[1] = 0

    def V(s):
        if not (opt["d_nov"] and novalu[0]):
            I(s)
        pace[1] += 1
        if pend and pace[1] % pace[0] == 0:
            pend.pop(0)()

    def later(f):
        if not opt["wsp"]:
            return f()
        if not pend:
            pace[0], pace[1] = opt["wsp"], 0
        pend.append(f)

    def flush():
        while pend:
            pend.pop(0)()

    def unp(dst, src):
        V(f"v_lshlrev_b32 v{dst}, 16, v{src}")
        V(f"v_and_b32 v{dst+1}, s{sMASK}, v{src}")

    def vwrite(addr, src, u):
        if opt["d_now"] and u >= 2:
            return
        e.lds(f"ds_write_b128 v{addr}, {vr(src)} offset:{VS[u % 3]}")

    T16 = list(range(13, 26)) + [54, 55, 56]

    def chainA(D, n, par, neg, waddr, u, ob, wf=False):
        op = "v_subrev_f32" if neg else "v_sub_f32"
        A, B = T16[:8], T16[8:]

        def unp8(R, src):
            for k in range(4):
                V(f"v_lshlrev_b32 v{R[2*k]}, 16, v{src+k}")
                V(f"v_and_b32 v{R[2*k+1]}, s{sMASK}, v{src+k}")
        unp8(A, D(par))
        for j in range(n):
            unp8(B, D(par + 2 * j + 2))
            for k in range(8):
                V(f"{op} v{A[k]}, v{A[k]}, v{B[k]}")
            for k in range(4):
                V(f"v_cvt_pk_bf16_f32 v{ob + 4*(j & 1) + k}, v{A[2*k]}, v{A[2*k+1]}")
            if wf and j == 0:
                waitfree(u, 44)
            vwrite(waddr[j], ob + 4 * (j & 1), u)
            A, B = B, A

    def tA(u, main=True, ext=True):
        kind_, st, p = UNITS[u]
        neg = (u >= 4 and st == 1)
        if main:
            e.need(f"x{p}_{st}")
            if opt["pst"] and u <= 1:
                e.stamp()
            chainA(lambda j: PD(p, j), 4, st, neg, wE, u, OB, True)
        if X and ext:
            e.need(f"e{p}_{st}")
            chainA(lambda j: PX(p, j), 2, st, neg, wX, u, OB + 8)

    def pairB(d1, d2, o1, o2):
        for k0 in (0, 2):
            for k in (k0, k0 + 1):
                a = TMP + 6 * (k & 1)
                unp(a, d1 + k); unp(a + 2, d2 + k)
            for k in (k0, k0 + 1):
                a = TMP + 6 * (k & 1)
                b, s = a + 2, a + 4
                V(f"v_add_f32 v{s}, v{a}, v{b}"); V(f"v_add_f32 v{s+1}, v{a+1}, v{b+1}")
                V(f"v_sub_f32 v{a}, v{b}, v{a}"); V(f"v_sub_f32 v{a+1}, v{b+1}, v{a+1}")
            for k in (k0, k0 + 1):
                a = TMP + 6 * (k & 1)
                V(f"v_cvt_pk_bf16_f32 v{o1+k}, v{a+4}, v{a+5}")
                V(f"v_cvt_pk_bf16_f32 v{o2+k}, v{a}, v{a+1}")

    npoll = [0]

    def trypoll(final=False):
        if X:
            return
        n = npoll[0]
        npoll[0] += 1
        lab = f"L_PL{kind}{n}"
        I(f"s_cmp_eq_u32 s{sPEND}, 0")
        I(f"s_cbranch_scc1 {lab}_skip")
        if n == 0:
            I(f"s_load_dword s{sPOLL}, s[{sDBG}:{sDBG+1}], 0")
            e.label(lab + "_skip")
            return
        assert n == 1
        I("s_waitcnt lgkmcnt(0)")
        I(f"s_mov_b32 s{sCNT}, 0")
        I(f"v_mov_b32 v255, 0")
        e.label(lab)
        I(f"s_cmp_ge_u32 s{sPOLL}, {0 if opt['noatom'] else NWORK}")
        I(f"s_cbranch_scc1 {lab}_ok")
        I("s_sleep 6")
        I(f"global_load_dword v254, v255, s[{sDBG}:{sDBG+1}] sc1")
        I(f"s_add_u32 s{sCNT}, s{sCNT}, 1")
        I("s_waitcnt vmcnt(0)")
        I(f"v_readfirstlane_b32 s{sPOLL}, v254")
        I(f"s_cmp_lt_u32 s{sCNT}, 20000")
        I(f"s_cbranch_scc1 {lab}")
        e.label(lab + "_ok")
        if opt["pst"]:
            e.stamp()
            I(f"s_mov_b32 s{sST + 2*e.nst}, s{sCNT}")
            e.nst += 1
        I("ds_write_b32 v250, v251")
        I(f"s_mov_b32 s{sPEND}, 0")
        if opt["u_pf"]:
            I(f"s_mul_i32 s{sT0}, s{sIDX}, {216*128}")
            I(f"v_min_u32 v253, 53, v0")
            I(f"v_lshl_add_u32 v253, v253, 7, s{sT0}")
            for k in range(4):
                I(f"s_mov_b32 s{sT1}, {k*54*128}")
                I(f"buffer_load_dword v254, v253, s[{sU}:{sU+3}], s{sT1} offen sc1")
        e.label(lab + "_skip")

    def wpoint():
        pollflag(31, f"L_WI{kind}", opt["psl"], 20)
        if opt["otlb"] == 2 or (opt["otlb"] == 1 and kind == "w"):
            I("s_mov_b64 exec, 1")
            e.vmem(f"buffer_load_dword v254, v{xB}, s[{sO}:{sO+3}], 0 offen")
            I("s_mov_b64 exec, -1")
        xsched("w")

    def ppoint(k):
        if k == 0 and opt["pollw"]:
            if not X:
                I(f"s_cmp_eq_u32 s{sPEND}, 0")
                I(f"s_cbranch_scc1 L_PWAIT{kind}")
                pollflag(16, f"L_F0{kind}", opt["psl"], 20)
                e.label(f"L_PWAIT{kind}")
        trypoll()
        if k == 1:
            for t in range(2, 3 + opt["rlead"]):
                upf(t)

    def tB1(u):
        p = UNITS[u][2]
        e.need([f"x{p}_0", f"x{p}_1"] + ([f"e{p}_0", f"e{p}_1"] if X else []))
        for ee in range(4):
            pairB(PD(p, 1 + 2 * ee), PD(p, 2 + 2 * ee), OB + 4 * (ee & 1), OB + 8 + 4 * ee)
            if ee == 0:
                waitfree(u)
                xpace(u, 200 if X else 120)
            vwrite(wE[ee], OB + 4 * (ee & 1), u)
            if u == 2 and ee == opt["wat"]:
                wpoint()
            if u == 2 and ee == opt["pat"]:
                ppoint(0)
            if u == 2 and ee == min(opt["pat"] + 1, 3):
                ppoint(1)
        if X:
            e.need([f"e{p}_0", f"e{p}_1"])
            for ee in range(2):
                pairB(PX(p, 1 + 2 * ee), PX(p, 2 + 2 * ee), OB + 4 * ee, OB + 24 + 4 * ee)
                vwrite(wX[ee], OB + 4 * ee, u)
        flush()
        ready(u)

    def tB2(u):
        waitfree(u + 1)
        xsched(f"f{u}")
        for ee in range(4):
            vwrite(wE[ee], OB + 8 + 4 * ee, u + 1)
        if X:
            for ee in range(2):
                vwrite(wX[ee], OB + 24 + 4 * ee, u + 1)
        ready(u + 1)

    n1 = 1 if X else opt["n1"]

    def bar():
        e.drain_lg()
        if not opt["pst"] or e.nst < 15:
            e.stamp()
        I("s_barrier")

    def signal():
        e.need("ust")
        if opt["pst"]:
            e.stamp()
        I(f"v_mov_b32 v{eA}, {FLAGS + 15*16 + 4}")
        I("s_mov_b64 exec, 1")
        I(f"ds_add_rtn_u32 v{eC}, v{eA}, v251")
        I("s_waitcnt lgkmcnt(0)")
        e.lg = []
        I(f"v_readfirstlane_b32 s{sT0}, v{eC}")
        I(f"s_cmp_eq_u32 s{sT0}, 3")
        I("s_cbranch_scc0 L_NOATOM")
        I(f"v_mov_b32 v{eA}, 0")
        if not opt["noatom"]:
            I(f"global_atomic_add v{eA}, v251, s[{sDBG}:{sDBG+1}] sc1")
        e.label("L_NOATOM")
        I("s_mov_b64 exec, -1")

    if opt["otlb"] == 1 and kind != "w":
        I("s_mov_b64 exec, 1")
        e.vmem(f"buffer_load_dword v254, v{xB}, s[{sO}:{sO+3}], 0 offen")
        I("s_mov_b64 exec, -1")
    e.drain_lg()
    e.stamp()
    I("s_barrier")
    if opt["pro"] == "alpha":
        I("s_barrier")
        if kind != "w" and opt["aord"] == 0:
            xl(0, 1)
    if kind == "w":
        signal()
        xl(0, 1)
    tA(0)
    ready(0)
    if opt["pro"] == "alpha" and kind != "w" and opt["aord"] == 1:
        xl(0, 1)
    xsched("a0")
    tA(1)
    ready(1)
    xsched("a1")
    novalu[0] = True
    for u in range(2, 12):
        k, st, p = UNITS[u]
        if k == "A":
            if u == 2:
                wpoint()
                ppoint(0)
                ppoint(1)
            tA(u)
            ready(u)
            xsched(f"a{u}")
        elif st == 0:
            tB1(u)
            xsched(f"j{u}")
            tB2(u)
            xsched(f"k{u}")
    if True:
        if True:
            rA, rB, gA, gB, vXL, vXG = 1, 2, 3, 4, 5, 6
            I(f"s_mul_i32 s{sT0}, s{sROW0}, 86016")
            I(f"s_mul_i32 s{sT1}, s{sSTRIP}, 12288")
            I(f"s_add_u32 s{sT0}, s{sT0}, s{sT1}")
            I(f"s_mul_i32 s{sT1}, s{sPW}, 3072")
            I(f"s_add_u32 s{sT0}, s{sT0}, s{sT1}")
            I(f"s_mul_i32 s{sT1}, s{sPW}, 1600")
            I(f"s_add_u32 s{sT1}, s{sT1}, {OUT}")
            for (r, gg, add) in ((rA, gA, 0), (rB, gB, 64)):
                I(f"v_add_u32 v{t0}, {add}, v0")
                I(f"v_min_u32 v{t0}, 95, v{t0}")
                I(f"v_mul_u32_u24 v{t1}, 10923, v{t0}")
                I(f"v_lshrrev_b32 v{t1}, 18, v{t1}")
                I(f"v_mul_u32_u24 v{t2}, 24, v{t1}")
                I(f"v_sub_u32 v{t2}, v{t0}, v{t2}")
                I(f"v_lshlrev_b32 v{t2}, 4, v{t2}")
                I(f"v_mul_u32_u24 v{t3}, 400, v{t1}")
                I(f"v_add3_u32 v{r}, v{t3}, v{t2}, s{sT1}")
                I(f"v_mul_u32_u24 v{t3}, 768, v{t1}")
                I(f"v_add3_u32 v{gg}, v{t3}, v{t2}, s{sT0}")
            I(f"v_cmp_gt_u32 vcc, 32, v0")
            I(f"v_mov_b32 v{t4}, s{sINV}")
            I(f"v_add_u32 v250, {6*OROW}, v{rA}")
            I(f"v_cndmask_b32 v{gB}, v{t4}, v{gB}, vcc")
            I(f"v_add_u32 v251, {6*OROW}, v{rB}")
            I(f"s_lshl_b32 s{sT0}, s{sPW}, 2")
            I(f"v_bfe_u32 v{t0}, v0, 3, 2")
            I(f"v_add_u32 v{t0}, s{sT0}, v{t0}")
            I(f"v_and_b32 v{t1}, 7, v0")
            I(f"v_mul_u32_u24 v{t2}, 144, v{t0}")
            I(f"v_lshl_add_u32 v{t2}, v{t1}, 4, v{t2}")
            I(f"v_add_u32 v{vXL}, {XST}, v{t2}")
            I(f"v_mul_u32_u24 v{t0}, 768, v{t0}")
            I(f"v_lshrrev_b32 v{t2}, 1, v{t1}")
            I(f"v_mul_u32_u24 v{t2}, 96, v{t2}")
            I(f"v_and_b32 v{t1}, 1, v{t1}")
            I(f"v_lshl_add_u32 v{t2}, v{t1}, 4, v{t2}")
            I(f"s_mul_i32 s{sT0}, s{sEROW}, 86016")
            I(f"s_mul_i32 s{sT1}, s{sES}, 12288")
            I(f"s_add_u32 s{sT0}, s{sT0}, s{sT1}")
            I(f"s_lshl_b32 s{sT1}, s{sF0}, 5")
            I(f"s_add_u32 s{sT0}, s{sT0}, s{sT1}")
            I(f"v_add3_u32 v{vXG}, v{t0}, v{t2}, s{sT0}")
            I(f"v_cndmask_b32 v{vXG}, v{t4}, v{vXG}, vcc")
    rA, rB, gA, gB, vXL, vXG = 1, 2, 3, 4, 5, 6
    sf = opt["sf"]
    nb = [0]

    def rowread(st, m, b):
        a0, a1 = (rA, rB) if st == 0 else (250, 251)
        I(f"ds_read_b128 {vr(b)}, v{a0} offset:{m*OROW}")
        I(f"ds_read_b128 {vr(b+4)}, v{a1} offset:{m*OROW}")

    def rowstore(st, m, b, w0=None, w1=None):
        sf = opt["sfl"] if st == 1 and m >= 6 - opt["nlast"] else opt["sf"]
        I(f"s_mov_b32 s{sOFF}, {m*86016}")
        if w0: I(w0)
        I(f"buffer_store_dwordx4 {vr(b)}, v{gA}, s[{sO}:{sO+3}], s{sOFF} offen offset:{384*st} {sf}")
        if w1: I(w1)
        I(f"buffer_store_dwordx4 {vr(b+4)}, v{gB}, s[{sO}:{sO+3}], s{sOFF} offen offset:{384*st} {sf}")

    def xpart(st, b):
        if kind == "w":
            return
        if kind == "n":
            I(f"s_cmp_eq_u32 s{sHASX}, 0")
            I(f"s_cbranch_scc1 L_NOX{st}")
        pollflag(12 + st, f"L_F{kind}X{st}", opt["slp"])
        I(f"ds_read_b128 {vr(b)}, v{vXL} offset:{2304*st}")
        I("s_waitcnt lgkmcnt(0)")
        I(f"buffer_store_dwordx4 {vr(b)}, v{vXG}, s[{sO}:{sO+3}], 0 offen offset:{384*st}")
        if kind == "n":
            e.label(f"L_NOX{st}")

    pollflag(5, f"L_F{kind}0_5", opt["psl"])
    for m in range(6):
        rowread(0, m, 28 + 8 * m)
    pollflag(14, f"L_F{kind}GO", opt["slp"])
    if not opt["pst"]:
        e.stamp()
    for m in range(6):
        rowstore(0, m, 28 + 8 * m)
    xpart(0, 76)
    for m in [0, 1, "X", 2, 3, 4, 5]:
        if m == "X":
            xpart(1, 80)
            continue
        b = 84 + 8 * m
        pollflag(6 + m, f"L_F{kind}1_{m}", opt["slp"] if m < 4 else opt["slpl"])
        if m in (0, 5) and not opt["pst"]:
            e.stamp()
        rowread(1, m, b)
        rowstore(1, m, b, "s_waitcnt lgkmcnt(1)", "s_waitcnt lgkmcnt(0)")
    e.stamp()
    if opt["stamp"]:
        I("s_waitcnt vmcnt(0)")
        e.stamp()
    e.dump_stamps("p")
    I("s_endpgm")
    return e.L


def generate(**kw):
    opt = dict(DEF)
    opt.update(kw)
    opt["code_pf_lines"] = 18
    UNITS[:] = ORDERS[opt["order"]]
    L = []
    L.append(f"; @launch grid=(256,1,1) block=(512,1,1) lds={LDS_BYTES}")
    L.append('.amdgcn_target "amdgcn-amd-amdhsa--gfx950"')
    L.append(".text")
    L.append(f".globl {KNAME}")
    L.append(".p2align 8")
    L.append(f".type {KNAME},@function")
    L.append(f"{KNAME}:")
    e = Em(opt)
    I = e.I
    e.stamp()
    I(f"s_load_dwordx8 s[{sKA}:{sKA+7}], s[0:1], 0")
    I(f"s_load_dwordx4 s[{sDBG}:{sDBG+3}], s[0:1], 32")
    I("v_lshrrev_b32 v1, 6, v0")
    I("s_cmp_ge_u32 s2, 256")
    I("s_cbranch_scc1 L_END")
    I(f"v_readfirstlane_b32 s{sWAVE}, v1")
    I("v_and_b32 v0, 63, v0")
    if opt["epf"]:
        R = opt["epf"]
        I(f"s_getpc_b64 s[{sPC}:{sPC+1}]")
        I(f"s_bfe_u32 s{sT0}, s2, {3 | ((R.bit_length() - 1) << 16)}")
        I(f"v_min_u32 v2, {24 // R - 1}, v0")
        I(f"v_lshl_add_u32 v2, v2, {R.bit_length() - 1}, s{sT0}")
        I(f"v_mul_u32_u24 v1, {CS}, v1")
        I(f"v_lshl_add_u32 v2, v2, 7, v1")
        I(f"v_min_u32 v2, L_END-{KNAME}-256, v2")
        e.vmem(f"global_load_dword v255, v2, s[{sPC}:{sPC+1}]", "epf")
    I(f"s_mov_b32 s{sMASK}, 0xffff0000")
    I(f"s_mov_b32 s{sINV}, 0x80000000")
    I(f"s_lshr_b32 s{sIDX}, s2, 3")
    I(f"s_cmp_lt_u32 s{sWAVE}, 4")
    I("s_cbranch_scc1 L_CONS")
    I(f"s_sub_u32 s{sPW}, s{sWAVE}, 4")
    I(f"s_cmp_lt_u32 s{sIDX}, 7")
    I("s_cbranch_scc1 L_PW")
    L += e.L
    epw = Em(opt, e)
    worker_pre(epw, opt)
    producer_main(epw, opt)
    ep = Em(opt, e)
    producer_main(ep, opt)
    if not opt["xo"]:
        for j in (1, 3, 5, 7, 9):
            xload(ep, 0, j)
    ep.I(f"s_cmp_ge_u32 s{sIDX}, 19")
    ep.I("s_cbranch_scc1 L_PN")
    ep.I(f"s_cmp_eq_u32 s{sPW}, 3")
    ep.I("s_cbranch_scc1 L_PN")
    L += ep.L
    L += producer(ep, opt, "x")
    L.append(f".org {KNAME} + {1 * CS}, 0" if opt["epf"] else ".p2align 6")
    L.append("L_PN:")
    L += producer(ep, opt, "n")
    L.append(f".org {KNAME} + {2 * CS}, 0" if opt["epf"] else ".p2align 6")
    L.append("L_PW:")
    L += epw.L
    L += producer(epw, opt, "w")
    L.append(f".org {KNAME} + {3 * CS}, 0" if opt["epf"] else ".p2align 6")
    L.append("L_CONS:")
    ec = Em(opt, e)
    consumer_pro(ec, opt)
    L += ec.L
    L += consumer(ec, opt, True)
    L.append(f".org {KNAME} + {5 * CS}, 0" if opt["epf"] else ".p2align 6")
    L.append("L_CN:")
    L += consumer(ec, opt, False)
    L.append("L_END:")
    L.append("    s_endpgm")
    L.append('.section .rodata,"a"')
    L.append(".p2align 6")
    L.append(f".amdhsa_kernel {KNAME}")
    for d in ("next_free_vgpr 256", "next_free_sgpr 102", "accum_offset 256", "group_segment_fixed_size 0",
              "kernarg_size 48", "user_sgpr_count 2", "user_sgpr_kernarg_segment_ptr 1",
              "system_sgpr_workgroup_id_x 1", "ieee_mode 0", "float_denorm_mode_32 1"):
        L.append("  .amdhsa_" + d)
    L.append(".end_amdhsa_kernel")
    return "\n".join(L) + "\n"


if __name__ == "__main__":
    out = sys.argv[1]
    kw = {}
    for a in sys.argv[2:]:
        k, v = a.split("=", 1)
        try:
            kw[k] = int(v)
        except ValueError:
            try:
                kw[k] = float(v)
            except ValueError:
                kw[k] = v.replace("+", " ")
    open(out, "w").write(generate(**kw))
```

```python
import sys, os
sys.path.insert(0, os.path.dirname(os.path.abspath(__file__)))
from cost import gapcost

KNAME = "standalone__standard_2d_1d_3d_conv__vision_kernel"

DEF = dict(
    stamp=0, spin=4000, spinref=0, cst=-1, cev=8, pst=0,
    xf="", sf="nt", uf="sc1",
    code_pf=1, w_pf=1,
    prio=0, slp=1,
    pro="beta",
    xs="w:1e,w:1o,4p:2e,k4:2o",
    dsp=4.5,
    ustep=3, ulead=12,
    lag=-1,
    go=23,
    noatom=0, u_pf=0, pollp=1, pollat=-2, n1=1, y0at=0, gam=0, psl=2, epf=2, xo=1, w1late=0, otlb=0, aord=0, rsh=0, dd=0, wta=0, d_xcc=0, ego=0, st2=1, wp1=0, pdel=0, nraw=4, pollu=2, pslp=8, trd=9, d_now=0, d_nov=0, d_nou=0, sfl='sc1', nlast=0, slpl=0, ustep0=5, order=2, wat=1, pat=3, rpf=1, rlead=0, wsp=10, pollw=0, w2pre=0, tr1at=4, wo=2, ulead0=0,
)

VSLOT = 22528
VHALF = 11264
VS = [0, VSLOT, 2 * VSLOT]
FLAGS = 3 * VSLOT
WRING = FLAGS + 512
WWAVE = 18432
OROW = 6400
OUT = WRING
XST = OUT + 12 * OROW
PRE = XST + 4608
LDS_BYTES = PRE + 12288
NWORK = 56
CS = 12288

XBYTES = 224 * 224 * 384
WBYTES = 9 * 192 * 384
UBYTES = 24 * 36864

ORDERS = {
    2: [("A", 0, 0), ("A", 1, 0),
        ("B", 0, 0), ("B", 1, 0), ("B", 0, 1), ("B", 1, 1), ("B", 0, 2), ("B", 1, 2),
        ("A", 0, 1), ("A", 0, 2), ("A", 1, 1), ("A", 1, 2)],
    3: [("A", 0, 0), ("A", 1, 0), ("A", 0, 1),
        ("B", 0, 0), ("B", 1, 0), ("B", 0, 1), ("B", 1, 1), ("B", 0, 2), ("B", 1, 2),
        ("A", 0, 2), ("A", 1, 1), ("A", 1, 2)],
    1: [("A", 0, 0), ("A", 1, 0), ("A", 0, 1), ("A", 1, 1),
        ("B", 0, 0), ("B", 1, 0), ("B", 0, 1), ("B", 1, 1), ("B", 0, 2), ("B", 1, 2),
        ("A", 0, 2), ("A", 1, 2)],
}
UNITS = list(ORDERS[2])


def step_info(s):
    kind, st, pair = UNITS[s >> 1]
    return kind, st, 2 * pair + (s & 1)


sX, sW, sO, sU, sB = 4, 8, 12, 16, 20
sDBG, sWS, sKA = 24, 26, 28
sWAVE, sL, sSTRIP, sROW0, sHASX, sES, sEROW = 36, 37, 38, 39, 40, 41, 42
sF0, sF1, sF2, sIDX = 43, 44, 45, 46
sT0, sT1, sT2, sT3 = 47, 48, 49, 50
sMASK, sRING, sOFF, sOFF2, sPW = 51, 52, 53, 54, 55
sPC, sCNT, sINV = 56, 58, 59
sPOLL, sPEND = 3, 56
sST = 60


class Em:
    def __init__(self, opt, parent=None):
        self.L = []
        self.lg = list(parent.lg) if parent else []
        self.vm = list(parent.vm) if parent else []
        self.opt = opt
        self.nst = parent.nst if parent else 0

    def I(self, s):
        self.L.append("    " + s)

    def label(self, s):
        self.L.append(s + ":")

    def lds(self, s, name=None):
        self.I(s)
        self.lg.append(name)

    def vmem(self, s, name=None):
        self.I(s)
        self.vm.append(name)

    def need(self, names):
        if isinstance(names, str):
            names = [names]
        w = []
        k = max([i for i, n in enumerate(self.vm) if n in names], default=-1)
        if k >= 0:
            n = min(len(self.vm) - 1 - k, 63)
            w.append(f"vmcnt({n})")
            self.vm = self.vm[len(self.vm) - n:] if n else []
        k = max([i for i, n in enumerate(self.lg) if n in names], default=-1)
        if k >= 0:
            n = min(len(self.lg) - 1 - k, 15)
            w.append(f"lgkmcnt({n})")
            self.lg = self.lg[len(self.lg) - n:] if n else []
        if w:
            self.I("s_waitcnt " + " ".join(w))

    def drain_lg(self):
        self.I("s_waitcnt lgkmcnt(0)")
        self.lg = []

    def drain_vm(self):
        self.I("s_waitcnt vmcnt(0)")
        self.vm = []

    def stamp(self):
        o = self.opt
        if o["stamp"] == 4 and self.nst != o["spinref"]:
            self.nst += 1
        elif o["stamp"]:
            r = sST + 2 * self.nst
            assert r + 1 < 102, "too many stamps"
            self.I(f"s_memrealtime s[{r}:{r+1}]" if o["stamp"] in (1, 4) else f"s_memtime s[{r}:{r+1}]")
            self.nst += 1

    def dump_stamps(self, role):
        o = self.opt
        if not o["stamp"]:
            return
        self.I("s_waitcnt vmcnt(0) lgkmcnt(0)")
        if o["stamp"] == 4:
            if o["spinref"] and role != "c":
                return
            lab = f"L_SPIN{id(self)}"
            self.label(lab)
            self.I(f"s_memrealtime s[{sT1}:{sT1+1}]")
            self.I("s_waitcnt lgkmcnt(0)")
            self.I(f"s_sub_u32 s{sT0}, s{sT1}, s{sST + 2*o['spinref']}")
            self.I(f"s_cmp_lt_u32 s{sT0}, {o['spin']}")
            self.I(f"s_cbranch_scc1 {lab}")
            return
        self.I(f"s_lshl_b32 s{sT0}, s2, 3")
        self.I(f"s_add_u32 s{sT0}, s{sT0}, s{sWAVE}")
        self.I(f"s_lshl_b32 s{sT0}, s{sT0}, 8")
        self.I(f"s_add_u32 s{sT0}, s{sT0}, 0x100000")
        self.I(f"v_mov_b32 v1, s{sT0}")
        for i in range(self.nst):
            self.I(f"v_mov_b32 v2, s{sST + 2*i}")
            self.I(f"global_store_dword v1, v2, s[{sWS}:{sWS+1}] offset:{4*i}")
        self.I(f"v_mov_b32 v2, {self.nst}")
        self.I(f"global_store_dword v1, v2, s[{sWS}:{sWS+1}] offset:252")


def vr(a, n=4):
    return f"v[{a}:{a+n-1}]"


def srd(e, s, lo, nbytes, bias=0):
    if bias:
        e.I(f"s_sub_u32 s{s}, s{lo}, {bias}")
        e.I(f"s_subb_u32 s{s+1}, s{lo+1}, 0")
    else:
        e.I(f"s_mov_b32 s{s}, s{lo}")
        e.I(f"s_mov_b32 s{s+1}, s{lo+1}")
    e.I(f"s_mov_b32 s{s+2}, {nbytes + bias}")
    e.I(f"s_mov_b32 s{s+3}, 0x20000")


def decode_main(e):
    I = e.I
    I(f"s_and_b32 s{sT0}, s2, 7")
    I(f"s_lshl_b32 s{sT0}, s{sT0}, 5")
    I(f"s_add_u32 s{sT0}, s{sT0}, s{sIDX}")
    I(f"s_mul_i32 s{sT0}, s{sT0}, 7")
    I(f"s_lshr_b32 s{sSTRIP}, s{sT0}, 8")
    I(f"s_and_b32 s{sT0}, s{sT0}, 255")
    I(f"s_mul_i32 s{sT0}, s{sT0}, 293")
    I(f"s_lshr_b32 s{sT0}, s{sT0}, 11")
    I(f"s_mul_i32 s{sROW0}, s{sT0}, 6")


def decode_extra(e):
    I = e.I
    I(f"s_and_b32 s{sT0}, s2, 7")
    I(f"s_mul_i32 s{sT0}, s{sT0}, 12")
    I(f"s_sub_u32 s{sT3}, s{sIDX}, 7")
    I(f"s_add_u32 s{sT0}, s{sT0}, s{sT3}")
    I(f"s_mul_i32 s{sT1}, s{sT0}, 21846")
    I(f"s_lshr_b32 s{sT1}, s{sT1}, 16")
    I(f"s_mul_i32 s{sT2}, s{sT1}, 3")
    I(f"s_sub_u32 s{sF0}, s{sT0}, s{sT2}")
    I(f"s_cmp_lt_u32 s{sT3}, 12")
    I(f"s_cselect_b32 s{sHASX}, 1, 0")
    I(f"s_cselect_b32 s{sF0}, s{sF0}, 0")
    I(f"s_cselect_b32 s{sT1}, s{sT1}, 0")
    I(f"s_lshl_b32 s{sES}, s{sT1}, 1")
    I(f"s_and_b32 s{sES}, s{sES}, 12")
    I(f"s_lshr_b32 s{sES}, 0x5310, s{sES}")
    I(f"s_and_b32 s{sES}, s{sES}, 15")
    I(f"s_and_b32 s{sEROW}, s{sT1}, 1")
    I(f"s_add_u32 s{sEROW}, s{sEROW}, 222")
    I(f"s_lshr_b32 s{sT3}, s{sT1}, 3")
    I(f"s_lshl_b32 s{sT3}, s{sT3}, 1")
    I(f"s_and_b32 s{sT2}, s{sT1}, 7")
    I(f"s_add_u32 s{sT2}, s{sT2}, 216")
    I(f"s_cmp_lt_u32 s{sT1}, 8")
    I(f"s_cselect_b32 s{sES}, s{sES}, s{sT3}")
    I(f"s_cselect_b32 s{sEROW}, s{sEROW}, s{sT2}")


def consumer_pro(e, opt):
    I = e.I
    vV, vV2, vT = 1, 2, 3
    vD = [4, 5, 6]
    vU = [7, 253, 254]
    t0, t1, t2, t3, t4 = 8, 9, 10, 11, 12
    sF = [sF0, sF1, sF2]
    decode_extra(e)
    I(f"s_add_u32 s{sF1}, s{sF0}, 1")
    I(f"s_cmp_eq_u32 s{sF1}, 3")
    I(f"s_cselect_b32 s{sF1}, 0, s{sF1}")
    I(f"s_add_u32 s{sF2}, s{sF1}, 1")
    I(f"s_cmp_eq_u32 s{sF2}, 3")
    I(f"s_cselect_b32 s{sF2}, 0, s{sF2}")
    I(f"v_lshrrev_b32 v{t0}, 4, v0")
    I(f"s_mul_i32 s{sT0}, s{sWAVE}, 96")
    I(f"v_lshlrev_b32 v{t4}, 3, v{t0}")
    I(f"v_add_u32 v{t4}, s{sT0}, v{t4}")
    for s in range(3):
        I(f"s_lshl_b32 s{sT1}, s{sF[s]}, 5")
        I(f"v_add_u32 v{13+s}, s{sT1}, v{t4}")
    if opt["w_pf"]:
        I(f"s_mul_i32 s{sT1}, s{sIDX}, 36")
        I(f"v_min_u32 v{t1}, 35, v0")
        I(f"v_add_u32 v{t1}, s{sT1}, v{t1}")
        I(f"v_mul_u32_u24 v{t2}, 10923, v{t1}")
        I(f"v_lshrrev_b32 v{t2}, 21, v{t2}")
        I(f"v_add_u32 v{t3}, 1, v{t2}")
        I(f"v_lshrrev_b32 v{t3}, 1, v{t3}")
        I(f"v_mul_u32_u24 v{t3}, 576, v{t3}")
        I(f"v_mul_u32_u24 v{t2}, 384, v{t2}")
        I(f"v_add3_u32 v{t1}, v{t1}, v{t2}, v{t3}")
        I(f"s_mul_i32 s{sT1}, s{sWAVE}, {192*128}")
        I(f"s_add_u32 s{sT1}, s{sT1}, 2048")
        I(f"v_lshl_add_u32 v252, v{t1}, 7, s{sT1}")
    I("s_waitcnt lgkmcnt(0)")
    srd(e, sB, sKA + 4, 384)
    srd(e, sW, sKA + 2, WBYTES, 2048)
    srd(e, sU, sWS, UBYTES)
    if opt["w_pf"]:
        I(f"s_cmp_ge_u32 s{sWAVE}, {1 if opt['nraw'] == 4 else 2}")
        I("s_cbranch_scc1 L_NOWPF")
        I(f"buffer_load_dword v255, v252, s[{sW}:{sW+3}], 0 offen")
        e.label("L_NOWPF")
    if opt["code_pf"]:
        I(f"s_cmp_eq_u32 s{sWAVE}, 2")
        I("s_cbranch_scc0 L_NOCPF")
        I(f"s_getpc_b64 s[{sPC}:{sPC+1}]")
        e.label("L_PC0")
        I(f"s_sub_u32 s{sPC}, s{sPC}, L_PC0-{KNAME}")
        I(f"s_subb_u32 s{sPC+1}, s{sPC+1}, 0")
        I(f"s_mul_i32 s{sT1}, s{sIDX}, {opt['code_pf_lines']*128}")
        I(f"v_min_u32 v252, {opt['code_pf_lines']-1}, v0")
        I(f"v_lshl_add_u32 v252, v252, 7, s{sT1}")
        I(f"v_min_u32 v252, L_END-{KNAME}, v252")
        I(f"global_load_dword v255, v252, s[{sPC}:{sPC+1}]")
        e.label("L_NOCPF")
    if opt["d_xcc"]:
        I(f"s_cmp_lt_u32 s2, 12")
        I("s_cbranch_scc0 L_NOXCC")
        I(f"s_getreg_b32 s{sT1}, hwreg(HW_REG_XCC_ID)")
        I(f"s_lshl_b32 s{sT2}, s2, 2")
        I(f"v_mov_b32 v22, s{sT1}")
        I(f"v_mov_b32 v23, s{sT2}")
        I(f"global_store_dword v23, v22, s[{sDBG}:{sDBG+1}] offset:16")
        e.label("L_NOXCC")
    for s in range(3):
        e.vmem(f"buffer_load_dwordx2 {vr(16+2*s, 2)}, v{13+s}, s[{sB}:{sB+3}], 0 offen", "bias")
    I(f"v_and_b32 v{t1}, 15, v0")
    I(f"v_xor_b32 v{t2}, v{t0}, v{t1}")
    I(f"v_lshl_add_u32 v{t2}, v{t0}, 4, v{t2}")
    I(f"v_lshlrev_b32 v{vV}, 4, v{t2}")
    I(f"v_add_u32 v{vV2}, 0x8000, v{vV}")
    I(f"s_mul_i32 s{sRING}, s{sWAVE}, {WWAVE}")
    I(f"s_add_u32 s{sRING}, s{sRING}, {WRING}")
    I(f"v_lshrrev_b32 v{t2}, 2, v0")
    I(f"v_mul_u32_u24 v{t2}, 96, v{t2}")
    I(f"v_and_b32 v{t3}, 3, v0")
    I(f"v_lshl_add_u32 v{t2}, v{t3}, 3, v{t2}")
    I(f"v_add_u32 v{vT}, s{sRING}, v{t2}")
    for d in range(3):
        I(f"v_add_u32 v{t1}, {64*d}, v0")
        I(f"v_mul_u32_u24 v{t2}, 43691, v{t1}")
        I(f"v_lshrrev_b32 v{t2}, 18, v{t2}")
        I(f"v_mul_u32_u24 v{t3}, 6, v{t2}")
        I(f"v_sub_u32 v{t1}, v{t1}, v{t3}")
        I(f"v_bfe_u32 v{t3}, v{t2}, 2, 2")
        I(f"v_lshlrev_b32 v{t3}, 3, v{t3}")
        I(f"v_lshrrev_b32 v{t4}, 4, v{t2}")
        I(f"v_lshl_add_u32 v{t3}, v{t4}, 2, v{t3}")
        I(f"v_and_b32 v{t2}, 3, v{t2}")
        I(f"v_add_u32 v{t2}, v{t2}, v{t3}")
        I(f"v_mul_u32_u24 v{t2}, 384, v{t2}")
        I(f"v_lshrrev_b32 v{t3}, 1, v{t1}")
        I(f"v_add_u32 v{t3}, s{sF0}, v{t3}")
        I(f"v_subrev_u32 v{t4}, 3, v{t3}")
        I(f"v_min_u32 v{t3}, v{t3}, v{t4}")
        I(f"v_lshl_add_u32 v{t2}, v{t3}, 5, v{t2}")
        I(f"v_and_b32 v{t1}, 1, v{t1}")
        I(f"v_lshl_add_u32 v{t2}, v{t1}, 4, v{t2}")
        I(f"v_add_u32 v{t2}, s{sT0}, v{t2}")
        I(f"v_add_u32 v{vD[d]}, {2048 - 1024*d}, v{t2}")
    I(f"s_mul_i32 s{sT1}, s{sWAVE}, 9216")
    for s in range(3):
        I(f"s_mul_i32 s{sT0}, s{sF[s]}, 3072")
        I(f"s_add_u32 s{sT0}, s{sT0}, s{sT1}")
        I(f"v_lshl_add_u32 v{vU[s]}, v0, 4, s{sT0}")
    I(f"s_cmp_eq_u32 s{sHASX}, 0")
    I("s_cbranch_scc1 L_CN")


def consumer(parent, opt, extra):
    e = Em(opt, parent)
    I = e.I
    vV, vV2, vT = 1, 2, 3
    vD = [4, 5, 6]
    vU = [7, 253, 254]
    vO = vD
    vOX, vFL, vONE, vCK = 3, 255, 252, 0
    VR = 8
    WB = [24, 60]
    ACC = 96
    acc = {}
    for m in range(6):
        for st in range(2):
            for s in range(3):
                acc[(m, st, s)] = ACC + 4 * ((m * 2 + st) * 3 + s)
    acc[("X", 0)] = 240
    acc[("X", 1)] = 244
    spare = [248]
    sF = [sF0, sF1, sF2]
    tag = "x" if extra else "n"

    def W(step, i, s):
        return WB[step & 1] + 4 * (i * 3 + s)

    def dma_ops(step, i):
        kind, st, c = step_info(step)
        slot = (step & 1) * 3 + i
        ops = [("S", lambda: I(f"s_add_u32 m0, s{sRING}, {slot*3072}")),
               ("S", lambda: I(f"s_mov_b32 s{sOFF2}, {(i*3+2*st)*73728 + c*12288}"))]
        for d in range(3):
            def f(d=d):
                e.need([f"w{step-2}_{i}"])
                e.vmem(f"buffer_load_dwordx4 v{vD[d]}, s[{sW}:{sW+3}], s{sOFF2} offen offset:{1024*d} lds", f"dma{step}_{i}")
            ops.append(("M", f))
        return ops

    def tr_ops(step, i):
        slot = (step & 1) * 3 + i
        ops = []
        for s in range(3):
            for h in range(2):
                def f(s=s, h=h):
                    e.need([f"dma{step}_{i}"])
                    e.lds(f"ds_read_b64_tr_b16 {vr(W(step, i, s) + 2*h, 2)}, v{vT} offset:{slot*3072 + h*1536 + s*32}", f"w{step}_{i}")
                ops.append(("WR" if s == 0 and h == 0 else "R", f))
        return ops

    def u_op(step, i, s):
        if opt["d_nou"] and step > 9:
            return ("S", lambda: I("s_nop 0"))
        return ("M", lambda: e.vmem(f"buffer_load_dwordx4 {vr(W(step, i, s))}, v{vU[s]}, s[{sU}:{sU+3}], s{sOFF} offen offset:{1024*i} {opt['uf']}", f"w{step}_{i}"))

    def u_off(step):
        kind, st, c = step_info(step)
        pos = st if kind == "B" else 2 + st
        return ("S", lambda: I(f"s_mov_b32 s{sOFF}, {(pos*6+c)*36864}"))

    I(f"v_lshlrev_b32 v8, 3, v0")
    I(f"v_add_u32 v8, {FLAGS}, v8")
    I(f"v_mov_b32 v10, 0")
    I(f"v_mov_b32 v11, 0")
    I(f"ds_write_b64 v8, v[10:11]")
    I("s_waitcnt lgkmcnt(0)")
    e.stamp()
    I("s_barrier")
    for i in range(3):
        for c, f in dma_ops(0, i):
            f()
    if opt["pro"] == "alpha":
        I("s_barrier")
    w1late = opt["w1late"] == 2 or (opt["w1late"] == 1 and not extra)
    if not w1late:
        for i in range(3):
            for c, f in dma_ops(1, i):
                f()
    e.need("bias")
    for s in range(3):
        a, b = acc[(5, 0, s)], acc[(5, 1, s)]
        I(f"v_lshlrev_b32 v{a}, 16, v{16+2*s}")
        I(f"v_and_b32 v{a+1}, s{sMASK}, v{16+2*s}")
        I(f"v_lshlrev_b32 v{a+2}, 16, v{17+2*s}")
        I(f"v_and_b32 v{a+3}, s{sMASK}, v{17+2*s}")
        for k in range(4):
            I(f"v_xor_b32 v{b+k}, s{sINV}, v{a+k}")
    for i in range(3):
        for c, f in tr_ops(0, i):
            f()
    if w1late:
        for i in range(3):
            for c, f in dma_ops(1, i):
                f()
    if opt["w2pre"]:
        for i in range(3):
            for c, f in dma_ops(2, i):
                f()
    I(f"s_lshl_b32 s{sT0}, s{sWAVE}, 2")
    I(f"s_add_u32 s{sT0}, s{sT0}, {FLAGS}")
    I(f"v_mov_b32 v{vFL}, s{sT0}")
    I(f"v_mov_b32 v{vONE}, 1")
    if opt["prio"]:
        I(f"s_setprio {opt['prio']}")
    e.stamp()

    groups = []

    def g_row(step, r):
        st = step_info(step)[1]
        mf = []
        for i in (2, 1, 0):
            m = r - i
            if 0 <= m <= 5:
                for s in range(3):
                    mf.append(((m, st, s), i, s))
        return dict(step=step, row=r, mf=mf)

    def g_x(step, i):
        return dict(step=step, row=8 + i, mf=[(("X", step_info(step)[1]), i, 0)])

    for step in range(22):
        seq = [g_row(step, 0), g_row(step, 1), g_x(step, 0), g_row(step, 2), g_x(step, 1), g_row(step, 3),
               g_x(step, 2), g_row(step, 4), g_row(step, 5), g_row(step, 6), g_row(step, 7)]
        groups += [g for g in seq if extra or g["row"] < 8]
    lag = opt["lag"]
    if lag >= 0:
        seq = []
        for r in range(8 + lag):
            if r < 8:
                seq.append((22, r))
            if r >= lag:
                seq.append((23, r - lag))
    else:
        seq = [(22, 0), (22, 1), (22, 2), (23, 0), (22, 3), (23, 1), (23, 2), (23, 3),
               (22, 4), (23, 4), (22, 5), (23, 5), (22, 6), (23, 6), (22, 7), (23, 7)]
    for (st_, r) in seq:
        groups.append(g_row(st_, r))
        if extra and st_ == 22 and 1 <= r <= 3:
            groups.append(g_x(22, r - 1))
        if extra and st_ == 23 and 1 <= r <= 3 and lag < 0:
            groups.append(g_x(23, r - 1))
        if extra and st_ == 23 and 2 <= r <= 4 and lag >= 0:
            groups.append(g_x(23, r - 2))

    stream = []
    gstart = []
    for gi, g in enumerate(groups):
        gstart.append(len(stream))
        for (key, i, s) in g["mf"]:
            stream.append((gi, key, i, s))
    N = len(stream)
    gend = [gstart[k + 1] - 1 if k + 1 < len(groups) else N - 1 for k in range(len(groups))]
    step_start, step_end = {}, {}
    last_use, last_acc, first_acc, first_tap = {}, {}, {}, {}
    for gi, g in enumerate(groups):
        step_start.setdefault(g["step"], gstart[gi])
        step_end[g["step"]] = gend[gi]
    for n, (gi, key, i, s) in enumerate(stream):
        st = groups[gi]["step"]
        last_use[(st, i, s)] = n
        last_acc[(st, key)] = n
        first_acc.setdefault((st, key), n)
        first_tap.setdefault((st, i), n)
    SL = step_start[1] - step_start[0]

    fill = [[] for _ in range(N + 1)]
    cl = [""] * (N + 1)
    endw = [""] * (N + 1)
    for gi in range(1, len(groups)):
        endw[gstart[gi] - 1] = "W"
    for (st, i), n in first_tap.items():
        if n:
            endw[n - 1] = "W"

    def put(g, op):
        fill[g].append(op[1])
        cl[g] += op[0]

    def addcost(g, c, cur):
        base = cur.get(g, cl[g])
        return gapcost(base + c + endw[g]) - gapcost(base + endw[g])

    def place(g0, ops, deadline=None, per=2, strict=False):
        for budget in range(0, len(ops) + 1):
            cur = {}
            res = []
            g, n, left = g0, 0, budget
            for c, f in ops:
                free = 4 if c == "D" else 0
                while g < N:
                    if n < per:
                        ac = addcost(g, c, cur)
                        if ac <= free:
                            break
                        if left and ac <= free + 4:
                            left -= 1
                            break
                    g += 1
                    n = 0
                g = min(g, N)
                cur[g] = cur.get(g, cl[g]) + c
                res.append(g)
                n += 1
            if deadline is None or res[-1] <= deadline:
                break
        else:
            assert not strict, (g0, deadline, res[-1])
        for g, op in zip(res, ops):
            put(g, op)
        return res[-1]

    def vread(gi):
        g = groups[gi]
        u = g["step"] >> 1
        off = VS[u % 3] + (g["step"] & 1) * VHALF + g["row"] * 1024
        base = vV
        if off >= 0x8000:
            base, off = vV2, off - 0x8000
        r = VR + 4 * (gi % 4)
        return ("R", lambda: e.lds(f"ds_read_b128 {vr(r)}, v{base} offset:{off}", f"v{gi}"))

    first_of_unit = {}
    for gi, g in enumerate(groups):
        first_of_unit.setdefault(g["step"] >> 1, gi)
    def flag(k):
        return ("d", lambda: e.lds(f"ds_write_b32 v{vFL}, v{vONE} offset:{k*16}"))

    def ckread(off, name):
        return ("R", lambda: e.lds(f"ds_read_b32 v{vCK}, v{vV2} offset:{FLAGS - 0x8000 + off}", name))

    def check1(name):
        def f():
            e.need(name)
            I(f"v_readfirstlane_b32 s{sT0}, v{vCK}")
        return f

    def check(off, val, name, st=False):
        def f():
            lab = f"L_CK{tag}{name}"
            I(f"s_cmp_eq_u32 s{sT0}, {val}")
            I(f"s_cbranch_scc0 {lab}_spin")
            e.label(lab)
            if st and opt["cst"] < 0:
                e.stamp()
            cold.append(f"{lab}_spin:")
            cold.append(f"    ds_read_b32 v{vCK}, v{vV2} offset:{FLAGS - 0x8000 + off}")
            cold.append("    s_waitcnt lgkmcnt(0)")
            cold.append(f"    v_readfirstlane_b32 s{sT0}, v{vCK}")
            cold.append(f"    s_cmp_eq_u32 s{sT0}, {val}")
            cold.append(f"    s_cbranch_scc0 {lab}_spin")
            cold.append(f"    s_branch {lab}")
        return f

    cold = []
    bar_gap = {}
    rpos = {}
    for gi in range(4, len(groups)):
        g = gend[gi - 4]
        if opt["rsh"] and len(groups[gi - 3]["mf"]) > 1 and g - 0 >= rpos.get(gi - 1, -1):
            g += 1
        g = max(g, rpos.get(gi - 1, -1) + 1)
        rpos[gi] = g
        put(g, vread(gi))
    for u in range(1, 12):
        gi = first_of_unit[u]
        gp = gend[gi - 4]
        bar_gap[u] = gp - 1
        put(gp - 2, ("WV", check1(f"rdy{u}")))
        put(gp - 1, ("SS", check(448 + 4 * u, 4, f"rdy{u}", True)))
        gq = gp - (7 if opt["rsh"] else 8)
        assert place(gq, [ckread(448 + 4 * u, f"rdy{u}")]) < gp - 4
        if u - 1 <= 8:
            place(gstart[gi - 1], [flag(16 + u - 1)])

    g = 0
    gtr1 = 0
    k = 0
    for step in ((3,) if opt["w2pre"] else (2, 3)):
        for i in range(3):
            if step == 3:
                gtr1 = place(max(gtr1, opt["tr1at"] + (14 if w1late else 0) + 8 * i), tr_ops(1, i), per=1) + 1
                g = max(g, gtr1 + opt['trd'])
            ops = dma_ops(step, i)
            g = place(max(g, int(k * opt["dsp"])), ops[:2])
            for d in range(3):
                g = place(max(g + 1, int(k * opt["dsp"]) + 1), [ops[2 + d]])
                k += 1
    place(g + 1, [flag(31)])
    NR = opt["nraw"]
    for step in range(2, NR):
        gt = step_start[step - 1] + SL - 24
        for i in range(3):
            gt = max(gt, max(last_use[(step - 2, i, s)] for s in range(3)))
            gt = place(gt, tr_ops(step, i), per=1, deadline=first_tap[(step, i)] - 4) + 1
            if step + 2 < NR:
                ops = dma_ops(step + 2, i)
                t0_ = step_start[step] + int(i * SL / 3)
                g = place(max(g, gt + opt["trd"], t0_), ops[:2])
                for d in range(3):
                    g = place(max(g + 1, t0_ + int(d * SL / 9) + 1), [ops[2 + d]])

    gchk = step_start[NR - 1] - opt["ulead0"] - 3

    place(gchk - 10, [ckread(240, "uflag")])
    put(gchk - 1, ("WV", check1("uflag")))
    put(gchk, ("SS", check(240, 1, "uflag")))
    g = gchk + 1
    go_gap = None
    early_go = []
    for step in range(NR, 24):
        base = step_start[step - 1] - opt["ulead"]
        stp = opt["ustep"] * SL / 57
        if step == NR:
            base, stp = gchk + 2, opt["ustep0"]
        if step == 23:
            base, stp = last_use[(21, 0, 0)], 2
        k = 0
        for i in range(3):
            for s in range(3):
                tgt = max(base + int(k * stp), last_use[(step - 2, i, s)], g)
                if k == 0:
                    g = place(max(g, tgt - 2), [u_off(step)])
                    tgt = max(tgt, g + 1)
                g = place(tgt, [u_op(step, i, s)]) + 1
                k += 1
        if step == opt["go"]:
            go_gap = g
        if opt["ego"] and step in (21, 22):
            early_go.append((g, 25 + step - 21))

    def bfly_ops(k0, k1, first):
        ops = []
        if first:
            o0, o1, md = "v_sub_f32_e64", "v_add_f32_e64", " div:2"
        else:
            o0, o1, md = "v_add_f32", "v_sub_f32", ""
        for k in range(4):
            ops.append(("V", lambda k=k: I(f"{o0} v{spare[0]+k}, v{acc[k0]+k}, v{acc[k1]+k}{md}")))
        for k in range(4):
            def f(k=k):
                I(f"{o1} v{acc[k1]+k}, v{acc[k0]+k}, v{acc[k1]+k}{md}")
                if k == 3:
                    acc[k0], spare[0] = spare[0], acc[k0]
            ops.append(("V", f))
        return ops

    order = [0, 1, "X", 2, 3, 4, 5] if extra else [0, 1, 2, 3, 4, 5]
    fb = [u for u in range(12) if UNITS[u][0] == "B"]
    y0last = 2 * max(u for u in range(12) if UNITS[u][1] == 0) + 1
    for last, first in ((2 * fb[0] - 1, True), (2 * fb[-1] + 1, False)):
        blocks = []
        for m in order:
            keys = [((m, 0, s), (m, 1, s)) for s in range(3)] if m != "X" else [(("X", 0), ("X", 1))]
            for (k0, k1) in keys:
                rdy = max(n for (st_, k_), n in last_acc.items() if st_ <= last and k_ in (k0, k1))
                blocks.append((rdy + 8, first_acc[(last + 1, k0)] - 3, k0, k1))
        dl = [b[1] for b in blocks]
        for k in range(len(dl) - 2, -1, -1):
            dl[k] = min(dl[k], dl[k + 1] - opt.get("bsp", 4))
        g = 0
        for (rdy, _, k0, k1), d in zip(blocks, dl):
            g = place(max(g, rdy), bfly_ops(k0, k1, first), deadline=d, per=3)
            assert g <= _, (last, k0, g, _)

    def oaddr():
        ops = []
        A = lambda s: ops.append((s[0].upper(), lambda: I(s)))
        t, q = vO[1], vO[2]
        A(f"v_lshrrev_b32 v{q}, 8, v{vV}")
        A(f"v_bfe_u32 v{t}, v{vV}, 4, 4")
        A(f"v_xor_b32 v{t}, v{t}, v{q}")
        A(f"v_lshlrev_b32 v{q}, 3, v{q}")
        A(f"s_lshl_b32 s{sT1}, s{sWAVE}, 5")
        A(f"s_add_u32 s{sT1}, s{sT1}, {XST}")
        A(f"v_mul_u32_u24 v{vOX}, 144, v{t}")
        A(f"v_add3_u32 v{vOX}, v{vOX}, v{q}, s{sT1}")
        A(f"v_mul_u32_u24 v{t}, 400, v{t}")
        A(f"v_add_u32 v{q}, v{t}, v{q}")
        A(f"s_mul_i32 s{sT1}, s{sWAVE}, 96")
        A(f"s_add_u32 s{sT1}, s{sT1}, {OUT}")
        for s in range(3):
            A(f"s_lshl_b32 s{sT2}, s{sF[s]}, 5")
            A(f"s_add_u32 s{sT2}, s{sT2}, s{sT1}")
            A(f"v_add_u32 v{vO[s]}, s{sT2}, v{q}")
        return ops
    place(step_start[10], oaddr())

    def epi_ops(key, addr, off):
        return [("V", lambda: I(f"v_cvt_pk_bf16_f32 v{acc[key]}, v{acc[key]}, v{acc[key]+1}")),
                ("V", lambda: I(f"v_cvt_pk_bf16_f32 v{acc[key]+1}, v{acc[key]+2}, v{acc[key]+3}")),
                ("D", lambda: e.lds(f"ds_write_b64 v{addr}, {vr(acc[key], 2)} offset:{off}"))]

    place(go_gap, [flag(14)])
    for g_, k_ in early_go:
        place(g_, [flag(k_)])
    def after(n):
        g, c = n, 0
        while g < N:
            c += sum(1 for ch in cl[g] if ch != "W")
            if c >= 8:
                return g
            g += 1
            c += 1
            if c >= 8:
                return g
        return None

    def epi2(key, addr, off):
        return [("V", lambda: I(f"v_cvt_pk_bf16_f32 v{acc[key]}, v{acc[key]}, v{acc[key]+1}")),
                ("V", lambda: I(f"v_cvt_pk_bf16_f32 v{acc[key]+1}, v{acc[key]+2}, v{acc[key]+3}")),
                ("d", lambda: e.lds(f"ds_write_b32 v{addr}, v{acc[key]} offset:{off}")),
                ("d", lambda: e.lds(f"ds_write_b32 v{addr}, v{acc[key]+1} offset:{off+4}"))]

    g = 0
    for st, last in ((0, y0last), (1, 23)):
        if st == 0:
            g = last_acc[(y0last, (0, 0, 0))] + opt["y0at"]
        if st == 1:
            g = place(g, [("V", lambda s=s: I(f"v_add_u32 v{vO[s]}, {6*OROW}, v{vO[s]}")) for s in range(3)])
        done = {m: (last_acc[(last, ("X", st))] if m == "X" else last_acc[(last, (m, st, 0))]) for m in order}
        ep = epi2 if (st == 0 and opt["dd"] >= 1) else epi_ops
        for m in sorted(order, key=lambda m: done[m]):
            if st == 1 and opt["dd"] >= 2:
                ep = epi2 if m in ("X", 0, 1, 2) else epi_ops
            if m == "X":
                g = place(max(g, after(done[m])), ep(("X", st), vOX, 2304 * st) + [flag(12 + st)])
                continue
            o3 = [ep((m, st, s), vO[s], m * OROW) for s in range(3)]
            g0 = after(done[m] + 2)
            if g0 is None or g >= N:
                have = (N - 1 - (done[m] + 2)) + sum(sum(1 for ch in cl[k] if ch != "W") for k in range(done[m] + 2, N + 1))
                if have < 8:
                    put(N, ("S", lambda n_=8 - have: I(f"s_nop {n_ - 1}")))
                for op in [o for t in o3 for o in t if o[0] == "V"] + [o for t in o3 for o in t if o[0] != "V"] + [flag(6 * st + m)]:
                    put(N, op)
                g = N
                continue
            g = max(g, after(done[m]))
            g = place(g, o3[0])
            g = place(max(g, after(done[m] + 1) or N), o3[1])
            g = place(max(g, g0), o3[2] + [flag(6 * st + m)])

    if opt["cst"] >= 0:
        for k in range(15):
            g = step_start[opt["cst"]] + k * opt["cev"]
            if g < N:
                fill[g].append(e.stamp)
    ckread(448, "rdy0")[1]()
    check1("rdy0")()
    check(448, 4, "rdy0")()
    e.stamp()
    for gi in range(4):
        vread(gi)[1]()
    started = set()
    for n, (gi, key, i, s) in enumerate(stream):
        step = groups[gi]["step"]
        kind, st, c = step_info(step)
        e.need([f"v{gi}", f"w{step}_{i}"])
        d = acc[key]
        cc = d
        if step in (0, 2) and key not in started:
            started.add(key)
            cc = acc[(5, st, s)]
        I(f"v_mfma_f32_16x16x32_bf16 {vr(d)}, {vr(W(step, i, s))}, {vr(VR + 4*(gi % 4))}, {vr(cc)}")
        for f in fill[n]:
            f()
    e.stamp()
    for f in fill[N]:
        f()
    e.stamp()
    e.dump_stamps("c")
    I("s_endpgm")
    return e.L + cold


xA, xB, xC, eA, eB, eC = 1, 2, 3, 4, 5, 6
wE = [7, 8, 9, 10]
wX = [11, 12]
TMP = 13
OB = 26
RAW = 58
RAWX = 178


def PD(p, j):
    return RAW + 40 * p + 4 * j


def PX(p, j):
    return RAWX + 24 * p + 4 * j


def xload(e, p, j):
    a, off = (xA, 0) if j == 0 else ((xC, 0) if j == 9 else (xB, (j - 1) * 384))
    e.vmem(f"buffer_load_dwordx4 {vr(PD(p, j))}, v{a}, s[{sX}:{sX+3}], 0 offen offset:{off + 128*p} {e.opt['xf']}", f"x{p}_{j&1}")


def eload(e, p, j):
    a, off = (eA, 0) if j == 0 else ((eC, 0) if j == 5 else (eB, (j - 1) * 384))
    e.vmem(f"buffer_load_dwordx4 {vr(PX(p, j))}, v{a}, s[{sX}:{sX+3}], 0 offen offset:{off + 128*p} {e.opt['xf']}", f"e{p}_{j&1}")


def worker_pre(e, opt):
    I = e.I
    t1, t2, t3 = 14, 15, 16
    I(f"s_and_b32 s{sT0}, s2, 7")
    I(f"s_cmp_lt_u32 s{sIDX}, 6")
    I(f"s_cselect_b32 s{sT2}, s{sIDX}, s{sT0}")
    I(f"s_cselect_b32 s{sT0}, s{sT0}, 8")
    I(f"s_mul_i32 s{sT1}, s{sT0}, 11")
    I(f"s_lshr_b32 s{sT1}, s{sT1}, 5")
    I(f"s_mul_i32 s{sT3}, s{sT1}, 3")
    I(f"s_sub_u32 s{sT0}, s{sT0}, s{sT3}")
    I(f"s_lshl_b32 s{sT0}, s{sT0}, 2")
    I(f"s_add_u32 s{sT0}, s{sT0}, s{sPW}")
    I(f"s_mul_i32 s{sOFF}, s{sT1}, {3*73728}")
    I(f"s_mul_i32 s{sOFF2}, s{sT2}, 12288")
    I(f"s_add_u32 s{sOFF}, s{sOFF}, s{sOFF2}")
    I(f"s_lshl_b32 s{sOFF2}, s{sT0}, 5")
    I(f"s_add_u32 s{sOFF}, s{sOFF}, s{sOFF2}")
    I(f"v_bfe_u32 v{t1}, v0, 3, 2")
    I(f"v_lshlrev_b32 v{t1}, 3, v{t1}")
    I(f"v_lshrrev_b32 v{t2}, 5, v0")
    I(f"v_lshl_add_u32 v{t1}, v{t2}, 2, v{t1}")
    I(f"v_bfe_u32 v{t2}, v0, 1, 2")
    I(f"v_add_u32 v{t1}, v{t1}, v{t2}")
    I(f"v_mul_u32_u24 v{t1}, 384, v{t1}")
    I(f"v_and_b32 v{t2}, 1, v0")
    I(f"v_lshl_add_u32 v{eA}, v{t2}, 4, v{t1}")
    I(f"s_mul_i32 s{sRING}, s{sPW}, 3072")
    I(f"s_add_u32 s{sRING}, s{sRING}, {PRE}")
    I(f"s_mov_b32 m0, s{sRING}")
    I("s_waitcnt lgkmcnt(0)")
    srd(e, sW, sKA + 2, WBYTES)
    for j in range(3):
        e.vmem(f"buffer_load_dwordx4 v{eA}, s[{sW}:{sW+3}], s{sOFF} offen lds", "pre")
        if j < 2:
            I(f"s_add_u32 m0, s{sRING}, {1024*(j+1)}")
            I(f"s_add_u32 s{sOFF}, s{sOFF}, 73728")
    I(f"s_cmp_lt_u32 s{sT2}, 6")
    I(f"s_cselect_b32 s{sCNT}, 0, s{sINV}")
    I(f"s_mul_i32 s{sOFF}, s{sT2}, 36864")
    I(f"s_mul_i32 s{sT0}, s{sT0}, 3")
    I(f"s_add_u32 s{sT0}, s{sT0}, s{sT1}")
    I(f"s_lshl_b32 s{sT0}, s{sT0}, 10")
    I(f"s_add_u32 s{sOFF}, s{sOFF}, s{sT0}")
    I(f"s_or_b32 s{sOFF}, s{sOFF}, s{sCNT}")
    I(f"v_lshl_add_u32 v{eB}, v0, 4, s{sOFF}")


def producer_main(e, opt):
    I = e.I
    t0, t1, t2, t3 = 13, 14, 15, 16
    decode_main(e)
    I(f"v_and_b32 v{t0}, 3, v0")
    I(f"v_bfe_u32 v{t1}, v0, 2, 2")
    I(f"v_bfe_u32 v{t2}, v0, 4, 1")
    I(f"v_lshrrev_b32 v{wE[0]}, 5, v0")
    I(f"s_lshl_b32 s{sT0}, s{sPW}, 1")
    I(f"s_add_u32 s{sT0}, s{sT0}, s{sROW0}")
    I(f"s_mul_i32 s{sT0}, s{sT0}, 86016")
    I(f"s_mul_i32 s{sT1}, s{sSTRIP}, 12288")
    I(f"s_add_u32 s{sT0}, s{sT0}, s{sT1}")
    I(f"s_sub_u32 s{sT0}, s{sT0}, 86016")
    I(f"v_mul_u32_u24 v{t3}, 86016, v{t2}")
    I(f"v_lshl_add_u32 v{t3}, v{t0}, 4, v{t3}")
    I(f"v_lshl_add_u32 v{t3}, v{wE[0]}, 6, v{t3}")
    I(f"v_mul_u32_u24 v{xB}, 3072, v{t1}")
    I(f"v_add3_u32 v{xB}, v{xB}, v{t3}, s{sT0}")
    I(f"v_cmp_gt_i32 vcc, 0, v{xB}")
    I(f"v_lshl_add_u32 v{t3}, s{sSTRIP}, 2, v{t1}")
    I(f"v_mov_b32 v{xC}, s{sINV}")
    I(f"v_cndmask_b32 v{xB}, v{xB}, v{xC}, vcc")
    I(f"v_cmp_ne_u32 vcc, 0, v{t3}")
    I(f"v_subrev_u32 v{xA}, 384, v{xB}")
    I(f"v_add_u32 v{wE[1]}, 3072, v{xB}")
    I(f"v_cndmask_b32 v{xA}, v{xC}, v{xA}, vcc")
    I(f"v_cmp_ne_u32 vcc, 27, v{t3}")
    I("s_waitcnt lgkmcnt(0)")
    srd(e, sX, sKA, XBYTES)
    I(f"v_cndmask_b32 v{xC}, v{xC}, v{wE[1]}, vcc")
    for j in (0, 2, 4, 6, 8):
        xload(e, 0, j)


def producer(parent, opt, kind):
    e = Em(opt, parent)
    I = e.I
    t0, t1, t2, t3, t4 = 13, 14, 15, 16, 17
    X = kind == "x"
    G = RAWX
    if kind == "w":
        if opt["wp1"]:
            I("s_barrier")
        srd(e, sU, sWS, UBYTES)
        I(f"v_lshrrev_b32 v{eC}, 2, v0")
        I(f"v_lshlrev_b32 v{eC}, 5, v{eC}")
        I(f"v_lshl_add_u32 v{eC}, v{t0}, 3, v{eC}")
        I(f"v_add_u32 v{eC}, s{sRING}, v{eC}")
        if opt["pst"] == 2:
            e.stamp()
        e.need("pre")
        if opt["pst"] == 2:
            e.stamp()
        for j in range(3):
            for h in range(2):
                e.lds(f"ds_read_b64_tr_b16 {vr(G + 4*j + 2*h, 2)}, v{eC} offset:{1024*j + 512*h}", f"pt{j}")
        U = G + 12
        for j in (0, 2, 1):
            e.need(f"pt{j}")
            for k in range(4):
                I(f"v_lshlrev_b32 v{U + 8*j + 2*k}, 16, v{G + 4*j + k}")
                I(f"v_and_b32 v{U + 8*j + 2*k + 1}, s{sMASK}, v{G + 4*j + k}")
            if j == 2:
                for kk in range(8):
                    I(f"v_add_f32 v{U+kk}, v{U+kk}, v{U+16+kk}")
        for kk in range(8):
            I(f"v_sub_f32_e64 v{U+16+kk}, v{U+kk}, v{U+8+kk} div:2")
            I(f"v_add_f32_e64 v{U+kk}, v{U+kk}, v{U+8+kk} div:2")
        for k in range(4):
            I(f"v_cvt_pk_bf16_f32 v{G+36+k}, v{U+2*k}, v{U+2*k+1}")
            I(f"v_cvt_pk_bf16_f32 v{G+40+k}, v{U+16+2*k}, v{U+16+2*k+1}")
        for pos, r in ((0, G + 36), (1, G + 40), (2, G), (3, G + 8)):
            I(f"s_mov_b32 s{sOFF}, {pos*6*36864}")
            e.vmem(f"buffer_store_dwordx4 {vr(r)}, v{eB}, s[{sU}:{sU+3}], s{sOFF} offen sc1", "ust")
        if opt["pst"]:
            e.stamp()
    if kind == "n" and opt["xo"] and opt["pro"] != "alpha":
        for j in (1, 3, 5, 7, 9):
            xload(e, 0, j)
    I(f"s_lshl_b32 s{sT0}, s{sPW}, 1")
    I(f"v_add_u32 v{t2}, s{sT0}, v{t2}")
    I(f"v_mul_u32_u24 v{wE[0]}, {VHALF}, v{wE[0]}")
    I(f"v_lshl_add_u32 v{wE[0]}, v{t2}, 10, v{wE[0]}")
    I(f"v_lshlrev_b32 v{t3}, 2, v{t1}")
    I(f"v_lshl_add_u32 v{t3}, v{t0}, 4, v{t3}")
    I(f"v_add_u32 v{t3}, v{t3}, v{t0}")
    I(f"v_lshl_add_u32 v{wE[0]}, v{t3}, 4, v{wE[0]}")
    for k in range(1, 4):
        I(f"v_xor_b32 v{wE[k]}, {16*k}, v{wE[0]}")
    decode_extra(e)
    srd(e, sO, sKA + 6, XBYTES)
    if X:
        I(f"v_bfe_u32 v{t1}, v0, 2, 1")
        I(f"v_lshlrev_b32 v{t1}, 1, v{t1}")
        I(f"v_bfe_u32 v{t2}, v0, 3, 1")
        I(f"v_bfe_u32 v{t3}, v0, 4, 1")
        I(f"v_lshlrev_b32 v{t3}, 2, v{t3}")
        I(f"v_or3_b32 v{t1}, v{t1}, v{t2}, v{t3}")
        I(f"s_add_u32 s{sT0}, s{sEROW}, s{sPW}")
        I(f"s_sub_u32 s{sT0}, s{sT0}, 1")
        I(f"s_mul_i32 s{sT1}, s{sT0}, 86016")
        I(f"s_cmp_lt_u32 s{sT0}, 224")
        I(f"s_cselect_b32 s{sT1}, s{sT1}, s{sINV}")
        I(f"s_lshl_b32 s{sT0}, s{sES}, 5")
        I(f"v_lshl_add_u32 v{t4}, v{t1}, 2, s{sT0}")
        I(f"v_mul_u32_u24 v{t2}, 384, v{t4}")
        I(f"v_lshl_add_u32 v{t2}, v{t0}, 4, v{t2}")
        I(f"v_lshrrev_b32 v{t3}, 5, v0")
        I(f"v_lshl_add_u32 v{t2}, v{t3}, 6, v{t2}")
        I(f"v_add_u32 v{eB}, s{sT1}, v{t2}")
        I(f"v_cmp_ne_u32 vcc, 0, v{t4}")
        I(f"v_subrev_u32 v{t2}, 384, v{eB}")
        I(f"v_mov_b32 v{eA}, s{sINV}")
        I(f"v_cndmask_b32 v{eA}, v{eA}, v{t2}, vcc")
        I(f"v_cmp_ne_u32 vcc, 220, v{t4}")
        I(f"v_add_u32 v{t2}, 1536, v{eB}")
        I(f"v_mov_b32 v{eC}, s{sINV}")
        I(f"v_cndmask_b32 v{eC}, v{eC}, v{t2}, vcc")
        for j in (0, 2, 4):
            eload(e, 0, j)
        if opt["pro"] != "alpha":
            if opt["xo"]:
                for j in (1, 3, 5, 7, 9):
                    xload(e, 0, j)
            for j in (1, 3, 5):
                eload(e, 0, j)
        I(f"v_lshlrev_b32 v{t1}, 1, v{t1}")
        I(f"v_xor_b32 v{t1}, v{t1}, v{t0}")
        I(f"v_lshl_add_u32 v{t1}, v{t0}, 4, v{t1}")
        I(f"v_lshlrev_b32 v{t1}, 4, v{t1}")
        I(f"v_mul_u32_u24 v{t3}, {VHALF}, v{t3}")
        I(f"s_add_u32 s{sT0}, s{sPW}, 8")
        I(f"s_lshl_b32 s{sT0}, s{sT0}, 10")
        I(f"v_add3_u32 v{wX[0]}, v{t1}, v{t3}, s{sT0}")
        I(f"v_xor_b32 v{wX[1]}, 16, v{wX[0]}")
    else:
        I(f"s_cmp_eq_u32 s{sPW}, 3")
        I(f"s_cselect_b32 s{sPEND}, 1, 0")
        if opt["rpf"] == 1:
            I(f"s_mul_i32 s{sT0}, s{sIDX}, {18*128}")
            I(f"v_min_u32 v253, 17, v0")
            I(f"v_lshl_add_u32 v253, v253, 7, s{sT0}")
        elif opt["rpf"] == 2:
            I(f"s_sub_u32 s{sT0}, s{sIDX}, 12")
            I(f"s_cmp_lt_u32 s{sIDX}, 7")
            I(f"s_cselect_b32 s{sT0}, s{sIDX}, s{sT0}")
            I(f"s_mul_i32 s{sT1}, s{sT0}, 13")
            I(f"s_lshr_b32 s{sT1}, s{sT1}, 6")
            I(f"s_mul_i32 s{sT2}, s{sT1}, 5")
            I(f"s_sub_u32 s{sL}, s{sT0}, s{sT2}")
            I(f"s_cmp_eq_u32 s{sHASX}, 0")
            I(f"s_cselect_b32 s{sL}, s{sL}, 9")
            I(f"s_cmp_eq_u32 s{sPW}, 3")
            I(f"s_cselect_b32 s{sL}, s{sL}, 9")
            I(f"s_mul_i32 s{sT1}, s{sT1}, {144*128}")
            I(f"v_min_u32 v253, 47, v0")
            I(f"v_lshl_add_u32 v253, v253, 7, s{sT1}")
        I(f"v_mov_b32 v250, {FLAGS + 15*16}")
        if kind == "n":
            srd(e, sU, sWS, UBYTES)
    I(f"v_mov_b32 v251, 1")
    I(f"v_mov_b32 v252, {FLAGS}")

    def pollflag(idx, lab, slp, r=16):
        e.label(lab)
        I(f"ds_read_b128 {vr(r)}, v252 offset:{idx*16}")
        I("s_waitcnt lgkmcnt(0)")
        e.lg = []
        I(f"v_and_b32 v{r}, v{r}, v{r+1}")
        I(f"v_and_b32 v{r+2}, v{r+2}, v{r+3}")
        I(f"v_and_b32 v{r}, v{r}, v{r+2}")
        I("s_nop 0")
        I(f"v_readfirstlane_b32 s{sT0}, v{r}")
        I(f"s_cmp_eq_u32 s{sT0}, 1")
        I(f"s_cbranch_scc1 {lab}_ok")
        if slp:
            I(f"s_sleep {slp}")
        I(f"s_branch {lab}")
        e.label(lab + "_ok")

    upf_from = [(3 if opt["order"] == 2 else opt["pollu"] + 1) + opt["rlead"]]
    upf_from[0] = max(upf_from[0], opt["nraw"] // 2)

    def upf(t, sfx=''):
        if X or not opt["rpf"]:
            return
        k, st, p = UNITS[t]
        base = ((st if k == "B" else 2 + st) * 6 + 2 * p) * 36864
        lab = f"L_UP{kind}{t}{sfx}"
        if opt["rpf"] == 1:
            I(f"s_cmp_eq_u32 s{sPW}, 3")
            I(f"s_cbranch_scc0 {lab}")
            I(f"s_mov_b32 s{sT1}, {base}")
            I(f"buffer_load_dword v254, v253, s[{sU}:{sU+3}], s{sT1} offen sc1")
        else:
            I(f"s_cmp_eq_u32 s{sL}, {t % 5}")
            I(f"s_cbranch_scc0 {lab}")
            for q in range(3):
                I(f"s_mov_b32 s{sT1}, {base + q*48*128}")
                I(f"buffer_load_dword v254, v253, s[{sU}:{sU+3}], s{sT1} offen sc1")
        e.label(lab)

    def waitfree(u, r=16):
        if u >= 3:
            pollflag(16 + u - 3, f"L_FR{kind}{u}", opt["psl"], r)
            if upf_from[0] <= u + opt["rlead"] <= 11:
                upf(u + opt["rlead"])

    def ready(u):
        I("s_mov_b64 exec, 1")
        e.lds(f"ds_add_u32 v252, v251 offset:{448 + 4*u}")
        I("s_mov_b64 exec, -1")
        if not opt["pst"] or e.nst < 15:
            e.stamp()

    def xl(p, par):
        for j in range(par, 10, 2):
            xload(e, p, j)
        if X:
            for j in range(par, 6, 2):
                eload(e, p, j)

    def parse(t):
        d = {}
        for item in t.split(","):
            when, what = item.split(":")
            d.setdefault(when, []).append((int(what[0]), 0 if what[1] == "e" else 1))
        return d
    xsX = parse(opt.get("xsx") or opt["xs"])
    xsN = parse(opt["xs"])
    xs = xsX if X else xsN
    seen = set()

    def xsched(when):
        if kind != "n":
            for p, par in xs.get(when, []):
                xl(p, par)
            return
        a, b = xsX.get(when, []), xsN.get(when, [])
        for it in a + [t for t in b if t not in a]:
            both = it in a and it in b
            if not both:
                lab = f"L_XS{when}_{it[0]}{it[1]}"
                I(f"s_cmp_eq_u32 s{sHASX}, {1 if it in a else 0}")
                I(f"s_cbranch_scc0 {lab}")
            keep = list(e.vm)
            xl(*it)
            if not both:
                e.label(lab)
                if it not in seen:
                    e.vm = keep
                seen.add(it)

    pend = []
    novalu = [False]
    pace = [0, 0]

    def xpace(per, nvalu):
        for p, par in xs.get(f"{per}p", []):
            pend.extend([lambda j=j, p=p: xload(e, p, j) for j in range(par, 10, 2)])
            if X:
                pend.extend([lambda j=j, p=p: eload(e, p, j) for j in range(par, 6, 2)])
        if pend:
            pace[0] = max(1, nvalu // len(pend))
            pace[1] = 0

    def V(s):
        if not (opt["d_nov"] and novalu[0]):
            I(s)
        pace[1] += 1
        if pend and pace[1] % pace[0] == 0:
            pend.pop(0)()

    def later(f):
        if not opt["wsp"]:
            return f()
        if not pend:
            pace[0], pace[1] = opt["wsp"], 0
        pend.append(f)

    def flush():
        while pend:
            pend.pop(0)()

    def unp(dst, src):
        V(f"v_lshlrev_b32 v{dst}, 16, v{src}")
        V(f"v_and_b32 v{dst+1}, s{sMASK}, v{src}")

    def vwrite(addr, src, u):
        if opt["d_now"] and u >= 2:
            return
        e.lds(f"ds_write_b128 v{addr}, {vr(src)} offset:{VS[u % 3]}")

    T16 = list(range(13, 26)) + [54, 55, 56]

    def chainA(D, n, par, neg, waddr, u, ob, wf=False):
        op = "v_subrev_f32" if neg else "v_sub_f32"
        A, B = T16[:8], T16[8:]

        def unp8(R, src):
            for k in range(4):
                V(f"v_lshlrev_b32 v{R[2*k]}, 16, v{src+k}")
                V(f"v_and_b32 v{R[2*k+1]}, s{sMASK}, v{src+k}")
        unp8(A, D(par))
        for j in range(n):
            unp8(B, D(par + 2 * j + 2))
            for k in range(8):
                V(f"{op} v{A[k]}, v{A[k]}, v{B[k]}")
            for k in range(4):
                V(f"v_cvt_pk_bf16_f32 v{ob + 4*(j & 1) + k}, v{A[2*k]}, v{A[2*k+1]}")
            if wf and j == 0:
                waitfree(u, 44)
            vwrite(waddr[j], ob + 4 * (j & 1), u)
            A, B = B, A

    def tA(u, main=True, ext=True):
        kind_, st, p = UNITS[u]
        neg = (st == 1 and any(UNITS[t][0] == "B" for t in range(u)))
        if main:
            e.need(f"x{p}_{st}")
            if opt["pst"] and u <= 1:
                e.stamp()
            chainA(lambda j: PD(p, j), 4, st, neg, wE, u, OB, True)
        if X and ext:
            e.need(f"e{p}_{st}")
            chainA(lambda j: PX(p, j), 2, st, neg, wX, u, OB + 8)

    def pairB(d1, d2, o1, o2):
        for k0 in (0, 2):
            for k in (k0, k0 + 1):
                a = TMP + 6 * (k & 1)
                unp(a, d1 + k); unp(a + 2, d2 + k)
            for k in (k0, k0 + 1):
                a = TMP + 6 * (k & 1)
                b, s = a + 2, a + 4
                V(f"v_add_f32 v{s}, v{a}, v{b}"); V(f"v_add_f32 v{s+1}, v{a+1}, v{b+1}")
                V(f"v_sub_f32 v{a}, v{b}, v{a}"); V(f"v_sub_f32 v{a+1}, v{b+1}, v{a+1}")
            for k in (k0, k0 + 1):
                a = TMP + 6 * (k & 1)
                V(f"v_cvt_pk_bf16_f32 v{o1+k}, v{a+4}, v{a+5}")
                V(f"v_cvt_pk_bf16_f32 v{o2+k}, v{a}, v{a+1}")

    npoll = [0]

    def trypoll(final=False):
        if X:
            return
        n = npoll[0]
        npoll[0] += 1
        lab = f"L_PL{kind}{n}"
        I(f"s_cmp_eq_u32 s{sPEND}, 0")
        I(f"s_cbranch_scc1 {lab}_skip")
        if n == 0:
            if opt["pdel"]:
                I(f"s_sleep {opt['pdel']}")
            I(f"s_load_dword s{sPOLL}, s[{sDBG}:{sDBG+1}], 0")
            e.label(lab + "_skip")
            return
        I("s_waitcnt lgkmcnt(0)")
        tgt = 0 if opt["noatom"] else NWORK
        if final:
            I(f"s_mov_b32 s{sCNT}, {n}")
            I(f"v_mov_b32 v255, 0")
            e.label(lab)
            I(f"s_cmp_ge_u32 s{sPOLL}, {tgt}")
            I(f"s_cbranch_scc1 {lab}_ok")
            I(f"s_sleep {opt['pslp']}")
            I(f"s_cmp_ge_u32 s{sCNT}, 4")
            I(f"s_cbranch_scc1 {lab}_v")
            I(f"s_lshl_b32 s{sT0}, s{sCNT}, 6")
            I(f"s_load_dword s{sPOLL}, s[{sDBG}:{sDBG+1}], s{sT0}")
            I(f"s_add_u32 s{sCNT}, s{sCNT}, 1")
            I("s_waitcnt lgkmcnt(0)")
            I(f"s_branch {lab}")
            e.label(lab + "_v")
            I(f"global_load_dword v254, v255, s[{sDBG}:{sDBG+1}] sc1")
            I(f"s_add_u32 s{sCNT}, s{sCNT}, 1")
            I("s_waitcnt vmcnt(0)")
            I(f"v_readfirstlane_b32 s{sPOLL}, v254")
            I(f"s_cmp_lt_u32 s{sCNT}, 20000")
            I(f"s_cbranch_scc1 {lab}")
        else:
            I(f"s_cmp_ge_u32 s{sPOLL}, {tgt}")
            I(f"s_cbranch_scc1 {lab}_ok")
            I(f"s_load_dword s{sPOLL}, s[{sDBG}:{sDBG+1}], {64*n}")
            I(f"s_branch {lab}_skip")
        e.label(lab + "_ok")
        if opt["pst"]:
            I(f"s_memrealtime s[{sST + 2*pslot[0]}:{sST + 2*pslot[0] + 1}]")
            I(f"s_mov_b32 s{sST + 2*pslot[0] + 2}, " + (f"s{sCNT}" if final else f"{n}"))
        I("ds_write_b32 v250, v251")
        I(f"s_mov_b32 s{sPEND}, 0")
        for t in range(opt["nraw"] // 2, upf_from[0]):
            upf(t, f"_{n}")
        e.label(lab + "_skip")

    pslot = [0]

    def wpoint():
        pollflag(31, f"L_WI{kind}", opt["psl"], 20)
        if opt["otlb"] == 2 or (opt["otlb"] == 1 and kind == "w"):
            I("s_mov_b64 exec, 1")
            e.vmem(f"buffer_load_dword v254, v{xB}, s[{sO}:{sO+3}], 0 offen")
            I("s_mov_b64 exec, -1")
        xsched("w")

    def tB1(u):
        p = UNITS[u][2]
        e.need([f"x{p}_0", f"x{p}_1"] + ([f"e{p}_0", f"e{p}_1"] if X else []))
        for ee in range(4):
            pairB(PD(p, 1 + 2 * ee), PD(p, 2 + 2 * ee), OB + 4 * (ee & 1), OB + 8 + 4 * ee)
            if ee == 0:
                waitfree(u)
                xpace(u, 200 if X else 120)
            vwrite(wE[ee], OB + 4 * (ee & 1), u)
            if u == 2 and ee == opt["wat"]:
                wpoint()
            if u == 2 and ee >= opt["pat"]:
                if ee == opt["pat"] and opt["pst"] and not X:
                    pslot[0] = e.nst
                    e.nst += 2
                trypoll()
                if ee == 3:
                    trypoll(final=True)
        if X:
            e.need([f"e{p}_0", f"e{p}_1"])
            for ee in range(2):
                pairB(PX(p, 1 + 2 * ee), PX(p, 2 + 2 * ee), OB + 4 * ee, OB + 24 + 4 * ee)
                vwrite(wX[ee], OB + 4 * ee, u)
        flush()
        ready(u)

    def tB2(u):
        waitfree(u + 1)
        xsched(f"f{u}")
        for ee in range(4):
            vwrite(wE[ee], OB + 8 + 4 * ee, u + 1)
        if X:
            for ee in range(2):
                vwrite(wX[ee], OB + 24 + 4 * ee, u + 1)
        ready(u + 1)

    n1 = 1 if X else opt["n1"]

    def bar():
        e.drain_lg()
        if not opt["pst"] or e.nst < 15:
            e.stamp()
        I("s_barrier")

    def signal():
        e.need("ust")
        if opt["pst"]:
            e.stamp()
        I(f"v_mov_b32 v{eA}, {FLAGS + 15*16 + 4}")
        I("s_mov_b64 exec, 1")
        I(f"ds_add_rtn_u32 v{eC}, v{eA}, v251")
        I("s_waitcnt lgkmcnt(0)")
        e.lg = []
        I(f"v_readfirstlane_b32 s{sT0}, v{eC}")
        I(f"s_cmp_eq_u32 s{sT0}, 3")
        I("s_cbranch_scc0 L_NOATOM")
        I("s_mov_b64 exec, 15")
        I(f"v_lshlrev_b32 v{eA}, 6, v0")
        if not opt["noatom"]:
            I(f"global_atomic_add v{eA}, v251, s[{sDBG}:{sDBG+1}] sc1")
        e.label("L_NOATOM")
        I("s_mov_b64 exec, -1")

    if opt["otlb"] == 1 and kind != "w":
        I("s_mov_b64 exec, 1")
        e.vmem(f"buffer_load_dword v254, v{xB}, s[{sO}:{sO+3}], 0 offen")
        I("s_mov_b64 exec, -1")
    if kind == "w" and opt["wo"] == 0:
        xl(0, 1)
    e.drain_lg()
    e.stamp()
    if not (kind == "w" and opt["wp1"]):
        I("s_barrier")
    if opt["pro"] == "alpha":
        I("s_barrier")
        if kind != "w" and opt["aord"] == 0:
            xl(0, 1)
    if kind == "w" and not opt["wta"]:
        signal()
        if opt["wo"]:
            xl(0, 1)
    tA(0)
    ready(0)
    if kind == "w" and opt["wta"]:
        signal()
        if opt["wo"]:
            xl(0, 1)
    if opt["pro"] == "alpha" and kind != "w" and opt["aord"] == 1:
        xl(0, 1)
    xsched("a0")
    tA(1)
    ready(1)
    xsched("a1")
    novalu[0] = True
    for u in range(2, 12):
        k, st, p = UNITS[u]
        if k == "A":
            if u == 2:
                wpoint()
            tA(u)
            ready(u)
            if u == opt["pollu"]:
                trypoll()
                trypoll(final=True)
            xsched(f"a{u}")
        elif st == 0:
            tB1(u)
            xsched(f"j{u}")
            tB2(u)
            xsched(f"k{u}")
    if True:
        if True:
            rA, rB, gA, gB, vXL, vXG = 1, 2, 3, 4, 5, 6
            I(f"s_mul_i32 s{sT0}, s{sROW0}, 86016")
            I(f"s_mul_i32 s{sT1}, s{sSTRIP}, 12288")
            I(f"s_add_u32 s{sT0}, s{sT0}, s{sT1}")
            I(f"s_mul_i32 s{sT1}, s{sPW}, 3072")
            I(f"s_add_u32 s{sT0}, s{sT0}, s{sT1}")
            I(f"s_mul_i32 s{sT1}, s{sPW}, 1600")
            I(f"s_add_u32 s{sT1}, s{sT1}, {OUT}")
            for j in range(3 if opt["st2"] else 0):
                I(f"v_add_u32 v{t0}, {64*j}, v0")
                I(f"v_mul_u32_u24 v{t1}, 1366, v{t0}")
                I(f"v_lshrrev_b32 v{t1}, 16, v{t1}")
                I(f"v_mul_u32_u24 v{t2}, 48, v{t1}")
                I(f"v_sub_u32 v{t2}, v{t0}, v{t2}")
                I(f"v_lshlrev_b32 v{t2}, 3, v{t2}")
                I(f"v_mul_u32_u24 v{t3}, 400, v{t1}")
                I(f"v_add3_u32 v{7+j}, v{t3}, v{t2}, s{sT1}")
                I(f"v_mul_u32_u24 v{t3}, 768, v{t1}")
                I(f"v_add3_u32 v{10+j}, v{t3}, v{t2}, s{sT0}")
                I(f"v_add_u32 v{20+j}, {6*OROW}, v{7+j}")
            for (r, gg, add) in ((rA, gA, 0), (rB, gB, 64)):
                I(f"v_add_u32 v{t0}, {add}, v0")
                I(f"v_min_u32 v{t0}, 95, v{t0}")
                I(f"v_mul_u32_u24 v{t1}, 10923, v{t0}")
                I(f"v_lshrrev_b32 v{t1}, 18, v{t1}")
                I(f"v_mul_u32_u24 v{t2}, 24, v{t1}")
                I(f"v_sub_u32 v{t2}, v{t0}, v{t2}")
                I(f"v_lshlrev_b32 v{t2}, 4, v{t2}")
                I(f"v_mul_u32_u24 v{t3}, 400, v{t1}")
                I(f"v_add3_u32 v{r}, v{t3}, v{t2}, s{sT1}")
                I(f"v_mul_u32_u24 v{t3}, 768, v{t1}")
                I(f"v_add3_u32 v{gg}, v{t3}, v{t2}, s{sT0}")
            I(f"v_cmp_gt_u32 vcc, 32, v0")
            I(f"v_mov_b32 v{t4}, s{sINV}")
            I(f"v_add_u32 v250, {6*OROW}, v{rA}")
            I(f"v_cndmask_b32 v{gB}, v{t4}, v{gB}, vcc")
            I(f"v_add_u32 v251, {6*OROW}, v{rB}")
            I(f"s_lshl_b32 s{sT0}, s{sPW}, 2")
            I(f"v_bfe_u32 v{t0}, v0, 3, 2")
            I(f"v_add_u32 v{t0}, s{sT0}, v{t0}")
            I(f"v_and_b32 v{t1}, 7, v0")
            I(f"v_mul_u32_u24 v{t2}, 144, v{t0}")
            I(f"v_lshl_add_u32 v{t2}, v{t1}, 4, v{t2}")
            I(f"v_add_u32 v{vXL}, {XST}, v{t2}")
            I(f"v_mul_u32_u24 v{t0}, 768, v{t0}")
            I(f"v_lshrrev_b32 v{t2}, 1, v{t1}")
            I(f"v_mul_u32_u24 v{t2}, 96, v{t2}")
            I(f"v_and_b32 v{t1}, 1, v{t1}")
            I(f"v_lshl_add_u32 v{t2}, v{t1}, 4, v{t2}")
            I(f"s_mul_i32 s{sT0}, s{sEROW}, 86016")
            I(f"s_mul_i32 s{sT1}, s{sES}, 12288")
            I(f"s_add_u32 s{sT0}, s{sT0}, s{sT1}")
            I(f"s_lshl_b32 s{sT1}, s{sF0}, 5")
            I(f"s_add_u32 s{sT0}, s{sT0}, s{sT1}")
            I(f"v_add3_u32 v{vXG}, v{t0}, v{t2}, s{sT0}")
            I(f"v_cndmask_b32 v{vXG}, v{t4}, v{vXG}, vcc")
    rA, rB, gA, gB, vXL, vXG = 1, 2, 3, 4, 5, 6
    sf = opt["sf"]
    nb = [0]

    def rowread(st, m, b):
        if opt["st2"]:
            for j in range(3):
                I(f"ds_read_b64 {vr(b + 2*j, 2)}, v{(7 if st == 0 else 20) + j} offset:{m*OROW}")
            return
        a0, a1 = (rA, rB) if st == 0 else (250, 251)
        I(f"ds_read_b128 {vr(b)}, v{a0} offset:{m*OROW}")
        I(f"ds_read_b128 {vr(b+4)}, v{a1} offset:{m*OROW}")

    def rowstore(st, m, b, w0=None, w1=None):
        sf = opt["sfl"] if st == 1 and m >= 6 - opt["nlast"] else opt["sf"]
        I(f"s_mov_b32 s{sOFF}, {m*86016}")
        if opt["st2"]:
            for j in range(3):
                if w0: I(f"s_waitcnt lgkmcnt({2-j})")
                I(f"buffer_store_dwordx2 {vr(b + 2*j, 2)}, v{10+j}, s[{sO}:{sO+3}], s{sOFF} offen offset:{384*st} {sf}")
            return
        if w0: I(w0)
        I(f"buffer_store_dwordx4 {vr(b)}, v{gA}, s[{sO}:{sO+3}], s{sOFF} offen offset:{384*st} {sf}")
        if w1: I(w1)
        I(f"buffer_store_dwordx4 {vr(b+4)}, v{gB}, s[{sO}:{sO+3}], s{sOFF} offen offset:{384*st} {sf}")

    def xpart(st, b):
        if kind == "w":
            return
        if kind == "n":
            I(f"s_cmp_eq_u32 s{sHASX}, 0")
            I(f"s_cbranch_scc1 L_NOX{st}")
        pollflag(12 + st, f"L_F{kind}X{st}", opt["slp"])
        I(f"ds_read_b128 {vr(b)}, v{vXL} offset:{2304*st}")
        I("s_waitcnt lgkmcnt(0)")
        I(f"buffer_store_dwordx4 {vr(b)}, v{vXG}, s[{sO}:{sO+3}], 0 offen offset:{384*st}")
        if kind == "n":
            e.label(f"L_NOX{st}")

    batches = [(14, range(6))]
    if opt["ego"]:
        a_, b_ = int(str(opt["ego"])[1]), int(str(opt["ego"])[2])
        batches = [(25, tuple(range(a_))), (26, tuple(range(a_, a_ + b_))), (14, tuple(range(a_ + b_, 6)))]
        batches = [t for t in batches if t[1] or t[0] == 14]
    for k_, rows in batches:
        if rows:
            pollflag(rows[-1], f"L_F{kind}0_{rows[-1]}", opt["psl"])
        for m in rows:
            rowread(0, m, 28 + 8 * m)
        pollflag(k_, f"L_F{kind}GO{k_}", opt["slp"])
        if k_ == 14 and not opt["pst"]:
            e.stamp()
        for m in rows:
            rowstore(0, m, 28 + 8 * m)
    xpart(0, 76)
    for m in [0, 1, "X", 2, 3, 4, 5]:
        if m == "X":
            xpart(1, 80)
            continue
        b = 84 + 8 * m
        pollflag(6 + m, f"L_F{kind}1_{m}", opt["slp"] if m < 4 else opt["slpl"])
        if m in (0, 5) and not opt["pst"]:
            e.stamp()
        rowread(1, m, b)
        rowstore(1, m, b, "s_waitcnt lgkmcnt(1)", "s_waitcnt lgkmcnt(0)")
    e.stamp()
    if opt["stamp"]:
        I("s_waitcnt vmcnt(0)")
        e.stamp()
    e.dump_stamps("p")
    I("s_endpgm")
    return e.L


def generate(**kw):
    opt = dict(DEF)
    opt.update(kw)
    opt["code_pf_lines"] = 20
    UNITS[:] = ORDERS[opt["order"]]
    L = []
    L.append("; one 512-thread workgroup per CU: waves 0-3 MFMA, waves 4-7 input transform / output stores.")
    L.append(f"; @launch grid=(256,1,1) block=(512,1,1) lds={LDS_BYTES}")
    L.append('.amdgcn_target "amdgcn-amd-amdhsa--gfx950"')
    L.append(".text")
    L.append(f".globl {KNAME}")
    L.append(".p2align 8")
    L.append(f".type {KNAME},@function")
    L.append(f"{KNAME}:")
    e = Em(opt)
    I = e.I
    e.stamp()
    I(f"s_load_dwordx8 s[{sKA}:{sKA+7}], s[0:1], 0")
    I(f"s_load_dwordx4 s[{sDBG}:{sDBG+3}], s[0:1], 32")
    I("v_lshrrev_b32 v1, 6, v0")
    I("s_cmp_ge_u32 s2, 256")
    I("s_cbranch_scc1 L_END")
    I(f"v_readfirstlane_b32 s{sWAVE}, v1")
    I("v_and_b32 v0, 63, v0")
    if opt["epf"]:
        R = opt["epf"]
        I(f"s_getpc_b64 s[{sPC}:{sPC+1}]")
        I(f"s_bfe_u32 s{sT0}, s2, {3 | ((R.bit_length() - 1) << 16)}")
        I(f"v_min_u32 v2, {24 // R - 1}, v0")
        I(f"v_lshl_add_u32 v2, v2, {R.bit_length() - 1}, s{sT0}")
        I(f"v_mul_u32_u24 v1, {CS}, v1")
        I(f"v_lshl_add_u32 v2, v2, 7, v1")
        I(f"v_min_u32 v2, L_END-{KNAME}-256, v2")
        e.vmem(f"global_load_dword v255, v2, s[{sPC}:{sPC+1}]", "epf")
    I(f"s_mov_b32 s{sMASK}, 0xffff0000")
    I(f"s_mov_b32 s{sINV}, 0x80000000")
    I(f"s_lshr_b32 s{sIDX}, s2, 3")
    I(f"s_cmp_lt_u32 s{sWAVE}, 4")
    I("s_cbranch_scc1 L_CONS")
    I(f"s_sub_u32 s{sPW}, s{sWAVE}, 4")
    I(f"s_cmp_lt_u32 s{sIDX}, 7")
    I("s_cbranch_scc1 L_PW")
    L += e.L
    epw = Em(opt, e)
    worker_pre(epw, opt)
    producer_main(epw, opt)
    ep = Em(opt, e)
    producer_main(ep, opt)
    if not opt["xo"]:
        for j in (1, 3, 5, 7, 9):
            xload(ep, 0, j)
    ep.I(f"s_cmp_ge_u32 s{sIDX}, 19")
    ep.I("s_cbranch_scc1 L_PN")
    ep.I(f"s_cmp_eq_u32 s{sPW}, 3")
    ep.I("s_cbranch_scc1 L_PN")
    L += ep.L
    L += producer(ep, opt, "x")
    L.append(f".org {KNAME} + {1 * CS}, 0" if opt["epf"] else ".p2align 6")
    L.append("L_PN:")
    L += producer(ep, opt, "n")
    L.append(f".org {KNAME} + {2 * CS}, 0" if opt["epf"] else ".p2align 6")
    L.append("L_PW:")
    L += epw.L
    L += producer(epw, opt, "w")
    L.append(f".org {KNAME} + {3 * CS}, 0" if opt["epf"] else ".p2align 6")
    L.append("L_CONS:")
    ec = Em(opt, e)
    consumer_pro(ec, opt)
    L += ec.L
    L += consumer(ec, opt, True)
    L.append(f".org {KNAME} + {5 * CS}, 0" if opt["epf"] else ".p2align 6")
    L.append("L_CN:")
    L += consumer(ec, opt, False)
    L.append("L_END:")
    L.append("    s_endpgm")
    L.append('.section .rodata,"a"')
    L.append(".p2align 6")
    L.append(f".amdhsa_kernel {KNAME}")
    for d in ("next_free_vgpr 256", "next_free_sgpr 102", "accum_offset 256", "group_segment_fixed_size 0",
              "kernarg_size 48", "user_sgpr_count 2", "user_sgpr_kernarg_segment_ptr 1",
              "system_sgpr_workgroup_id_x 1", "ieee_mode 0", "float_denorm_mode_32 1"):
        L.append("  .amdhsa_" + d)
    L.append(".end_amdhsa_kernel")
    return "\n".join(L) + "\n"


if __name__ == "__main__":
    out = sys.argv[1]
    kw = {}
    for a in sys.argv[2:]:
        k, v = a.split("=", 1)
        try:
            kw[k] = int(v)
        except ValueError:
            try:
                kw[k] = float(v)
            except ValueError:
                kw[k] = v.replace("+", " ")
    open(out, "w").write(generate(**kw))
```

```python
import sys, os
sys.path.insert(0, os.path.dirname(os.path.abspath(__file__)))
from cost import gapcost

KNAME = "standalone__standard_2d_1d_3d_conv__vision_kernel"

DEF = dict(
    stamp=0, spin=4000, spinref=0, cst=-1, cev=8, pst=0,
    xf="", sf="nt", uf="sc1",
    code_pf=1, w_pf=1,
    prio=0, slp=1,
    pro="beta",
    xs="w:1e,w:1o,4p:2e,k4:2o",
    dsp=4.5,
    ustep=3, ulead=12,
    lag=-1,
    go=23,
    noatom=0, u_pf=0, pollp=1, pollat=-2, n1=1, y0at=0, gam=0, psl=2, epf=2, xo=1, w1late=0, otlb=0, aord=0, rsh=0, dd=0, wta=0, d_xcc=0, par=0, two=1, ego=0, st2=1, wp1=0, pdel=0, nraw=4, pollu=2, pslp=8, trd=9, d_now=0, d_nov=0, d_nou=0, sfl='sc1', nlast=0, slpl=0, ustep0=5, order=2, wat=1, pat=3, rpf=1, rlead=0, wsp=10, pollw=0, w2pre=0, tr1at=4, wo=2, ulead0=0,
)

VSLOT = 22528
VHALF = 11264
VS = [0, VSLOT, 2 * VSLOT]
FLAGS = 3 * VSLOT
WRING = FLAGS + 512
WWAVE = 18432
OROW = 6400
OUT = WRING
XST = OUT + 12 * OROW
PRE = XST + 4608
LDS_BYTES = PRE + 12288
NWORK = 56
CS = 12288

XBYTES = 224 * 224 * 384
WBYTES = 9 * 192 * 384
UBYTES = 24 * 36864

ORDERS = {
    2: [("A", 0, 0), ("A", 1, 0),
        ("B", 0, 0), ("B", 1, 0), ("B", 0, 1), ("B", 1, 1), ("B", 0, 2), ("B", 1, 2),
        ("A", 0, 1), ("A", 0, 2), ("A", 1, 1), ("A", 1, 2)],
    3: [("A", 0, 0), ("A", 1, 0), ("A", 0, 1),
        ("B", 0, 0), ("B", 1, 0), ("B", 0, 1), ("B", 1, 1), ("B", 0, 2), ("B", 1, 2),
        ("A", 0, 2), ("A", 1, 1), ("A", 1, 2)],
    1: [("A", 0, 0), ("A", 1, 0), ("A", 0, 1), ("A", 1, 1),
        ("B", 0, 0), ("B", 1, 0), ("B", 0, 1), ("B", 1, 1), ("B", 0, 2), ("B", 1, 2),
        ("A", 0, 2), ("A", 1, 2)],
}
UNITS = list(ORDERS[2])


def step_info(s):
    kind, st, pair = UNITS[s >> 1]
    return kind, st, 2 * pair + (s & 1)


sX, sW, sO, sU, sB = 4, 8, 12, 16, 20
sDBG, sWS, sKA = 24, 26, 28
sWAVE, sL, sSTRIP, sROW0, sHASX, sES, sEROW = 36, 37, 38, 39, 40, 41, 42
sF0, sF1, sF2, sIDX = 43, 44, 45, 46
sT0, sT1, sT2, sT3 = 47, 48, 49, 50
sMASK, sRING, sOFF, sOFF2, sPW = 51, 52, 53, 54, 55
sPC, sCNT, sINV = 56, 58, 59
sPOLL, sPEND = 3, 56
sST = 60


class Em:
    def __init__(self, opt, parent=None):
        self.L = []
        self.lg = list(parent.lg) if parent else []
        self.vm = list(parent.vm) if parent else []
        self.opt = opt
        self.nst = parent.nst if parent else 0

    def I(self, s):
        self.L.append("    " + s)

    def label(self, s):
        self.L.append(s + ":")

    def lds(self, s, name=None):
        self.I(s)
        self.lg.append(name)

    def vmem(self, s, name=None):
        self.I(s)
        self.vm.append(name)

    def need(self, names):
        if isinstance(names, str):
            names = [names]
        w = []
        k = max([i for i, n in enumerate(self.vm) if n in names], default=-1)
        if k >= 0:
            n = min(len(self.vm) - 1 - k, 63)
            w.append(f"vmcnt({n})")
            self.vm = self.vm[len(self.vm) - n:] if n else []
        k = max([i for i, n in enumerate(self.lg) if n in names], default=-1)
        if k >= 0:
            n = min(len(self.lg) - 1 - k, 15)
            w.append(f"lgkmcnt({n})")
            self.lg = self.lg[len(self.lg) - n:] if n else []
        if w:
            self.I("s_waitcnt " + " ".join(w))

    def drain_lg(self):
        self.I("s_waitcnt lgkmcnt(0)")
        self.lg = []

    def drain_vm(self):
        self.I("s_waitcnt vmcnt(0)")
        self.vm = []

    def stamp(self):
        o = self.opt
        if o["stamp"] == 4 and self.nst != o["spinref"]:
            self.nst += 1
        elif o["stamp"]:
            r = sST + 2 * self.nst
            assert r + 1 < 102, "too many stamps"
            self.I(f"s_memrealtime s[{r}:{r+1}]" if o["stamp"] in (1, 4) else f"s_memtime s[{r}:{r+1}]")
            self.nst += 1

    def dump_stamps(self, role):
        o = self.opt
        if not o["stamp"]:
            return
        self.I("s_waitcnt vmcnt(0) lgkmcnt(0)")
        if o["stamp"] == 4:
            if o["spinref"] and role != "c":
                return
            lab = f"L_SPIN{id(self)}"
            self.label(lab)
            self.I(f"s_memrealtime s[{sT1}:{sT1+1}]")
            self.I("s_waitcnt lgkmcnt(0)")
            self.I(f"s_sub_u32 s{sT0}, s{sT1}, s{sST + 2*o['spinref']}")
            self.I(f"s_cmp_lt_u32 s{sT0}, {o['spin']}")
            self.I(f"s_cbranch_scc1 {lab}")
            return
        self.I(f"s_lshl_b32 s{sT0}, s2, 3")
        self.I(f"s_add_u32 s{sT0}, s{sT0}, s{sWAVE}")
        self.I(f"s_lshl_b32 s{sT0}, s{sT0}, 8")
        self.I(f"s_add_u32 s{sT0}, s{sT0}, 0x100000")
        self.I(f"v_mov_b32 v1, s{sT0}")
        for i in range(self.nst):
            self.I(f"v_mov_b32 v2, s{sST + 2*i}")
            self.I(f"global_store_dword v1, v2, s[{sWS}:{sWS+1}] offset:{4*i}")
        self.I(f"v_mov_b32 v2, {self.nst}")
        self.I(f"global_store_dword v1, v2, s[{sWS}:{sWS+1}] offset:252")
        self.I(f"s_getreg_b32 s{sT0}, hwreg(HW_REG_XCC_ID)")
        self.I(f"v_mov_b32 v2, s{sT0}")
        self.I(f"global_store_dword v1, v2, s[{sWS}:{sWS+1}] offset:248")


def vr(a, n=4):
    return f"v[{a}:{a+n-1}]"


def srd(e, s, lo, nbytes, bias=0):
    if bias:
        e.I(f"s_sub_u32 s{s}, s{lo}, {bias}")
        e.I(f"s_subb_u32 s{s+1}, s{lo+1}, 0")
    else:
        e.I(f"s_mov_b32 s{s}, s{lo}")
        e.I(f"s_mov_b32 s{s+1}, s{lo+1}")
    e.I(f"s_mov_b32 s{s+2}, {nbytes + bias}")
    e.I(f"s_mov_b32 s{s+3}, 0x20000")


def decode_main(e):
    I = e.I
    I(f"s_and_b32 s{sT0}, s2, 7")
    I(f"s_lshl_b32 s{sT0}, s{sT0}, 5")
    I(f"s_add_u32 s{sT0}, s{sT0}, s{sIDX}")
    I(f"s_mul_i32 s{sT0}, s{sT0}, 7")
    I(f"s_lshr_b32 s{sSTRIP}, s{sT0}, 8")
    I(f"s_and_b32 s{sT0}, s{sT0}, 255")
    I(f"s_mul_i32 s{sT0}, s{sT0}, 293")
    I(f"s_lshr_b32 s{sT0}, s{sT0}, 11")
    I(f"s_mul_i32 s{sROW0}, s{sT0}, 6")


def decode_extra(e):
    I = e.I
    if e.opt["par"]:
        I(f"s_bfe_u32 s{sT0}, s2, {1 | (2 << 16)}")
        I(f"s_mul_i32 s{sT0}, s{sT0}, 24")
        I(f"s_add_u32 s{sT0}, s{sT0}, s{sIDX}")
        I(f"s_sub_u32 s{sT0}, s{sT0}, 8")
    else:
        I(f"s_and_b32 s{sT0}, s2, 7")
        I(f"s_mul_i32 s{sT0}, s{sT0}, 12")
        I(f"s_add_u32 s{sT0}, s{sT0}, s{sIDX}")
        I(f"s_sub_u32 s{sT0}, s{sT0}, 7")
    I(f"s_mul_i32 s{sT1}, s{sT0}, 21846")
    I(f"s_lshr_b32 s{sT1}, s{sT1}, 16")
    I(f"s_mul_i32 s{sT2}, s{sT1}, 3")
    I(f"s_sub_u32 s{sF0}, s{sT0}, s{sT2}")
    I(f"s_cmp_eq_u32 s{sHASX}, 1")
    I(f"s_cselect_b32 s{sF0}, s{sF0}, 0")
    I(f"s_cselect_b32 s{sT1}, s{sT1}, 0")
    I(f"s_lshl_b32 s{sES}, s{sT1}, 1")
    I(f"s_and_b32 s{sES}, s{sES}, 12")
    I(f"s_lshr_b32 s{sES}, 0x5310, s{sES}")
    I(f"s_and_b32 s{sES}, s{sES}, 15")
    I(f"s_and_b32 s{sEROW}, s{sT1}, 1")
    I(f"s_add_u32 s{sEROW}, s{sEROW}, 222")
    I(f"s_lshr_b32 s{sT3}, s{sT1}, 3")
    I(f"s_lshl_b32 s{sT3}, s{sT3}, 1")
    I(f"s_and_b32 s{sT2}, s{sT1}, 7")
    I(f"s_add_u32 s{sT2}, s{sT2}, 216")
    I(f"s_cmp_lt_u32 s{sT1}, 8")
    I(f"s_cselect_b32 s{sES}, s{sES}, s{sT3}")
    I(f"s_cselect_b32 s{sEROW}, s{sEROW}, s{sT2}")


def consumer_pro(e, opt):
    I = e.I
    vV, vV2, vT = 1, 2, 3
    vD = [4, 5, 6]
    vU = [7, 253, 254]
    t0, t1, t2, t3, t4 = 8, 9, 10, 11, 12
    sF = [sF0, sF1, sF2]
    decode_extra(e)
    I(f"s_add_u32 s{sF1}, s{sF0}, 1")
    I(f"s_cmp_eq_u32 s{sF1}, 3")
    I(f"s_cselect_b32 s{sF1}, 0, s{sF1}")
    I(f"s_add_u32 s{sF2}, s{sF1}, 1")
    I(f"s_cmp_eq_u32 s{sF2}, 3")
    I(f"s_cselect_b32 s{sF2}, 0, s{sF2}")
    I(f"v_lshrrev_b32 v{t0}, 4, v0")
    I(f"s_mul_i32 s{sT0}, s{sWAVE}, 96")
    I(f"v_lshlrev_b32 v{t4}, 3, v{t0}")
    I(f"v_add_u32 v{t4}, s{sT0}, v{t4}")
    for s in range(3):
        I(f"s_lshl_b32 s{sT1}, s{sF[s]}, 5")
        I(f"v_add_u32 v{13+s}, s{sT1}, v{t4}")
    if opt["w_pf"]:
        I(f"s_mul_i32 s{sT1}, s{sIDX}, 36")
        I(f"v_min_u32 v{t1}, 35, v0")
        I(f"v_add_u32 v{t1}, s{sT1}, v{t1}")
        I(f"v_mul_u32_u24 v{t2}, 10923, v{t1}")
        I(f"v_lshrrev_b32 v{t2}, 21, v{t2}")
        I(f"v_add_u32 v{t3}, 1, v{t2}")
        I(f"v_lshrrev_b32 v{t3}, 1, v{t3}")
        I(f"v_mul_u32_u24 v{t3}, 576, v{t3}")
        I(f"v_mul_u32_u24 v{t2}, 384, v{t2}")
        I(f"v_add3_u32 v{t1}, v{t1}, v{t2}, v{t3}")
        I(f"s_mul_i32 s{sT1}, s{sWAVE}, {192*128}")
        I(f"s_add_u32 s{sT1}, s{sT1}, 2048")
        I(f"v_lshl_add_u32 v252, v{t1}, 7, s{sT1}")
    I("s_waitcnt lgkmcnt(0)")
    srd(e, sB, sKA + 4, 384)
    srd(e, sW, sKA + 2, WBYTES, 2048)
    srd(e, sU, sWS, UBYTES)
    if opt["w_pf"]:
        I(f"s_cmp_ge_u32 s{sWAVE}, {1 if opt['nraw'] == 4 else 2}")
        I("s_cbranch_scc1 L_NOWPF")
        I(f"buffer_load_dword v255, v252, s[{sW}:{sW+3}], 0 offen")
        e.label("L_NOWPF")
    if opt["code_pf"]:
        I(f"s_cmp_eq_u32 s{sWAVE}, 2")
        I("s_cbranch_scc0 L_NOCPF")
        I(f"s_getpc_b64 s[{sPC}:{sPC+1}]")
        e.label("L_PC0")
        I(f"s_sub_u32 s{sPC}, s{sPC}, L_PC0-{KNAME}")
        I(f"s_subb_u32 s{sPC+1}, s{sPC+1}, 0")
        I(f"s_mul_i32 s{sT1}, s{sIDX}, {opt['code_pf_lines']*128}")
        I(f"v_min_u32 v252, {opt['code_pf_lines']-1}, v0")
        I(f"v_lshl_add_u32 v252, v252, 7, s{sT1}")
        I(f"v_min_u32 v252, L_END-{KNAME}, v252")
        I(f"global_load_dword v255, v252, s[{sPC}:{sPC+1}]")
        e.label("L_NOCPF")
    if opt["d_xcc"]:
        I(f"s_cmp_lt_u32 s2, 12")
        I("s_cbranch_scc0 L_NOXCC")
        I(f"s_getreg_b32 s{sT1}, hwreg(HW_REG_XCC_ID)")
        I(f"s_lshl_b32 s{sT2}, s2, 2")
        I(f"v_mov_b32 v22, s{sT1}")
        I(f"v_mov_b32 v23, s{sT2}")
        I(f"global_store_dword v23, v22, s[{sDBG}:{sDBG+1}] offset:16")
        e.label("L_NOXCC")
    for s in range(3):
        e.vmem(f"buffer_load_dwordx2 {vr(16+2*s, 2)}, v{13+s}, s[{sB}:{sB+3}], 0 offen", "bias")
    I(f"v_and_b32 v{t1}, 15, v0")
    I(f"v_xor_b32 v{t2}, v{t0}, v{t1}")
    I(f"v_lshl_add_u32 v{t2}, v{t0}, 4, v{t2}")
    I(f"v_lshlrev_b32 v{vV}, 4, v{t2}")
    I(f"v_add_u32 v{vV2}, 0x8000, v{vV}")
    I(f"s_mul_i32 s{sRING}, s{sWAVE}, {WWAVE}")
    I(f"s_add_u32 s{sRING}, s{sRING}, {WRING}")
    I(f"v_lshrrev_b32 v{t2}, 2, v0")
    I(f"v_mul_u32_u24 v{t2}, 96, v{t2}")
    I(f"v_and_b32 v{t3}, 3, v0")
    I(f"v_lshl_add_u32 v{t2}, v{t3}, 3, v{t2}")
    I(f"v_add_u32 v{vT}, s{sRING}, v{t2}")
    for d in range(3):
        I(f"v_add_u32 v{t1}, {64*d}, v0")
        I(f"v_mul_u32_u24 v{t2}, 43691, v{t1}")
        I(f"v_lshrrev_b32 v{t2}, 18, v{t2}")
        I(f"v_mul_u32_u24 v{t3}, 6, v{t2}")
        I(f"v_sub_u32 v{t1}, v{t1}, v{t3}")
        I(f"v_bfe_u32 v{t3}, v{t2}, 2, 2")
        I(f"v_lshlrev_b32 v{t3}, 3, v{t3}")
        I(f"v_lshrrev_b32 v{t4}, 4, v{t2}")
        I(f"v_lshl_add_u32 v{t3}, v{t4}, 2, v{t3}")
        I(f"v_and_b32 v{t2}, 3, v{t2}")
        I(f"v_add_u32 v{t2}, v{t2}, v{t3}")
        I(f"v_mul_u32_u24 v{t2}, 384, v{t2}")
        I(f"v_lshrrev_b32 v{t3}, 1, v{t1}")
        I(f"v_add_u32 v{t3}, s{sF0}, v{t3}")
        I(f"v_subrev_u32 v{t4}, 3, v{t3}")
        I(f"v_min_u32 v{t3}, v{t3}, v{t4}")
        I(f"v_lshl_add_u32 v{t2}, v{t3}, 5, v{t2}")
        I(f"v_and_b32 v{t1}, 1, v{t1}")
        I(f"v_lshl_add_u32 v{t2}, v{t1}, 4, v{t2}")
        I(f"v_add_u32 v{t2}, s{sT0}, v{t2}")
        I(f"v_add_u32 v{vD[d]}, {2048 - 1024*d}, v{t2}")
    I(f"s_mul_i32 s{sT1}, s{sWAVE}, 9216")
    for s in range(3):
        I(f"s_mul_i32 s{sT0}, s{sF[s]}, 3072")
        I(f"s_add_u32 s{sT0}, s{sT0}, s{sT1}")
        I(f"v_lshl_add_u32 v{vU[s]}, v0, 4, s{sT0}")
    I(f"s_cmp_eq_u32 s{sHASX}, 0")
    I("s_cbranch_scc1 L_CN")


def consumer(parent, opt, extra):
    e = Em(opt, parent)
    I = e.I
    vV, vV2, vT = 1, 2, 3
    vD = [4, 5, 6]
    vU = [7, 253, 254]
    vO = vD
    vOX, vFL, vONE, vCK = 3, 255, 252, 0
    VR = 8
    WB = [24, 60]
    ACC = 96
    acc = {}
    for m in range(6):
        for st in range(2):
            for s in range(3):
                acc[(m, st, s)] = ACC + 4 * ((m * 2 + st) * 3 + s)
    acc[("X", 0)] = 240
    acc[("X", 1)] = 244
    spare = [248]
    sF = [sF0, sF1, sF2]
    tag = "x" if extra else "n"

    def W(step, i, s):
        return WB[step & 1] + 4 * (i * 3 + s)

    def dma_ops(step, i):
        kind, st, c = step_info(step)
        slot = (step & 1) * 3 + i
        ops = [("S", lambda: I(f"s_add_u32 m0, s{sRING}, {slot*3072}")),
               ("S", lambda: I(f"s_mov_b32 s{sOFF2}, {(i*3+2*st)*73728 + c*12288}"))]
        for d in range(3):
            def f(d=d):
                e.need([f"w{step-2}_{i}"])
                e.vmem(f"buffer_load_dwordx4 v{vD[d]}, s[{sW}:{sW+3}], s{sOFF2} offen offset:{1024*d} lds", f"dma{step}_{i}")
            ops.append(("M", f))
        return ops

    def tr_ops(step, i):
        slot = (step & 1) * 3 + i
        ops = []
        for s in range(3):
            for h in range(2):
                def f(s=s, h=h):
                    e.need([f"dma{step}_{i}"])
                    e.lds(f"ds_read_b64_tr_b16 {vr(W(step, i, s) + 2*h, 2)}, v{vT} offset:{slot*3072 + h*1536 + s*32}", f"w{step}_{i}")
                ops.append(("WR" if s == 0 and h == 0 else "R", f))
        return ops

    def u_op(step, i, s):
        if opt["d_nou"] and step > 9:
            return ("S", lambda: I("s_nop 0"))
        return ("M", lambda: e.vmem(f"buffer_load_dwordx4 {vr(W(step, i, s))}, v{vU[s]}, s[{sU}:{sU+3}], s{sOFF} offen offset:{1024*i} {opt['uf']}", f"w{step}_{i}"))

    def u_off(step):
        kind, st, c = step_info(step)
        pos = st if kind == "B" else 2 + st
        return ("S", lambda: I(f"s_mov_b32 s{sOFF}, {(pos*6+c)*36864}"))

    I(f"v_lshlrev_b32 v8, 3, v0")
    I(f"v_add_u32 v8, {FLAGS}, v8")
    I(f"v_mov_b32 v10, 0")
    I(f"v_mov_b32 v11, 0")
    I(f"ds_write_b64 v8, v[10:11]")
    I("s_waitcnt lgkmcnt(0)")
    e.stamp()
    I("s_barrier")
    for i in range(3):
        for c, f in dma_ops(0, i):
            f()
    if opt["pro"] == "alpha":
        I("s_barrier")
    w1late = opt["w1late"] == 2 or (opt["w1late"] == 1 and not extra)
    if not w1late:
        for i in range(3):
            for c, f in dma_ops(1, i):
                f()
    e.need("bias")
    for s in range(3):
        a, b = acc[(5, 0, s)], acc[(5, 1, s)]
        I(f"v_lshlrev_b32 v{a}, 16, v{16+2*s}")
        I(f"v_and_b32 v{a+1}, s{sMASK}, v{16+2*s}")
        I(f"v_lshlrev_b32 v{a+2}, 16, v{17+2*s}")
        I(f"v_and_b32 v{a+3}, s{sMASK}, v{17+2*s}")
        for k in range(4):
            I(f"v_xor_b32 v{b+k}, s{sINV}, v{a+k}")
    for i in range(3):
        for c, f in tr_ops(0, i):
            f()
    if w1late:
        for i in range(3):
            for c, f in dma_ops(1, i):
                f()
    if opt["w2pre"]:
        for i in range(3):
            for c, f in dma_ops(2, i):
                f()
    I(f"s_lshl_b32 s{sT0}, s{sWAVE}, 2")
    I(f"s_add_u32 s{sT0}, s{sT0}, {FLAGS}")
    I(f"v_mov_b32 v{vFL}, s{sT0}")
    I(f"v_mov_b32 v{vONE}, 1")
    if opt["prio"]:
        I(f"s_setprio {opt['prio']}")
    e.stamp()

    groups = []

    def g_row(step, r):
        st = step_info(step)[1]
        mf = []
        for i in (2, 1, 0):
            m = r - i
            if 0 <= m <= 5:
                for s in range(3):
                    mf.append(((m, st, s), i, s))
        return dict(step=step, row=r, mf=mf)

    def g_x(step, i):
        return dict(step=step, row=8 + i, mf=[(("X", step_info(step)[1]), i, 0)])

    for step in range(22):
        seq = [g_row(step, 0), g_row(step, 1), g_x(step, 0), g_row(step, 2), g_x(step, 1), g_row(step, 3),
               g_x(step, 2), g_row(step, 4), g_row(step, 5), g_row(step, 6), g_row(step, 7)]
        groups += [g for g in seq if extra or g["row"] < 8]
    lag = opt["lag"]
    if lag >= 0:
        seq = []
        for r in range(8 + lag):
            if r < 8:
                seq.append((22, r))
            if r >= lag:
                seq.append((23, r - lag))
    else:
        seq = [(22, 0), (22, 1), (22, 2), (23, 0), (22, 3), (23, 1), (23, 2), (23, 3),
               (22, 4), (23, 4), (22, 5), (23, 5), (22, 6), (23, 6), (22, 7), (23, 7)]
    for (st_, r) in seq:
        groups.append(g_row(st_, r))
        if extra and st_ == 22 and 1 <= r <= 3:
            groups.append(g_x(22, r - 1))
        if extra and st_ == 23 and 1 <= r <= 3 and lag < 0:
            groups.append(g_x(23, r - 1))
        if extra and st_ == 23 and 2 <= r <= 4 and lag >= 0:
            groups.append(g_x(23, r - 2))

    stream = []
    gstart = []
    for gi, g in enumerate(groups):
        gstart.append(len(stream))
        for (key, i, s) in g["mf"]:
            stream.append((gi, key, i, s))
    N = len(stream)
    gend = [gstart[k + 1] - 1 if k + 1 < len(groups) else N - 1 for k in range(len(groups))]
    step_start, step_end = {}, {}
    last_use, last_acc, first_acc, first_tap = {}, {}, {}, {}
    for gi, g in enumerate(groups):
        step_start.setdefault(g["step"], gstart[gi])
        step_end[g["step"]] = gend[gi]
    for n, (gi, key, i, s) in enumerate(stream):
        st = groups[gi]["step"]
        last_use[(st, i, s)] = n
        last_acc[(st, key)] = n
        first_acc.setdefault((st, key), n)
        first_tap.setdefault((st, i), n)
    SL = step_start[1] - step_start[0]

    fill = [[] for _ in range(N + 1)]
    cl = [""] * (N + 1)
    endw = [""] * (N + 1)
    for gi in range(1, len(groups)):
        endw[gstart[gi] - 1] = "W"
    for (st, i), n in first_tap.items():
        if n:
            endw[n - 1] = "W"

    def put(g, op):
        fill[g].append(op[1])
        cl[g] += op[0]

    def addcost(g, c, cur):
        base = cur.get(g, cl[g])
        return gapcost(base + c + endw[g]) - gapcost(base + endw[g])

    def place(g0, ops, deadline=None, per=2, strict=False):
        for budget in range(0, len(ops) + 1):
            cur = {}
            res = []
            g, n, left = g0, 0, budget
            for c, f in ops:
                free = 4 if c == "D" else 0
                while g < N:
                    if n < per:
                        ac = addcost(g, c, cur)
                        if ac <= free:
                            break
                        if left and ac <= free + 4:
                            left -= 1
                            break
                    g += 1
                    n = 0
                g = min(g, N)
                cur[g] = cur.get(g, cl[g]) + c
                res.append(g)
                n += 1
            if deadline is None or res[-1] <= deadline:
                break
        else:
            assert not strict, (g0, deadline, res[-1])
        for g, op in zip(res, ops):
            put(g, op)
        return res[-1]

    def vread(gi):
        g = groups[gi]
        u = g["step"] >> 1
        off = VS[u % 3] + (g["step"] & 1) * VHALF + g["row"] * 1024
        base = vV
        if off >= 0x8000:
            base, off = vV2, off - 0x8000
        r = VR + 4 * (gi % 4)
        return ("R", lambda: e.lds(f"ds_read_b128 {vr(r)}, v{base} offset:{off}", f"v{gi}"))

    first_of_unit = {}
    for gi, g in enumerate(groups):
        first_of_unit.setdefault(g["step"] >> 1, gi)
    def flag(k):
        return ("d", lambda: e.lds(f"ds_write_b32 v{vFL}, v{vONE} offset:{k*16}"))

    def ckread(off, name):
        return ("R", lambda: e.lds(f"ds_read_b32 v{vCK}, v{vV2} offset:{FLAGS - 0x8000 + off}", name))

    def check1(name):
        def f():
            e.need(name)
            I(f"v_readfirstlane_b32 s{sT0}, v{vCK}")
        return f

    def check(off, val, name, st=False):
        def f():
            lab = f"L_CK{tag}{name}"
            I(f"s_cmp_eq_u32 s{sT0}, {val}")
            I(f"s_cbranch_scc0 {lab}_spin")
            e.label(lab)
            if st and opt["cst"] < 0:
                e.stamp()
            cold.append(f"{lab}_spin:")
            cold.append(f"    ds_read_b32 v{vCK}, v{vV2} offset:{FLAGS - 0x8000 + off}")
            cold.append("    s_waitcnt lgkmcnt(0)")
            cold.append(f"    v_readfirstlane_b32 s{sT0}, v{vCK}")
            cold.append(f"    s_cmp_eq_u32 s{sT0}, {val}")
            cold.append(f"    s_cbranch_scc0 {lab}_spin")
            cold.append(f"    s_branch {lab}")
        return f

    cold = []
    bar_gap = {}
    rpos = {}
    for gi in range(4, len(groups)):
        g = gend[gi - 4]
        if opt["rsh"] and len(groups[gi - 3]["mf"]) > 1 and g - 0 >= rpos.get(gi - 1, -1):
            g += 1
        g = max(g, rpos.get(gi - 1, -1) + 1)
        rpos[gi] = g
        put(g, vread(gi))
    for u in range(1, 12):
        gi = first_of_unit[u]
        gp = gend[gi - 4]
        bar_gap[u] = gp - 1
        put(gp - 2, ("WV", check1(f"rdy{u}")))
        put(gp - 1, ("SS", check(448 + 4 * u, 4, f"rdy{u}", True)))
        gq = gp - (7 if opt["rsh"] else 8)
        assert place(gq, [ckread(448 + 4 * u, f"rdy{u}")]) < gp - 4
        if u - 1 <= 8:
            place(gstart[gi - 1], [flag(16 + u - 1)])

    g = 0
    gtr1 = 0
    k = 0
    for step in ((3,) if opt["w2pre"] else (2, 3)):
        for i in range(3):
            if step == 3:
                gtr1 = place(max(gtr1, opt["tr1at"] + (14 if w1late else 0) + 8 * i), tr_ops(1, i), per=1) + 1
                g = max(g, gtr1 + opt['trd'])
            ops = dma_ops(step, i)
            g = place(max(g, int(k * opt["dsp"])), ops[:2])
            for d in range(3):
                g = place(max(g + 1, int(k * opt["dsp"]) + 1), [ops[2 + d]])
                k += 1
    place(g + 1, [flag(31)])
    NR = opt["nraw"]
    for step in range(2, NR):
        gt = step_start[step - 1] + SL - 24
        for i in range(3):
            gt = max(gt, max(last_use[(step - 2, i, s)] for s in range(3)))
            gt = place(gt, tr_ops(step, i), per=1, deadline=first_tap[(step, i)] - 4) + 1
            if step + 2 < NR:
                ops = dma_ops(step + 2, i)
                t0_ = step_start[step] + int(i * SL / 3)
                g = place(max(g, gt + opt["trd"], t0_), ops[:2])
                for d in range(3):
                    g = place(max(g + 1, t0_ + int(d * SL / 9) + 1), [ops[2 + d]])

    gchk = step_start[NR - 1] - opt["ulead0"] - 3

    place(gchk - 10, [ckread(240, "uflag")])
    put(gchk - 1, ("WV", check1("uflag")))
    put(gchk, ("SS", check(240, 1, "uflag")))
    g = gchk + 1
    go_gap = None
    early_go = []
    for step in range(NR, 24):
        base = step_start[step - 1] - opt["ulead"]
        stp = opt["ustep"] * SL / 57
        if step == NR:
            base, stp = gchk + 2, opt["ustep0"]
        if step == 23:
            base, stp = last_use[(21, 0, 0)], 2
        k = 0
        for i in range(3):
            for s in range(3):
                tgt = max(base + int(k * stp), last_use[(step - 2, i, s)], g)
                if k == 0:
                    g = place(max(g, tgt - 2), [u_off(step)])
                    tgt = max(tgt, g + 1)
                g = place(tgt, [u_op(step, i, s)]) + 1
                k += 1
        if step == opt["go"]:
            go_gap = g
        if opt["ego"] and step in (21, 22):
            early_go.append((g, 25 + step - 21))

    def bfly_ops(k0, k1, first):
        ops = []
        if first:
            o0, o1, md = "v_sub_f32_e64", "v_add_f32_e64", " div:2"
        else:
            o0, o1, md = "v_add_f32", "v_sub_f32", ""
        for k in range(4):
            ops.append(("V", lambda k=k: I(f"{o0} v{spare[0]+k}, v{acc[k0]+k}, v{acc[k1]+k}{md}")))
        for k in range(4):
            def f(k=k):
                I(f"{o1} v{acc[k1]+k}, v{acc[k0]+k}, v{acc[k1]+k}{md}")
                if k == 3:
                    acc[k0], spare[0] = spare[0], acc[k0]
            ops.append(("V", f))
        return ops

    order = [0, 1, "X", 2, 3, 4, 5] if extra else [0, 1, 2, 3, 4, 5]
    fb = [u for u in range(12) if UNITS[u][0] == "B"]
    y0last = 2 * max(u for u in range(12) if UNITS[u][1] == 0) + 1
    for last, first in ((2 * fb[0] - 1, True), (2 * fb[-1] + 1, False)):
        blocks = []
        for m in order:
            keys = [((m, 0, s), (m, 1, s)) for s in range(3)] if m != "X" else [(("X", 0), ("X", 1))]
            for (k0, k1) in keys:
                rdy = max(n for (st_, k_), n in last_acc.items() if st_ <= last and k_ in (k0, k1))
                blocks.append((rdy + 8, first_acc[(last + 1, k0)] - 3, k0, k1))
        dl = [b[1] for b in blocks]
        for k in range(len(dl) - 2, -1, -1):
            dl[k] = min(dl[k], dl[k + 1] - opt.get("bsp", 4))
        g = 0
        for (rdy, _, k0, k1), d in zip(blocks, dl):
            g = place(max(g, rdy), bfly_ops(k0, k1, first), deadline=d, per=3)
            assert g <= _, (last, k0, g, _)

    def oaddr():
        ops = []
        A = lambda s: ops.append((s[0].upper(), lambda: I(s)))
        t, q = vO[1], vO[2]
        A(f"v_lshrrev_b32 v{q}, 8, v{vV}")
        A(f"v_bfe_u32 v{t}, v{vV}, 4, 4")
        A(f"v_xor_b32 v{t}, v{t}, v{q}")
        A(f"v_lshlrev_b32 v{q}, 3, v{q}")
        A(f"s_lshl_b32 s{sT1}, s{sWAVE}, 5")
        A(f"s_add_u32 s{sT1}, s{sT1}, {XST}")
        A(f"v_mul_u32_u24 v{vOX}, 144, v{t}")
        A(f"v_add3_u32 v{vOX}, v{vOX}, v{q}, s{sT1}")
        A(f"v_mul_u32_u24 v{t}, 400, v{t}")
        A(f"v_add_u32 v{q}, v{t}, v{q}")
        A(f"s_mul_i32 s{sT1}, s{sWAVE}, 96")
        A(f"s_add_u32 s{sT1}, s{sT1}, {OUT}")
        for s in range(3):
            A(f"s_lshl_b32 s{sT2}, s{sF[s]}, 5")
            A(f"s_add_u32 s{sT2}, s{sT2}, s{sT1}")
            A(f"v_add_u32 v{vO[s]}, s{sT2}, v{q}")
        return ops
    place(step_start[10], oaddr())

    def epi_ops(key, addr, off):
        return [("V", lambda: I(f"v_cvt_pk_bf16_f32 v{acc[key]}, v{acc[key]}, v{acc[key]+1}")),
                ("V", lambda: I(f"v_cvt_pk_bf16_f32 v{acc[key]+1}, v{acc[key]+2}, v{acc[key]+3}")),
                ("D", lambda: e.lds(f"ds_write_b64 v{addr}, {vr(acc[key], 2)} offset:{off}"))]

    place(go_gap, [flag(14)])
    for g_, k_ in early_go:
        place(g_, [flag(k_)])
    def after(n):
        g, c = n, 0
        while g < N:
            c += sum(1 for ch in cl[g] if ch != "W")
            if c >= 8:
                return g
            g += 1
            c += 1
            if c >= 8:
                return g
        return None

    def epi2(key, addr, off):
        return [("V", lambda: I(f"v_cvt_pk_bf16_f32 v{acc[key]}, v{acc[key]}, v{acc[key]+1}")),
                ("V", lambda: I(f"v_cvt_pk_bf16_f32 v{acc[key]+1}, v{acc[key]+2}, v{acc[key]+3}")),
                ("d", lambda: e.lds(f"ds_write_b32 v{addr}, v{acc[key]} offset:{off}")),
                ("d", lambda: e.lds(f"ds_write_b32 v{addr}, v{acc[key]+1} offset:{off+4}"))]

    g = 0
    for st, last in ((0, y0last), (1, 23)):
        if st == 0:
            g = last_acc[(y0last, (0, 0, 0))] + opt["y0at"]
        if st == 1:
            g = place(g, [("V", lambda s=s: I(f"v_add_u32 v{vO[s]}, {6*OROW}, v{vO[s]}")) for s in range(3)])
        done = {m: (last_acc[(last, ("X", st))] if m == "X" else last_acc[(last, (m, st, 0))]) for m in order}
        ep = epi2 if (st == 0 and opt["dd"] >= 1) else epi_ops
        for m in sorted(order, key=lambda m: done[m]):
            if st == 1 and opt["dd"] >= 2:
                ep = epi2 if m in ("X", 0, 1, 2) else epi_ops
            if m == "X":
                g = place(max(g, after(done[m])), ep(("X", st), vOX, 2304 * st) + [flag(12 + st)])
                continue
            o3 = [ep((m, st, s), vO[s], m * OROW) for s in range(3)]
            g0 = after(done[m] + 2)
            if g0 is None or g >= N:
                have = (N - 1 - (done[m] + 2)) + sum(sum(1 for ch in cl[k] if ch != "W") for k in range(done[m] + 2, N + 1))
                if have < 8:
                    put(N, ("S", lambda n_=8 - have: I(f"s_nop {n_ - 1}")))
                for op in [o for t in o3 for o in t if o[0] == "V"] + [o for t in o3 for o in t if o[0] != "V"] + [flag(6 * st + m)]:
                    put(N, op)
                g = N
                continue
            g = max(g, after(done[m]))
            g = place(g, o3[0])
            g = place(max(g, after(done[m] + 1) or N), o3[1])
            g = place(max(g, g0), o3[2] + [flag(6 * st + m)])

    if opt["cst"] >= 0:
        for k in range(15):
            g = step_start[opt["cst"]] + k * opt["cev"]
            if g < N:
                fill[g].append(e.stamp)
    ckread(448, "rdy0")[1]()
    check1("rdy0")()
    check(448, 4, "rdy0")()
    e.stamp()
    for gi in range(4):
        vread(gi)[1]()
    started = set()
    for n, (gi, key, i, s) in enumerate(stream):
        step = groups[gi]["step"]
        kind, st, c = step_info(step)
        e.need([f"v{gi}", f"w{step}_{i}"])
        d = acc[key]
        cc = d
        if step in (0, 2) and key not in started:
            started.add(key)
            cc = acc[(5, st, s)]
        I(f"v_mfma_f32_16x16x32_bf16 {vr(d)}, {vr(W(step, i, s))}, {vr(VR + 4*(gi % 4))}, {vr(cc)}")
        for f in fill[n]:
            f()
    e.stamp()
    for f in fill[N]:
        f()
    e.stamp()
    e.dump_stamps("c")
    I("s_endpgm")
    return e.L + cold


xA, xB, xC, eA, eB, eC = 1, 2, 3, 4, 5, 6
wE = [7, 8, 9, 10]
wX = [11, 12]
TMP = 13
OB = 26
RAW = 58
RAWX = 178


def PD(p, j):
    return RAW + 40 * p + 4 * j


def PX(p, j):
    return RAWX + 24 * p + 4 * j


def xload(e, p, j):
    a, off = (xA, 0) if j == 0 else ((xC, 0) if j == 9 else (xB, (j - 1) * 384))
    e.vmem(f"buffer_load_dwordx4 {vr(PD(p, j))}, v{a}, s[{sX}:{sX+3}], 0 offen offset:{off + 128*p} {e.opt['xf']}", f"x{p}_{j&1}")


def eload(e, p, j):
    a, off = (eA, 0) if j == 0 else ((eC, 0) if j == 5 else (eB, (j - 1) * 384))
    e.vmem(f"buffer_load_dwordx4 {vr(PX(p, j))}, v{a}, s[{sX}:{sX+3}], 0 offen offset:{off + 128*p} {e.opt['xf']}", f"e{p}_{j&1}")


def worker_pre(e, opt):
    I = e.I
    t1, t2, t3 = 14, 15, 16
    I(f"s_and_b32 s{sT0}, s2, 7")
    I(f"s_cmp_lt_u32 s{sIDX}, 6")
    I(f"s_cselect_b32 s{sT2}, s{sIDX}, s{sT0}")
    I(f"s_cselect_b32 s{sT0}, s{sT0}, 8")
    I(f"s_mul_i32 s{sT1}, s{sT0}, 11")
    I(f"s_lshr_b32 s{sT1}, s{sT1}, 5")
    I(f"s_mul_i32 s{sT3}, s{sT1}, 3")
    I(f"s_sub_u32 s{sT0}, s{sT0}, s{sT3}")
    I(f"s_lshl_b32 s{sT0}, s{sT0}, 2")
    I(f"s_add_u32 s{sT0}, s{sT0}, s{sPW}")
    I(f"s_mul_i32 s{sOFF}, s{sT1}, {3*73728}")
    I(f"s_mul_i32 s{sOFF2}, s{sT2}, 12288")
    I(f"s_add_u32 s{sOFF}, s{sOFF}, s{sOFF2}")
    I(f"s_lshl_b32 s{sOFF2}, s{sT0}, 5")
    I(f"s_add_u32 s{sOFF}, s{sOFF}, s{sOFF2}")
    I(f"v_bfe_u32 v{t1}, v0, 3, 2")
    I(f"v_lshlrev_b32 v{t1}, 3, v{t1}")
    I(f"v_lshrrev_b32 v{t2}, 5, v0")
    I(f"v_lshl_add_u32 v{t1}, v{t2}, 2, v{t1}")
    I(f"v_bfe_u32 v{t2}, v0, 1, 2")
    I(f"v_add_u32 v{t1}, v{t1}, v{t2}")
    I(f"v_mul_u32_u24 v{t1}, 384, v{t1}")
    I(f"v_and_b32 v{t2}, 1, v0")
    I(f"v_lshl_add_u32 v{eA}, v{t2}, 4, v{t1}")
    I(f"s_mul_i32 s{sRING}, s{sPW}, 3072")
    I(f"s_add_u32 s{sRING}, s{sRING}, {PRE}")
    I(f"s_mov_b32 m0, s{sRING}")
    I("s_waitcnt lgkmcnt(0)")
    srd(e, sW, sKA + 2, WBYTES)
    for j in range(3):
        e.vmem(f"buffer_load_dwordx4 v{eA}, s[{sW}:{sW+3}], s{sOFF} offen lds", "pre")
        if j < 2:
            I(f"s_add_u32 m0, s{sRING}, {1024*(j+1)}")
            I(f"s_add_u32 s{sOFF}, s{sOFF}, 73728")
    I(f"s_cmp_lt_u32 s{sT2}, 6")
    I(f"s_cselect_b32 s{sCNT}, 0, s{sINV}")
    I(f"s_mul_i32 s{sOFF}, s{sT2}, 36864")
    I(f"s_mul_i32 s{sT0}, s{sT0}, 3")
    I(f"s_add_u32 s{sT0}, s{sT0}, s{sT1}")
    I(f"s_lshl_b32 s{sT0}, s{sT0}, 10")
    I(f"s_add_u32 s{sOFF}, s{sOFF}, s{sT0}")
    I(f"s_or_b32 s{sOFF}, s{sOFF}, s{sCNT}")
    I(f"v_lshl_add_u32 v{eB}, v0, 4, s{sOFF}")


def producer_main(e, opt):
    I = e.I
    t0, t1, t2, t3 = 13, 14, 15, 16
    decode_main(e)
    I(f"v_and_b32 v{t0}, 3, v0")
    I(f"v_bfe_u32 v{t1}, v0, 2, 2")
    I(f"v_bfe_u32 v{t2}, v0, 4, 1")
    I(f"v_lshrrev_b32 v{wE[0]}, 5, v0")
    I(f"s_lshl_b32 s{sT0}, s{sPW}, 1")
    I(f"s_add_u32 s{sT0}, s{sT0}, s{sROW0}")
    I(f"s_mul_i32 s{sT0}, s{sT0}, 86016")
    I(f"s_mul_i32 s{sT1}, s{sSTRIP}, 12288")
    I(f"s_add_u32 s{sT0}, s{sT0}, s{sT1}")
    I(f"s_sub_u32 s{sT0}, s{sT0}, 86016")
    I(f"v_mul_u32_u24 v{t3}, 86016, v{t2}")
    I(f"v_lshl_add_u32 v{t3}, v{t0}, 4, v{t3}")
    I(f"v_lshl_add_u32 v{t3}, v{wE[0]}, 6, v{t3}")
    I(f"v_mul_u32_u24 v{xB}, 3072, v{t1}")
    I(f"v_add3_u32 v{xB}, v{xB}, v{t3}, s{sT0}")
    I(f"v_cmp_gt_i32 vcc, 0, v{xB}")
    I(f"v_lshl_add_u32 v{t3}, s{sSTRIP}, 2, v{t1}")
    I(f"v_mov_b32 v{xC}, s{sINV}")
    I(f"v_cndmask_b32 v{xB}, v{xB}, v{xC}, vcc")
    I(f"v_cmp_ne_u32 vcc, 0, v{t3}")
    I(f"v_subrev_u32 v{xA}, 384, v{xB}")
    I(f"v_add_u32 v{wE[1]}, 3072, v{xB}")
    I(f"v_cndmask_b32 v{xA}, v{xC}, v{xA}, vcc")
    I(f"v_cmp_ne_u32 vcc, 27, v{t3}")
    I("s_waitcnt lgkmcnt(0)")
    srd(e, sX, sKA, XBYTES)
    I(f"v_cndmask_b32 v{xC}, v{xC}, v{wE[1]}, vcc")
    for j in (0, 2, 4, 6, 8):
        xload(e, 0, j)


def producer(parent, opt, kind):
    e = Em(opt, parent)
    I = e.I
    t0, t1, t2, t3, t4 = 13, 14, 15, 16, 17
    X = kind == "x"
    G = RAWX
    if kind == "w":
        if opt["wo"] < 0:
            for j in (1, 3, 5, 7, 9):
                xload(e, 0, j)
        if opt["wp1"]:
            I("s_barrier")
        srd(e, sU, sWS, UBYTES)
        I(f"v_lshrrev_b32 v{eC}, 2, v0")
        I(f"v_lshlrev_b32 v{eC}, 5, v{eC}")
        I(f"v_lshl_add_u32 v{eC}, v{t0}, 3, v{eC}")
        I(f"v_add_u32 v{eC}, s{sRING}, v{eC}")
        if opt["pst"] == 2:
            e.stamp()
        e.need("pre")
        if opt["pst"] == 2:
            e.stamp()
        for j in range(3):
            for h in range(2):
                e.lds(f"ds_read_b64_tr_b16 {vr(G + 4*j + 2*h, 2)}, v{eC} offset:{1024*j + 512*h}", f"pt{j}")
        U = G + 12
        for j in (0, 2, 1):
            e.need(f"pt{j}")
            for k in range(4):
                I(f"v_lshlrev_b32 v{U + 8*j + 2*k}, 16, v{G + 4*j + k}")
                I(f"v_and_b32 v{U + 8*j + 2*k + 1}, s{sMASK}, v{G + 4*j + k}")
            if j == 2:
                for kk in range(8):
                    I(f"v_add_f32 v{U+kk}, v{U+kk}, v{U+16+kk}")
        for kk in range(8):
            I(f"v_sub_f32_e64 v{U+16+kk}, v{U+kk}, v{U+8+kk} div:2")
            I(f"v_add_f32_e64 v{U+kk}, v{U+kk}, v{U+8+kk} div:2")
        for k in range(4):
            I(f"v_cvt_pk_bf16_f32 v{G+36+k}, v{U+2*k}, v{U+2*k+1}")
            I(f"v_cvt_pk_bf16_f32 v{G+40+k}, v{U+16+2*k}, v{U+16+2*k+1}")
        for pos, r in ((0, G + 36), (1, G + 40), (2, G), (3, G + 8)):
            I(f"s_mov_b32 s{sOFF}, {pos*6*36864}")
            e.vmem(f"buffer_store_dwordx4 {vr(r)}, v{eB}, s[{sU}:{sU+3}], s{sOFF} offen sc1", "ust")
        if opt["pst"]:
            e.stamp()
    if kind == "n" and opt["xo"] and opt["pro"] != "alpha":
        for j in (1, 3, 5, 7, 9):
            xload(e, 0, j)
    I(f"s_lshl_b32 s{sT0}, s{sPW}, 1")
    I(f"v_add_u32 v{t2}, s{sT0}, v{t2}")
    I(f"v_mul_u32_u24 v{wE[0]}, {VHALF}, v{wE[0]}")
    I(f"v_lshl_add_u32 v{wE[0]}, v{t2}, 10, v{wE[0]}")
    I(f"v_lshlrev_b32 v{t3}, 2, v{t1}")
    I(f"v_lshl_add_u32 v{t3}, v{t0}, 4, v{t3}")
    I(f"v_add_u32 v{t3}, v{t3}, v{t0}")
    I(f"v_lshl_add_u32 v{wE[0]}, v{t3}, 4, v{wE[0]}")
    for k in range(1, 4):
        I(f"v_xor_b32 v{wE[k]}, {16*k}, v{wE[0]}")
    decode_extra(e)
    srd(e, sO, sKA + 6, XBYTES)
    if X:
        I(f"v_bfe_u32 v{t1}, v0, 2, 1")
        I(f"v_lshlrev_b32 v{t1}, 1, v{t1}")
        I(f"v_bfe_u32 v{t2}, v0, 3, 1")
        I(f"v_bfe_u32 v{t3}, v0, 4, 1")
        I(f"v_lshlrev_b32 v{t3}, 2, v{t3}")
        I(f"v_or3_b32 v{t1}, v{t1}, v{t2}, v{t3}")
        I(f"s_add_u32 s{sT0}, s{sEROW}, s{sPW}")
        I(f"s_sub_u32 s{sT0}, s{sT0}, 1")
        I(f"s_mul_i32 s{sT1}, s{sT0}, 86016")
        I(f"s_cmp_lt_u32 s{sT0}, 224")
        I(f"s_cselect_b32 s{sT1}, s{sT1}, s{sINV}")
        I(f"s_lshl_b32 s{sT0}, s{sES}, 5")
        I(f"v_lshl_add_u32 v{t4}, v{t1}, 2, s{sT0}")
        I(f"v_mul_u32_u24 v{t2}, 384, v{t4}")
        I(f"v_lshl_add_u32 v{t2}, v{t0}, 4, v{t2}")
        I(f"v_lshrrev_b32 v{t3}, 5, v0")
        I(f"v_lshl_add_u32 v{t2}, v{t3}, 6, v{t2}")
        I(f"v_add_u32 v{eB}, s{sT1}, v{t2}")
        I(f"v_cmp_ne_u32 vcc, 0, v{t4}")
        I(f"v_subrev_u32 v{t2}, 384, v{eB}")
        I(f"v_mov_b32 v{eA}, s{sINV}")
        I(f"v_cndmask_b32 v{eA}, v{eA}, v{t2}, vcc")
        I(f"v_cmp_ne_u32 vcc, 220, v{t4}")
        I(f"v_add_u32 v{t2}, 1536, v{eB}")
        I(f"v_mov_b32 v{eC}, s{sINV}")
        I(f"v_cndmask_b32 v{eC}, v{eC}, v{t2}, vcc")
        for j in (0, 2, 4):
            eload(e, 0, j)
        if opt["pro"] != "alpha":
            if opt["xo"]:
                for j in (1, 3, 5, 7, 9):
                    xload(e, 0, j)
            for j in (1, 3, 5):
                eload(e, 0, j)
        I(f"v_lshlrev_b32 v{t1}, 1, v{t1}")
        I(f"v_xor_b32 v{t1}, v{t1}, v{t0}")
        I(f"v_lshl_add_u32 v{t1}, v{t0}, 4, v{t1}")
        I(f"v_lshlrev_b32 v{t1}, 4, v{t1}")
        I(f"v_mul_u32_u24 v{t3}, {VHALF}, v{t3}")
        I(f"s_add_u32 s{sT0}, s{sPW}, 8")
        I(f"s_lshl_b32 s{sT0}, s{sT0}, 10")
        I(f"v_add3_u32 v{wX[0]}, v{t1}, v{t3}, s{sT0}")
        I(f"v_xor_b32 v{wX[1]}, 16, v{wX[0]}")
    else:
        I(f"s_cmp_eq_u32 s{sPW}, 3")
        I(f"s_cselect_b32 s{sPEND}, 1, 0")
        if opt["rpf"] == 1:
            I(f"s_mul_i32 s{sT0}, s{sIDX}, {18*128}")
            I(f"v_min_u32 v253, 17, v0")
            I(f"v_lshl_add_u32 v253, v253, 7, s{sT0}")
        elif opt["rpf"] == 2:
            I(f"s_sub_u32 s{sT0}, s{sIDX}, 12")
            I(f"s_cmp_lt_u32 s{sIDX}, 7")
            I(f"s_cselect_b32 s{sT0}, s{sIDX}, s{sT0}")
            I(f"s_mul_i32 s{sT1}, s{sT0}, 13")
            I(f"s_lshr_b32 s{sT1}, s{sT1}, 6")
            I(f"s_mul_i32 s{sT2}, s{sT1}, 5")
            I(f"s_sub_u32 s{sL}, s{sT0}, s{sT2}")
            I(f"s_cmp_eq_u32 s{sHASX}, 0")
            I(f"s_cselect_b32 s{sL}, s{sL}, 9")
            I(f"s_cmp_eq_u32 s{sPW}, 3")
            I(f"s_cselect_b32 s{sL}, s{sL}, 9")
            I(f"s_mul_i32 s{sT1}, s{sT1}, {144*128}")
            I(f"v_min_u32 v253, 47, v0")
            I(f"v_lshl_add_u32 v253, v253, 7, s{sT1}")
        I(f"v_mov_b32 v250, {FLAGS + 15*16}")
        if kind == "n":
            srd(e, sU, sWS, UBYTES)
    I(f"v_mov_b32 v251, 1")
    I(f"v_mov_b32 v252, {FLAGS}")

    def pollflag(idx, lab, slp, r=16):
        e.label(lab)
        I(f"ds_read_b128 {vr(r)}, v252 offset:{idx*16}")
        I("s_waitcnt lgkmcnt(0)")
        e.lg = []
        I(f"v_and_b32 v{r}, v{r}, v{r+1}")
        I(f"v_and_b32 v{r+2}, v{r+2}, v{r+3}")
        I(f"v_and_b32 v{r}, v{r}, v{r+2}")
        I("s_nop 0")
        I(f"v_readfirstlane_b32 s{sT0}, v{r}")
        I(f"s_cmp_eq_u32 s{sT0}, 1")
        I(f"s_cbranch_scc1 {lab}_ok")
        if slp:
            I(f"s_sleep {slp}")
        I(f"s_branch {lab}")
        e.label(lab + "_ok")

    upf_from = [(3 if opt["order"] == 2 else opt["pollu"] + 1) + opt["rlead"]]
    upf_from[0] = max(upf_from[0], opt["nraw"] // 2)

    def upf(t, sfx=''):
        if X or not opt["rpf"]:
            return
        k, st, p = UNITS[t]
        base = ((st if k == "B" else 2 + st) * 6 + 2 * p) * 36864
        lab = f"L_UP{kind}{t}{sfx}"
        if opt["rpf"] == 1:
            I(f"s_cmp_eq_u32 s{sPW}, 3")
            I(f"s_cbranch_scc0 {lab}")
            I(f"s_mov_b32 s{sT1}, {base}")
            I(f"buffer_load_dword v254, v253, s[{sU}:{sU+3}], s{sT1} offen sc1")
        else:
            I(f"s_cmp_eq_u32 s{sL}, {t % 5}")
            I(f"s_cbranch_scc0 {lab}")
            for q in range(3):
                I(f"s_mov_b32 s{sT1}, {base + q*48*128}")
                I(f"buffer_load_dword v254, v253, s[{sU}:{sU+3}], s{sT1} offen sc1")
        e.label(lab)

    def waitfree(u, r=16):
        if u >= 3:
            pollflag(16 + u - 3, f"L_FR{kind}{u}", opt["psl"], r)
            if upf_from[0] <= u + opt["rlead"] <= 11:
                upf(u + opt["rlead"])

    def ready(u):
        I("s_mov_b64 exec, 1")
        e.lds(f"ds_add_u32 v252, v251 offset:{448 + 4*u}")
        I("s_mov_b64 exec, -1")
        if not opt["pst"] or e.nst < 15:
            e.stamp()

    def xl(p, par):
        for j in range(par, 10, 2):
            xload(e, p, j)
        if X:
            for j in range(par, 6, 2):
                eload(e, p, j)

    def parse(t):
        d = {}
        for item in t.split(","):
            when, what = item.split(":")
            d.setdefault(when, []).append((int(what[0]), 0 if what[1] == "e" else 1))
        return d
    xsX = parse(opt.get("xsx") or opt["xs"])
    xsN = parse(opt["xs"])
    xs = xsX if X else xsN
    seen = set()

    def xsched(when):
        if kind != "n":
            for p, par in xs.get(when, []):
                xl(p, par)
            return
        a, b = xsX.get(when, []), xsN.get(when, [])
        for it in a + [t for t in b if t not in a]:
            both = it in a and it in b
            if not both:
                lab = f"L_XS{when}_{it[0]}{it[1]}"
                I(f"s_cmp_eq_u32 s{sHASX}, {1 if it in a else 0}")
                I(f"s_cbranch_scc0 {lab}")
            keep = list(e.vm)
            xl(*it)
            if not both:
                e.label(lab)
                if it not in seen:
                    e.vm = keep
                seen.add(it)

    pend = []
    novalu = [False]
    pace = [0, 0]

    def xpace(per, nvalu):
        for p, par in xs.get(f"{per}p", []):
            pend.extend([lambda j=j, p=p: xload(e, p, j) for j in range(par, 10, 2)])
            if X:
                pend.extend([lambda j=j, p=p: eload(e, p, j) for j in range(par, 6, 2)])
        if pend:
            pace[0] = max(1, nvalu // len(pend))
            pace[1] = 0

    def V(s):
        if not (opt["d_nov"] and novalu[0]):
            I(s)
        pace[1] += 1
        if pend and pace[1] % pace[0] == 0:
            pend.pop(0)()

    def later(f):
        if not opt["wsp"]:
            return f()
        if not pend:
            pace[0], pace[1] = opt["wsp"], 0
        pend.append(f)

    def flush():
        while pend:
            pend.pop(0)()

    def unp(dst, src):
        V(f"v_lshlrev_b32 v{dst}, 16, v{src}")
        V(f"v_and_b32 v{dst+1}, s{sMASK}, v{src}")

    def vwrite(addr, src, u):
        if opt["d_now"] and u >= 2:
            return
        e.lds(f"ds_write_b128 v{addr}, {vr(src)} offset:{VS[u % 3]}")

    T16 = list(range(13, 26)) + [54, 55, 56]

    def chainA(D, n, par, neg, waddr, u, ob, wf=False):
        op = "v_subrev_f32" if neg else "v_sub_f32"
        A, B = T16[:8], T16[8:]

        def unp8(R, src):
            for k in range(4):
                V(f"v_lshlrev_b32 v{R[2*k]}, 16, v{src+k}")
                V(f"v_and_b32 v{R[2*k+1]}, s{sMASK}, v{src+k}")
        unp8(A, D(par))
        for j in range(n):
            unp8(B, D(par + 2 * j + 2))
            for k in range(8):
                V(f"{op} v{A[k]}, v{A[k]}, v{B[k]}")
            for k in range(4):
                V(f"v_cvt_pk_bf16_f32 v{ob + 4*(j & 1) + k}, v{A[2*k]}, v{A[2*k+1]}")
            if wf and j == 0:
                waitfree(u, 44)
            vwrite(waddr[j], ob + 4 * (j & 1), u)
            if kind == "w" and u == 1 and opt["wta"] == 10 + j:
                signal()
            if kind == "w" and u == 1 and opt["two"] == 10 + j:
                publish()
            A, B = B, A

    def tA(u, main=True, ext=True):
        kind_, st, p = UNITS[u]
        neg = (st == 1 and any(UNITS[t][0] == "B" for t in range(u)))
        if main:
            e.need(f"x{p}_{st}")
            if opt["pst"] and u <= 1:
                e.stamp()
            chainA(lambda j: PD(p, j), 4, st, neg, wE, u, OB, True)
        if X and ext:
            e.need(f"e{p}_{st}")
            chainA(lambda j: PX(p, j), 2, st, neg, wX, u, OB + 8)

    def pairB(d1, d2, o1, o2):
        for k0 in (0, 2):
            for k in (k0, k0 + 1):
                a = TMP + 6 * (k & 1)
                unp(a, d1 + k); unp(a + 2, d2 + k)
            for k in (k0, k0 + 1):
                a = TMP + 6 * (k & 1)
                b, s = a + 2, a + 4
                V(f"v_add_f32 v{s}, v{a}, v{b}"); V(f"v_add_f32 v{s+1}, v{a+1}, v{b+1}")
                V(f"v_sub_f32 v{a}, v{b}, v{a}"); V(f"v_sub_f32 v{a+1}, v{b+1}, v{a+1}")
            for k in (k0, k0 + 1):
                a = TMP + 6 * (k & 1)
                V(f"v_cvt_pk_bf16_f32 v{o1+k}, v{a+4}, v{a+5}")
                V(f"v_cvt_pk_bf16_f32 v{o2+k}, v{a}, v{a+1}")

    npoll = [0]

    def trypoll(final=False):
        if X:
            return
        n = npoll[0]
        npoll[0] += 1
        lab = f"L_PL{kind}{n}"
        I(f"s_cmp_eq_u32 s{sPEND}, 0")
        I(f"s_cbranch_scc1 {lab}_skip")
        if n == 0:
            if opt["pdel"]:
                I(f"s_sleep {opt['pdel']}")
            I(f"s_load_dword s{sPOLL}, s[{sDBG}:{sDBG+1}], {128 if opt['two'] else 0}")
            e.label(lab + "_skip")
            return
        I("s_waitcnt lgkmcnt(0)")
        tgt = 0 if opt["noatom"] else NWORK
        if final:
            I(f"s_mov_b32 s{sCNT}, {n}")
            I(f"v_mov_b32 v255, 0")
            e.label(lab)
            I(f"s_cmp_ge_u32 s{sPOLL}, {tgt}")
            I(f"s_cbranch_scc1 {lab}_ok")
            I(f"s_sleep {opt['pslp']}")
            I(f"s_cmp_ge_u32 s{sCNT}, {2 if opt['two'] else 4}")
            I(f"s_cbranch_scc1 {lab}_v")
            I(f"s_lshl_b32 s{sT0}, s{sCNT}, 6")
            if opt["two"]:
                I(f"s_add_u32 s{sT0}, s{sT0}, 128")
            I(f"s_load_dword s{sPOLL}, s[{sDBG}:{sDBG+1}], s{sT0}")
            I(f"s_add_u32 s{sCNT}, s{sCNT}, 1")
            I("s_waitcnt lgkmcnt(0)")
            I(f"s_branch {lab}")
            e.label(lab + "_v")
            I(f"global_load_dword v254, v255, s[{sDBG}:{sDBG+1}] offset:{128 if opt['two'] else 0} sc1")
            I(f"s_add_u32 s{sCNT}, s{sCNT}, 1")
            I("s_waitcnt vmcnt(0)")
            I(f"v_readfirstlane_b32 s{sPOLL}, v254")
            I(f"s_cmp_lt_u32 s{sCNT}, 20000")
            I(f"s_cbranch_scc1 {lab}")
        else:
            I(f"s_cmp_ge_u32 s{sPOLL}, {tgt}")
            I(f"s_cbranch_scc1 {lab}_ok")
            I(f"s_load_dword s{sPOLL}, s[{sDBG}:{sDBG+1}], {64*n + (128 if opt['two'] else 0)}")
            I(f"s_branch {lab}_skip")
        e.label(lab + "_ok")
        if opt["pst"]:
            I(f"s_memrealtime s[{sST + 2*pslot[0]}:{sST + 2*pslot[0] + 1}]")
            I(f"s_mov_b32 s{sST + 2*pslot[0] + 2}, " + (f"s{sCNT}" if final else f"{n}"))
        I("ds_write_b32 v250, v251")
        I(f"s_mov_b32 s{sPEND}, 0")
        for t in range(opt["nraw"] // 2, upf_from[0]):
            upf(t, f"_{n}")
        e.label(lab + "_skip")

    pslot = [0]

    def wpoint():
        pollflag(31, f"L_WI{kind}", opt["psl"], 20)
        if opt["otlb"] == 2 or (opt["otlb"] == 1 and kind == "w"):
            I("s_mov_b64 exec, 1")
            e.vmem(f"buffer_load_dword v254, v{xB}, s[{sO}:{sO+3}], 0 offen")
            I("s_mov_b64 exec, -1")
        xsched("w")

    def tB1(u):
        p = UNITS[u][2]
        e.need([f"x{p}_0", f"x{p}_1"] + ([f"e{p}_0", f"e{p}_1"] if X else []))
        for ee in range(4):
            pairB(PD(p, 1 + 2 * ee), PD(p, 2 + 2 * ee), OB + 4 * (ee & 1), OB + 8 + 4 * ee)
            if ee == 0:
                waitfree(u)
                xpace(u, 200 if X else 120)
            vwrite(wE[ee], OB + 4 * (ee & 1), u)
            if u == 2 and ee == opt["wat"]:
                wpoint()
            if u == 2 and ee >= opt["pat"]:
                if ee == opt["pat"] and opt["pst"] and not X:
                    pslot[0] = e.nst
                    e.nst += 2
                trypoll()
                if ee == 3:
                    trypoll(final=True)
        if X:
            e.need([f"e{p}_0", f"e{p}_1"])
            for ee in range(2):
                pairB(PX(p, 1 + 2 * ee), PX(p, 2 + 2 * ee), OB + 4 * ee, OB + 24 + 4 * ee)
                vwrite(wX[ee], OB + 4 * ee, u)
        flush()
        ready(u)

    def tB2(u):
        waitfree(u + 1)
        xsched(f"f{u}")
        for ee in range(4):
            vwrite(wE[ee], OB + 8 + 4 * ee, u + 1)
        if X:
            for ee in range(2):
                vwrite(wX[ee], OB + 24 + 4 * ee, u + 1)
        ready(u + 1)

    n1 = 1 if X else opt["n1"]

    def bar():
        e.drain_lg()
        if not opt["pst"] or e.nst < 15:
            e.stamp()
        I("s_barrier")

    def atom_mark():
        assert not e.vm
        e.vm.append("atom")

    def signal():
        e.need("ust")
        if opt["pst"]:
            e.stamp()
        I(f"v_mov_b32 v{eA}, {FLAGS + 15*16 + 4}")
        I("s_mov_b64 exec, 1")
        I(f"ds_add_rtn_u32 v{eC}, v{eA}, v251")
        I("s_waitcnt lgkmcnt(0)")
        e.lg = []
        I(f"v_readfirstlane_b32 s{sT0}, v{eC}")
        if opt["two"]:
            I(f"v_mov_b32 v{eC}, 0")
        I(f"s_cmp_eq_u32 s{sT0}, 3")
        I("s_cbranch_scc0 L_NOATOM")
        if opt["two"]:
            I(f"v_mov_b32 v{eA}, 0")
            I(f"v_mov_b32 v{eC}, 1")
            I(f"global_atomic_add v{eC}, v{eA}, v{eC}, s[{sDBG}:{sDBG+1}] sc0 sc1")
        else:
            I("s_mov_b64 exec, 15")
            I(f"v_lshlrev_b32 v{eA}, 6, v0")
            if not opt["noatom"]:
                I(f"global_atomic_add v{eA}, v251, s[{sDBG}:{sDBG+1}] sc1")
        e.label("L_NOATOM")
        I("s_mov_b64 exec, -1")
        atom_mark()

    def publish():
        if kind != "w" or not opt["two"]:
            return
        e.need("atom")
        I(f"v_readfirstlane_b32 s{sT0}, v{eC}")
        I(f"s_cmp_eq_u32 s{sT0}, {NWORK - 1}")
        I("s_cbranch_scc0 L_NOPUB")
        I("s_mov_b64 exec, 3")
        I(f"v_lshlrev_b32 v{eA}, 6, v0")
        I(f"v_mov_b32 v{eC}, {NWORK}")
        I(f"global_store_dword v{eA}, v{eC}, s[{sDBG}:{sDBG+1}] offset:128 sc1")
        I("s_mov_b64 exec, -1")
        e.label("L_NOPUB")

    if opt["otlb"] == 1 and kind != "w":
        I("s_mov_b64 exec, 1")
        e.vmem(f"buffer_load_dword v254, v{xB}, s[{sO}:{sO+3}], 0 offen")
        I("s_mov_b64 exec, -1")
    if kind == "w" and opt["wo"] == 0:
        xl(0, 1)
    e.drain_lg()
    e.stamp()
    if not (kind == "w" and opt["wp1"]):
        I("s_barrier")
    if opt["pro"] == "alpha":
        I("s_barrier")
        if kind != "w" and opt["aord"] == 0:
            xl(0, 1)
    if kind == "w" and opt["wta"] == 0:
        signal()
        if opt["two"] == 1:
            publish()
        if opt["wo"] > 0:
            xl(0, 1)
    tA(0)
    ready(0)
    if opt["two"] == 2:
        publish()
    if kind == "w" and opt["wta"] == 1:
        signal()
        if opt["two"] == 1:
            publish()
        if opt["wo"] > 0:
            xl(0, 1)
    if opt["pro"] == "alpha" and kind != "w" and opt["aord"] == 1:
        xl(0, 1)
    xsched("a0")
    tA(1)
    ready(1)
    if kind == "w" and opt["wta"] == 2:
        signal()
    xsched("a1")
    novalu[0] = True
    for u in range(2, 12):
        k, st, p = UNITS[u]
        if k == "A":
            if u == 2:
                wpoint()
            tA(u)
            ready(u)
            if u == opt["pollu"]:
                trypoll()
                trypoll(final=True)
            xsched(f"a{u}")
        elif st == 0:
            tB1(u)
            xsched(f"j{u}")
            tB2(u)
            xsched(f"k{u}")
    if True:
        if True:
            rA, rB, gA, gB, vXL, vXG = 1, 2, 3, 4, 5, 6
            I(f"s_mul_i32 s{sT0}, s{sROW0}, 86016")
            I(f"s_mul_i32 s{sT1}, s{sSTRIP}, 12288")
            I(f"s_add_u32 s{sT0}, s{sT0}, s{sT1}")
            I(f"s_mul_i32 s{sT1}, s{sPW}, 3072")
            I(f"s_add_u32 s{sT0}, s{sT0}, s{sT1}")
            I(f"s_mul_i32 s{sT1}, s{sPW}, 1600")
            I(f"s_add_u32 s{sT1}, s{sT1}, {OUT}")
            for j in range(3 if opt["st2"] else 0):
                I(f"v_add_u32 v{t0}, {64*j}, v0")
                I(f"v_mul_u32_u24 v{t1}, 1366, v{t0}")
                I(f"v_lshrrev_b32 v{t1}, 16, v{t1}")
                I(f"v_mul_u32_u24 v{t2}, 48, v{t1}")
                I(f"v_sub_u32 v{t2}, v{t0}, v{t2}")
                I(f"v_lshlrev_b32 v{t2}, 3, v{t2}")
                I(f"v_mul_u32_u24 v{t3}, 400, v{t1}")
                I(f"v_add3_u32 v{7+j}, v{t3}, v{t2}, s{sT1}")
                I(f"v_mul_u32_u24 v{t3}, 768, v{t1}")
                I(f"v_add3_u32 v{10+j}, v{t3}, v{t2}, s{sT0}")
                I(f"v_add_u32 v{20+j}, {6*OROW}, v{7+j}")
            for (r, gg, add) in ((rA, gA, 0), (rB, gB, 64)):
                I(f"v_add_u32 v{t0}, {add}, v0")
                I(f"v_min_u32 v{t0}, 95, v{t0}")
                I(f"v_mul_u32_u24 v{t1}, 10923, v{t0}")
                I(f"v_lshrrev_b32 v{t1}, 18, v{t1}")
                I(f"v_mul_u32_u24 v{t2}, 24, v{t1}")
                I(f"v_sub_u32 v{t2}, v{t0}, v{t2}")
                I(f"v_lshlrev_b32 v{t2}, 4, v{t2}")
                I(f"v_mul_u32_u24 v{t3}, 400, v{t1}")
                I(f"v_add3_u32 v{r}, v{t3}, v{t2}, s{sT1}")
                I(f"v_mul_u32_u24 v{t3}, 768, v{t1}")
                I(f"v_add3_u32 v{gg}, v{t3}, v{t2}, s{sT0}")
            I(f"v_cmp_gt_u32 vcc, 32, v0")
            I(f"v_mov_b32 v{t4}, s{sINV}")
            I(f"v_add_u32 v250, {6*OROW}, v{rA}")
            I(f"v_cndmask_b32 v{gB}, v{t4}, v{gB}, vcc")
            I(f"v_add_u32 v251, {6*OROW}, v{rB}")
            I(f"s_lshl_b32 s{sT0}, s{sPW}, 2")
            I(f"v_bfe_u32 v{t0}, v0, 3, 2")
            I(f"v_add_u32 v{t0}, s{sT0}, v{t0}")
            I(f"v_and_b32 v{t1}, 7, v0")
            I(f"v_mul_u32_u24 v{t2}, 144, v{t0}")
            I(f"v_lshl_add_u32 v{t2}, v{t1}, 4, v{t2}")
            I(f"v_add_u32 v{vXL}, {XST}, v{t2}")
            I(f"v_mul_u32_u24 v{t0}, 768, v{t0}")
            I(f"v_lshrrev_b32 v{t2}, 1, v{t1}")
            I(f"v_mul_u32_u24 v{t2}, 96, v{t2}")
            I(f"v_and_b32 v{t1}, 1, v{t1}")
            I(f"v_lshl_add_u32 v{t2}, v{t1}, 4, v{t2}")
            I(f"s_mul_i32 s{sT0}, s{sEROW}, 86016")
            I(f"s_mul_i32 s{sT1}, s{sES}, 12288")
            I(f"s_add_u32 s{sT0}, s{sT0}, s{sT1}")
            I(f"s_lshl_b32 s{sT1}, s{sF0}, 5")
            I(f"s_add_u32 s{sT0}, s{sT0}, s{sT1}")
            I(f"v_add3_u32 v{vXG}, v{t0}, v{t2}, s{sT0}")
            I(f"v_cndmask_b32 v{vXG}, v{t4}, v{vXG}, vcc")
    rA, rB, gA, gB, vXL, vXG = 1, 2, 3, 4, 5, 6
    sf = opt["sf"]
    nb = [0]

    def rowread(st, m, b):
        if opt["st2"]:
            for j in range(3):
                I(f"ds_read_b64 {vr(b + 2*j, 2)}, v{(7 if st == 0 else 20) + j} offset:{m*OROW}")
            return
        a0, a1 = (rA, rB) if st == 0 else (250, 251)
        I(f"ds_read_b128 {vr(b)}, v{a0} offset:{m*OROW}")
        I(f"ds_read_b128 {vr(b+4)}, v{a1} offset:{m*OROW}")

    def rowstore(st, m, b, w0=None, w1=None):
        sf = opt["sfl"] if st == 1 and m >= 6 - opt["nlast"] else opt["sf"]
        I(f"s_mov_b32 s{sOFF}, {m*86016}")
        if opt["st2"]:
            for j in range(3):
                if w0: I(f"s_waitcnt lgkmcnt({2-j})")
                I(f"buffer_store_dwordx2 {vr(b + 2*j, 2)}, v{10+j}, s[{sO}:{sO+3}], s{sOFF} offen offset:{384*st} {sf}")
            return
        if w0: I(w0)
        I(f"buffer_store_dwordx4 {vr(b)}, v{gA}, s[{sO}:{sO+3}], s{sOFF} offen offset:{384*st} {sf}")
        if w1: I(w1)
        I(f"buffer_store_dwordx4 {vr(b+4)}, v{gB}, s[{sO}:{sO+3}], s{sOFF} offen offset:{384*st} {sf}")

    def xpart(st, b):
        if kind == "w":
            return
        if kind == "n":
            I(f"s_cmp_eq_u32 s{sHASX}, 0")
            I(f"s_cbranch_scc1 L_NOX{st}")
        pollflag(12 + st, f"L_F{kind}X{st}", opt["slp"])
        I(f"ds_read_b128 {vr(b)}, v{vXL} offset:{2304*st}")
        I("s_waitcnt lgkmcnt(0)")
        I(f"buffer_store_dwordx4 {vr(b)}, v{vXG}, s[{sO}:{sO+3}], 0 offen offset:{384*st}")
        if kind == "n":
            e.label(f"L_NOX{st}")

    batches = [(14, range(6))]
    if opt["ego"]:
        a_, b_ = int(str(opt["ego"])[1]), int(str(opt["ego"])[2])
        batches = [(25, tuple(range(a_))), (26, tuple(range(a_, a_ + b_))), (14, tuple(range(a_ + b_, 6)))]
        batches = [t for t in batches if t[1] or t[0] == 14]
    for k_, rows in batches:
        if rows:
            pollflag(rows[-1], f"L_F{kind}0_{rows[-1]}", opt["psl"])
        for m in rows:
            rowread(0, m, 28 + 8 * m)
        pollflag(k_, f"L_F{kind}GO{k_}", opt["slp"])
        if k_ == 14 and not opt["pst"]:
            e.stamp()
        for m in rows:
            rowstore(0, m, 28 + 8 * m)
    xpart(0, 76)
    for m in [0, 1, "X", 2, 3, 4, 5]:
        if m == "X":
            xpart(1, 80)
            continue
        b = 84 + 8 * m
        pollflag(6 + m, f"L_F{kind}1_{m}", opt["slp"] if m < 4 else opt["slpl"])
        if m in (0, 5) and not opt["pst"]:
            e.stamp()
        rowread(1, m, b)
        rowstore(1, m, b, "s_waitcnt lgkmcnt(1)", "s_waitcnt lgkmcnt(0)")
    e.stamp()
    if opt["stamp"]:
        I("s_waitcnt vmcnt(0)")
        e.stamp()
    e.dump_stamps("p")
    I("s_endpgm")
    return e.L


def generate(**kw):
    opt = dict(DEF)
    opt.update(kw)
    opt["code_pf_lines"] = 20
    UNITS[:] = ORDERS[opt["order"]]
    L = []
    L.append("; one 512-thread workgroup per CU: waves 0-3 MFMA, waves 4-7 input transform / output stores.")
    L.append(f"; @launch grid=(256,1,1) block=(512,1,1) lds={LDS_BYTES}")
    L.append('.amdgcn_target "amdgcn-amd-amdhsa--gfx950"')
    L.append(".text")
    L.append(f".globl {KNAME}")
    L.append(".p2align 8")
    L.append(f".type {KNAME},@function")
    L.append(f"{KNAME}:")
    e = Em(opt)
    I = e.I
    e.stamp()
    I(f"s_load_dwordx8 s[{sKA}:{sKA+7}], s[0:1], 0")
    I(f"s_load_dwordx4 s[{sDBG}:{sDBG+3}], s[0:1], 32")
    I("v_lshrrev_b32 v1, 6, v0")
    I("s_cmp_ge_u32 s2, 256")
    I("s_cbranch_scc1 L_END")
    I(f"v_readfirstlane_b32 s{sWAVE}, v1")
    I("v_and_b32 v0, 63, v0")
    if opt["epf"]:
        R = opt["epf"]
        I(f"s_getpc_b64 s[{sPC}:{sPC+1}]")
        I(f"s_bfe_u32 s{sT0}, s2, {3 | ((R.bit_length() - 1) << 16)}")
        I(f"v_min_u32 v2, {24 // R - 1}, v0")
        I(f"v_lshl_add_u32 v2, v2, {R.bit_length() - 1}, s{sT0}")
        I(f"v_mul_u32_u24 v1, {CS}, v1")
        I(f"v_lshl_add_u32 v2, v2, 7, v1")
        I(f"v_min_u32 v2, L_END-{KNAME}-256, v2")
        e.vmem(f"global_load_dword v255, v2, s[{sPC}:{sPC+1}]", "epf")
    I(f"s_mov_b32 s{sMASK}, 0xffff0000")
    I(f"s_mov_b32 s{sINV}, 0x80000000")
    I(f"s_lshr_b32 s{sIDX}, s2, 3")
    if opt["par"]:
        I(f"s_and_b32 s{sHASX}, s2, 1")
        I(f"s_xor_b32 s{sHASX}, s{sHASX}, {1 if opt['par'] == 1 else 0}")
        I(f"s_cmp_ge_u32 s{sIDX}, 8")
        I(f"s_cselect_b32 s{sHASX}, s{sHASX}, 0")
    else:
        I(f"s_sub_u32 s{sT0}, s{sIDX}, 7")
        I(f"s_cmp_lt_u32 s{sT0}, 12")
        I(f"s_cselect_b32 s{sHASX}, 1, 0")
    I(f"s_cmp_lt_u32 s{sWAVE}, 4")
    I("s_cbranch_scc1 L_CONS")
    I(f"s_sub_u32 s{sPW}, s{sWAVE}, 4")
    I(f"s_cmp_lt_u32 s{sIDX}, 7")
    I("s_cbranch_scc1 L_PW")
    L += e.L
    epw = Em(opt, e)
    worker_pre(epw, opt)
    producer_main(epw, opt)
    ep = Em(opt, e)
    producer_main(ep, opt)
    if not opt["xo"]:
        for j in (1, 3, 5, 7, 9):
            xload(ep, 0, j)
    ep.I(f"s_cmp_eq_u32 s{sHASX}, 0")
    ep.I("s_cbranch_scc1 L_PN")
    ep.I(f"s_cmp_eq_u32 s{sPW}, 3")
    ep.I("s_cbranch_scc1 L_PN")
    L += ep.L
    L += producer(ep, opt, "x")
    L.append(f".org {KNAME} + {1 * CS}, 0" if opt["epf"] else ".p2align 6")
    L.append("L_PN:")
    L += producer(ep, opt, "n")
    L.append(f".org {KNAME} + {2 * CS}, 0" if opt["epf"] else ".p2align 6")
    L.append("L_PW:")
    L += epw.L
    L += producer(epw, opt, "w")
    L.append(f".org {KNAME} + {3 * CS}, 0" if opt["epf"] else ".p2align 6")
    L.append("L_CONS:")
    ec = Em(opt, e)
    consumer_pro(ec, opt)
    L += ec.L
    L += consumer(ec, opt, True)
    L.append(f".org {KNAME} + {5 * CS}, 0" if opt["epf"] else ".p2align 6")
    L.append("L_CN:")
    L += consumer(ec, opt, False)
    L.append("L_END:")
    L.append("    s_endpgm")
    L.append('.section .rodata,"a"')
    L.append(".p2align 6")
    L.append(f".amdhsa_kernel {KNAME}")
    for d in ("next_free_vgpr 256", "next_free_sgpr 102", "accum_offset 256", "group_segment_fixed_size 0",
              "kernarg_size 48", "user_sgpr_count 2", "user_sgpr_kernarg_segment_ptr 1",
              "system_sgpr_workgroup_id_x 1", "ieee_mode 0", "float_denorm_mode_32 1"):
        L.append("  .amdhsa_" + d)
    L.append(".end_amdhsa_kernel")
    return "\n".join(L) + "\n"


if __name__ == "__main__":
    out = sys.argv[1]
    kw = {}
    for a in sys.argv[2:]:
        k, v = a.split("=", 1)
        try:
            kw[k] = int(v)
        except ValueError:
            try:
                kw[k] = float(v)
            except ValueError:
                kw[k] = v.replace("+", " ")
    open(out, "w").write(generate(**kw))
```

```python
import sys, os
sys.path.insert(0, os.path.dirname(os.path.abspath(__file__)))
from cost import gapcost

KNAME = "standalone__standard_2d_1d_3d_conv__vision_kernel"

DEF = dict(
    stamp=0, spin=4000, spinref=0, cst=-1, cev=8, pst=0,
    xf="", sf="nt", uf="sc1",
    code_pf=1, w_pf=1,
    prio=0, slp=1,
    pro="beta",
    xs="w:1e,w:1o,4p:2e,k4:2o",
    dsp=4.5,
    ustep=3, ulead=12,
    lag=-1,
    go=23,
    noatom=0, u_pf=0, pollp=1, pollat=-2, n1=1, y0at=0, gam=0, psl=2, epf=2, xo=1, w1late=0, otlb=0, aord=0, rsh=0, dd=0, wta=0, d_xcc=0, par=0, dedup=0, two=2, d_sl=0, ego=0, st2=1, wp1=0, pdel=0, nraw=4, pollu=2, pslp=8, trd=9, d_now=0, d_nov=0, d_nou=0, sfl='sc1', nlast=0, slpl=0, ustep0=5, order=2, wat=1, pat=3, rpf=1, rlead=0, wsp=10, pollw=0, w2pre=0, tr1at=4, wo=2, ulead0=0,
)

VSLOT = 22528
VHALF = 11264
VS = [0, VSLOT, 2 * VSLOT]
FLAGS = 3 * VSLOT
WRING = FLAGS + 512
WWAVE = 18432
OROW = 6400
OUT = WRING
XST = OUT + 12 * OROW
PRE = XST + 4608
LDS_BYTES = PRE + 12288
NWORK = 56
CS = 12800

XBYTES = 224 * 224 * 384
WBYTES = 9 * 192 * 384
UBYTES = 24 * 36864

ORDERS = {
    2: [("A", 0, 0), ("A", 1, 0),
        ("B", 0, 0), ("B", 1, 0), ("B", 0, 1), ("B", 1, 1), ("B", 0, 2), ("B", 1, 2),
        ("A", 0, 1), ("A", 0, 2), ("A", 1, 1), ("A", 1, 2)],
    3: [("A", 0, 0), ("A", 1, 0), ("A", 0, 1),
        ("B", 0, 0), ("B", 1, 0), ("B", 0, 1), ("B", 1, 1), ("B", 0, 2), ("B", 1, 2),
        ("A", 0, 2), ("A", 1, 1), ("A", 1, 2)],
    1: [("A", 0, 0), ("A", 1, 0), ("A", 0, 1), ("A", 1, 1),
        ("B", 0, 0), ("B", 1, 0), ("B", 0, 1), ("B", 1, 1), ("B", 0, 2), ("B", 1, 2),
        ("A", 0, 2), ("A", 1, 2)],
}
UNITS = list(ORDERS[2])


def step_info(s):
    kind, st, pair = UNITS[s >> 1]
    return kind, st, 2 * pair + (s & 1)


sX, sW, sO, sU, sB = 4, 8, 12, 16, 20
sDBG, sWS, sKA = 24, 26, 28
sWAVE, sL, sSTRIP, sROW0, sHASX, sES, sEROW = 36, 37, 38, 39, 40, 41, 42
sF0, sF1, sF2, sIDX = 43, 44, 45, 46
sT0, sT1, sT2, sT3 = 47, 48, 49, 50
sMASK, sRING, sOFF, sOFF2, sPW = 51, 52, 53, 54, 55
sPC, sCNT, sINV = 56, 58, 59
sPOLL, sPEND = 3, 56
sST = 60


class Em:
    def __init__(self, opt, parent=None):
        self.L = []
        self.lg = list(parent.lg) if parent else []
        self.vm = list(parent.vm) if parent else []
        self.opt = opt
        self.nst = parent.nst if parent else 0

    def I(self, s):
        self.L.append("    " + s)

    def label(self, s):
        self.L.append(s + ":")

    def lds(self, s, name=None):
        self.I(s)
        self.lg.append(name)

    def vmem(self, s, name=None):
        self.I(s)
        self.vm.append(name)

    def need(self, names):
        if isinstance(names, str):
            names = [names]
        w = []
        k = max([i for i, n in enumerate(self.vm) if n in names], default=-1)
        if k >= 0:
            n = min(len(self.vm) - 1 - k, 63)
            w.append(f"vmcnt({n})")
            self.vm = self.vm[len(self.vm) - n:] if n else []
        k = max([i for i, n in enumerate(self.lg) if n in names], default=-1)
        if k >= 0:
            n = min(len(self.lg) - 1 - k, 15)
            w.append(f"lgkmcnt({n})")
            self.lg = self.lg[len(self.lg) - n:] if n else []
        if w:
            self.I("s_waitcnt " + " ".join(w))

    def drain_lg(self):
        self.I("s_waitcnt lgkmcnt(0)")
        self.lg = []

    def drain_vm(self):
        self.I("s_waitcnt vmcnt(0)")
        self.vm = []

    def stamp(self):
        o = self.opt
        if o["stamp"] == 4 and self.nst != o["spinref"]:
            self.nst += 1
        elif o["stamp"]:
            r = sST + 2 * self.nst
            assert r + 1 < 100, "too many stamps"
            self.I(f"s_memrealtime s[{r}:{r+1}]" if o["stamp"] in (1, 4) else f"s_memtime s[{r}:{r+1}]")
            self.nst += 1

    def dump_stamps(self, role):
        o = self.opt
        if not o["stamp"]:
            return
        self.I("s_waitcnt vmcnt(0) lgkmcnt(0)")
        if o["stamp"] == 4:
            if o["spinref"] and role != "c":
                return
            lab = f"L_SPIN{id(self)}"
            self.label(lab)
            self.I(f"s_memrealtime s[{sT1}:{sT1+1}]")
            self.I("s_waitcnt lgkmcnt(0)")
            self.I(f"s_sub_u32 s{sT0}, s{sT1}, s{sST + 2*o['spinref']}")
            if o["d_xcc"] == 2:
                self.I(f"s_getreg_b32 s{sT3}, hwreg(HW_REG_XCC_ID)")
                self.I(f"s_and_b32 s{sT3}, s{sT3}, 15")
                self.I(f"s_mul_i32 s{sT3}, s{sT3}, 300")
                self.I(f"s_add_u32 s{sT3}, s{sT3}, {o['spin']}")
                self.I(f"s_cmp_eq_u32 s2, 0")
                self.I(f"s_cselect_b32 s{sT3}, s{sT3}, 0")
                self.I(f"s_cmp_lt_u32 s{sT0}, s{sT3}")
            else:
                self.I(f"s_cmp_lt_u32 s{sT0}, {o['spin']}")
            self.I(f"s_cbranch_scc1 {lab}")
            return
        self.I(f"s_lshl_b32 s{sT0}, s2, 3")
        self.I(f"s_add_u32 s{sT0}, s{sT0}, s{sWAVE}")
        self.I(f"s_lshl_b32 s{sT0}, s{sT0}, 8")
        self.I(f"s_add_u32 s{sT0}, s{sT0}, 0x100000")
        self.I(f"v_mov_b32 v1, s{sT0}")
        for i in range(self.nst):
            self.I(f"v_mov_b32 v2, s{sST + 2*i}")
            self.I(f"global_store_dword v1, v2, s[{sWS}:{sWS+1}] offset:{4*i}")
        self.I(f"v_mov_b32 v2, {self.nst}")
        self.I(f"global_store_dword v1, v2, s[{sWS}:{sWS+1}] offset:252")
        self.I(f"s_getreg_b32 s{sT0}, hwreg(HW_REG_XCC_ID)")
        self.I(f"v_mov_b32 v2, s{sT0}")
        self.I(f"global_store_dword v1, v2, s[{sWS}:{sWS+1}] offset:248")


def vr(a, n=4):
    return f"v[{a}:{a+n-1}]"


def srd(e, s, lo, nbytes, bias=0):
    if bias:
        e.I(f"s_sub_u32 s{s}, s{lo}, {bias}")
        e.I(f"s_subb_u32 s{s+1}, s{lo+1}, 0")
    else:
        e.I(f"s_mov_b32 s{s}, s{lo}")
        e.I(f"s_mov_b32 s{s+1}, s{lo+1}")
    e.I(f"s_mov_b32 s{s+2}, {nbytes + bias}")
    e.I(f"s_mov_b32 s{s+3}, 0x20000")


def decode_main(e):
    I = e.I
    I(f"s_and_b32 s{sT0}, s2, 7")
    I(f"s_lshl_b32 s{sT0}, s{sT0}, 5")
    I(f"s_add_u32 s{sT0}, s{sT0}, s{sIDX}")
    I(f"s_mul_i32 s{sT0}, s{sT0}, 7")
    I(f"s_lshr_b32 s{sSTRIP}, s{sT0}, 8")
    I(f"s_and_b32 s{sT0}, s{sT0}, 255")
    I(f"s_mul_i32 s{sT0}, s{sT0}, 293")
    I(f"s_lshr_b32 s{sT0}, s{sT0}, 11")
    I(f"s_mul_i32 s{sROW0}, s{sT0}, 6")


def decode_extra(e):
    I = e.I
    if e.opt["par"]:
        I(f"s_bfe_u32 s{sT0}, s2, {1 | (2 << 16)}")
        I(f"s_mul_i32 s{sT0}, s{sT0}, 24")
        I(f"s_add_u32 s{sT0}, s{sT0}, s{sIDX}")
        I(f"s_sub_u32 s{sT0}, s{sT0}, 8")
    else:
        I(f"s_and_b32 s{sT0}, s2, 7")
        I(f"s_mul_i32 s{sT0}, s{sT0}, 12")
        I(f"s_add_u32 s{sT0}, s{sT0}, s{sIDX}")
        I(f"s_sub_u32 s{sT0}, s{sT0}, 7")
    I(f"s_mul_i32 s{sT1}, s{sT0}, 21846")
    I(f"s_lshr_b32 s{sT1}, s{sT1}, 16")
    I(f"s_mul_i32 s{sT2}, s{sT1}, 3")
    I(f"s_sub_u32 s{sF0}, s{sT0}, s{sT2}")
    I(f"s_cmp_eq_u32 s{sHASX}, 1")
    I(f"s_cselect_b32 s{sF0}, s{sF0}, 0")
    I(f"s_cselect_b32 s{sT1}, s{sT1}, 0")
    I(f"s_lshl_b32 s{sES}, s{sT1}, 1")
    I(f"s_and_b32 s{sES}, s{sES}, 12")
    I(f"s_lshr_b32 s{sES}, 0x5310, s{sES}")
    I(f"s_and_b32 s{sES}, s{sES}, 15")
    I(f"s_and_b32 s{sEROW}, s{sT1}, 1")
    I(f"s_add_u32 s{sEROW}, s{sEROW}, 222")
    I(f"s_lshr_b32 s{sT3}, s{sT1}, 3")
    I(f"s_lshl_b32 s{sT3}, s{sT3}, 1")
    I(f"s_and_b32 s{sT2}, s{sT1}, 7")
    I(f"s_add_u32 s{sT2}, s{sT2}, 216")
    I(f"s_cmp_lt_u32 s{sT1}, 8")
    I(f"s_cselect_b32 s{sES}, s{sES}, s{sT3}")
    I(f"s_cselect_b32 s{sEROW}, s{sEROW}, s{sT2}")


def consumer_pro(e, opt):
    I = e.I
    vV, vV2, vT = 1, 2, 3
    vD = [4, 5, 6]
    vU = [7, 253, 254]
    t0, t1, t2, t3, t4 = 8, 9, 10, 11, 12
    sF = [sF0, sF1, sF2]
    decode_extra(e)
    I(f"s_add_u32 s{sF1}, s{sF0}, 1")
    I(f"s_cmp_eq_u32 s{sF1}, 3")
    I(f"s_cselect_b32 s{sF1}, 0, s{sF1}")
    I(f"s_add_u32 s{sF2}, s{sF1}, 1")
    I(f"s_cmp_eq_u32 s{sF2}, 3")
    I(f"s_cselect_b32 s{sF2}, 0, s{sF2}")
    I(f"v_lshrrev_b32 v{t0}, 4, v0")
    I(f"s_mul_i32 s{sT0}, s{sWAVE}, 96")
    I(f"v_lshlrev_b32 v{t4}, 3, v{t0}")
    I(f"v_add_u32 v{t4}, s{sT0}, v{t4}")
    for s in range(3):
        I(f"s_lshl_b32 s{sT1}, s{sF[s]}, 5")
        I(f"v_add_u32 v{13+s}, s{sT1}, v{t4}")
    if opt["w_pf"]:
        I(f"s_mul_i32 s{sT1}, s{sIDX}, 36")
        I(f"v_min_u32 v{t1}, 35, v0")
        I(f"v_add_u32 v{t1}, s{sT1}, v{t1}")
        I(f"v_mul_u32_u24 v{t2}, 10923, v{t1}")
        I(f"v_lshrrev_b32 v{t2}, 21, v{t2}")
        I(f"v_add_u32 v{t3}, 1, v{t2}")
        I(f"v_lshrrev_b32 v{t3}, 1, v{t3}")
        I(f"v_mul_u32_u24 v{t3}, 576, v{t3}")
        I(f"v_mul_u32_u24 v{t2}, 384, v{t2}")
        I(f"v_add3_u32 v{t1}, v{t1}, v{t2}, v{t3}")
        I(f"s_mul_i32 s{sT1}, s{sWAVE}, {192*128}")
        I(f"s_add_u32 s{sT1}, s{sT1}, 2048")
        I(f"v_lshl_add_u32 v252, v{t1}, 7, s{sT1}")
    I("s_waitcnt lgkmcnt(0)")
    srd(e, sB, sKA + 4, 384)
    srd(e, sW, sKA + 2, WBYTES, 2048)
    srd(e, sU, sWS, UBYTES)
    if opt["w_pf"]:
        I(f"s_cmp_ge_u32 s{sWAVE}, {1 if opt['nraw'] == 4 else 2}")
        I("s_cbranch_scc1 L_NOWPF")
        I(f"buffer_load_dword v255, v252, s[{sW}:{sW+3}], 0 offen")
        e.label("L_NOWPF")
    if opt["code_pf"]:
        I(f"s_cmp_eq_u32 s{sWAVE}, 2")
        I("s_cbranch_scc0 L_NOCPF")
        I(f"s_getpc_b64 s[{sPC}:{sPC+1}]")
        e.label("L_PC0")
        I(f"s_sub_u32 s{sPC}, s{sPC}, L_PC0-{KNAME}")
        I(f"s_subb_u32 s{sPC+1}, s{sPC+1}, 0")
        I(f"s_mul_i32 s{sT1}, s{sIDX}, {opt['code_pf_lines']*128}")
        I(f"v_min_u32 v252, {opt['code_pf_lines']-1}, v0")
        I(f"v_lshl_add_u32 v252, v252, 7, s{sT1}")
        I(f"v_min_u32 v252, L_END-{KNAME}, v252")
        I(f"global_load_dword v255, v252, s[{sPC}:{sPC+1}]")
        e.label("L_NOCPF")
    if opt["d_xcc"] == 1:
        I(f"s_cmp_lt_u32 s2, 12")
        I("s_cbranch_scc0 L_NOXCC")
        I(f"s_getreg_b32 s{sT1}, hwreg(HW_REG_XCC_ID)")
        I(f"s_lshl_b32 s{sT2}, s2, 2")
        I(f"v_mov_b32 v22, s{sT1}")
        I(f"v_mov_b32 v23, s{sT2}")
        I(f"global_store_dword v23, v22, s[{sDBG}:{sDBG+1}] offset:16")
        e.label("L_NOXCC")
    for s in range(3):
        e.vmem(f"buffer_load_dwordx2 {vr(16+2*s, 2)}, v{13+s}, s[{sB}:{sB+3}], 0 offen", "bias")
    I(f"v_and_b32 v{t1}, 15, v0")
    I(f"v_xor_b32 v{t2}, v{t0}, v{t1}")
    I(f"v_lshl_add_u32 v{t2}, v{t0}, 4, v{t2}")
    I(f"v_lshlrev_b32 v{vV}, 4, v{t2}")
    I(f"v_add_u32 v{vV2}, 0x8000, v{vV}")
    I(f"s_mul_i32 s{sRING}, s{sWAVE}, {WWAVE}")
    I(f"s_add_u32 s{sRING}, s{sRING}, {WRING}")
    I(f"v_lshrrev_b32 v{t2}, 2, v0")
    I(f"v_mul_u32_u24 v{t2}, 96, v{t2}")
    I(f"v_and_b32 v{t3}, 3, v0")
    I(f"v_lshl_add_u32 v{t2}, v{t3}, 3, v{t2}")
    I(f"v_add_u32 v{vT}, s{sRING}, v{t2}")
    for d in range(3):
        I(f"v_add_u32 v{t1}, {64*d}, v0")
        I(f"v_mul_u32_u24 v{t2}, 43691, v{t1}")
        I(f"v_lshrrev_b32 v{t2}, 18, v{t2}")
        I(f"v_mul_u32_u24 v{t3}, 6, v{t2}")
        I(f"v_sub_u32 v{t1}, v{t1}, v{t3}")
        I(f"v_bfe_u32 v{t3}, v{t2}, 2, 2")
        I(f"v_lshlrev_b32 v{t3}, 3, v{t3}")
        I(f"v_lshrrev_b32 v{t4}, 4, v{t2}")
        I(f"v_lshl_add_u32 v{t3}, v{t4}, 2, v{t3}")
        I(f"v_and_b32 v{t2}, 3, v{t2}")
        I(f"v_add_u32 v{t2}, v{t2}, v{t3}")
        I(f"v_mul_u32_u24 v{t2}, 384, v{t2}")
        I(f"v_lshrrev_b32 v{t3}, 1, v{t1}")
        I(f"v_add_u32 v{t3}, s{sF0}, v{t3}")
        I(f"v_subrev_u32 v{t4}, 3, v{t3}")
        I(f"v_min_u32 v{t3}, v{t3}, v{t4}")
        I(f"v_lshl_add_u32 v{t2}, v{t3}, 5, v{t2}")
        I(f"v_and_b32 v{t1}, 1, v{t1}")
        I(f"v_lshl_add_u32 v{t2}, v{t1}, 4, v{t2}")
        I(f"v_add_u32 v{t2}, s{sT0}, v{t2}")
        I(f"v_add_u32 v{vD[d]}, {2048 - 1024*d}, v{t2}")
    I(f"s_mul_i32 s{sT1}, s{sWAVE}, 9216")
    for s in range(3):
        I(f"s_mul_i32 s{sT0}, s{sF[s]}, 3072")
        I(f"s_add_u32 s{sT0}, s{sT0}, s{sT1}")
        I(f"v_lshl_add_u32 v{vU[s]}, v0, 4, s{sT0}")
    I(f"s_cmp_eq_u32 s{sHASX}, 0")
    I("s_cbranch_scc1 L_CN")


def consumer(parent, opt, extra):
    e = Em(opt, parent)
    I = e.I
    vV, vV2, vT = 1, 2, 3
    vD = [4, 5, 6]
    vU = [7, 253, 254]
    vO = vD
    vOX, vFL, vONE, vCK = 3, 255, 252, 0
    VR = 8
    WB = [24, 60]
    ACC = 96
    acc = {}
    for m in range(6):
        for st in range(2):
            for s in range(3):
                acc[(m, st, s)] = ACC + 4 * ((m * 2 + st) * 3 + s)
    acc[("X", 0)] = 240
    acc[("X", 1)] = 244
    spare = [248]
    sF = [sF0, sF1, sF2]
    tag = "x" if extra else "n"

    def W(step, i, s):
        return WB[step & 1] + 4 * (i * 3 + s)

    def dma_ops(step, i):
        kind, st, c = step_info(step)
        slot = (step & 1) * 3 + i
        ops = [("S", lambda: I(f"s_add_u32 m0, s{sRING}, {slot*3072}")),
               ("S", lambda: I(f"s_mov_b32 s{sOFF2}, {(i*3+2*st)*73728 + c*12288}"))]
        for d in range(3):
            def f(d=d):
                e.need([f"w{step-2}_{i}"])
                e.vmem(f"buffer_load_dwordx4 v{vD[d]}, s[{sW}:{sW+3}], s{sOFF2} offen offset:{1024*d} lds", f"dma{step}_{i}")
            ops.append(("M", f))
        return ops

    def tr_ops(step, i):
        slot = (step & 1) * 3 + i
        ops = []
        for s in range(3):
            for h in range(2):
                def f(s=s, h=h):
                    e.need([f"dma{step}_{i}"])
                    e.lds(f"ds_read_b64_tr_b16 {vr(W(step, i, s) + 2*h, 2)}, v{vT} offset:{slot*3072 + h*1536 + s*32}", f"w{step}_{i}")
                ops.append(("WR" if s == 0 and h == 0 else "R", f))
        return ops

    def u_op(step, i, s):
        if opt["d_nou"] and step > 9:
            return ("S", lambda: I("s_nop 0"))
        return ("M", lambda: e.vmem(f"buffer_load_dwordx4 {vr(W(step, i, s))}, v{vU[s]}, s[{sU}:{sU+3}], s{sOFF} offen offset:{1024*i} {opt['uf']}", f"w{step}_{i}"))

    def u_off(step):
        kind, st, c = step_info(step)
        pos = st if kind == "B" else 2 + st
        return ("S", lambda: I(f"s_mov_b32 s{sOFF}, {(pos*6+c)*36864}"))

    I(f"v_lshlrev_b32 v8, 3, v0")
    I(f"v_add_u32 v8, {FLAGS}, v8")
    I(f"v_mov_b32 v10, 0")
    I(f"v_mov_b32 v11, 0")
    I(f"ds_write_b64 v8, v[10:11]")
    I("s_waitcnt lgkmcnt(0)")
    e.stamp()
    I("s_barrier")
    for i in range(3):
        for c, f in dma_ops(0, i):
            f()
    if opt["pro"] == "alpha":
        I("s_barrier")
    w1late = opt["w1late"] == 2 or (opt["w1late"] == 1 and not extra)
    if not w1late:
        for i in range(3):
            for c, f in dma_ops(1, i):
                f()
    e.need("bias")
    for s in range(3):
        a, b = acc[(5, 0, s)], acc[(5, 1, s)]
        I(f"v_lshlrev_b32 v{a}, 16, v{16+2*s}")
        I(f"v_and_b32 v{a+1}, s{sMASK}, v{16+2*s}")
        I(f"v_lshlrev_b32 v{a+2}, 16, v{17+2*s}")
        I(f"v_and_b32 v{a+3}, s{sMASK}, v{17+2*s}")
        for k in range(4):
            I(f"v_xor_b32 v{b+k}, s{sINV}, v{a+k}")
    for i in range(3):
        for c, f in tr_ops(0, i):
            f()
    if w1late:
        for i in range(3):
            for c, f in dma_ops(1, i):
                f()
    if opt["w2pre"]:
        for i in range(3):
            for c, f in dma_ops(2, i):
                f()
    I(f"s_lshl_b32 s{sT0}, s{sWAVE}, 2")
    I(f"s_add_u32 s{sT0}, s{sT0}, {FLAGS}")
    I(f"v_mov_b32 v{vFL}, s{sT0}")
    I(f"v_mov_b32 v{vONE}, 1")
    if opt["prio"]:
        I(f"s_setprio {opt['prio']}")
    e.stamp()

    groups = []

    def g_row(step, r):
        st = step_info(step)[1]
        mf = []
        for i in (2, 1, 0):
            m = r - i
            if 0 <= m <= 5:
                for s in range(3):
                    mf.append(((m, st, s), i, s))
        return dict(step=step, row=r, mf=mf)

    def g_x(step, i):
        return dict(step=step, row=8 + i, mf=[(("X", step_info(step)[1]), i, 0)])

    for step in range(22):
        seq = [g_row(step, 0), g_row(step, 1), g_x(step, 0), g_row(step, 2), g_x(step, 1), g_row(step, 3),
               g_x(step, 2), g_row(step, 4), g_row(step, 5), g_row(step, 6), g_row(step, 7)]
        groups += [g for g in seq if extra or g["row"] < 8]
    lag = opt["lag"]
    if lag >= 0:
        seq = []
        for r in range(8 + lag):
            if r < 8:
                seq.append((22, r))
            if r >= lag:
                seq.append((23, r - lag))
    else:
        seq = [(22, 0), (22, 1), (22, 2), (23, 0), (22, 3), (23, 1), (23, 2), (23, 3),
               (22, 4), (23, 4), (22, 5), (23, 5), (22, 6), (23, 6), (22, 7), (23, 7)]
    for (st_, r) in seq:
        groups.append(g_row(st_, r))
        if extra and st_ == 22 and 1 <= r <= 3:
            groups.append(g_x(22, r - 1))
        if extra and st_ == 23 and 1 <= r <= 3 and lag < 0:
            groups.append(g_x(23, r - 1))
        if extra and st_ == 23 and 2 <= r <= 4 and lag >= 0:
            groups.append(g_x(23, r - 2))

    stream = []
    gstart = []
    for gi, g in enumerate(groups):
        gstart.append(len(stream))
        for (key, i, s) in g["mf"]:
            stream.append((gi, key, i, s))
    N = len(stream)
    gend = [gstart[k + 1] - 1 if k + 1 < len(groups) else N - 1 for k in range(len(groups))]
    step_start, step_end = {}, {}
    last_use, last_acc, first_acc, first_tap = {}, {}, {}, {}
    for gi, g in enumerate(groups):
        step_start.setdefault(g["step"], gstart[gi])
        step_end[g["step"]] = gend[gi]
    for n, (gi, key, i, s) in enumerate(stream):
        st = groups[gi]["step"]
        last_use[(st, i, s)] = n
        last_acc[(st, key)] = n
        first_acc.setdefault((st, key), n)
        first_tap.setdefault((st, i), n)
    SL = step_start[1] - step_start[0]

    fill = [[] for _ in range(N + 1)]
    cl = [""] * (N + 1)
    endw = [""] * (N + 1)
    for gi in range(1, len(groups)):
        endw[gstart[gi] - 1] = "W"
    for (st, i), n in first_tap.items():
        if n:
            endw[n - 1] = "W"

    def put(g, op):
        fill[g].append(op[1])
        cl[g] += op[0]

    def addcost(g, c, cur):
        base = cur.get(g, cl[g])
        return gapcost(base + c + endw[g]) - gapcost(base + endw[g])

    def place(g0, ops, deadline=None, per=2, strict=False):
        for budget in range(0, len(ops) + 1):
            cur = {}
            res = []
            g, n, left = g0, 0, budget
            for c, f in ops:
                free = 4 if c == "D" else 0
                while g < N:
                    if n < per:
                        ac = addcost(g, c, cur)
                        if ac <= free:
                            break
                        if left and ac <= free + 4:
                            left -= 1
                            break
                    g += 1
                    n = 0
                g = min(g, N)
                cur[g] = cur.get(g, cl[g]) + c
                res.append(g)
                n += 1
            if deadline is None or res[-1] <= deadline:
                break
        else:
            assert not strict, (g0, deadline, res[-1])
        for g, op in zip(res, ops):
            put(g, op)
        return res[-1]

    def vread(gi):
        g = groups[gi]
        u = g["step"] >> 1
        off = VS[u % 3] + (g["step"] & 1) * VHALF + g["row"] * 1024
        base = vV
        if off >= 0x8000:
            base, off = vV2, off - 0x8000
        r = VR + 4 * (gi % 4)
        return ("R", lambda: e.lds(f"ds_read_b128 {vr(r)}, v{base} offset:{off}", f"v{gi}"))

    first_of_unit = {}
    for gi, g in enumerate(groups):
        first_of_unit.setdefault(g["step"] >> 1, gi)
    def flag(k):
        return ("d", lambda: e.lds(f"ds_write_b32 v{vFL}, v{vONE} offset:{k*16}"))

    def ckread(off, name):
        return ("R", lambda: e.lds(f"ds_read_b32 v{vCK}, v{vV2} offset:{FLAGS - 0x8000 + off}", name))

    def check1(name):
        def f():
            e.need(name)
            I(f"v_readfirstlane_b32 s{sT0}, v{vCK}")
        return f

    def check(off, val, name, st=False):
        def f():
            lab = f"L_CK{tag}{name}"
            I(f"s_cmp_eq_u32 s{sT0}, {val}")
            I(f"s_cbranch_scc0 {lab}_spin")
            e.label(lab)
            if st and opt["cst"] < 0:
                e.stamp()
            cold.append(f"{lab}_spin:")
            cold.append(f"    ds_read_b32 v{vCK}, v{vV2} offset:{FLAGS - 0x8000 + off}")
            cold.append("    s_waitcnt lgkmcnt(0)")
            cold.append(f"    v_readfirstlane_b32 s{sT0}, v{vCK}")
            cold.append(f"    s_cmp_eq_u32 s{sT0}, {val}")
            cold.append(f"    s_cbranch_scc0 {lab}_spin")
            cold.append(f"    s_branch {lab}")
        return f

    cold = []
    bar_gap = {}
    rpos = {}
    for gi in range(4, len(groups)):
        g = gend[gi - 4]
        if opt["rsh"] and len(groups[gi - 3]["mf"]) > 1 and g - 0 >= rpos.get(gi - 1, -1):
            g += 1
        g = max(g, rpos.get(gi - 1, -1) + 1)
        rpos[gi] = g
        put(g, vread(gi))
    for u in range(1, 12):
        gi = first_of_unit[u]
        gp = gend[gi - 4]
        bar_gap[u] = gp - 1
        put(gp - 2, ("WV", check1(f"rdy{u}")))
        put(gp - 1, ("SS", check(448 + 4 * u, 4, f"rdy{u}", True)))
        gq = gp - (7 if opt["rsh"] else 8)
        assert place(gq, [ckread(448 + 4 * u, f"rdy{u}")]) < gp - 4
        if u - 1 <= 8:
            place(gstart[gi - 1], [flag(16 + u - 1)])

    g = 0
    gtr1 = 0
    k = 0
    for step in ((3,) if opt["w2pre"] else (2, 3)):
        for i in range(3):
            if step == 3:
                gtr1 = place(max(gtr1, opt["tr1at"] + (14 if w1late else 0) + 8 * i), tr_ops(1, i), per=1) + 1
                g = max(g, gtr1 + opt['trd'])
            ops = dma_ops(step, i)
            g = place(max(g, int(k * opt["dsp"])), ops[:2])
            for d in range(3):
                g = place(max(g + 1, int(k * opt["dsp"]) + 1), [ops[2 + d]])
                k += 1
    place(g + 1, [flag(31)])
    NR = opt["nraw"]
    for step in range(2, NR):
        gt = step_start[step - 1] + SL - 24
        for i in range(3):
            gt = max(gt, max(last_use[(step - 2, i, s)] for s in range(3)))
            gt = place(gt, tr_ops(step, i), per=1, deadline=first_tap[(step, i)] - 4) + 1
            if step + 2 < NR:
                ops = dma_ops(step + 2, i)
                t0_ = step_start[step] + int(i * SL / 3)
                g = place(max(g, gt + opt["trd"], t0_), ops[:2])
                for d in range(3):
                    g = place(max(g + 1, t0_ + int(d * SL / 9) + 1), [ops[2 + d]])

    gchk = step_start[NR - 1] - opt["ulead0"] - 3

    place(gchk - 10, [ckread(240, "uflag")])
    put(gchk - 1, ("WV", check1("uflag")))
    put(gchk, ("SS", check(240, 1, "uflag")))
    g = gchk + 1
    go_gap = None
    early_go = []
    for step in range(NR, 24):
        base = step_start[step - 1] - opt["ulead"]
        stp = opt["ustep"] * SL / 57
        if step == NR:
            base, stp = gchk + 2, opt["ustep0"]
        if step == 23:
            base, stp = last_use[(21, 0, 0)], 2
        k = 0
        for i in range(3):
            for s in range(3):
                tgt = max(base + int(k * stp), last_use[(step - 2, i, s)], g)
                if k == 0:
                    g = place(max(g, tgt - 2), [u_off(step)])
                    tgt = max(tgt, g + 1)
                g = place(tgt, [u_op(step, i, s)]) + 1
                k += 1
        if step == opt["go"]:
            go_gap = g
        if opt["ego"] and step in (21, 22):
            early_go.append((g, 25 + step - 21))

    def bfly_ops(k0, k1, first):
        ops = []
        if first:
            o0, o1, md = "v_sub_f32_e64", "v_add_f32_e64", " div:2"
        else:
            o0, o1, md = "v_add_f32", "v_sub_f32", ""
        for k in range(4):
            ops.append(("V", lambda k=k: I(f"{o0} v{spare[0]+k}, v{acc[k0]+k}, v{acc[k1]+k}{md}")))
        for k in range(4):
            def f(k=k):
                I(f"{o1} v{acc[k1]+k}, v{acc[k0]+k}, v{acc[k1]+k}{md}")
                if k == 3:
                    acc[k0], spare[0] = spare[0], acc[k0]
            ops.append(("V", f))
        return ops

    order = [0, 1, "X", 2, 3, 4, 5] if extra else [0, 1, 2, 3, 4, 5]
    fb = [u for u in range(12) if UNITS[u][0] == "B"]
    y0last = 2 * max(u for u in range(12) if UNITS[u][1] == 0) + 1
    for last, first in ((2 * fb[0] - 1, True), (2 * fb[-1] + 1, False)):
        blocks = []
        for m in order:
            keys = [((m, 0, s), (m, 1, s)) for s in range(3)] if m != "X" else [(("X", 0), ("X", 1))]
            for (k0, k1) in keys:
                rdy = max(n for (st_, k_), n in last_acc.items() if st_ <= last and k_ in (k0, k1))
                blocks.append((rdy + 8, first_acc[(last + 1, k0)] - 3, k0, k1))
        dl = [b[1] for b in blocks]
        for k in range(len(dl) - 2, -1, -1):
            dl[k] = min(dl[k], dl[k + 1] - opt.get("bsp", 4))
        g = 0
        for (rdy, _, k0, k1), d in zip(blocks, dl):
            g = place(max(g, rdy), bfly_ops(k0, k1, first), deadline=d, per=3)
            assert g <= _, (last, k0, g, _)

    def oaddr():
        ops = []
        A = lambda s: ops.append((s[0].upper(), lambda: I(s)))
        t, q = vO[1], vO[2]
        A(f"v_lshrrev_b32 v{q}, 8, v{vV}")
        A(f"v_bfe_u32 v{t}, v{vV}, 4, 4")
        A(f"v_xor_b32 v{t}, v{t}, v{q}")
        A(f"v_lshlrev_b32 v{q}, 3, v{q}")
        A(f"s_lshl_b32 s{sT1}, s{sWAVE}, 5")
        A(f"s_add_u32 s{sT1}, s{sT1}, {XST}")
        A(f"v_mul_u32_u24 v{vOX}, 144, v{t}")
        A(f"v_add3_u32 v{vOX}, v{vOX}, v{q}, s{sT1}")
        A(f"v_mul_u32_u24 v{t}, 400, v{t}")
        A(f"v_add_u32 v{q}, v{t}, v{q}")
        A(f"s_mul_i32 s{sT1}, s{sWAVE}, 96")
        A(f"s_add_u32 s{sT1}, s{sT1}, {OUT}")
        for s in range(3):
            A(f"s_lshl_b32 s{sT2}, s{sF[s]}, 5")
            A(f"s_add_u32 s{sT2}, s{sT2}, s{sT1}")
            A(f"v_add_u32 v{vO[s]}, s{sT2}, v{q}")
        return ops
    place(step_start[10], oaddr())

    def epi_ops(key, addr, off):
        return [("V", lambda: I(f"v_cvt_pk_bf16_f32 v{acc[key]}, v{acc[key]}, v{acc[key]+1}")),
                ("V", lambda: I(f"v_cvt_pk_bf16_f32 v{acc[key]+1}, v{acc[key]+2}, v{acc[key]+3}")),
                ("D", lambda: e.lds(f"ds_write_b64 v{addr}, {vr(acc[key], 2)} offset:{off}"))]

    place(go_gap, [flag(14)])
    for g_, k_ in early_go:
        place(g_, [flag(k_)])
    def after(n):
        g, c = n, 0
        while g < N:
            c += sum(1 for ch in cl[g] if ch != "W")
            if c >= 8:
                return g
            g += 1
            c += 1
            if c >= 8:
                return g
        return None

    def epi2(key, addr, off):
        return [("V", lambda: I(f"v_cvt_pk_bf16_f32 v{acc[key]}, v{acc[key]}, v{acc[key]+1}")),
                ("V", lambda: I(f"v_cvt_pk_bf16_f32 v{acc[key]+1}, v{acc[key]+2}, v{acc[key]+3}")),
                ("d", lambda: e.lds(f"ds_write_b32 v{addr}, v{acc[key]} offset:{off}")),
                ("d", lambda: e.lds(f"ds_write_b32 v{addr}, v{acc[key]+1} offset:{off+4}"))]

    g = 0
    for st, last in ((0, y0last), (1, 23)):
        if st == 0:
            g = last_acc[(y0last, (0, 0, 0))] + opt["y0at"]
        if st == 1:
            g = place(g, [("V", lambda s=s: I(f"v_add_u32 v{vO[s]}, {6*OROW}, v{vO[s]}")) for s in range(3)])
        done = {m: (last_acc[(last, ("X", st))] if m == "X" else last_acc[(last, (m, st, 0))]) for m in order}
        ep = epi2 if (st == 0 and opt["dd"] >= 1) else epi_ops
        for m in sorted(order, key=lambda m: done[m]):
            if st == 1 and opt["dd"] >= 2:
                ep = epi2 if m in ("X", 0, 1, 2) else epi_ops
            if m == "X":
                g = place(max(g, after(done[m])), ep(("X", st), vOX, 2304 * st) + [flag(12 + st)])
                continue
            o3 = [ep((m, st, s), vO[s], m * OROW) for s in range(3)]
            g0 = after(done[m] + 2)
            if g0 is None or g >= N:
                have = (N - 1 - (done[m] + 2)) + sum(sum(1 for ch in cl[k] if ch != "W") for k in range(done[m] + 2, N + 1))
                if have < 8:
                    put(N, ("S", lambda n_=8 - have: I(f"s_nop {n_ - 1}")))
                for op in [o for t in o3 for o in t if o[0] == "V"] + [o for t in o3 for o in t if o[0] != "V"] + [flag(6 * st + m)]:
                    put(N, op)
                g = N
                continue
            g = max(g, after(done[m]))
            g = place(g, o3[0])
            g = place(max(g, after(done[m] + 1) or N), o3[1])
            g = place(max(g, g0), o3[2] + [flag(6 * st + m)])

    if opt["cst"] >= 0:
        for k in range(15):
            g = step_start[opt["cst"]] + k * opt["cev"]
            if g < N:
                fill[g].append(e.stamp)
    ckread(448, "rdy0")[1]()
    check1("rdy0")()
    check(448, 4, "rdy0")()
    e.stamp()
    for gi in range(4):
        vread(gi)[1]()
    started = set()
    for n, (gi, key, i, s) in enumerate(stream):
        step = groups[gi]["step"]
        kind, st, c = step_info(step)
        e.need([f"v{gi}", f"w{step}_{i}"])
        d = acc[key]
        cc = d
        if step in (0, 2) and key not in started:
            started.add(key)
            cc = acc[(5, st, s)]
        I(f"v_mfma_f32_16x16x32_bf16 {vr(d)}, {vr(W(step, i, s))}, {vr(VR + 4*(gi % 4))}, {vr(cc)}")
        for f in fill[n]:
            f()
    e.stamp()
    for f in fill[N]:
        f()
    e.stamp()
    e.dump_stamps("c")
    I("s_endpgm")
    return e.L + cold


xA, xB, xC, eA, eB, eC = 1, 2, 3, 4, 5, 6
wE = [7, 8, 9, 10]
wX = [11, 12]
TMP = 13
OB = 26
RAW = 58
RAWX = 178


def PD(p, j):
    return RAW + 40 * p + 4 * j


def PX(p, j):
    return RAWX + 24 * p + 4 * j


sEM = 100


def masked(e, on):
    if on:
        e.I(f"s_mov_b64 exec, s[{sEM}:{sEM+1}]")


def unmask(e, on):
    if on:
        e.I("s_mov_b64 exec, -1")


def xload(e, p, j):
    a, off = (xA, 0) if j == 0 else ((xC, 0) if j == 9 else (xB, (j - 1) * 384))
    m = e.opt["dedup"] and j >= 8
    masked(e, m)
    e.vmem(f"buffer_load_dwordx4 {vr(PD(p, j))}, v{a}, s[{sX}:{sX+3}], 0 offen offset:{off + 128*p} {e.opt['xf']}", f"x{p}_{j&1}")
    unmask(e, m)


def eload(e, p, j):
    a, off = (eA, 0) if j == 0 else ((eC, 0) if j == 5 else (eB, (j - 1) * 384))
    m = e.opt["dedup"] and j >= 4
    masked(e, m)
    e.vmem(f"buffer_load_dwordx4 {vr(PX(p, j))}, v{a}, s[{sX}:{sX+3}], 0 offen offset:{off + 128*p} {e.opt['xf']}", f"e{p}_{j&1}")
    unmask(e, m)


def worker_pre(e, opt):
    I = e.I
    t1, t2, t3 = 14, 15, 16
    I(f"s_and_b32 s{sT0}, s2, 7")
    I(f"s_cmp_lt_u32 s{sIDX}, 6")
    I(f"s_cselect_b32 s{sT2}, s{sIDX}, s{sT0}")
    I(f"s_cselect_b32 s{sT0}, s{sT0}, 8")
    I(f"s_mul_i32 s{sT1}, s{sT0}, 11")
    I(f"s_lshr_b32 s{sT1}, s{sT1}, 5")
    I(f"s_mul_i32 s{sT3}, s{sT1}, 3")
    I(f"s_sub_u32 s{sT0}, s{sT0}, s{sT3}")
    I(f"s_lshl_b32 s{sT0}, s{sT0}, 2")
    I(f"s_add_u32 s{sT0}, s{sT0}, s{sPW}")
    I(f"s_mul_i32 s{sOFF}, s{sT1}, {3*73728}")
    I(f"s_mul_i32 s{sOFF2}, s{sT2}, 12288")
    I(f"s_add_u32 s{sOFF}, s{sOFF}, s{sOFF2}")
    I(f"s_lshl_b32 s{sOFF2}, s{sT0}, 5")
    I(f"s_add_u32 s{sOFF}, s{sOFF}, s{sOFF2}")
    I(f"v_bfe_u32 v{t1}, v0, 3, 2")
    I(f"v_lshlrev_b32 v{t1}, 3, v{t1}")
    I(f"v_lshrrev_b32 v{t2}, 5, v0")
    I(f"v_lshl_add_u32 v{t1}, v{t2}, 2, v{t1}")
    I(f"v_bfe_u32 v{t2}, v0, 1, 2")
    I(f"v_add_u32 v{t1}, v{t1}, v{t2}")
    I(f"v_mul_u32_u24 v{t1}, 384, v{t1}")
    I(f"v_and_b32 v{t2}, 1, v0")
    I(f"v_lshl_add_u32 v{eA}, v{t2}, 4, v{t1}")
    I(f"s_mul_i32 s{sRING}, s{sPW}, 3072")
    I(f"s_add_u32 s{sRING}, s{sRING}, {PRE}")
    I(f"s_mov_b32 m0, s{sRING}")
    I("s_waitcnt lgkmcnt(0)")
    srd(e, sW, sKA + 2, WBYTES)
    for j in range(3):
        e.vmem(f"buffer_load_dwordx4 v{eA}, s[{sW}:{sW+3}], s{sOFF} offen lds", "pre")
        if j < 2:
            I(f"s_add_u32 m0, s{sRING}, {1024*(j+1)}")
            I(f"s_add_u32 s{sOFF}, s{sOFF}, 73728")
    I(f"s_cmp_lt_u32 s{sT2}, 6")
    I(f"s_cselect_b32 s{sCNT}, 0, s{sINV}")
    I(f"s_mul_i32 s{sOFF}, s{sT2}, 36864")
    I(f"s_mul_i32 s{sT0}, s{sT0}, 3")
    I(f"s_add_u32 s{sT0}, s{sT0}, s{sT1}")
    I(f"s_lshl_b32 s{sT0}, s{sT0}, 10")
    I(f"s_add_u32 s{sOFF}, s{sOFF}, s{sT0}")
    I(f"s_or_b32 s{sOFF}, s{sOFF}, s{sCNT}")
    I(f"v_lshl_add_u32 v{eB}, v0, 4, s{sOFF}")


def producer_main(e, opt):
    I = e.I
    t0, t1, t2, t3 = 13, 14, 15, 16
    decode_main(e)
    I(f"v_and_b32 v{t0}, 3, v0")
    I(f"v_bfe_u32 v{t1}, v0, 2, 2")
    I(f"v_bfe_u32 v{t2}, v0, 4, 1")
    I(f"v_lshrrev_b32 v{wE[0]}, 5, v0")
    I(f"s_lshl_b32 s{sT0}, s{sPW}, 1")
    I(f"s_add_u32 s{sT0}, s{sT0}, s{sROW0}")
    I(f"s_mul_i32 s{sT0}, s{sT0}, 86016")
    I(f"s_mul_i32 s{sT1}, s{sSTRIP}, 12288")
    I(f"s_add_u32 s{sT0}, s{sT0}, s{sT1}")
    I(f"s_sub_u32 s{sT0}, s{sT0}, 86016")
    I(f"v_mul_u32_u24 v{t3}, 86016, v{t2}")
    I(f"v_lshl_add_u32 v{t3}, v{t0}, 4, v{t3}")
    I(f"v_lshl_add_u32 v{t3}, v{wE[0]}, 6, v{t3}")
    I(f"v_mul_u32_u24 v{xB}, 3072, v{t1}")
    I(f"v_add3_u32 v{xB}, v{xB}, v{t3}, s{sT0}")
    I(f"v_cmp_gt_i32 vcc, 0, v{xB}")
    I(f"v_lshl_add_u32 v{t3}, s{sSTRIP}, 2, v{t1}")
    I(f"v_mov_b32 v{xC}, s{sINV}")
    I(f"v_cndmask_b32 v{xB}, v{xB}, v{xC}, vcc")
    I(f"v_cmp_ne_u32 vcc, 0, v{t3}")
    I(f"v_subrev_u32 v{xA}, 384, v{xB}")
    I(f"v_add_u32 v{wE[1]}, 3072, v{xB}")
    I(f"v_cndmask_b32 v{xA}, v{xC}, v{xA}, vcc")
    I(f"v_cmp_ne_u32 vcc, 27, v{t3}")
    if opt["dedup"]:
        I(f"s_mov_b32 s{sEM}, 0xf000f000")
        I(f"s_mov_b32 s{sEM+1}, 0xf000f000")
    I("s_waitcnt lgkmcnt(0)")
    srd(e, sX, sKA, XBYTES)
    I(f"v_cndmask_b32 v{xC}, v{xC}, v{wE[1]}, vcc")
    for j in (0, 2, 4, 6, 8):
        xload(e, 0, j)


def producer(parent, opt, kind):
    e = Em(opt, parent)
    I = e.I
    t0, t1, t2, t3, t4 = 13, 14, 15, 16, 17
    X = kind == "x"
    G = RAWX
    if kind == "w":
        if opt["wo"] < 0:
            for j in (1, 3, 5, 7, 9):
                xload(e, 0, j)
        if opt["wp1"]:
            I("s_barrier")
        srd(e, sU, sWS, UBYTES)
        I(f"v_lshrrev_b32 v{eC}, 2, v0")
        I(f"v_lshlrev_b32 v{eC}, 5, v{eC}")
        I(f"v_lshl_add_u32 v{eC}, v{t0}, 3, v{eC}")
        I(f"v_add_u32 v{eC}, s{sRING}, v{eC}")
        if opt["pst"] == 2:
            e.stamp()
        e.need("pre")
        if opt["pst"] == 2:
            e.stamp()
        for j in range(3):
            for h in range(2):
                e.lds(f"ds_read_b64_tr_b16 {vr(G + 4*j + 2*h, 2)}, v{eC} offset:{1024*j + 512*h}", f"pt{j}")
        U = G + 12
        for j in (0, 2, 1):
            e.need(f"pt{j}")
            for k in range(4):
                I(f"v_lshlrev_b32 v{U + 8*j + 2*k}, 16, v{G + 4*j + k}")
                I(f"v_and_b32 v{U + 8*j + 2*k + 1}, s{sMASK}, v{G + 4*j + k}")
            if j == 2:
                for kk in range(8):
                    I(f"v_add_f32 v{U+kk}, v{U+kk}, v{U+16+kk}")
        for kk in range(8):
            I(f"v_sub_f32_e64 v{U+16+kk}, v{U+kk}, v{U+8+kk} div:2")
            I(f"v_add_f32_e64 v{U+kk}, v{U+kk}, v{U+8+kk} div:2")
        for k in range(4):
            I(f"v_cvt_pk_bf16_f32 v{G+36+k}, v{U+2*k}, v{U+2*k+1}")
            I(f"v_cvt_pk_bf16_f32 v{G+40+k}, v{U+16+2*k}, v{U+16+2*k+1}")
        for pos, r in ((0, G + 36), (1, G + 40), (2, G), (3, G + 8)):
            I(f"s_mov_b32 s{sOFF}, {pos*6*36864}")
            e.vmem(f"buffer_store_dwordx4 {vr(r)}, v{eB}, s[{sU}:{sU+3}], s{sOFF} offen sc1", "ust")
        if opt["pst"]:
            e.stamp()
    if kind == "n" and opt["xo"] and opt["pro"] != "alpha":
        for j in (1, 3, 5, 7, 9):
            xload(e, 0, j)
    I(f"s_lshl_b32 s{sT0}, s{sPW}, 1")
    I(f"v_add_u32 v{t2}, s{sT0}, v{t2}")
    I(f"v_mul_u32_u24 v{wE[0]}, {VHALF}, v{wE[0]}")
    I(f"v_lshl_add_u32 v{wE[0]}, v{t2}, 10, v{wE[0]}")
    I(f"v_lshlrev_b32 v{t3}, 2, v{t1}")
    I(f"v_lshl_add_u32 v{t3}, v{t0}, 4, v{t3}")
    I(f"v_add_u32 v{t3}, v{t3}, v{t0}")
    I(f"v_lshl_add_u32 v{wE[0]}, v{t3}, 4, v{wE[0]}")
    for k in range(1, 4):
        I(f"v_xor_b32 v{wE[k]}, {16*k}, v{wE[0]}")
    decode_extra(e)
    srd(e, sO, sKA + 6, XBYTES)
    if X:
        if opt["dedup"]:
            I(f"v_bfe_u32 v{t1}, v0, 2, 3")
        else:
            I(f"v_bfe_u32 v{t1}, v0, 2, 1")
            I(f"v_lshlrev_b32 v{t1}, 1, v{t1}")
            I(f"v_bfe_u32 v{t2}, v0, 3, 1")
            I(f"v_bfe_u32 v{t3}, v0, 4, 1")
            I(f"v_lshlrev_b32 v{t3}, 2, v{t3}")
            I(f"v_or3_b32 v{t1}, v{t1}, v{t2}, v{t3}")
        I(f"s_add_u32 s{sT0}, s{sEROW}, s{sPW}")
        I(f"s_sub_u32 s{sT0}, s{sT0}, 1")
        I(f"s_mul_i32 s{sT1}, s{sT0}, 86016")
        I(f"s_cmp_lt_u32 s{sT0}, 224")
        I(f"s_cselect_b32 s{sT1}, s{sT1}, s{sINV}")
        I(f"s_lshl_b32 s{sT0}, s{sES}, 5")
        I(f"v_lshl_add_u32 v{t4}, v{t1}, 2, s{sT0}")
        I(f"v_mul_u32_u24 v{t2}, 384, v{t4}")
        I(f"v_lshl_add_u32 v{t2}, v{t0}, 4, v{t2}")
        I(f"v_lshrrev_b32 v{t3}, 5, v0")
        I(f"v_lshl_add_u32 v{t2}, v{t3}, 6, v{t2}")
        I(f"v_add_u32 v{eB}, s{sT1}, v{t2}")
        I(f"v_cmp_ne_u32 vcc, 0, v{t4}")
        I(f"v_subrev_u32 v{t2}, 384, v{eB}")
        I(f"v_mov_b32 v{eA}, s{sINV}")
        I(f"v_cndmask_b32 v{eA}, v{eA}, v{t2}, vcc")
        I(f"v_cmp_ne_u32 vcc, 220, v{t4}")
        I(f"v_add_u32 v{t2}, 1536, v{eB}")
        I(f"v_mov_b32 v{eC}, s{sINV}")
        I(f"v_cndmask_b32 v{eC}, v{eC}, v{t2}, vcc")
        for j in (0, 2, 4):
            eload(e, 0, j)
        if opt["pro"] != "alpha":
            if opt["xo"]:
                for j in (1, 3, 5, 7, 9):
                    xload(e, 0, j)
            for j in (1, 3, 5):
                eload(e, 0, j)
        I(f"v_lshlrev_b32 v{t1}, 1, v{t1}")
        I(f"v_xor_b32 v{t1}, v{t1}, v{t0}")
        I(f"v_lshl_add_u32 v{t1}, v{t0}, 4, v{t1}")
        I(f"v_lshlrev_b32 v{t1}, 4, v{t1}")
        I(f"v_mul_u32_u24 v{t3}, {VHALF}, v{t3}")
        I(f"s_add_u32 s{sT0}, s{sPW}, 8")
        I(f"s_lshl_b32 s{sT0}, s{sT0}, 10")
        I(f"v_add3_u32 v{wX[0]}, v{t1}, v{t3}, s{sT0}")
        I(f"v_xor_b32 v{wX[1]}, 16, v{wX[0]}")
    else:
        I(f"s_cmp_eq_u32 s{sPW}, 3")
        I(f"s_cselect_b32 s{sPEND}, 1, 0")
        if opt["rpf"] == 1:
            I(f"s_mul_i32 s{sT0}, s{sIDX}, {18*128}")
            I(f"v_min_u32 v253, 17, v0")
            I(f"v_lshl_add_u32 v253, v253, 7, s{sT0}")
        elif opt["rpf"] == 2:
            I(f"s_sub_u32 s{sT0}, s{sIDX}, 12")
            I(f"s_cmp_lt_u32 s{sIDX}, 7")
            I(f"s_cselect_b32 s{sT0}, s{sIDX}, s{sT0}")
            I(f"s_mul_i32 s{sT1}, s{sT0}, 13")
            I(f"s_lshr_b32 s{sT1}, s{sT1}, 6")
            I(f"s_mul_i32 s{sT2}, s{sT1}, 5")
            I(f"s_sub_u32 s{sL}, s{sT0}, s{sT2}")
            I(f"s_cmp_eq_u32 s{sHASX}, 0")
            I(f"s_cselect_b32 s{sL}, s{sL}, 9")
            I(f"s_cmp_eq_u32 s{sPW}, 3")
            I(f"s_cselect_b32 s{sL}, s{sL}, 9")
            I(f"s_mul_i32 s{sT1}, s{sT1}, {144*128}")
            I(f"v_min_u32 v253, 47, v0")
            I(f"v_lshl_add_u32 v253, v253, 7, s{sT1}")
        I(f"v_mov_b32 v250, {FLAGS + 15*16}")
        if kind == "n":
            srd(e, sU, sWS, UBYTES)
    I(f"v_mov_b32 v251, 1")
    I(f"v_mov_b32 v252, {FLAGS}")

    def pollflag(idx, lab, slp, r=16):
        e.label(lab)
        I(f"ds_read_b128 {vr(r)}, v252 offset:{idx*16}")
        I("s_waitcnt lgkmcnt(0)")
        e.lg = []
        I(f"v_and_b32 v{r}, v{r}, v{r+1}")
        I(f"v_and_b32 v{r+2}, v{r+2}, v{r+3}")
        I(f"v_and_b32 v{r}, v{r}, v{r+2}")
        I("s_nop 0")
        I(f"v_readfirstlane_b32 s{sT0}, v{r}")
        I(f"s_cmp_eq_u32 s{sT0}, 1")
        I(f"s_cbranch_scc1 {lab}_ok")
        if slp:
            I(f"s_sleep {slp}")
        I(f"s_branch {lab}")
        e.label(lab + "_ok")

    upf_from = [(3 if opt["order"] == 2 else opt["pollu"] + 1) + opt["rlead"]]
    upf_from[0] = max(upf_from[0], opt["nraw"] // 2)

    def upf(t, sfx=''):
        if X or not opt["rpf"]:
            return
        k, st, p = UNITS[t]
        base = ((st if k == "B" else 2 + st) * 6 + 2 * p) * 36864
        lab = f"L_UP{kind}{t}{sfx}"
        if opt["rpf"] == 1:
            I(f"s_cmp_eq_u32 s{sPW}, 3")
            I(f"s_cbranch_scc0 {lab}")
            I(f"s_mov_b32 s{sT1}, {base}")
            I(f"buffer_load_dword v254, v253, s[{sU}:{sU+3}], s{sT1} offen sc1")
        else:
            I(f"s_cmp_eq_u32 s{sL}, {t % 5}")
            I(f"s_cbranch_scc0 {lab}")
            for q in range(3):
                I(f"s_mov_b32 s{sT1}, {base + q*48*128}")
                I(f"buffer_load_dword v254, v253, s[{sU}:{sU+3}], s{sT1} offen sc1")
        e.label(lab)

    def waitfree(u, r=16):
        if u >= 3:
            pollflag(16 + u - 3, f"L_FR{kind}{u}", opt["psl"], r)
            if upf_from[0] <= u + opt["rlead"] <= 11:
                upf(u + opt["rlead"])

    def ready(u):
        I("s_mov_b64 exec, 1")
        e.lds(f"ds_add_u32 v252, v251 offset:{448 + 4*u}")
        I("s_mov_b64 exec, -1")
        if not opt["pst"] or e.nst < 15:
            e.stamp()

    def xl(p, par):
        sl = opt["d_sl"] if p == 2 else 0
        for j in range(par, 10, 2):
            xload(e, p, j)
            if sl:
                I(f"s_sleep {sl if X else (sl * 8) // 5}")
        if X:
            for j in range(par, 6, 2):
                eload(e, p, j)
                if sl:
                    I(f"s_sleep {sl}")

    def parse(t):
        d = {}
        for item in t.split(","):
            when, what = item.split(":")
            d.setdefault(when, []).append((int(what[0]), 0 if what[1] == "e" else 1))
        return d
    xsX = parse(opt.get("xsx") or opt["xs"])
    xsN = parse(opt["xs"])
    xs = xsX if X else xsN
    seen = set()

    def xsched(when):
        if kind != "n":
            for p, par in xs.get(when, []):
                xl(p, par)
            return
        a, b = xsX.get(when, []), xsN.get(when, [])
        for it in a + [t for t in b if t not in a]:
            both = it in a and it in b
            if not both:
                lab = f"L_XS{when}_{it[0]}{it[1]}"
                I(f"s_cmp_eq_u32 s{sHASX}, {1 if it in a else 0}")
                I(f"s_cbranch_scc0 {lab}")
            keep = list(e.vm)
            xl(*it)
            if not both:
                e.label(lab)
                if it not in seen:
                    e.vm = keep
                seen.add(it)

    pend = []
    novalu = [False]
    pace = [0, 0]

    def xpace(per, nvalu):
        for p, par in xs.get(f"{per}p", []):
            pend.extend([lambda j=j, p=p: xload(e, p, j) for j in range(par, 10, 2)])
            if X:
                pend.extend([lambda j=j, p=p: eload(e, p, j) for j in range(par, 6, 2)])
        if pend:
            pace[0] = max(1, nvalu // len(pend))
            pace[1] = 0

    def V(s):
        if not (opt["d_nov"] and novalu[0]):
            I(s)
        pace[1] += 1
        if pend and pace[1] % pace[0] == 0:
            pend.pop(0)()

    def later(f):
        if not opt["wsp"]:
            return f()
        if not pend:
            pace[0], pace[1] = opt["wsp"], 0
        pend.append(f)

    def flush():
        while pend:
            pend.pop(0)()

    def unp(dst, src):
        V(f"v_lshlrev_b32 v{dst}, 16, v{src}")
        V(f"v_and_b32 v{dst+1}, s{sMASK}, v{src}")

    def vwrite(addr, src, u):
        if opt["d_now"] and u >= 2:
            return
        e.lds(f"ds_write_b128 v{addr}, {vr(src)} offset:{VS[u % 3]}")

    T16 = list(range(13, 26)) + [54, 55, 56]

    def chainA(D, n, par, neg, waddr, u, ob, wf=False):
        op = "v_subrev_f32" if neg else "v_sub_f32"
        A, B = T16[:8], T16[8:]

        def unp8(R, src):
            for k in range(4):
                V(f"v_lshlrev_b32 v{R[2*k]}, 16, v{src+k}")
                V(f"v_and_b32 v{R[2*k+1]}, s{sMASK}, v{src+k}")
        unp8(A, D(par))
        for j in range(n):
            unp8(B, D(par + 2 * j + 2))
            for k in range(8):
                V(f"{op} v{A[k]}, v{A[k]}, v{B[k]}")
            for k in range(4):
                V(f"v_cvt_pk_bf16_f32 v{ob + 4*(j & 1) + k}, v{A[2*k]}, v{A[2*k+1]}")
            if wf and j == 0:
                waitfree(u, 44)
            vwrite(waddr[j], ob + 4 * (j & 1), u)
            if kind == "w" and u == 1 and opt["wta"] == 10 + j:
                signal()
            if kind == "w" and u == 1 and opt["two"] == 10 + j:
                publish()
            A, B = B, A

    fixed = set()

    def needx(p, pars, ext):
        e.need([f"{'e' if ext else 'x'}{p}_{par}" for par in pars])
        for par in pars:
            if opt["dedup"] and (p, par, ext) not in fixed:
                fixed.add((p, par, ext))
                dst, src = (PX(p, 4 + par), PX(p, par)) if ext else (PD(p, 8 + par), PD(p, par))
                for k in range(4):
                    V(f"v_mov_b32_dpp v{dst+k}, v{src+k} row_shl:4 row_mask:0xf bank_mask:0x7")

    def tA(u, main=True, ext=True):
        kind_, st, p = UNITS[u]
        neg = (st == 1 and any(UNITS[t][0] == "B" for t in range(u)))
        if main:
            needx(p, [st], False)
            if opt["pst"] and u <= 1:
                e.stamp()
            chainA(lambda j: PD(p, j), 4, st, neg, wE, u, OB, True)
        if X and ext:
            needx(p, [st], True)
            chainA(lambda j: PX(p, j), 2, st, neg, wX, u, OB + 8)

    def pairB(d1, d2, o1, o2):
        for k0 in (0, 2):
            for k in (k0, k0 + 1):
                a = TMP + 6 * (k & 1)
                unp(a, d1 + k); unp(a + 2, d2 + k)
            for k in (k0, k0 + 1):
                a = TMP + 6 * (k & 1)
                b, s = a + 2, a + 4
                V(f"v_add_f32 v{s}, v{a}, v{b}"); V(f"v_add_f32 v{s+1}, v{a+1}, v{b+1}")
                V(f"v_sub_f32 v{a}, v{b}, v{a}"); V(f"v_sub_f32 v{a+1}, v{b+1}, v{a+1}")
            for k in (k0, k0 + 1):
                a = TMP + 6 * (k & 1)
                V(f"v_cvt_pk_bf16_f32 v{o1+k}, v{a+4}, v{a+5}")
                V(f"v_cvt_pk_bf16_f32 v{o2+k}, v{a}, v{a+1}")

    npoll = [0]

    def trypoll(final=False):
        if X:
            return
        n = npoll[0]
        npoll[0] += 1
        lab = f"L_PL{kind}{n}"
        I(f"s_cmp_eq_u32 s{sPEND}, 0")
        I(f"s_cbranch_scc1 {lab}_skip")
        if n == 0:
            if opt["pdel"]:
                I(f"s_sleep {opt['pdel']}")
            I(f"s_load_dword s{sPOLL}, s[{sDBG}:{sDBG+1}], {128 if opt['two'] else 0}")
            e.label(lab + "_skip")
            return
        I("s_waitcnt lgkmcnt(0)")
        tgt = 0 if opt["noatom"] else NWORK
        if final:
            I(f"s_mov_b32 s{sCNT}, {n}")
            I(f"v_mov_b32 v255, 0")
            e.label(lab)
            I(f"s_cmp_ge_u32 s{sPOLL}, {tgt}")
            I(f"s_cbranch_scc1 {lab}_ok")
            I(f"s_sleep {opt['pslp']}")
            I(f"s_cmp_ge_u32 s{sCNT}, {2 if opt['two'] else 4}")
            I(f"s_cbranch_scc1 {lab}_v")
            I(f"s_lshl_b32 s{sT0}, s{sCNT}, 6")
            if opt["two"]:
                I(f"s_add_u32 s{sT0}, s{sT0}, 128")
            I(f"s_load_dword s{sPOLL}, s[{sDBG}:{sDBG+1}], s{sT0}")
            I(f"s_add_u32 s{sCNT}, s{sCNT}, 1")
            I("s_waitcnt lgkmcnt(0)")
            I(f"s_branch {lab}")
            e.label(lab + "_v")
            I(f"global_load_dword v254, v255, s[{sDBG}:{sDBG+1}] offset:{128 if opt['two'] else 0} sc1")
            I(f"s_add_u32 s{sCNT}, s{sCNT}, 1")
            I("s_waitcnt vmcnt(0)")
            I(f"v_readfirstlane_b32 s{sPOLL}, v254")
            I(f"s_cmp_lt_u32 s{sCNT}, 20000")
            I(f"s_cbranch_scc1 {lab}")
        else:
            I(f"s_cmp_ge_u32 s{sPOLL}, {tgt}")
            I(f"s_cbranch_scc1 {lab}_ok")
            I(f"s_load_dword s{sPOLL}, s[{sDBG}:{sDBG+1}], {64*n + (128 if opt['two'] else 0)}")
            I(f"s_branch {lab}_skip")
        e.label(lab + "_ok")
        if opt["pst"]:
            I(f"s_memrealtime s[{sST + 2*pslot[0]}:{sST + 2*pslot[0] + 1}]")
            I(f"s_mov_b32 s{sST + 2*pslot[0] + 2}, " + (f"s{sCNT}" if final else f"{n}"))
        I("ds_write_b32 v250, v251")
        I(f"s_mov_b32 s{sPEND}, 0")
        for t in range(opt["nraw"] // 2, upf_from[0]):
            upf(t, f"_{n}")
        e.label(lab + "_skip")

    pslot = [0]

    def wpoint():
        pollflag(31, f"L_WI{kind}", opt["psl"], 20)
        if opt["otlb"] == 2 or (opt["otlb"] == 1 and kind == "w"):
            I("s_mov_b64 exec, 1")
            e.vmem(f"buffer_load_dword v254, v{xB}, s[{sO}:{sO+3}], 0 offen")
            I("s_mov_b64 exec, -1")
        xsched("w")

    def tB1(u):
        p = UNITS[u][2]
        e.need([f"x{p}_0", f"x{p}_1"] + ([f"e{p}_0", f"e{p}_1"] if X else []))
        needx(p, [0], False)
        if X:
            needx(p, [0], True)
        for ee in range(4):
            pairB(PD(p, 1 + 2 * ee), PD(p, 2 + 2 * ee), OB + 4 * (ee & 1), OB + 8 + 4 * ee)
            if ee == 0:
                waitfree(u)
                xpace(u, 200 if X else 120)
            vwrite(wE[ee], OB + 4 * (ee & 1), u)
            if u == 2 and ee == opt["wat"]:
                wpoint()
            if u == 2 and ee >= opt["pat"]:
                if ee == opt["pat"] and opt["pst"] and not X:
                    pslot[0] = e.nst
                    e.nst += 2
                trypoll()
                if ee == 3:
                    trypoll(final=True)
        if X:
            e.need([f"e{p}_0", f"e{p}_1"])
            for ee in range(2):
                pairB(PX(p, 1 + 2 * ee), PX(p, 2 + 2 * ee), OB + 4 * ee, OB + 24 + 4 * ee)
                vwrite(wX[ee], OB + 4 * ee, u)
        flush()
        ready(u)

    def tB2(u):
        waitfree(u + 1)
        xsched(f"f{u}")
        for ee in range(4):
            vwrite(wE[ee], OB + 8 + 4 * ee, u + 1)
        if X:
            for ee in range(2):
                vwrite(wX[ee], OB + 24 + 4 * ee, u + 1)
        ready(u + 1)

    n1 = 1 if X else opt["n1"]

    def bar():
        e.drain_lg()
        if not opt["pst"] or e.nst < 15:
            e.stamp()
        I("s_barrier")

    def atom_mark():
        assert not e.vm
        e.vm.append("atom")

    def signal():
        e.need("ust")
        if opt["pst"]:
            e.stamp()
        I(f"v_mov_b32 v{eA}, {FLAGS + 15*16 + 4}")
        I("s_mov_b64 exec, 1")
        I(f"ds_add_rtn_u32 v{eC}, v{eA}, v251")
        I("s_waitcnt lgkmcnt(0)")
        e.lg = []
        I(f"v_readfirstlane_b32 s{sT0}, v{eC}")
        if opt["two"]:
            I(f"v_mov_b32 v{eC}, 0")
        I(f"s_cmp_eq_u32 s{sT0}, 3")
        I("s_cbranch_scc0 L_NOATOM")
        if opt["two"]:
            I(f"v_mov_b32 v{eA}, 0")
            I(f"v_mov_b32 v{eC}, 1")
            I(f"global_atomic_add v{eC}, v{eA}, v{eC}, s[{sDBG}:{sDBG+1}] sc0 sc1")
        else:
            I("s_mov_b64 exec, 15")
            I(f"v_lshlrev_b32 v{eA}, 6, v0")
            if not opt["noatom"]:
                I(f"global_atomic_add v{eA}, v251, s[{sDBG}:{sDBG+1}] sc1")
        e.label("L_NOATOM")
        I("s_mov_b64 exec, -1")
        atom_mark()

    def publish():
        if kind != "w" or not opt["two"]:
            return
        e.need("atom")
        I(f"v_readfirstlane_b32 s{sT0}, v{eC}")
        I(f"s_cmp_eq_u32 s{sT0}, {NWORK - 1}")
        I("s_cbranch_scc0 L_NOPUB")
        I("s_mov_b64 exec, 3")
        I(f"v_lshlrev_b32 v{eA}, 6, v0")
        I(f"v_mov_b32 v{eC}, {NWORK}")
        I(f"global_store_dword v{eA}, v{eC}, s[{sDBG}:{sDBG+1}] offset:128 sc1")
        I("s_mov_b64 exec, -1")
        e.label("L_NOPUB")

    if opt["otlb"] == 1 and kind != "w":
        I("s_mov_b64 exec, 1")
        e.vmem(f"buffer_load_dword v254, v{xB}, s[{sO}:{sO+3}], 0 offen")
        I("s_mov_b64 exec, -1")
    if kind == "w" and opt["wo"] == 0:
        xl(0, 1)
    e.drain_lg()
    e.stamp()
    if not (kind == "w" and opt["wp1"]):
        I("s_barrier")
    if opt["pro"] == "alpha":
        I("s_barrier")
        if kind != "w" and opt["aord"] == 0:
            xl(0, 1)
    if kind == "w" and opt["wta"] == 0:
        signal()
        if opt["two"] == 1:
            publish()
        if opt["wo"] > 0:
            xl(0, 1)
    tA(0)
    ready(0)
    if opt["two"] == 2:
        publish()
    if kind == "w" and opt["wta"] == 1:
        signal()
        if opt["two"] == 1:
            publish()
        if opt["wo"] > 0:
            xl(0, 1)
    if opt["pro"] == "alpha" and kind != "w" and opt["aord"] == 1:
        xl(0, 1)
    xsched("a0")
    tA(1)
    ready(1)
    if kind == "w" and opt["wta"] == 2:
        signal()
    xsched("a1")
    novalu[0] = True
    for u in range(2, 12):
        k, st, p = UNITS[u]
        if k == "A":
            if u == 2:
                wpoint()
            tA(u)
            ready(u)
            if u == opt["pollu"]:
                trypoll()
                trypoll(final=True)
            xsched(f"a{u}")
        elif st == 0:
            tB1(u)
            xsched(f"j{u}")
            tB2(u)
            xsched(f"k{u}")
    if True:
        if True:
            rA, rB, gA, gB, vXL, vXG = 1, 2, 3, 4, 5, 6
            I(f"s_mul_i32 s{sT0}, s{sROW0}, 86016")
            I(f"s_mul_i32 s{sT1}, s{sSTRIP}, 12288")
            I(f"s_add_u32 s{sT0}, s{sT0}, s{sT1}")
            I(f"s_mul_i32 s{sT1}, s{sPW}, 3072")
            I(f"s_add_u32 s{sT0}, s{sT0}, s{sT1}")
            I(f"s_mul_i32 s{sT1}, s{sPW}, 1600")
            I(f"s_add_u32 s{sT1}, s{sT1}, {OUT}")
            for j in range(3 if opt["st2"] else 0):
                I(f"v_add_u32 v{t0}, {64*j}, v0")
                I(f"v_mul_u32_u24 v{t1}, 1366, v{t0}")
                I(f"v_lshrrev_b32 v{t1}, 16, v{t1}")
                I(f"v_mul_u32_u24 v{t2}, 48, v{t1}")
                I(f"v_sub_u32 v{t2}, v{t0}, v{t2}")
                I(f"v_lshlrev_b32 v{t2}, 3, v{t2}")
                I(f"v_mul_u32_u24 v{t3}, 400, v{t1}")
                I(f"v_add3_u32 v{7+j}, v{t3}, v{t2}, s{sT1}")
                I(f"v_mul_u32_u24 v{t3}, 768, v{t1}")
                I(f"v_add3_u32 v{10+j}, v{t3}, v{t2}, s{sT0}")
                I(f"v_add_u32 v{20+j}, {6*OROW}, v{7+j}")
            for (r, gg, add) in ((rA, gA, 0), (rB, gB, 64)):
                I(f"v_add_u32 v{t0}, {add}, v0")
                I(f"v_min_u32 v{t0}, 95, v{t0}")
                I(f"v_mul_u32_u24 v{t1}, 10923, v{t0}")
                I(f"v_lshrrev_b32 v{t1}, 18, v{t1}")
                I(f"v_mul_u32_u24 v{t2}, 24, v{t1}")
                I(f"v_sub_u32 v{t2}, v{t0}, v{t2}")
                I(f"v_lshlrev_b32 v{t2}, 4, v{t2}")
                I(f"v_mul_u32_u24 v{t3}, 400, v{t1}")
                I(f"v_add3_u32 v{r}, v{t3}, v{t2}, s{sT1}")
                I(f"v_mul_u32_u24 v{t3}, 768, v{t1}")
                I(f"v_add3_u32 v{gg}, v{t3}, v{t2}, s{sT0}")
            I(f"v_cmp_gt_u32 vcc, 32, v0")
            I(f"v_mov_b32 v{t4}, s{sINV}")
            I(f"v_add_u32 v250, {6*OROW}, v{rA}")
            I(f"v_cndmask_b32 v{gB}, v{t4}, v{gB}, vcc")
            I(f"v_add_u32 v251, {6*OROW}, v{rB}")
            I(f"s_lshl_b32 s{sT0}, s{sPW}, 2")
            I(f"v_bfe_u32 v{t0}, v0, 3, 2")
            I(f"v_add_u32 v{t0}, s{sT0}, v{t0}")
            I(f"v_and_b32 v{t1}, 7, v0")
            I(f"v_mul_u32_u24 v{t2}, 144, v{t0}")
            I(f"v_lshl_add_u32 v{t2}, v{t1}, 4, v{t2}")
            I(f"v_add_u32 v{vXL}, {XST}, v{t2}")
            I(f"v_mul_u32_u24 v{t0}, 768, v{t0}")
            I(f"v_lshrrev_b32 v{t2}, 1, v{t1}")
            I(f"v_mul_u32_u24 v{t2}, 96, v{t2}")
            I(f"v_and_b32 v{t1}, 1, v{t1}")
            I(f"v_lshl_add_u32 v{t2}, v{t1}, 4, v{t2}")
            I(f"s_mul_i32 s{sT0}, s{sEROW}, 86016")
            I(f"s_mul_i32 s{sT1}, s{sES}, 12288")
            I(f"s_add_u32 s{sT0}, s{sT0}, s{sT1}")
            I(f"s_lshl_b32 s{sT1}, s{sF0}, 5")
            I(f"s_add_u32 s{sT0}, s{sT0}, s{sT1}")
            I(f"v_add3_u32 v{vXG}, v{t0}, v{t2}, s{sT0}")
            I(f"v_cndmask_b32 v{vXG}, v{t4}, v{vXG}, vcc")
    rA, rB, gA, gB, vXL, vXG = 1, 2, 3, 4, 5, 6
    sf = opt["sf"]
    nb = [0]

    def rowread(st, m, b):
        if opt["st2"]:
            for j in range(3):
                I(f"ds_read_b64 {vr(b + 2*j, 2)}, v{(7 if st == 0 else 20) + j} offset:{m*OROW}")
            return
        a0, a1 = (rA, rB) if st == 0 else (250, 251)
        I(f"ds_read_b128 {vr(b)}, v{a0} offset:{m*OROW}")
        I(f"ds_read_b128 {vr(b+4)}, v{a1} offset:{m*OROW}")

    def rowstore(st, m, b, w0=None, w1=None):
        sf = opt["sfl"] if st == 1 and m >= 6 - opt["nlast"] else opt["sf"]
        I(f"s_mov_b32 s{sOFF}, {m*86016}")
        if opt["st2"]:
            for j in range(3):
                if w0: I(f"s_waitcnt lgkmcnt({2-j})")
                I(f"buffer_store_dwordx2 {vr(b + 2*j, 2)}, v{10+j}, s[{sO}:{sO+3}], s{sOFF} offen offset:{384*st} {sf}")
            return
        if w0: I(w0)
        I(f"buffer_store_dwordx4 {vr(b)}, v{gA}, s[{sO}:{sO+3}], s{sOFF} offen offset:{384*st} {sf}")
        if w1: I(w1)
        I(f"buffer_store_dwordx4 {vr(b+4)}, v{gB}, s[{sO}:{sO+3}], s{sOFF} offen offset:{384*st} {sf}")

    def xpart(st, b):
        if kind == "w":
            return
        if kind == "n":
            I(f"s_cmp_eq_u32 s{sHASX}, 0")
            I(f"s_cbranch_scc1 L_NOX{st}")
        pollflag(12 + st, f"L_F{kind}X{st}", opt["slp"])
        I(f"ds_read_b128 {vr(b)}, v{vXL} offset:{2304*st}")
        I("s_waitcnt lgkmcnt(0)")
        I(f"buffer_store_dwordx4 {vr(b)}, v{vXG}, s[{sO}:{sO+3}], 0 offen offset:{384*st}")
        if kind == "n":
            e.label(f"L_NOX{st}")

    batches = [(14, range(6))]
    if opt["ego"]:
        a_, b_ = int(str(opt["ego"])[1]), int(str(opt["ego"])[2])
        batches = [(25, tuple(range(a_))), (26, tuple(range(a_, a_ + b_))), (14, tuple(range(a_ + b_, 6)))]
        batches = [t for t in batches if t[1] or t[0] == 14]
    for k_, rows in batches:
        if rows:
            pollflag(rows[-1], f"L_F{kind}0_{rows[-1]}", opt["psl"])
        for m in rows:
            rowread(0, m, 28 + 8 * m)
        pollflag(k_, f"L_F{kind}GO{k_}", opt["slp"])
        if k_ == 14 and not opt["pst"]:
            e.stamp()
        for m in rows:
            rowstore(0, m, 28 + 8 * m)
    xpart(0, 76)
    for m in [0, 1, "X", 2, 3, 4, 5]:
        if m == "X":
            xpart(1, 80)
            continue
        b = 84 + 8 * m
        pollflag(6 + m, f"L_F{kind}1_{m}", opt["slp"] if m < 4 else opt["slpl"])
        if m in (0, 5) and not opt["pst"]:
            e.stamp()
        rowread(1, m, b)
        rowstore(1, m, b, "s_waitcnt lgkmcnt(1)", "s_waitcnt lgkmcnt(0)")
    e.stamp()
    if opt["stamp"]:
        I("s_waitcnt vmcnt(0)")
        e.stamp()
    e.dump_stamps("p")
    I("s_endpgm")
    return e.L


def generate(**kw):
    opt = dict(DEF)
    opt.update(kw)
    opt["code_pf_lines"] = 20
    UNITS[:] = ORDERS[opt["order"]]
    L = []
    L.append("; one 512-thread workgroup per CU: waves 0-3 MFMA, waves 4-7 input transform / output stores.")
    L.append(f"; @launch grid=(256,1,1) block=(512,1,1) lds={LDS_BYTES}")
    L.append('.amdgcn_target "amdgcn-amd-amdhsa--gfx950"')
    L.append(".text")
    L.append(f".globl {KNAME}")
    L.append(".p2align 8")
    L.append(f".type {KNAME},@function")
    L.append(f"{KNAME}:")
    e = Em(opt)
    I = e.I
    e.stamp()
    I(f"s_load_dwordx8 s[{sKA}:{sKA+7}], s[0:1], 0")
    I(f"s_load_dwordx4 s[{sDBG}:{sDBG+3}], s[0:1], 32")
    I("v_lshrrev_b32 v1, 6, v0")
    I("s_cmp_ge_u32 s2, 256")
    I("s_cbranch_scc1 L_END")
    I(f"v_readfirstlane_b32 s{sWAVE}, v1")
    I("v_and_b32 v0, 63, v0")
    if opt["epf"]:
        R = opt["epf"]
        I(f"s_getpc_b64 s[{sPC}:{sPC+1}]")
        I(f"s_bfe_u32 s{sT0}, s2, {3 | ((R.bit_length() - 1) << 16)}")
        I(f"v_min_u32 v2, {24 // R - 1}, v0")
        I(f"v_lshl_add_u32 v2, v2, {R.bit_length() - 1}, s{sT0}")
        I(f"v_mul_u32_u24 v1, {CS}, v1")
        I(f"v_lshl_add_u32 v2, v2, 7, v1")
        I(f"v_min_u32 v2, L_END-{KNAME}-256, v2")
        e.vmem(f"global_load_dword v255, v2, s[{sPC}:{sPC+1}]", "epf")
    I(f"s_mov_b32 s{sMASK}, 0xffff0000")
    I(f"s_mov_b32 s{sINV}, 0x80000000")
    I(f"s_lshr_b32 s{sIDX}, s2, 3")
    if opt["par"]:
        I(f"s_and_b32 s{sHASX}, s2, 1")
        I(f"s_xor_b32 s{sHASX}, s{sHASX}, {1 if opt['par'] == 1 else 0}")
        I(f"s_cmp_ge_u32 s{sIDX}, 8")
        I(f"s_cselect_b32 s{sHASX}, s{sHASX}, 0")
    else:
        I(f"s_sub_u32 s{sT0}, s{sIDX}, 7")
        I(f"s_cmp_lt_u32 s{sT0}, 12")
        I(f"s_cselect_b32 s{sHASX}, 1, 0")
    I(f"s_cmp_lt_u32 s{sWAVE}, 4")
    I("s_cbranch_scc1 L_CONS")
    I(f"s_sub_u32 s{sPW}, s{sWAVE}, 4")
    I(f"s_cmp_lt_u32 s{sIDX}, 7")
    I("s_cbranch_scc1 L_PW")
    L += e.L
    epw = Em(opt, e)
    worker_pre(epw, opt)
    producer_main(epw, opt)
    ep = Em(opt, e)
    producer_main(ep, opt)
    if not opt["xo"]:
        for j in (1, 3, 5, 7, 9):
            xload(ep, 0, j)
    ep.I(f"s_cmp_eq_u32 s{sHASX}, 0")
    ep.I("s_cbranch_scc1 L_PN")
    ep.I(f"s_cmp_eq_u32 s{sPW}, 3")
    ep.I("s_cbranch_scc1 L_PN")
    L += ep.L
    L += producer(ep, opt, "x")
    L.append(f".org {KNAME} + {1 * CS}, 0" if opt["epf"] else ".p2align 6")
    L.append("L_PN:")
    L += producer(ep, opt, "n")
    L.append(f".org {KNAME} + {2 * CS}, 0" if opt["epf"] else ".p2align 6")
    L.append("L_PW:")
    L += epw.L
    L += producer(epw, opt, "w")
    L.append(f".org {KNAME} + {3 * CS}, 0" if opt["epf"] else ".p2align 6")
    L.append("L_CONS:")
    ec = Em(opt, e)
    consumer_pro(ec, opt)
    L += ec.L
    L += consumer(ec, opt, True)
    L.append(f".org {KNAME} + {5 * CS}, 0" if opt["epf"] else ".p2align 6")
    L.append("L_CN:")
    L += consumer(ec, opt, False)
    L.append("L_END:")
    L.append("    s_endpgm")
    L.append('.section .rodata,"a"')
    L.append(".p2align 6")
    L.append(f".amdhsa_kernel {KNAME}")
    for d in ("next_free_vgpr 256", "next_free_sgpr 102", "accum_offset 256", "group_segment_fixed_size 0",
              "kernarg_size 48", "user_sgpr_count 2", "user_sgpr_kernarg_segment_ptr 1",
              "system_sgpr_workgroup_id_x 1", "ieee_mode 0", "float_denorm_mode_32 1"):
        L.append("  .amdhsa_" + d)
    L.append(".end_amdhsa_kernel")
    return "\n".join(L) + "\n"


if __name__ == "__main__":
    out = sys.argv[1]
    kw = {}
    for a in sys.argv[2:]:
        k, v = a.split("=", 1)
        try:
            kw[k] = int(v)
        except ValueError:
            try:
                kw[k] = float(v)
            except ValueError:
                kw[k] = v.replace("+", " ")
    open(out, "w").write(generate(**kw))
```

```python
import sys, os
sys.path.insert(0, os.path.dirname(os.path.abspath(__file__)))
from cost import gapcost

KNAME = "standalone__standard_2d_1d_3d_conv__vision_kernel"

DEF = dict(
    stamp=0, spin=4000, spinref=0, cst=-1, cev=8, pst=0,
    xf="", sf="nt", uf="sc1",
    code_pf=1, w_pf=1,
    prio=0, slp=1,
    pro="beta",
    xs="w:1e,w:1o,4p:2e,k4:2o",
    dsp=4.5,
    ustep=3, ulead=12,
    lag=-1,
    go=23,
    noatom=0, u_pf=0, pollp=1, pollat=-2, n1=1, y0at=0, gam=0, psl=2, epf=2, xo=1, w1late=0, otlb=0, aord=0, rsh=0, dd=0, wta=0, d_xcc=0, d_jit=0, d_st=0, par=0, wnear=0, w8=0, dedup=0, two=2, d_sl=0, ego=0, st2=1, wp1=0, pdel=0, nraw=4, pollu=2, pslp=8, trd=9, d_now=0, d_nov=0, d_nou=0, sfl='sc1', nlast=0, slpl=0, ustep0=5, order=2, wat=1, pat=3, rpf=1, rlead=0, wsp=10, pollw=0, w2pre=0, tr1at=4, wo=2, ulead0=0,
)

VSLOT = 22528
VHALF = 11264
VS = [0, VSLOT, 2 * VSLOT]
FLAGS = 3 * VSLOT
WRING = FLAGS + 512
WWAVE = 18432
OROW = 6400
OUT = WRING
XST = OUT + 12 * OROW
PRE = VS[1]
LDS_BYTES = XST + 4608
NW = [56]
CS = 12800

XBYTES = 224 * 224 * 384
WBYTES = 9 * 192 * 384
UBYTES = 24 * 36864

ORDERS = {
    2: [("A", 0, 0), ("A", 1, 0),
        ("B", 0, 0), ("B", 1, 0), ("B", 0, 1), ("B", 1, 1), ("B", 0, 2), ("B", 1, 2),
        ("A", 0, 1), ("A", 0, 2), ("A", 1, 1), ("A", 1, 2)],
    3: [("A", 0, 0), ("A", 1, 0), ("A", 0, 1),
        ("B", 0, 0), ("B", 1, 0), ("B", 0, 1), ("B", 1, 1), ("B", 0, 2), ("B", 1, 2),
        ("A", 0, 2), ("A", 1, 1), ("A", 1, 2)],
    1: [("A", 0, 0), ("A", 1, 0), ("A", 0, 1), ("A", 1, 1),
        ("B", 0, 0), ("B", 1, 0), ("B", 0, 1), ("B", 1, 1), ("B", 0, 2), ("B", 1, 2),
        ("A", 0, 2), ("A", 1, 2)],
}
UNITS = list(ORDERS[2])


def step_info(s):
    kind, st, pair = UNITS[s >> 1]
    return kind, st, 2 * pair + (s & 1)


sX, sW, sO, sU, sB = 4, 8, 12, 16, 20
sDBG, sWS, sKA = 24, 26, 28
sWAVE, sL, sSTRIP, sROW0, sHASX, sES, sEROW = 36, 37, 38, 39, 40, 41, 42
sF0, sF1, sF2, sIDX = 43, 44, 45, 46
sT0, sT1, sT2, sT3 = 47, 48, 49, 50
sMASK, sRING, sOFF, sOFF2, sPW = 51, 52, 53, 54, 55
sPC, sCNT, sINV = 56, 58, 59
sPOLL, sPEND = 3, 56
sST = 60


NSPIN = [0]


class Em:
    def __init__(self, opt, parent=None):
        self.L = []
        self.lg = list(parent.lg) if parent else []
        self.vm = list(parent.vm) if parent else []
        self.opt = opt
        self.nst = parent.nst if parent else 0

    def I(self, s):
        self.L.append("    " + s)

    def label(self, s):
        self.L.append(s + ":")

    def lds(self, s, name=None):
        self.I(s)
        self.lg.append(name)

    def vmem(self, s, name=None):
        self.I(s)
        self.vm.append(name)

    def need(self, names):
        if isinstance(names, str):
            names = [names]
        w = []
        k = max([i for i, n in enumerate(self.vm) if n in names], default=-1)
        if k >= 0:
            n = min(len(self.vm) - 1 - k, 63)
            w.append(f"vmcnt({n})")
            self.vm = self.vm[len(self.vm) - n:] if n else []
        k = max([i for i, n in enumerate(self.lg) if n in names], default=-1)
        if k >= 0:
            n = min(len(self.lg) - 1 - k, 15)
            w.append(f"lgkmcnt({n})")
            self.lg = self.lg[len(self.lg) - n:] if n else []
        if w:
            self.I("s_waitcnt " + " ".join(w))

    def drain_lg(self):
        self.I("s_waitcnt lgkmcnt(0)")
        self.lg = []

    def drain_vm(self):
        self.I("s_waitcnt vmcnt(0)")
        self.vm = []

    def stamp(self):
        o = self.opt
        if o["stamp"] == 4 and self.nst != o["spinref"]:
            self.nst += 1
        elif o["stamp"]:
            r = sST + 2 * self.nst
            assert r + 1 < 100, "too many stamps"
            self.I(f"s_memrealtime s[{r}:{r+1}]" if o["stamp"] in (1, 4) else f"s_memtime s[{r}:{r+1}]")
            self.nst += 1

    def jit(self, k):
        if not self.opt["d_jit"]:
            return
        NSPIN[0] += 1
        n = NSPIN[0]
        self.I(f"s_mul_i32 s98, s2, {7 + 2*k}")
        self.I(f"s_mul_i32 s99, s{sWAVE}, {5 + 6*k}")
        self.I("s_add_u32 s98, s98, s99")
        self.I(f"s_add_u32 s98, s98, {self.opt['d_jit'] * 3 + k}")
        self.I("s_and_b32 s98, s98, 7")
        self.I("s_cmp_lt_u32 s98, 5")
        self.I(f"s_cbranch_scc1 L_JIT{n}")
        self.I(f"s_sleep {20 + 9*(k % 5)}")
        self.label(f"L_JIT{n}")

    def dump_stamps(self, role):
        o = self.opt
        if not o["stamp"]:
            return
        self.I("s_waitcnt vmcnt(0) lgkmcnt(0)")
        if o["stamp"] == 4:
            if o["spinref"] and role != "c":
                return
            NSPIN[0] += 1
            lab = f"L_SPIN{NSPIN[0]}"
            self.label(lab)
            self.I(f"s_memrealtime s[{sT1}:{sT1+1}]")
            self.I("s_waitcnt lgkmcnt(0)")
            self.I(f"s_sub_u32 s{sT0}, s{sT1}, s{sST + 2*o['spinref']}")
            if o["d_xcc"] == 2:
                self.I(f"s_getreg_b32 s{sT3}, hwreg(HW_REG_XCC_ID)")
                self.I(f"s_and_b32 s{sT3}, s{sT3}, 15")
                self.I(f"s_mul_i32 s{sT3}, s{sT3}, 300")
                self.I(f"s_add_u32 s{sT3}, s{sT3}, {o['spin']}")
                self.I(f"s_cmp_eq_u32 s2, 0")
                self.I(f"s_cselect_b32 s{sT3}, s{sT3}, 0")
                self.I(f"s_cmp_lt_u32 s{sT0}, s{sT3}")
            else:
                self.I(f"s_cmp_lt_u32 s{sT0}, {o['spin']}")
            self.I(f"s_cbranch_scc1 {lab}")
            return
        self.I(f"s_lshl_b32 s{sT0}, s2, 3")
        self.I(f"s_add_u32 s{sT0}, s{sT0}, s{sWAVE}")
        self.I(f"s_lshl_b32 s{sT0}, s{sT0}, 8")
        self.I(f"s_add_u32 s{sT0}, s{sT0}, 0x100000")
        self.I(f"v_mov_b32 v1, s{sT0}")
        for i in range(self.nst):
            self.I(f"v_mov_b32 v2, s{sST + 2*i}")
            self.I(f"global_store_dword v1, v2, s[{sWS}:{sWS+1}] offset:{4*i}")
        self.I(f"v_mov_b32 v2, {self.nst}")
        self.I(f"global_store_dword v1, v2, s[{sWS}:{sWS+1}] offset:252")
        self.I(f"s_getreg_b32 s{sT0}, hwreg(HW_REG_XCC_ID)")
        self.I(f"v_mov_b32 v2, s{sT0}")
        self.I(f"global_store_dword v1, v2, s[{sWS}:{sWS+1}] offset:248")


def vr(a, n=4):
    return f"v[{a}:{a+n-1}]"


def srd(e, s, lo, nbytes, bias=0):
    if bias:
        e.I(f"s_sub_u32 s{s}, s{lo}, {bias}")
        e.I(f"s_subb_u32 s{s+1}, s{lo+1}, 0")
    else:
        e.I(f"s_mov_b32 s{s}, s{lo}")
        e.I(f"s_mov_b32 s{s+1}, s{lo+1}")
    e.I(f"s_mov_b32 s{s+2}, {nbytes + bias}")
    e.I(f"s_mov_b32 s{s+3}, 0x20000")


def decode_main(e):
    I = e.I
    I(f"s_and_b32 s{sT0}, s2, 7")
    I(f"s_lshl_b32 s{sT0}, s{sT0}, 5")
    I(f"s_add_u32 s{sT0}, s{sT0}, s{sIDX}")
    I(f"s_mul_i32 s{sT0}, s{sT0}, 7")
    I(f"s_lshr_b32 s{sSTRIP}, s{sT0}, 8")
    I(f"s_and_b32 s{sT0}, s{sT0}, 255")
    I(f"s_mul_i32 s{sT0}, s{sT0}, 293")
    I(f"s_lshr_b32 s{sT0}, s{sT0}, 11")
    I(f"s_mul_i32 s{sROW0}, s{sT0}, 6")


def decode_extra(e):
    I = e.I
    if e.opt["par"]:
        I(f"s_bfe_u32 s{sT0}, s2, {1 | (2 << 16)}")
        I(f"s_mul_i32 s{sT0}, s{sT0}, 24")
        I(f"s_add_u32 s{sT0}, s{sT0}, s{sIDX}")
        I(f"s_sub_u32 s{sT0}, s{sT0}, 8")
    else:
        I(f"s_and_b32 s{sT0}, s2, 7")
        I(f"s_mul_i32 s{sT0}, s{sT0}, 12")
        I(f"s_add_u32 s{sT0}, s{sT0}, s{sIDX}")
        I(f"s_sub_u32 s{sT0}, s{sT0}, 7")
    I(f"s_mul_i32 s{sT1}, s{sT0}, 21846")
    I(f"s_lshr_b32 s{sT1}, s{sT1}, 16")
    I(f"s_mul_i32 s{sT2}, s{sT1}, 3")
    I(f"s_sub_u32 s{sF0}, s{sT0}, s{sT2}")
    I(f"s_cmp_eq_u32 s{sHASX}, 1")
    I(f"s_cselect_b32 s{sF0}, s{sF0}, 0")
    I(f"s_cselect_b32 s{sT1}, s{sT1}, 0")
    I(f"s_lshl_b32 s{sES}, s{sT1}, 1")
    I(f"s_and_b32 s{sES}, s{sES}, 12")
    I(f"s_lshr_b32 s{sES}, 0x5310, s{sES}")
    I(f"s_and_b32 s{sES}, s{sES}, 15")
    I(f"s_and_b32 s{sEROW}, s{sT1}, 1")
    I(f"s_add_u32 s{sEROW}, s{sEROW}, 222")
    I(f"s_lshr_b32 s{sT3}, s{sT1}, 3")
    I(f"s_lshl_b32 s{sT3}, s{sT3}, 1")
    I(f"s_and_b32 s{sT2}, s{sT1}, 7")
    I(f"s_add_u32 s{sT2}, s{sT2}, 216")
    I(f"s_cmp_lt_u32 s{sT1}, 8")
    I(f"s_cselect_b32 s{sES}, s{sES}, s{sT3}")
    I(f"s_cselect_b32 s{sEROW}, s{sEROW}, s{sT2}")


def consumer_pro(e, opt):
    I = e.I
    vV, vV2, vT = 1, 2, 3
    vD = [4, 5, 6]
    vU = [7, 253, 254]
    t0, t1, t2, t3, t4 = 8, 9, 10, 11, 12
    sF = [sF0, sF1, sF2]
    if opt["w8"] == 2:
        I(f"s_cmp_eq_u32 s{sL}, 0")
        I("s_cbranch_scc1 L_CW0")
        keep = list(e.vm)
        worker_pre(e, opt, cons=True)
        e.vm = keep
        e.label("L_CW0")
    decode_extra(e)
    I(f"s_add_u32 s{sF1}, s{sF0}, 1")
    I(f"s_cmp_eq_u32 s{sF1}, 3")
    I(f"s_cselect_b32 s{sF1}, 0, s{sF1}")
    I(f"s_add_u32 s{sF2}, s{sF1}, 1")
    I(f"s_cmp_eq_u32 s{sF2}, 3")
    I(f"s_cselect_b32 s{sF2}, 0, s{sF2}")
    I(f"v_lshrrev_b32 v{t0}, 4, v0")
    I(f"s_mul_i32 s{sT0}, s{sWAVE}, 96")
    I(f"v_lshlrev_b32 v{t4}, 3, v{t0}")
    I(f"v_add_u32 v{t4}, s{sT0}, v{t4}")
    for s in range(3):
        I(f"s_lshl_b32 s{sT1}, s{sF[s]}, 5")
        I(f"v_add_u32 v{13+s}, s{sT1}, v{t4}")
    if opt["w_pf"]:
        I(f"s_mul_i32 s{sT1}, s{sIDX}, 36")
        I(f"v_min_u32 v{t1}, 35, v0")
        I(f"v_add_u32 v{t1}, s{sT1}, v{t1}")
        I(f"v_mul_u32_u24 v{t2}, 10923, v{t1}")
        I(f"v_lshrrev_b32 v{t2}, 21, v{t2}")
        I(f"v_add_u32 v{t3}, 1, v{t2}")
        I(f"v_lshrrev_b32 v{t3}, 1, v{t3}")
        I(f"v_mul_u32_u24 v{t3}, 576, v{t3}")
        I(f"v_mul_u32_u24 v{t2}, 384, v{t2}")
        I(f"v_add3_u32 v{t1}, v{t1}, v{t2}, v{t3}")
        I(f"s_mul_i32 s{sT1}, s{sWAVE}, {192*128}")
        I(f"s_add_u32 s{sT1}, s{sT1}, 2048")
        I(f"v_lshl_add_u32 v252, v{t1}, 7, s{sT1}")
    I("s_waitcnt lgkmcnt(0)")
    srd(e, sB, sKA + 4, 384)
    srd(e, sW, sKA + 2, WBYTES, 2048)
    srd(e, sU, sWS, UBYTES)
    if opt["w_pf"]:
        I(f"s_cmp_ge_u32 s{sWAVE}, {1 if opt['nraw'] == 4 else 2}")
        I("s_cbranch_scc1 L_NOWPF")
        I(f"buffer_load_dword v255, v252, s[{sW}:{sW+3}], 0 offen")
        e.label("L_NOWPF")
    if opt["code_pf"]:
        I(f"s_cmp_eq_u32 s{sWAVE}, 2")
        I("s_cbranch_scc0 L_NOCPF")
        I(f"s_getpc_b64 s[{sPC}:{sPC+1}]")
        e.label("L_PC0")
        I(f"s_sub_u32 s{sPC}, s{sPC}, L_PC0-{KNAME}")
        I(f"s_subb_u32 s{sPC+1}, s{sPC+1}, 0")
        I(f"s_mul_i32 s{sT1}, s{sIDX}, {opt['code_pf_lines']*128}")
        I(f"v_min_u32 v252, {opt['code_pf_lines']-1}, v0")
        I(f"v_lshl_add_u32 v252, v252, 7, s{sT1}")
        I(f"v_min_u32 v252, L_END-{KNAME}, v252")
        I(f"global_load_dword v255, v252, s[{sPC}:{sPC+1}]")
        e.label("L_NOCPF")
    if opt["d_xcc"] == 1:
        I(f"s_cmp_lt_u32 s2, 12")
        I("s_cbranch_scc0 L_NOXCC")
        I(f"s_getreg_b32 s{sT1}, hwreg(HW_REG_XCC_ID)")
        I(f"s_lshl_b32 s{sT2}, s2, 2")
        I(f"v_mov_b32 v22, s{sT1}")
        I(f"v_mov_b32 v23, s{sT2}")
        I(f"global_store_dword v23, v22, s[{sDBG}:{sDBG+1}] offset:16")
        e.label("L_NOXCC")
    for s in range(3):
        e.vmem(f"buffer_load_dwordx2 {vr(16+2*s, 2)}, v{13+s}, s[{sB}:{sB+3}], 0 offen", "bias")
    I(f"v_and_b32 v{t1}, 15, v0")
    I(f"v_xor_b32 v{t2}, v{t0}, v{t1}")
    I(f"v_lshl_add_u32 v{t2}, v{t0}, 4, v{t2}")
    I(f"v_lshlrev_b32 v{vV}, 4, v{t2}")
    I(f"v_add_u32 v{vV2}, 0x8000, v{vV}")
    I(f"s_mul_i32 s{sRING}, s{sWAVE}, {WWAVE}")
    I(f"s_add_u32 s{sRING}, s{sRING}, {WRING}")
    I(f"v_lshrrev_b32 v{t2}, 2, v0")
    I(f"v_mul_u32_u24 v{t2}, 96, v{t2}")
    I(f"v_and_b32 v{t3}, 3, v0")
    I(f"v_lshl_add_u32 v{t2}, v{t3}, 3, v{t2}")
    I(f"v_add_u32 v{vT}, s{sRING}, v{t2}")
    for d in range(3):
        I(f"v_add_u32 v{t1}, {64*d}, v0")
        I(f"v_mul_u32_u24 v{t2}, 43691, v{t1}")
        I(f"v_lshrrev_b32 v{t2}, 18, v{t2}")
        I(f"v_mul_u32_u24 v{t3}, 6, v{t2}")
        I(f"v_sub_u32 v{t1}, v{t1}, v{t3}")
        I(f"v_bfe_u32 v{t3}, v{t2}, 2, 2")
        I(f"v_lshlrev_b32 v{t3}, 3, v{t3}")
        I(f"v_lshrrev_b32 v{t4}, 4, v{t2}")
        I(f"v_lshl_add_u32 v{t3}, v{t4}, 2, v{t3}")
        I(f"v_and_b32 v{t2}, 3, v{t2}")
        I(f"v_add_u32 v{t2}, v{t2}, v{t3}")
        I(f"v_mul_u32_u24 v{t2}, 384, v{t2}")
        I(f"v_lshrrev_b32 v{t3}, 1, v{t1}")
        I(f"v_add_u32 v{t3}, s{sF0}, v{t3}")
        I(f"v_subrev_u32 v{t4}, 3, v{t3}")
        I(f"v_min_u32 v{t3}, v{t3}, v{t4}")
        I(f"v_lshl_add_u32 v{t2}, v{t3}, 5, v{t2}")
        I(f"v_and_b32 v{t1}, 1, v{t1}")
        I(f"v_lshl_add_u32 v{t2}, v{t1}, 4, v{t2}")
        I(f"v_add_u32 v{t2}, s{sT0}, v{t2}")
        I(f"v_add_u32 v{vD[d]}, {2048 - 1024*d}, v{t2}")
    I(f"s_mul_i32 s{sT1}, s{sWAVE}, 9216")
    for s in range(3):
        I(f"s_mul_i32 s{sT0}, s{sF[s]}, 3072")
        I(f"s_add_u32 s{sT0}, s{sT0}, s{sT1}")
        I(f"v_lshl_add_u32 v{vU[s]}, v0, 4, s{sT0}")
    if opt["w8"] == 2:
        I(f"s_cmp_eq_u32 s{sL}, 0")
        I("s_cbranch_scc1 L_CW1")
        w = Em(opt, e)
        w.vm = ["pre0"] + ["x"] * 3
        w.I(f"v_lshrrev_b32 v98, 2, v0")
        w.I(f"v_lshlrev_b32 v98, 5, v98")
        w.I(f"v_and_b32 v99, 3, v0")
        w.I(f"v_lshl_add_u32 v98, v99, 3, v98")
        w.I(f"v_add_u32 v98, s{sPOLL}, v98")
        prepass(w, dict(opt, pst=0), 0, 100, 120, 97, 98)
        e.L += w.L
        e.label("L_CW1")
    I(f"s_cmp_eq_u32 s{sHASX}, 0")
    I("s_cbranch_scc1 L_CN")


def consumer(parent, opt, extra):
    e = Em(opt, parent)
    I = e.I
    vV, vV2, vT = 1, 2, 3
    vD = [4, 5, 6]
    vU = [7, 253, 254]
    vO = vD
    vOX, vFL, vONE, vCK = 3, 255, 252, 0
    VR = 8
    WB = [24, 60]
    ACC = 96
    acc = {}
    for m in range(6):
        for st in range(2):
            for s in range(3):
                acc[(m, st, s)] = ACC + 4 * ((m * 2 + st) * 3 + s)
    acc[("X", 0)] = 240
    acc[("X", 1)] = 244
    spare = [248]
    sF = [sF0, sF1, sF2]
    tag = "x" if extra else "n"

    def W(step, i, s):
        return WB[step & 1] + 4 * (i * 3 + s)

    def dma_ops(step, i):
        kind, st, c = step_info(step)
        slot = (step & 1) * 3 + i
        ops = [("S", lambda: I(f"s_add_u32 m0, s{sRING}, {slot*3072}")),
               ("S", lambda: I(f"s_mov_b32 s{sOFF2}, {(i*3+2*st)*73728 + c*12288}"))]
        for d in range(3):
            def f(d=d):
                e.need([f"w{step-2}_{i}"])
                e.vmem(f"buffer_load_dwordx4 v{vD[d]}, s[{sW}:{sW+3}], s{sOFF2} offen offset:{1024*d} lds", f"dma{step}_{i}")
            ops.append(("M", f))
        return ops

    def tr_ops(step, i):
        slot = (step & 1) * 3 + i
        ops = []
        for s in range(3):
            for h in range(2):
                def f(s=s, h=h):
                    e.need([f"dma{step}_{i}"])
                    e.lds(f"ds_read_b64_tr_b16 {vr(W(step, i, s) + 2*h, 2)}, v{vT} offset:{slot*3072 + h*1536 + s*32}", f"w{step}_{i}")
                ops.append(("WR" if s == 0 and h == 0 else "R", f))
        return ops

    def u_op(step, i, s):
        if opt["d_nou"] and step > 9:
            return ("S", lambda: I("s_nop 0"))
        return ("M", lambda: e.vmem(f"buffer_load_dwordx4 {vr(W(step, i, s))}, v{vU[s]}, s[{sU}:{sU+3}], s{sOFF} offen offset:{1024*i} {opt['uf']}", f"w{step}_{i}"))

    def u_off(step):
        kind, st, c = step_info(step)
        pos = st if kind == "B" else 2 + st
        return ("S", lambda: I(f"s_mov_b32 s{sOFF}, {(pos*6+c)*36864}"))

    I(f"v_lshlrev_b32 v8, 3, v0")
    I(f"v_add_u32 v8, {FLAGS}, v8")
    I(f"v_mov_b32 v10, 0")
    I(f"v_mov_b32 v11, 0")
    I(f"ds_write_b64 v8, v[10:11]")
    I("s_waitcnt lgkmcnt(0)")
    e.stamp()
    I("s_barrier")
    for i in range(3):
        for c, f in dma_ops(0, i):
            f()
    if opt["pro"] == "alpha":
        I("s_barrier")
    w1late = opt["w1late"] == 2 or (opt["w1late"] == 1 and not extra)
    if not w1late:
        for i in range(3):
            for c, f in dma_ops(1, i):
                f()
    e.need("bias")
    if opt["w8"] == 2 and not extra:
        I(f"s_cmp_eq_u32 s{sL}, 0")
        I("s_cbranch_scc1 L_CW2")
        I(f"v_mov_b32 v8, {FLAGS + 15*16 + 4}")
        I(f"v_mov_b32 v9, 1")
        I("s_mov_b64 exec, 1")
        I("ds_add_u32 v8, v9")
        I("s_mov_b64 exec, -1")
        e.label("L_CW2")
    for s in range(3):
        a, b = acc[(5, 0, s)], acc[(5, 1, s)]
        I(f"v_lshlrev_b32 v{a}, 16, v{16+2*s}")
        I(f"v_and_b32 v{a+1}, s{sMASK}, v{16+2*s}")
        I(f"v_lshlrev_b32 v{a+2}, 16, v{17+2*s}")
        I(f"v_and_b32 v{a+3}, s{sMASK}, v{17+2*s}")
        for k in range(4):
            I(f"v_xor_b32 v{b+k}, s{sINV}, v{a+k}")
    for i in range(3):
        for c, f in tr_ops(0, i):
            f()
    if w1late:
        for i in range(3):
            for c, f in dma_ops(1, i):
                f()
    if opt["w2pre"]:
        for i in range(3):
            for c, f in dma_ops(2, i):
                f()
    I(f"s_lshl_b32 s{sT0}, s{sWAVE}, 2")
    I(f"s_add_u32 s{sT0}, s{sT0}, {FLAGS}")
    I(f"v_mov_b32 v{vFL}, s{sT0}")
    I(f"v_mov_b32 v{vONE}, 1")
    if opt["prio"]:
        I(f"s_setprio {opt['prio']}")
    e.stamp()

    groups = []

    def g_row(step, r):
        st = step_info(step)[1]
        mf = []
        for i in (2, 1, 0):
            m = r - i
            if 0 <= m <= 5:
                for s in range(3):
                    mf.append(((m, st, s), i, s))
        return dict(step=step, row=r, mf=mf)

    def g_x(step, i):
        return dict(step=step, row=8 + i, mf=[(("X", step_info(step)[1]), i, 0)])

    for step in range(22):
        seq = [g_row(step, 0), g_row(step, 1), g_x(step, 0), g_row(step, 2), g_x(step, 1), g_row(step, 3),
               g_x(step, 2), g_row(step, 4), g_row(step, 5), g_row(step, 6), g_row(step, 7)]
        groups += [g for g in seq if extra or g["row"] < 8]
    lag = opt["lag"]
    if lag >= 0:
        seq = []
        for r in range(8 + lag):
            if r < 8:
                seq.append((22, r))
            if r >= lag:
                seq.append((23, r - lag))
    else:
        seq = [(22, 0), (22, 1), (22, 2), (23, 0), (22, 3), (23, 1), (23, 2), (23, 3),
               (22, 4), (23, 4), (22, 5), (23, 5), (22, 6), (23, 6), (22, 7), (23, 7)]
    for (st_, r) in seq:
        groups.append(g_row(st_, r))
        if extra and st_ == 22 and 1 <= r <= 3:
            groups.append(g_x(22, r - 1))
        if extra and st_ == 23 and 1 <= r <= 3 and lag < 0:
            groups.append(g_x(23, r - 1))
        if extra and st_ == 23 and 2 <= r <= 4 and lag >= 0:
            groups.append(g_x(23, r - 2))

    stream = []
    gstart = []
    for gi, g in enumerate(groups):
        gstart.append(len(stream))
        for (key, i, s) in g["mf"]:
            stream.append((gi, key, i, s))
    N = len(stream)
    gend = [gstart[k + 1] - 1 if k + 1 < len(groups) else N - 1 for k in range(len(groups))]
    step_start, step_end = {}, {}
    last_use, last_acc, first_acc, first_tap = {}, {}, {}, {}
    for gi, g in enumerate(groups):
        step_start.setdefault(g["step"], gstart[gi])
        step_end[g["step"]] = gend[gi]
    for n, (gi, key, i, s) in enumerate(stream):
        st = groups[gi]["step"]
        last_use[(st, i, s)] = n
        last_acc[(st, key)] = n
        first_acc.setdefault((st, key), n)
        first_tap.setdefault((st, i), n)
    SL = step_start[1] - step_start[0]

    fill = [[] for _ in range(N + 1)]
    cl = [""] * (N + 1)
    endw = [""] * (N + 1)
    for gi in range(1, len(groups)):
        endw[gstart[gi] - 1] = "W"
    for (st, i), n in first_tap.items():
        if n:
            endw[n - 1] = "W"

    def put(g, op):
        fill[g].append(op[1])
        cl[g] += op[0]

    def addcost(g, c, cur):
        base = cur.get(g, cl[g])
        return gapcost(base + c + endw[g]) - gapcost(base + endw[g])

    def place(g0, ops, deadline=None, per=2, strict=False):
        for budget in range(0, len(ops) + 1):
            cur = {}
            res = []
            g, n, left = g0, 0, budget
            for c, f in ops:
                free = 4 if c == "D" else 0
                while g < N:
                    if n < per:
                        ac = addcost(g, c, cur)
                        if ac <= free:
                            break
                        if left and ac <= free + 4:
                            left -= 1
                            break
                    g += 1
                    n = 0
                g = min(g, N)
                cur[g] = cur.get(g, cl[g]) + c
                res.append(g)
                n += 1
            if deadline is None or res[-1] <= deadline:
                break
        else:
            assert not strict, (g0, deadline, res[-1])
        for g, op in zip(res, ops):
            put(g, op)
        return res[-1]

    def vread(gi):
        g = groups[gi]
        u = g["step"] >> 1
        off = VS[u % 3] + (g["step"] & 1) * VHALF + g["row"] * 1024
        base = vV
        if off >= 0x8000:
            base, off = vV2, off - 0x8000
        r = VR + 4 * (gi % 4)
        return ("R", lambda: e.lds(f"ds_read_b128 {vr(r)}, v{base} offset:{off}", f"v{gi}"))

    first_of_unit = {}
    for gi, g in enumerate(groups):
        first_of_unit.setdefault(g["step"] >> 1, gi)
    def flag(k):
        return ("d", lambda: e.jit(70 + k) or e.lds(f"ds_write_b32 v{vFL}, v{vONE} offset:{k*16}"))

    def ckread(off, name):
        return ("R", lambda: e.lds(f"ds_read_b32 v{vCK}, v{vV2} offset:{FLAGS - 0x8000 + off}", name))

    def check1(name):
        def f():
            e.jit(len(name) + len(e.L) % 13)
            e.need(name)
            I(f"v_readfirstlane_b32 s{sT0}, v{vCK}")
        return f

    def check(off, val, name, st=False):
        def f():
            lab = f"L_CK{tag}{name}"
            I(f"s_cmp_eq_u32 s{sT0}, {val}")
            I(f"s_cbranch_scc0 {lab}_spin")
            e.label(lab)
            if st and opt["cst"] < 0:
                e.stamp()
            cold.append(f"{lab}_spin:")
            cold.append(f"    ds_read_b32 v{vCK}, v{vV2} offset:{FLAGS - 0x8000 + off}")
            cold.append("    s_waitcnt lgkmcnt(0)")
            cold.append(f"    v_readfirstlane_b32 s{sT0}, v{vCK}")
            cold.append(f"    s_cmp_eq_u32 s{sT0}, {val}")
            cold.append(f"    s_cbranch_scc0 {lab}_spin")
            cold.append(f"    s_branch {lab}")
        return f

    cold = []
    bar_gap = {}
    rpos = {}
    for gi in range(4, len(groups)):
        g = gend[gi - 4]
        if opt["rsh"] and len(groups[gi - 3]["mf"]) > 1 and g - 0 >= rpos.get(gi - 1, -1):
            g += 1
        g = max(g, rpos.get(gi - 1, -1) + 1)
        rpos[gi] = g
        put(g, vread(gi))
    for u in range(1, 12):
        gi = first_of_unit[u]
        gp = gend[gi - 4]
        bar_gap[u] = gp - 1
        put(gp - 2, ("WV", check1(f"rdy{u}")))
        put(gp - 1, ("SS", check(448 + 4 * u, 4, f"rdy{u}", True)))
        gq = gp - (7 if opt["rsh"] else 8)
        assert place(gq, [ckread(448 + 4 * u, f"rdy{u}")]) < gp - 4
        if u - 1 <= 8:
            place(gstart[gi - 1], [flag(16 + u - 1)])

    g = 0
    gtr1 = 0
    k = 0
    for step in ((3,) if opt["w2pre"] else (2, 3)):
        for i in range(3):
            if step == 3:
                gtr1 = place(max(gtr1, opt["tr1at"] + (14 if w1late else 0) + 8 * i), tr_ops(1, i), per=1) + 1
                g = max(g, gtr1 + opt['trd'])
            ops = dma_ops(step, i)
            g = place(max(g, int(k * opt["dsp"])), ops[:2])
            for d in range(3):
                g = place(max(g + 1, int(k * opt["dsp"]) + 1), [ops[2 + d]])
                k += 1
    place(g + 1, [flag(31)])
    NR = opt["nraw"]
    for step in range(2, NR):
        gt = step_start[step - 1] + SL - 24
        for i in range(3):
            gt = max(gt, max(last_use[(step - 2, i, s)] for s in range(3)))
            gt = place(gt, tr_ops(step, i), per=1, deadline=first_tap[(step, i)] - 4) + 1
            if step + 2 < NR:
                ops = dma_ops(step + 2, i)
                t0_ = step_start[step] + int(i * SL / 3)
                g = place(max(g, gt + opt["trd"], t0_), ops[:2])
                for d in range(3):
                    g = place(max(g + 1, t0_ + int(d * SL / 9) + 1), [ops[2 + d]])

    gchk = step_start[NR - 1] - opt["ulead0"] - 3

    place(gchk - 10, [ckread(240, "uflag")])
    put(gchk - 1, ("WV", check1("uflag")))
    put(gchk, ("SS", check(240, 1, "uflag")))
    g = gchk + 1
    go_gap = None
    early_go = []
    for step in range(NR, 24):
        base = step_start[step - 1] - opt["ulead"]
        stp = opt["ustep"] * SL / 57
        if step == NR:
            base, stp = gchk + 2, opt["ustep0"]
        if step == 23:
            base, stp = last_use[(21, 0, 0)], 2
        k = 0
        for i in range(3):
            for s in range(3):
                tgt = max(base + int(k * stp), last_use[(step - 2, i, s)], g)
                if k == 0:
                    g = place(max(g, tgt - 2), [u_off(step)])
                    tgt = max(tgt, g + 1)
                g = place(tgt, [u_op(step, i, s)]) + 1
                k += 1
        if step == opt["go"]:
            go_gap = g
        if opt["ego"] and step in (21, 22):
            early_go.append((g, 25 + step - 21))

    def bfly_ops(k0, k1, first):
        ops = []
        if first:
            o0, o1, md = "v_sub_f32_e64", "v_add_f32_e64", " div:2"
        else:
            o0, o1, md = "v_add_f32", "v_sub_f32", ""
        for k in range(4):
            ops.append(("V", lambda k=k: I(f"{o0} v{spare[0]+k}, v{acc[k0]+k}, v{acc[k1]+k}{md}")))
        for k in range(4):
            def f(k=k):
                I(f"{o1} v{acc[k1]+k}, v{acc[k0]+k}, v{acc[k1]+k}{md}")
                if k == 3:
                    acc[k0], spare[0] = spare[0], acc[k0]
            ops.append(("V", f))
        return ops

    order = [0, 1, "X", 2, 3, 4, 5] if extra else [0, 1, 2, 3, 4, 5]
    fb = [u for u in range(12) if UNITS[u][0] == "B"]
    y0last = 2 * max(u for u in range(12) if UNITS[u][1] == 0) + 1
    for last, first in ((2 * fb[0] - 1, True), (2 * fb[-1] + 1, False)):
        blocks = []
        for m in order:
            keys = [((m, 0, s), (m, 1, s)) for s in range(3)] if m != "X" else [(("X", 0), ("X", 1))]
            for (k0, k1) in keys:
                rdy = max(n for (st_, k_), n in last_acc.items() if st_ <= last and k_ in (k0, k1))
                blocks.append((rdy + 8, first_acc[(last + 1, k0)] - 3, k0, k1))
        dl = [b[1] for b in blocks]
        for k in range(len(dl) - 2, -1, -1):
            dl[k] = min(dl[k], dl[k + 1] - opt.get("bsp", 4))
        g = 0
        for (rdy, _, k0, k1), d in zip(blocks, dl):
            g = place(max(g, rdy), bfly_ops(k0, k1, first), deadline=d, per=3)
            assert g <= _, (last, k0, g, _)

    def oaddr():
        ops = []
        A = lambda s: ops.append((s[0].upper(), lambda: I(s)))
        t, q = vO[1], vO[2]
        A(f"v_lshrrev_b32 v{q}, 8, v{vV}")
        A(f"v_bfe_u32 v{t}, v{vV}, 4, 4")
        A(f"v_xor_b32 v{t}, v{t}, v{q}")
        A(f"v_lshlrev_b32 v{q}, 3, v{q}")
        A(f"s_lshl_b32 s{sT1}, s{sWAVE}, 5")
        A(f"s_add_u32 s{sT1}, s{sT1}, {XST}")
        A(f"v_mul_u32_u24 v{vOX}, 144, v{t}")
        A(f"v_add3_u32 v{vOX}, v{vOX}, v{q}, s{sT1}")
        A(f"v_mul_u32_u24 v{t}, 400, v{t}")
        A(f"v_add_u32 v{q}, v{t}, v{q}")
        A(f"s_mul_i32 s{sT1}, s{sWAVE}, 96")
        A(f"s_add_u32 s{sT1}, s{sT1}, {OUT}")
        for s in range(3):
            A(f"s_lshl_b32 s{sT2}, s{sF[s]}, 5")
            A(f"s_add_u32 s{sT2}, s{sT2}, s{sT1}")
            A(f"v_add_u32 v{vO[s]}, s{sT2}, v{q}")
        return ops
    place(step_start[10], oaddr())

    def epi_ops(key, addr, off):
        return [("V", lambda: I(f"v_cvt_pk_bf16_f32 v{acc[key]}, v{acc[key]}, v{acc[key]+1}")),
                ("V", lambda: I(f"v_cvt_pk_bf16_f32 v{acc[key]+1}, v{acc[key]+2}, v{acc[key]+3}")),
                ("D", lambda: e.lds(f"ds_write_b64 v{addr}, {vr(acc[key], 2)} offset:{off}"))]

    place(go_gap, [flag(14)])
    for g_, k_ in early_go:
        place(g_, [flag(k_)])
    def after(n):
        g, c = n, 0
        while g < N:
            c += sum(1 for ch in cl[g] if ch != "W")
            if c >= 8:
                return g
            g += 1
            c += 1
            if c >= 8:
                return g
        return None

    def epi2(key, addr, off):
        return [("V", lambda: I(f"v_cvt_pk_bf16_f32 v{acc[key]}, v{acc[key]}, v{acc[key]+1}")),
                ("V", lambda: I(f"v_cvt_pk_bf16_f32 v{acc[key]+1}, v{acc[key]+2}, v{acc[key]+3}")),
                ("d", lambda: e.lds(f"ds_write_b32 v{addr}, v{acc[key]} offset:{off}")),
                ("d", lambda: e.lds(f"ds_write_b32 v{addr}, v{acc[key]+1} offset:{off+4}"))]

    g = 0
    for st, last in ((0, y0last), (1, 23)):
        if st == 0:
            g = last_acc[(y0last, (0, 0, 0))] + opt["y0at"]
        if st == 1:
            g = place(g, [("V", lambda s=s: I(f"v_add_u32 v{vO[s]}, {6*OROW}, v{vO[s]}")) for s in range(3)])
        done = {m: (last_acc[(last, ("X", st))] if m == "X" else last_acc[(last, (m, st, 0))]) for m in order}
        ep = epi2 if (st == 0 and opt["dd"] >= 1) else epi_ops
        for m in sorted(order, key=lambda m: done[m]):
            if st == 1 and opt["dd"] >= 2:
                ep = epi2 if m in ("X", 0, 1, 2) else epi_ops
            if m == "X":
                g = place(max(g, after(done[m])), ep(("X", st), vOX, 2304 * st) + [flag(12 + st)])
                continue
            o3 = [ep((m, st, s), vO[s], m * OROW) for s in range(3)]
            g0 = after(done[m] + 2)
            if g0 is None or g >= N:
                have = (N - 1 - (done[m] + 2)) + sum(sum(1 for ch in cl[k] if ch != "W") for k in range(done[m] + 2, N + 1))
                if have < 8:
                    put(N, ("S", lambda n_=8 - have: I(f"s_nop {n_ - 1}")))
                for op in [o for t in o3 for o in t if o[0] == "V"] + [o for t in o3 for o in t if o[0] != "V"] + [flag(6 * st + m)]:
                    put(N, op)
                g = N
                continue
            g = max(g, after(done[m]))
            g = place(g, o3[0])
            g = place(max(g, after(done[m] + 1) or N), o3[1])
            g = place(max(g, g0), o3[2] + [flag(6 * st + m)])

    if opt["cst"] >= 0:
        for k in range(15):
            g = step_start[opt["cst"]] + k * opt["cev"]
            if g < N:
                fill[g].append(e.stamp)
    ckread(448, "rdy0")[1]()
    check1("rdy0")()
    check(448, 4, "rdy0")()
    e.stamp()
    for gi in range(4):
        vread(gi)[1]()
    started = set()
    for n, (gi, key, i, s) in enumerate(stream):
        step = groups[gi]["step"]
        kind, st, c = step_info(step)
        e.need([f"v{gi}", f"w{step}_{i}"])
        d = acc[key]
        cc = d
        if step in (0, 2) and key not in started:
            started.add(key)
            cc = acc[(5, st, s)]
        I(f"v_mfma_f32_16x16x32_bf16 {vr(d)}, {vr(W(step, i, s))}, {vr(VR + 4*(gi % 4))}, {vr(cc)}")
        for f in fill[n]:
            f()
    e.stamp()
    for f in fill[N]:
        f()
    e.stamp()
    e.dump_stamps("c")
    I("s_endpgm")
    return e.L + cold


xA, xB, xC, eA, eB, eC = 1, 2, 3, 4, 5, 6
wE = [7, 8, 9, 10]
wX = [11, 12]
TMP = 13
OB = 26
RAW = 58
RAWX = 178


def PD(p, j):
    return RAW + 40 * p + 4 * j


def PX(p, j):
    return RAWX + 24 * p + 4 * j


sEM = 100


def masked(e, on):
    if on:
        e.I(f"s_mov_b64 exec, s[{sEM}:{sEM+1}]")


def unmask(e, on):
    if on:
        e.I("s_mov_b64 exec, -1")


def xload(e, p, j):
    a, off = (xA, 0) if j == 0 else ((xC, 0) if j == 9 else (xB, (j - 1) * 384))
    m = e.opt["dedup"] and j >= 8
    masked(e, m)
    e.vmem(f"buffer_load_dwordx4 {vr(PD(p, j))}, v{a}, s[{sX}:{sX+3}], 0 offen offset:{off + 128*p} {e.opt['xf']}", f"x{p}_{j&1}")
    unmask(e, m)


def eload(e, p, j):
    a, off = (eA, 0) if j == 0 else ((eC, 0) if j == 5 else (eB, (j - 1) * 384))
    m = e.opt["dedup"] and j >= 4
    masked(e, m)
    e.vmem(f"buffer_load_dwordx4 {vr(PX(p, j))}, v{a}, s[{sX}:{sX+3}], 0 offen offset:{off + 128*p} {e.opt['xf']}", f"e{p}_{j&1}")
    unmask(e, m)


sW0, sW1, sW2, sW3 = 41, 42, 43, 44


def worker_pre(e, opt, part=3, cons=False):
    I = e.I
    t1, t2, t3 = 18, 19, 20
    eA, eB = (96, 97) if cons else (4, 5)
    sPW = sWAVE if cons else 55
    sRING = sPOLL if cons else 52
    if part & 1:
        if opt["w8"]:
            I(f"s_bfe_u32 s{sW0}, s2, {1 | (2 << 16)}")
            I(f"s_mul_i32 s{sW0}, s{sW0}, 7")
            I(f"s_add_u32 s{sW2}, s{sW0}, s{sIDX}")
            I(f"s_mul_i32 s{sW0}, s{sW2}, 43")
            I(f"s_lshr_b32 s{sW0}, s{sW0}, 7")
            I(f"s_mul_i32 s{sW3}, s{sW0}, 3")
            I(f"s_sub_u32 s{sW2}, s{sW2}, s{sW3}")
            I(f"s_lshl_b32 s{sW2}, s{sW2}, 1")
            if cons:
                I(f"s_add_u32 s{sW2}, s{sW2}, 1")
            I(f"s_cmp_lt_u32 s{sW0}, 9")
            I(f"s_cselect_b32 s{sCNT}, 0, s{sINV}")
        else:
            I(f"s_and_b32 s{sW0}, s2, 7")
            I(f"s_cmp_lt_u32 s{sIDX}, 6")
            I(f"s_cselect_b32 s{sW2}, s{sIDX}, s{sW0}")
            I(f"s_cselect_b32 s{sW0}, s{sW0}, 8")
            I(f"s_cmp_lt_u32 s{sW2}, 6")
            I(f"s_cselect_b32 s{sCNT}, 0, s{sINV}")
        I(f"s_mul_i32 s{sW1}, s{sW0}, 11")
        I(f"s_lshr_b32 s{sW1}, s{sW1}, 5")
        I(f"s_mul_i32 s{sW3}, s{sW1}, 3")
        I(f"s_sub_u32 s{sW0}, s{sW0}, s{sW3}")
        I(f"s_lshl_b32 s{sW0}, s{sW0}, 2")
        I(f"s_add_u32 s{sW0}, s{sW0}, s{sPW}")
        I(f"s_mul_i32 s{sOFF}, s{sW1}, {3*73728}")
        I(f"s_mul_i32 s{sOFF2}, s{sW2}, 12288")
        I(f"s_add_u32 s{sOFF}, s{sOFF}, s{sOFF2}")
        I(f"s_lshl_b32 s{sOFF2}, s{sW0}, 5")
        I(f"s_add_u32 s{sOFF}, s{sOFF}, s{sOFF2}")
        I(f"v_bfe_u32 v{t1}, v0, 3, 2")
        I(f"v_lshlrev_b32 v{t1}, 3, v{t1}")
        I(f"v_lshrrev_b32 v{t2}, 5, v0")
        I(f"v_lshl_add_u32 v{t1}, v{t2}, 2, v{t1}")
        I(f"v_bfe_u32 v{t2}, v0, 1, 2")
        I(f"v_add_u32 v{t1}, v{t1}, v{t2}")
        I(f"v_mul_u32_u24 v{t1}, 384, v{t1}")
        I(f"v_and_b32 v{t2}, 1, v0")
        I(f"v_lshl_add_u32 v{eA}, v{t2}, 4, v{t1}")
        I(f"s_mul_i32 s{sRING}, s{sPW}, 6144")
        I(f"s_add_u32 s{sRING}, s{sRING}, {PRE + (3072 if cons else 0)}")
        I(f"s_mov_b32 m0, s{sRING}")
    if not part & 2:
        return
    if part & 1:
        I("s_waitcnt lgkmcnt(0)")
    srd(e, sW, sKA + 2, WBYTES)
    nu = 2 if opt["w8"] == 1 else 1
    for k in range(3 * nu):
        e.vmem(f"buffer_load_dwordx4 v{eA}, s[{sW}:{sW+3}], s{sOFF} offen lds", f"pre{k // 3}")
        if k < 3 * nu - 1:
            I(f"s_add_u32 m0, s{sRING}, {1024*(k+1)}")
            if k == 2:
                I(f"s_sub_u32 s{sOFF}, s{sOFF}, {2*73728 - 12288}")
            else:
                I(f"s_add_u32 s{sOFF}, s{sOFF}, 73728")
    I(f"s_mul_i32 s{sOFF}, s{sW2}, 36864")
    I(f"s_mul_i32 s{sW0}, s{sW0}, 3")
    I(f"s_add_u32 s{sW0}, s{sW0}, s{sW1}")
    I(f"s_lshl_b32 s{sW0}, s{sW0}, 10")
    I(f"s_add_u32 s{sOFF}, s{sOFF}, s{sW0}")
    I(f"s_or_b32 s{sOFF}, s{sOFF}, s{sCNT}")
    I(f"v_lshl_add_u32 v{eB}, v0, 4, s{sOFF}")


def prepass(e, opt, un, G, U, eB, eC):
    I = e.I
    e.need(f"pre{un}")
    if opt["pst"] == 2 and un == 0:
        e.stamp()
    for j in range(3):
        for h in range(2):
            e.lds(f"ds_read_b64_tr_b16 {vr(G + 4*j + 2*h, 2)}, v{eC} offset:{3072*un + 1024*j + 512*h}", f"pt{j}")
    for j in (0, 2, 1):
        e.need(f"pt{j}")
        for k in range(4):
            I(f"v_lshlrev_b32 v{U + 8*j + 2*k}, 16, v{G + 4*j + k}")
            I(f"v_and_b32 v{U + 8*j + 2*k + 1}, s{sMASK}, v{G + 4*j + k}")
        if j == 2:
            for kk in range(8):
                I(f"v_add_f32 v{U+kk}, v{U+kk}, v{U+16+kk}")
    for kk in range(8):
        I(f"v_sub_f32_e64 v{U+16+kk}, v{U+kk}, v{U+8+kk} div:2")
        I(f"v_add_f32_e64 v{U+kk}, v{U+kk}, v{U+8+kk} div:2")
    for k in range(4):
        I(f"v_cvt_pk_bf16_f32 v{G+12+k}, v{U+2*k}, v{U+2*k+1}")
        I(f"v_cvt_pk_bf16_f32 v{G+16+k}, v{U+16+2*k}, v{U+16+2*k+1}")
    for pos, r in ((0, G + 12), (1, G + 16), (2, G), (3, G + 8)):
        I(f"s_mov_b32 s{sOFF}, {(pos*6 + un)*36864}")
        e.vmem(f"buffer_store_dwordx4 {vr(r)}, v{eB}, s[{sU}:{sU+3}], s{sOFF} offen sc1", "ust")


def producer_main(e, opt, loads=True, mid=None):
    I = e.I
    t0, t1, t2, t3 = 13, 14, 15, 16
    decode_main(e)
    I(f"v_and_b32 v{t0}, 3, v0")
    I(f"v_bfe_u32 v{t1}, v0, 2, 2")
    I(f"v_bfe_u32 v{t2}, v0, 4, 1")
    I(f"v_lshrrev_b32 v{wE[0]}, 5, v0")
    I(f"s_lshl_b32 s{sT0}, s{sPW}, 1")
    I(f"s_add_u32 s{sT0}, s{sT0}, s{sROW0}")
    I(f"s_mul_i32 s{sT0}, s{sT0}, 86016")
    I(f"s_mul_i32 s{sT1}, s{sSTRIP}, 12288")
    I(f"s_add_u32 s{sT0}, s{sT0}, s{sT1}")
    I(f"s_sub_u32 s{sT0}, s{sT0}, 86016")
    I(f"v_mul_u32_u24 v{t3}, 86016, v{t2}")
    I(f"v_lshl_add_u32 v{t3}, v{t0}, 4, v{t3}")
    I(f"v_lshl_add_u32 v{t3}, v{wE[0]}, 6, v{t3}")
    I(f"v_mul_u32_u24 v{xB}, 3072, v{t1}")
    I(f"v_add3_u32 v{xB}, v{xB}, v{t3}, s{sT0}")
    I(f"v_cmp_gt_i32 vcc, 0, v{xB}")
    I(f"v_lshl_add_u32 v{t3}, s{sSTRIP}, 2, v{t1}")
    I(f"v_mov_b32 v{xC}, s{sINV}")
    I(f"v_cndmask_b32 v{xB}, v{xB}, v{xC}, vcc")
    I(f"v_cmp_ne_u32 vcc, 0, v{t3}")
    I(f"v_subrev_u32 v{xA}, 384, v{xB}")
    I(f"v_add_u32 v{wE[1]}, 3072, v{xB}")
    I(f"v_cndmask_b32 v{xA}, v{xC}, v{xA}, vcc")
    I(f"v_cmp_ne_u32 vcc, 27, v{t3}")
    if opt["dedup"]:
        I(f"s_mov_b32 s{sEM}, 0xf000f000")
        I(f"s_mov_b32 s{sEM+1}, 0xf000f000")
    I("s_waitcnt lgkmcnt(0)")
    srd(e, sX, sKA, XBYTES)
    I(f"v_cndmask_b32 v{xC}, v{xC}, v{wE[1]}, vcc")
    if opt["d_st"] and loads:
        I(f"s_sleep {opt['d_st']}")
    if mid:
        mid()
    for j in (0, 2, 4, 6, 8) if loads else ():
        xload(e, 0, j)


def producer(parent, opt, kind):
    e = Em(opt, parent)
    I = e.I
    t0, t1, t2, t3, t4 = 13, 14, 15, 16, 17
    X = kind == "x"
    G = RAWX
    if kind == "w":
        if opt["wo"] == -1:
            for j in (1, 3, 5, 7, 9):
                xload(e, 0, j)
        if opt["wp1"]:
            I("s_barrier")
        srd(e, sU, sWS, UBYTES)
        I(f"v_lshrrev_b32 v{eC}, 2, v0")
        I(f"v_lshlrev_b32 v{eC}, 5, v{eC}")
        I(f"v_lshl_add_u32 v{eC}, v{t0}, 3, v{eC}")
        I(f"v_add_u32 v{eC}, s{sRING}, v{eC}")
        if opt["pst"] == 2:
            e.stamp()
        for un in range(2 if opt["w8"] == 1 else 1):
            prepass(e, opt, un, RAWX + 20 * un, RAWX + 40, eB, eC)
        if opt["wo"] == -2:
            for j in (0, 2, 4, 6, 8, 1, 3, 5, 7, 9):
                xload(e, 0, j)
        if opt["pst"]:
            e.stamp()
    if kind == "n" and opt["xo"] and opt["pro"] != "alpha":
        for j in (1, 3, 5, 7, 9):
            xload(e, 0, j)
    I(f"s_lshl_b32 s{sT0}, s{sPW}, 1")
    I(f"v_add_u32 v{t2}, s{sT0}, v{t2}")
    I(f"v_mul_u32_u24 v{wE[0]}, {VHALF}, v{wE[0]}")
    I(f"v_lshl_add_u32 v{wE[0]}, v{t2}, 10, v{wE[0]}")
    I(f"v_lshlrev_b32 v{t3}, 2, v{t1}")
    I(f"v_lshl_add_u32 v{t3}, v{t0}, 4, v{t3}")
    I(f"v_add_u32 v{t3}, v{t3}, v{t0}")
    I(f"v_lshl_add_u32 v{wE[0]}, v{t3}, 4, v{wE[0]}")
    for k in range(1, 4):
        I(f"v_xor_b32 v{wE[k]}, {16*k}, v{wE[0]}")
    decode_extra(e)
    srd(e, sO, sKA + 6, XBYTES)
    if X:
        if opt["dedup"]:
            I(f"v_bfe_u32 v{t1}, v0, 2, 3")
        else:
            I(f"v_bfe_u32 v{t1}, v0, 2, 1")
            I(f"v_lshlrev_b32 v{t1}, 1, v{t1}")
            I(f"v_bfe_u32 v{t2}, v0, 3, 1")
            I(f"v_bfe_u32 v{t3}, v0, 4, 1")
            I(f"v_lshlrev_b32 v{t3}, 2, v{t3}")
            I(f"v_or3_b32 v{t1}, v{t1}, v{t2}, v{t3}")
        I(f"s_add_u32 s{sT0}, s{sEROW}, s{sPW}")
        I(f"s_sub_u32 s{sT0}, s{sT0}, 1")
        I(f"s_mul_i32 s{sT1}, s{sT0}, 86016")
        I(f"s_cmp_lt_u32 s{sT0}, 224")
        I(f"s_cselect_b32 s{sT1}, s{sT1}, s{sINV}")
        I(f"s_lshl_b32 s{sT0}, s{sES}, 5")
        I(f"v_lshl_add_u32 v{t4}, v{t1}, 2, s{sT0}")
        I(f"v_mul_u32_u24 v{t2}, 384, v{t4}")
        I(f"v_lshl_add_u32 v{t2}, v{t0}, 4, v{t2}")
        I(f"v_lshrrev_b32 v{t3}, 5, v0")
        I(f"v_lshl_add_u32 v{t2}, v{t3}, 6, v{t2}")
        I(f"v_add_u32 v{eB}, s{sT1}, v{t2}")
        I(f"v_cmp_ne_u32 vcc, 0, v{t4}")
        I(f"v_subrev_u32 v{t2}, 384, v{eB}")
        I(f"v_mov_b32 v{eA}, s{sINV}")
        I(f"v_cndmask_b32 v{eA}, v{eA}, v{t2}, vcc")
        I(f"v_cmp_ne_u32 vcc, 220, v{t4}")
        I(f"v_add_u32 v{t2}, 1536, v{eB}")
        I(f"v_mov_b32 v{eC}, s{sINV}")
        I(f"v_cndmask_b32 v{eC}, v{eC}, v{t2}, vcc")
        for j in (0, 2, 4):
            eload(e, 0, j)
        if opt["pro"] != "alpha":
            if opt["xo"]:
                for j in (1, 3, 5, 7, 9):
                    xload(e, 0, j)
            for j in (1, 3, 5):
                eload(e, 0, j)
        I(f"v_lshlrev_b32 v{t1}, 1, v{t1}")
        I(f"v_xor_b32 v{t1}, v{t1}, v{t0}")
        I(f"v_lshl_add_u32 v{t1}, v{t0}, 4, v{t1}")
        I(f"v_lshlrev_b32 v{t1}, 4, v{t1}")
        I(f"v_mul_u32_u24 v{t3}, {VHALF}, v{t3}")
        I(f"s_add_u32 s{sT0}, s{sPW}, 8")
        I(f"s_lshl_b32 s{sT0}, s{sT0}, 10")
        I(f"v_add3_u32 v{wX[0]}, v{t1}, v{t3}, s{sT0}")
        I(f"v_xor_b32 v{wX[1]}, 16, v{wX[0]}")
    else:
        I(f"s_cmp_eq_u32 s{sPW}, 3")
        I(f"s_cselect_b32 s{sPEND}, 1, 0")
        if opt["rpf"] == 1:
            I(f"s_mul_i32 s{sT0}, s{sIDX}, {18*128}")
            I(f"v_min_u32 v253, 17, v0")
            I(f"v_lshl_add_u32 v253, v253, 7, s{sT0}")
        elif opt["rpf"] == 2:
            I(f"s_sub_u32 s{sT0}, s{sIDX}, 12")
            I(f"s_cmp_lt_u32 s{sIDX}, 7")
            I(f"s_cselect_b32 s{sT0}, s{sIDX}, s{sT0}")
            I(f"s_mul_i32 s{sT1}, s{sT0}, 13")
            I(f"s_lshr_b32 s{sT1}, s{sT1}, 6")
            I(f"s_mul_i32 s{sT2}, s{sT1}, 5")
            I(f"s_sub_u32 s{sL}, s{sT0}, s{sT2}")
            I(f"s_cmp_eq_u32 s{sHASX}, 0")
            I(f"s_cselect_b32 s{sL}, s{sL}, 9")
            I(f"s_cmp_eq_u32 s{sPW}, 3")
            I(f"s_cselect_b32 s{sL}, s{sL}, 9")
            I(f"s_mul_i32 s{sT1}, s{sT1}, {144*128}")
            I(f"v_min_u32 v253, 47, v0")
            I(f"v_lshl_add_u32 v253, v253, 7, s{sT1}")
        I(f"v_mov_b32 v250, {FLAGS + 15*16}")
        if kind == "n":
            srd(e, sU, sWS, UBYTES)
    I(f"v_mov_b32 v251, 1")
    I(f"v_mov_b32 v252, {FLAGS}")

    def pollflag(idx, lab, slp, r=16):
        e.label(lab)
        I(f"ds_read_b128 {vr(r)}, v252 offset:{idx*16}")
        I("s_waitcnt lgkmcnt(0)")
        e.lg = []
        I(f"v_and_b32 v{r}, v{r}, v{r+1}")
        I(f"v_and_b32 v{r+2}, v{r+2}, v{r+3}")
        I(f"v_and_b32 v{r}, v{r}, v{r+2}")
        I("s_nop 0")
        I(f"v_readfirstlane_b32 s{sT0}, v{r}")
        I(f"s_cmp_eq_u32 s{sT0}, 1")
        I(f"s_cbranch_scc1 {lab}_ok")
        if slp:
            I(f"s_sleep {slp}")
        I(f"s_branch {lab}")
        e.label(lab + "_ok")

    upf_from = [(3 if opt["order"] == 2 else opt["pollu"] + 1) + opt["rlead"]]
    upf_from[0] = max(upf_from[0], opt["nraw"] // 2)

    def upf(t, sfx=''):
        if X or not opt["rpf"]:
            return
        k, st, p = UNITS[t]
        base = ((st if k == "B" else 2 + st) * 6 + 2 * p) * 36864
        lab = f"L_UP{kind}{t}{sfx}"
        if opt["rpf"] == 1:
            I(f"s_cmp_eq_u32 s{sPW}, 3")
            I(f"s_cbranch_scc0 {lab}")
            I(f"s_mov_b32 s{sT1}, {base}")
            I(f"buffer_load_dword v254, v253, s[{sU}:{sU+3}], s{sT1} offen sc1")
        else:
            I(f"s_cmp_eq_u32 s{sL}, {t % 5}")
            I(f"s_cbranch_scc0 {lab}")
            for q in range(3):
                I(f"s_mov_b32 s{sT1}, {base + q*48*128}")
                I(f"buffer_load_dword v254, v253, s[{sU}:{sU+3}], s{sT1} offen sc1")
        e.label(lab)

    def waitfree(u, r=16):
        e.jit(20 + u)
        if u >= 3:
            pollflag(16 + u - 3, f"L_FR{kind}{u}", opt["psl"], r)
            if upf_from[0] <= u + opt["rlead"] <= 11:
                upf(u + opt["rlead"])

    def ready(u):
        e.jit(u)
        I("s_mov_b64 exec, 1")
        e.lds(f"ds_add_u32 v252, v251 offset:{448 + 4*u}")
        I("s_mov_b64 exec, -1")
        if not opt["pst"] or e.nst < 15:
            e.stamp()

    def xl(p, par):
        sl = opt["d_sl"] if p == 2 else 0
        for j in range(par, 10, 2):
            xload(e, p, j)
            if sl:
                I(f"s_sleep {sl if X else (sl * 8) // 5}")
        if X:
            for j in range(par, 6, 2):
                eload(e, p, j)
                if sl:
                    I(f"s_sleep {sl}")

    def parse(t):
        d = {}
        for item in t.split(","):
            when, what = item.split(":")
            d.setdefault(when, []).append((int(what[0]), 0 if what[1] == "e" else 1))
        return d
    xsX = parse(opt.get("xsx") or opt["xs"])
    xsN = parse(opt["xs"])
    xs = xsX if X else xsN
    seen = set()

    def xsched(when):
        if kind != "n":
            for p, par in xs.get(when, []):
                xl(p, par)
            return
        a, b = xsX.get(when, []), xsN.get(when, [])
        for it in a + [t for t in b if t not in a]:
            both = it in a and it in b
            if not both:
                lab = f"L_XS{when}_{it[0]}{it[1]}"
                I(f"s_cmp_eq_u32 s{sHASX}, {1 if it in a else 0}")
                I(f"s_cbranch_scc0 {lab}")
            keep = list(e.vm)
            xl(*it)
            if not both:
                e.label(lab)
                if it not in seen:
                    e.vm = keep
                seen.add(it)

    pend = []
    novalu = [False]
    pace = [0, 0]

    def xpace(per, nvalu):
        for p, par in xs.get(f"{per}p", []):
            pend.extend([lambda j=j, p=p: xload(e, p, j) for j in range(par, 10, 2)])
            if X:
                pend.extend([lambda j=j, p=p: eload(e, p, j) for j in range(par, 6, 2)])
        if pend:
            pace[0] = max(1, nvalu // len(pend))
            pace[1] = 0

    def V(s):
        if not (opt["d_nov"] and novalu[0]):
            I(s)
        pace[1] += 1
        if pend and pace[1] % pace[0] == 0:
            pend.pop(0)()

    def later(f):
        if not opt["wsp"]:
            return f()
        if not pend:
            pace[0], pace[1] = opt["wsp"], 0
        pend.append(f)

    def flush():
        while pend:
            pend.pop(0)()

    def unp(dst, src):
        V(f"v_lshlrev_b32 v{dst}, 16, v{src}")
        V(f"v_and_b32 v{dst+1}, s{sMASK}, v{src}")

    def vwrite(addr, src, u):
        if opt["d_now"] and u >= 2:
            return
        e.lds(f"ds_write_b128 v{addr}, {vr(src)} offset:{VS[u % 3]}")

    T16 = list(range(13, 26)) + [54, 55, 56]

    def chainA(D, n, par, neg, waddr, u, ob, wf=False):
        op = "v_subrev_f32" if neg else "v_sub_f32"
        A, B = T16[:8], T16[8:]

        def unp8(R, src):
            for k in range(4):
                V(f"v_lshlrev_b32 v{R[2*k]}, 16, v{src+k}")
                V(f"v_and_b32 v{R[2*k+1]}, s{sMASK}, v{src+k}")
        unp8(A, D(par))
        for j in range(n):
            unp8(B, D(par + 2 * j + 2))
            for k in range(8):
                V(f"{op} v{A[k]}, v{A[k]}, v{B[k]}")
            for k in range(4):
                V(f"v_cvt_pk_bf16_f32 v{ob + 4*(j & 1) + k}, v{A[2*k]}, v{A[2*k+1]}")
            if wf and j == 0:
                waitfree(u, 44)
            vwrite(waddr[j], ob + 4 * (j & 1), u)
            if kind == "w" and u == 1 and opt["wta"] == 10 + j:
                signal()
            if kind == "w" and u == 1 and opt["two"] == 10 + j:
                publish()
            A, B = B, A

    fixed = set()

    def needx(p, pars, ext):
        e.need([f"{'e' if ext else 'x'}{p}_{par}" for par in pars])
        for par in pars:
            if opt["dedup"] and (p, par, ext) not in fixed:
                fixed.add((p, par, ext))
                dst, src = (PX(p, 4 + par), PX(p, par)) if ext else (PD(p, 8 + par), PD(p, par))
                for k in range(4):
                    V(f"v_mov_b32_dpp v{dst+k}, v{src+k} row_shl:4 row_mask:0xf bank_mask:0x7")

    def tA(u, main=True, ext=True):
        kind_, st, p = UNITS[u]
        neg = (st == 1 and any(UNITS[t][0] == "B" for t in range(u)))
        if main:
            needx(p, [st], False)
            if opt["pst"] and u <= 1:
                e.stamp()
            chainA(lambda j: PD(p, j), 4, st, neg, wE, u, OB, True)
        if X and ext:
            needx(p, [st], True)
            chainA(lambda j: PX(p, j), 2, st, neg, wX, u, OB + 8)

    def pairB(d1, d2, o1, o2):
        for k0 in (0, 2):
            for k in (k0, k0 + 1):
                a = TMP + 6 * (k & 1)
                unp(a, d1 + k); unp(a + 2, d2 + k)
            for k in (k0, k0 + 1):
                a = TMP + 6 * (k & 1)
                b, s = a + 2, a + 4
                V(f"v_add_f32 v{s}, v{a}, v{b}"); V(f"v_add_f32 v{s+1}, v{a+1}, v{b+1}")
                V(f"v_sub_f32 v{a}, v{b}, v{a}"); V(f"v_sub_f32 v{a+1}, v{b+1}, v{a+1}")
            for k in (k0, k0 + 1):
                a = TMP + 6 * (k & 1)
                V(f"v_cvt_pk_bf16_f32 v{o1+k}, v{a+4}, v{a+5}")
                V(f"v_cvt_pk_bf16_f32 v{o2+k}, v{a}, v{a+1}")

    npoll = [0]

    def trypoll(final=False):
        if X:
            return
        n = npoll[0]
        npoll[0] += 1
        lab = f"L_PL{kind}{n}"
        I(f"s_cmp_eq_u32 s{sPEND}, 0")
        I(f"s_cbranch_scc1 {lab}_skip")
        if n == 0:
            if opt["pdel"]:
                I(f"s_sleep {opt['pdel']}")
            I(f"s_load_dword s{sPOLL}, s[{sDBG}:{sDBG+1}], {128 if opt['two'] else 0}")
            e.label(lab + "_skip")
            return
        I("s_waitcnt lgkmcnt(0)")
        tgt = 0 if opt["noatom"] else NW[0]
        if final:
            I(f"s_mov_b32 s{sCNT}, {n}")
            I(f"v_mov_b32 v255, 0")
            e.label(lab)
            I(f"s_cmp_ge_u32 s{sPOLL}, {tgt}")
            I(f"s_cbranch_scc1 {lab}_ok")
            I(f"s_sleep {opt['pslp']}")
            I(f"s_cmp_ge_u32 s{sCNT}, {2 if opt['two'] else 4}")
            I(f"s_cbranch_scc1 {lab}_v")
            I(f"s_lshl_b32 s{sT0}, s{sCNT}, 6")
            if opt["two"]:
                I(f"s_add_u32 s{sT0}, s{sT0}, 128")
            I(f"s_load_dword s{sPOLL}, s[{sDBG}:{sDBG+1}], s{sT0}")
            I(f"s_add_u32 s{sCNT}, s{sCNT}, 1")
            I("s_waitcnt lgkmcnt(0)")
            I(f"s_branch {lab}")
            e.label(lab + "_v")
            I(f"global_load_dword v254, v255, s[{sDBG}:{sDBG+1}] offset:{128 if opt['two'] else 0} sc1")
            I(f"s_add_u32 s{sCNT}, s{sCNT}, 1")
            I("s_waitcnt vmcnt(0)")
            I(f"v_readfirstlane_b32 s{sPOLL}, v254")
            I(f"s_cmp_lt_u32 s{sCNT}, 20000")
            I(f"s_cbranch_scc1 {lab}")
        else:
            I(f"s_cmp_ge_u32 s{sPOLL}, {tgt}")
            I(f"s_cbranch_scc1 {lab}_ok")
            I(f"s_load_dword s{sPOLL}, s[{sDBG}:{sDBG+1}], {64*n + (128 if opt['two'] else 0)}")
            I(f"s_branch {lab}_skip")
        e.label(lab + "_ok")
        if opt["pst"]:
            I(f"s_memrealtime s[{sST + 2*pslot[0]}:{sST + 2*pslot[0] + 1}]")
            I(f"s_mov_b32 s{sST + 2*pslot[0] + 2}, " + (f"s{sCNT}" if final else f"{n}"))
        I("ds_write_b32 v250, v251")
        I(f"s_mov_b32 s{sPEND}, 0")
        for t in range(opt["nraw"] // 2, upf_from[0]):
            upf(t, f"_{n}")
        e.label(lab + "_skip")

    pslot = [0]

    def wpoint():
        pollflag(31, f"L_WI{kind}", opt["psl"], 20)
        if opt["otlb"] == 2 or (opt["otlb"] == 1 and kind == "w"):
            I("s_mov_b64 exec, 1")
            e.vmem(f"buffer_load_dword v254, v{xB}, s[{sO}:{sO+3}], 0 offen")
            I("s_mov_b64 exec, -1")
        xsched("w")

    def tB1(u):
        p = UNITS[u][2]
        e.need([f"x{p}_0", f"x{p}_1"] + ([f"e{p}_0", f"e{p}_1"] if X else []))
        needx(p, [0], False)
        if X:
            needx(p, [0], True)
        for ee in range(4):
            pairB(PD(p, 1 + 2 * ee), PD(p, 2 + 2 * ee), OB + 4 * (ee & 1), OB + 8 + 4 * ee)
            if ee == 0:
                waitfree(u)
                xpace(u, 200 if X else 120)
            vwrite(wE[ee], OB + 4 * (ee & 1), u)
            if u == 2 and ee == opt["wat"]:
                wpoint()
            if u == 2 and ee >= opt["pat"]:
                if ee == opt["pat"] and opt["pst"] and not X:
                    pslot[0] = e.nst
                    e.nst += 2
                trypoll()
                if ee == 3:
                    trypoll(final=True)
        if X:
            e.need([f"e{p}_0", f"e{p}_1"])
            for ee in range(2):
                pairB(PX(p, 1 + 2 * ee), PX(p, 2 + 2 * ee), OB + 4 * ee, OB + 24 + 4 * ee)
                vwrite(wX[ee], OB + 4 * ee, u)
        flush()
        ready(u)

    def tB2(u):
        waitfree(u + 1)
        xsched(f"f{u}")
        for ee in range(4):
            vwrite(wE[ee], OB + 8 + 4 * ee, u + 1)
        if X:
            for ee in range(2):
                vwrite(wX[ee], OB + 24 + 4 * ee, u + 1)
        ready(u + 1)

    n1 = 1 if X else opt["n1"]

    def bar():
        e.drain_lg()
        if not opt["pst"] or e.nst < 15:
            e.stamp()
        I("s_barrier")

    def atom_mark():
        assert not e.vm
        e.vm.append("atom")

    def signal():
        e.jit(60)
        e.need("ust")
        if opt["pst"]:
            e.stamp()
        I(f"v_mov_b32 v{eA}, {FLAGS + 15*16 + 4}")
        I("s_mov_b64 exec, 1")
        I(f"ds_add_rtn_u32 v{eC}, v{eA}, v251")
        I("s_waitcnt lgkmcnt(0)")
        e.lg = []
        I(f"v_readfirstlane_b32 s{sT0}, v{eC}")
        if opt["w8"] == 2:
            I(f"s_mov_b32 s{sT0}, 0")
            I(f"s_cmp_eq_u32 s{sPW}, 3")
            I("s_cbranch_scc0 L_W8B")
            e.label("L_W8A")
            I(f"ds_read_b32 v{eC}, v{eA}")
            I("s_waitcnt lgkmcnt(0)")
            I(f"v_readfirstlane_b32 s{sT0}, v{eC}")
            I(f"s_cmp_eq_u32 s{sT0}, 8")
            I("s_cbranch_scc0 L_W8A")
            I(f"s_mov_b32 s{sT0}, 3")
            e.label("L_W8B")
        if opt["two"] == 3:
            I("s_mov_b64 exec, -1")
            I(f"s_cmp_eq_u32 s{sT0}, 3")
            I("s_cbranch_scc0 L_NOATOM")
            I(f"s_mov_b32 s{sT0}, 1")
            I(f"s_atomic_add s{sT0}, s[{sDBG}:{sDBG+1}], 0 glc")
            I("s_waitcnt lgkmcnt(0)")
            I(f"s_cmp_eq_u32 s{sT0}, {NW[0] - 1}")
            I("s_cbranch_scc0 L_NOATOM")
            I(f"s_mov_b32 s{sT0}, {NW[0]}")
            I(f"s_mov_b32 s{sT1}, {NW[0]}")
            I(f"s_atomic_add s{sT0}, s[{sDBG}:{sDBG+1}], 128 glc")
            I(f"s_atomic_add s{sT1}, s[{sDBG}:{sDBG+1}], 192 glc")
            I("s_waitcnt lgkmcnt(0)")
            e.label("L_NOATOM")
            return
        if opt["two"]:
            I(f"v_mov_b32 v{eC}, 0")
        I(f"s_cmp_eq_u32 s{sT0}, 3")
        I("s_cbranch_scc0 L_NOATOM")
        if opt["two"]:
            I(f"v_mov_b32 v{eA}, 0")
            I(f"v_mov_b32 v{eC}, 1")
            I(f"global_atomic_add v{eC}, v{eA}, v{eC}, s[{sDBG}:{sDBG+1}] sc0 sc1")
        else:
            I("s_mov_b64 exec, 15")
            I(f"v_lshlrev_b32 v{eA}, 6, v0")
            if not opt["noatom"]:
                I(f"global_atomic_add v{eA}, v251, s[{sDBG}:{sDBG+1}] sc1")
        e.label("L_NOATOM")
        I("s_mov_b64 exec, -1")
        atom_mark()

    def publish():
        if kind != "w" or not opt["two"]:
            return
        e.need("atom")
        I(f"v_readfirstlane_b32 s{sT0}, v{eC}")
        I(f"s_cmp_eq_u32 s{sT0}, {NW[0] - 1}")
        I("s_cbranch_scc0 L_NOPUB")
        I("s_mov_b64 exec, 3")
        I(f"v_lshlrev_b32 v{eA}, 6, v0")
        I(f"v_mov_b32 v{eC}, {NW[0]}")
        I(f"global_store_dword v{eA}, v{eC}, s[{sDBG}:{sDBG+1}] offset:128 sc1")
        I("s_mov_b64 exec, -1")
        e.label("L_NOPUB")

    if opt["otlb"] == 1 and kind != "w":
        I("s_mov_b64 exec, 1")
        e.vmem(f"buffer_load_dword v254, v{xB}, s[{sO}:{sO+3}], 0 offen")
        I("s_mov_b64 exec, -1")
    if kind == "w" and opt["wo"] == 0:
        xl(0, 1)
    e.drain_lg()
    e.stamp()
    if not (kind == "w" and opt["wp1"]):
        I("s_barrier")
    if opt["pro"] == "alpha":
        I("s_barrier")
        if kind != "w" and opt["aord"] == 0:
            xl(0, 1)
    if kind == "w" and opt["wta"] == 0:
        signal()
        if opt["two"] == 1:
            publish()
        if opt["wo"] > 0:
            xl(0, 1)
    tA(0)
    ready(0)
    if opt["two"] == 2:
        publish()
    if kind == "w" and opt["wta"] == 1:
        signal()
        if opt["two"] == 1:
            publish()
        if opt["wo"] > 0:
            xl(0, 1)
    if opt["pro"] == "alpha" and kind != "w" and opt["aord"] == 1:
        xl(0, 1)
    xsched("a0")
    tA(1)
    ready(1)
    if kind == "w" and opt["wta"] == 2:
        signal()
    xsched("a1")
    novalu[0] = True
    for u in range(2, 12):
        k, st, p = UNITS[u]
        if k == "A":
            if u == 2:
                wpoint()
            tA(u)
            ready(u)
            if u == opt["pollu"]:
                trypoll()
                trypoll(final=True)
            xsched(f"a{u}")
        elif st == 0:
            tB1(u)
            xsched(f"j{u}")
            tB2(u)
            xsched(f"k{u}")
    if True:
        if True:
            rA, rB, gA, gB, vXL, vXG = 1, 2, 3, 4, 5, 6
            I(f"s_mul_i32 s{sT0}, s{sROW0}, 86016")
            I(f"s_mul_i32 s{sT1}, s{sSTRIP}, 12288")
            I(f"s_add_u32 s{sT0}, s{sT0}, s{sT1}")
            I(f"s_mul_i32 s{sT1}, s{sPW}, 3072")
            I(f"s_add_u32 s{sT0}, s{sT0}, s{sT1}")
            I(f"s_mul_i32 s{sT1}, s{sPW}, 1600")
            I(f"s_add_u32 s{sT1}, s{sT1}, {OUT}")
            for j in range(3 if opt["st2"] else 0):
                I(f"v_add_u32 v{t0}, {64*j}, v0")
                I(f"v_mul_u32_u24 v{t1}, 1366, v{t0}")
                I(f"v_lshrrev_b32 v{t1}, 16, v{t1}")
                I(f"v_mul_u32_u24 v{t2}, 48, v{t1}")
                I(f"v_sub_u32 v{t2}, v{t0}, v{t2}")
                I(f"v_lshlrev_b32 v{t2}, 3, v{t2}")
                I(f"v_mul_u32_u24 v{t3}, 400, v{t1}")
                I(f"v_add3_u32 v{7+j}, v{t3}, v{t2}, s{sT1}")
                I(f"v_mul_u32_u24 v{t3}, 768, v{t1}")
                I(f"v_add3_u32 v{10+j}, v{t3}, v{t2}, s{sT0}")
                I(f"v_add_u32 v{20+j}, {6*OROW}, v{7+j}")
            for (r, gg, add) in ((rA, gA, 0), (rB, gB, 64)):
                I(f"v_add_u32 v{t0}, {add}, v0")
                I(f"v_min_u32 v{t0}, 95, v{t0}")
                I(f"v_mul_u32_u24 v{t1}, 10923, v{t0}")
                I(f"v_lshrrev_b32 v{t1}, 18, v{t1}")
                I(f"v_mul_u32_u24 v{t2}, 24, v{t1}")
                I(f"v_sub_u32 v{t2}, v{t0}, v{t2}")
                I(f"v_lshlrev_b32 v{t2}, 4, v{t2}")
                I(f"v_mul_u32_u24 v{t3}, 400, v{t1}")
                I(f"v_add3_u32 v{r}, v{t3}, v{t2}, s{sT1}")
                I(f"v_mul_u32_u24 v{t3}, 768, v{t1}")
                I(f"v_add3_u32 v{gg}, v{t3}, v{t2}, s{sT0}")
            I(f"v_cmp_gt_u32 vcc, 32, v0")
            I(f"v_mov_b32 v{t4}, s{sINV}")
            I(f"v_add_u32 v250, {6*OROW}, v{rA}")
            I(f"v_cndmask_b32 v{gB}, v{t4}, v{gB}, vcc")
            I(f"v_add_u32 v251, {6*OROW}, v{rB}")
            I(f"s_lshl_b32 s{sT0}, s{sPW}, 2")
            I(f"v_bfe_u32 v{t0}, v0, 3, 2")
            I(f"v_add_u32 v{t0}, s{sT0}, v{t0}")
            I(f"v_and_b32 v{t1}, 7, v0")
            I(f"v_mul_u32_u24 v{t2}, 144, v{t0}")
            I(f"v_lshl_add_u32 v{t2}, v{t1}, 4, v{t2}")
            I(f"v_add_u32 v{vXL}, {XST}, v{t2}")
            I(f"v_mul_u32_u24 v{t0}, 768, v{t0}")
            I(f"v_lshrrev_b32 v{t2}, 1, v{t1}")
            I(f"v_mul_u32_u24 v{t2}, 96, v{t2}")
            I(f"v_and_b32 v{t1}, 1, v{t1}")
            I(f"v_lshl_add_u32 v{t2}, v{t1}, 4, v{t2}")
            I(f"s_mul_i32 s{sT0}, s{sEROW}, 86016")
            I(f"s_mul_i32 s{sT1}, s{sES}, 12288")
            I(f"s_add_u32 s{sT0}, s{sT0}, s{sT1}")
            I(f"s_lshl_b32 s{sT1}, s{sF0}, 5")
            I(f"s_add_u32 s{sT0}, s{sT0}, s{sT1}")
            I(f"v_add3_u32 v{vXG}, v{t0}, v{t2}, s{sT0}")
            I(f"v_cndmask_b32 v{vXG}, v{t4}, v{vXG}, vcc")
    rA, rB, gA, gB, vXL, vXG = 1, 2, 3, 4, 5, 6
    sf = opt["sf"]
    nb = [0]

    def rowread(st, m, b):
        e.jit(40 + m + 6 * st)
        if opt["st2"]:
            for j in range(3):
                I(f"ds_read_b64 {vr(b + 2*j, 2)}, v{(7 if st == 0 else 20) + j} offset:{m*OROW}")
            return
        a0, a1 = (rA, rB) if st == 0 else (250, 251)
        I(f"ds_read_b128 {vr(b)}, v{a0} offset:{m*OROW}")
        I(f"ds_read_b128 {vr(b+4)}, v{a1} offset:{m*OROW}")

    def rowstore(st, m, b, w0=None, w1=None):
        sf = opt["sfl"] if st == 1 and m >= 6 - opt["nlast"] else opt["sf"]
        I(f"s_mov_b32 s{sOFF}, {m*86016}")
        if opt["st2"]:
            for j in range(3):
                if w0: I(f"s_waitcnt lgkmcnt({2-j})")
                I(f"buffer_store_dwordx2 {vr(b + 2*j, 2)}, v{10+j}, s[{sO}:{sO+3}], s{sOFF} offen offset:{384*st} {sf}")
            return
        if w0: I(w0)
        I(f"buffer_store_dwordx4 {vr(b)}, v{gA}, s[{sO}:{sO+3}], s{sOFF} offen offset:{384*st} {sf}")
        if w1: I(w1)
        I(f"buffer_store_dwordx4 {vr(b+4)}, v{gB}, s[{sO}:{sO+3}], s{sOFF} offen offset:{384*st} {sf}")

    def xpart(st, b):
        if kind == "w":
            return
        if kind == "n":
            I(f"s_cmp_eq_u32 s{sHASX}, 0")
            I(f"s_cbranch_scc1 L_NOX{st}")
        pollflag(12 + st, f"L_F{kind}X{st}", opt["slp"])
        I(f"ds_read_b128 {vr(b)}, v{vXL} offset:{2304*st}")
        I("s_waitcnt lgkmcnt(0)")
        I(f"buffer_store_dwordx4 {vr(b)}, v{vXG}, s[{sO}:{sO+3}], 0 offen offset:{384*st}")
        if kind == "n":
            e.label(f"L_NOX{st}")

    batches = [(14, range(6))]
    if opt["ego"]:
        a_, b_ = int(str(opt["ego"])[1]), int(str(opt["ego"])[2])
        batches = [(25, tuple(range(a_))), (26, tuple(range(a_, a_ + b_))), (14, tuple(range(a_ + b_, 6)))]
        batches = [t for t in batches if t[1] or t[0] == 14]
    for k_, rows in batches:
        if rows:
            pollflag(rows[-1], f"L_F{kind}0_{rows[-1]}", opt["psl"])
        for m in rows:
            rowread(0, m, 28 + 8 * m)
        pollflag(k_, f"L_F{kind}GO{k_}", opt["slp"])
        if k_ == 14 and not opt["pst"]:
            e.stamp()
        for m in rows:
            rowstore(0, m, 28 + 8 * m)
    xpart(0, 76)
    for m in [0, 1, "X", 2, 3, 4, 5]:
        if m == "X":
            xpart(1, 80)
            continue
        b = 84 + 8 * m
        pollflag(6 + m, f"L_F{kind}1_{m}", opt["slp"] if m < 4 else opt["slpl"])
        if m in (0, 5) and not opt["pst"]:
            e.stamp()
        rowread(1, m, b)
        rowstore(1, m, b, "s_waitcnt lgkmcnt(1)", "s_waitcnt lgkmcnt(0)")
    e.stamp()
    if opt["stamp"]:
        I("s_waitcnt vmcnt(0)")
        e.stamp()
    e.dump_stamps("p")
    I("s_endpgm")
    return e.L


def generate(**kw):
    opt = dict(DEF)
    opt.update(kw)
    opt["code_pf_lines"] = 20
    UNITS[:] = ORDERS[opt["order"]]
    NW[0] = 28 if opt["w8"] else 56
    assert not opt["wp1"]
    L = []
    L.append("; one 512-thread workgroup per CU: waves 0-3 MFMA, waves 4-7 input transform / output stores.")
    L.append(f"; @launch grid=(256,1,1) block=(512,1,1) lds={LDS_BYTES}")
    L.append('.amdgcn_target "amdgcn-amd-amdhsa--gfx950"')
    L.append(".text")
    L.append(f".globl {KNAME}")
    L.append(".p2align 8")
    L.append(f".type {KNAME},@function")
    L.append(f"{KNAME}:")
    e = Em(opt)
    I = e.I
    e.stamp()
    I(f"s_load_dwordx8 s[{sKA}:{sKA+7}], s[0:1], 0")
    I(f"s_load_dwordx4 s[{sDBG}:{sDBG+3}], s[0:1], 32")
    I("v_lshrrev_b32 v1, 6, v0")
    I("s_cmp_ge_u32 s2, 256")
    I("s_cbranch_scc1 L_END")
    I(f"v_readfirstlane_b32 s{sWAVE}, v1")
    I("v_and_b32 v0, 63, v0")
    if opt["epf"]:
        R = opt["epf"]
        I(f"s_getpc_b64 s[{sPC}:{sPC+1}]")
        I(f"s_bfe_u32 s{sT0}, s2, {3 | ((R.bit_length() - 1) << 16)}")
        I(f"v_min_u32 v2, {24 // R - 1}, v0")
        I(f"v_lshl_add_u32 v2, v2, {R.bit_length() - 1}, s{sT0}")
        I(f"v_mul_u32_u24 v1, {CS}, v1")
        I(f"v_lshl_add_u32 v2, v2, 7, v1")
        I(f"v_min_u32 v2, L_END-{KNAME}-256, v2")
        e.vmem(f"global_load_dword v255, v2, s[{sPC}:{sPC+1}]", "epf")
    I(f"s_mov_b32 s{sMASK}, 0xffff0000")
    I(f"s_mov_b32 s{sINV}, 0x80000000")
    I(f"s_lshr_b32 s{sIDX}, s2, 3")
    if opt["par"]:
        I(f"s_and_b32 s{sHASX}, s2, 1")
        I(f"s_xor_b32 s{sHASX}, s{sHASX}, {1 if opt['par'] == 1 else 0}")
        I(f"s_cmp_ge_u32 s{sIDX}, 8")
        I(f"s_cselect_b32 s{sHASX}, s{sHASX}, 0")
    else:
        I(f"s_sub_u32 s{sT0}, s{sIDX}, 7")
        I(f"s_cmp_lt_u32 s{sT0}, 12")
        I(f"s_cselect_b32 s{sHASX}, 1, 0")
    if opt["w8"] == 2:
        I(f"s_and_b32 s{sT0}, s2, 1")
        I(f"s_lshl_b32 s{sT0}, s{sT0}, 5")
        I(f"s_or_b32 s{sT0}, s{sT0}, s{sIDX}")
        I(f"s_cmp_lt_u32 s{sT0}, 7")
        I(f"s_cselect_b32 s{sL}, 1, 0")
    I(f"s_cmp_lt_u32 s{sWAVE}, 4")
    I("s_cbranch_scc1 L_CONS")
    I(f"s_sub_u32 s{sPW}, s{sWAVE}, 4")
    if opt["w8"] == 2:
        I(f"s_cmp_eq_u32 s{sL}, 1")
    elif opt["w8"]:
        I(f"s_and_b32 s{sT0}, s2, 1")
        I(f"s_lshl_b32 s{sT0}, s{sT0}, 5")
        I(f"s_or_b32 s{sT0}, s{sT0}, s{sIDX}")
        I(f"s_cmp_lt_u32 s{sT0}, 7")
    else:
        I(f"s_cmp_lt_u32 s{sIDX}, 7")
    if opt["wnear"] == 3:
        I(f"s_cselect_b32 s{sL}, 1, 0")
        L += e.L
        ep = Em(opt, e)
        worker_pre(ep, opt, 1)
        box = []

        def mid():
            ep.I(f"s_cmp_eq_u32 s{sL}, 0")
            ep.I("s_cbranch_scc1 L_PMAIN")
            w = Em(opt, ep)
            worker_pre(w, opt, 2)
            ep.L += w.L + ["    s_branch L_PW", "L_PMAIN:"]
            w.L = []
            if opt["wo"] != -2:
                for j in (0, 2, 4, 6, 8):
                    xload(w, 0, j)
            box.append(w)
        producer_main(ep, opt, mid=mid)
        epw = box[0]
    else:
        I({0: "s_cbranch_scc1 L_PW", 1: "s_cbranch_scc0 L_PMAIN", 2: "s_cbranch_scc1 L_WPRE"}[opt["wnear"]])
        L += e.L
        epw = Em(opt, e)
        worker_pre(epw, opt)
        wpre = []
        if opt["wnear"]:
            wpre, epw.L = epw.L + ["    s_branch L_PW"], []
        if opt["wnear"] == 1:
            L += wpre + ["L_PMAIN:"]
        producer_main(epw, opt, loads=opt["wo"] != -2)
        ep = Em(opt, e)
        producer_main(ep, opt)
    if not opt["xo"]:
        for j in (1, 3, 5, 7, 9):
            xload(ep, 0, j)
    ep.I(f"s_cmp_eq_u32 s{sHASX}, 0")
    ep.I("s_cbranch_scc1 L_PN")
    ep.I(f"s_cmp_eq_u32 s{sPW}, 3")
    ep.I("s_cbranch_scc1 L_PN")
    L += ep.L
    if opt["wnear"] == 2:
        L += ["    s_branch L_PX", "L_WPRE:"] + wpre + ["L_PX:"]
    L += producer(ep, opt, "x")
    L.append(f".org {KNAME} + {1 * CS}, 0" if opt["epf"] else ".p2align 6")
    L.append("L_PN:")
    L += producer(ep, opt, "n")
    L.append(f".org {KNAME} + {2 * CS}, 0" if opt["epf"] else ".p2align 6")
    L.append("L_PW:")
    L += epw.L
    L += producer(epw, opt, "w")
    L.append(f".org {KNAME} + {3 * CS}, 0" if opt["epf"] else ".p2align 6")
    L.append("L_CONS:")
    ec = Em(opt, e)
    consumer_pro(ec, opt)
    L += ec.L
    L += consumer(ec, opt, True)
    L.append(f".org {KNAME} + {5 * CS}, 0" if opt["epf"] else ".p2align 6")
    L.append("L_CN:")
    L += consumer(ec, opt, False)
    L.append("L_END:")
    L.append("    s_endpgm")
    L.append('.section .rodata,"a"')
    L.append(".p2align 6")
    L.append(f".amdhsa_kernel {KNAME}")
    for d in ("next_free_vgpr 256", "next_free_sgpr 102", "accum_offset 256", "group_segment_fixed_size 0",
              "kernarg_size 48", "user_sgpr_count 2", "user_sgpr_kernarg_segment_ptr 1",
              "system_sgpr_workgroup_id_x 1", "ieee_mode 0", "float_denorm_mode_32 1"):
        L.append("  .amdhsa_" + d)
    L.append(".end_amdhsa_kernel")
    return "\n".join(L) + "\n"


if __name__ == "__main__":
    out = sys.argv[1]
    kw = {}
    for a in sys.argv[2:]:
        k, v = a.split("=", 1)
        try:
            kw[k] = int(v)
        except ValueError:
            try:
                kw[k] = float(v)
            except ValueError:
                kw[k] = v.replace("+", " ")
    open(out, "w").write(generate(**kw))
```

```python
import sys, os
sys.path.insert(0, os.path.dirname(os.path.abspath(__file__)))
from cost import gapcost

KNAME = "standalone__standard_2d_1d_3d_conv__vision_kernel"

DEF = dict(
    stamp=0, spin=4000, spinref=0, cst=-1, cev=8, pst=0,
    xf="", sf="nt", uf="sc1",
    code_pf=1, w_pf=1,
    prio=0, slp=1,
    pro="beta",
    xs="w:1e,w:1o,4p:2e,k4:2o",
    dsp=4.5,
    ustep=3, ulead=12,
    lag=2,
    go=23,
    noatom=0, u_pf=0, pollp=1, pollat=-2, n1=1, y0at=0, gam=0, psl=2, epf=2, xo=1, w1late=0, otlb=2, aord=0, rsh=0, wp1=0, pdel=0, nraw=4, pollu=2, pslp=8, trd=9, d_now=0, d_nov=0, d_nou=0, sfl='sc1', nlast=0, slpl=0, ustep0=5, order=2, wat=1, pat=3, rpf=1, rlead=0, wsp=10, pollw=0, w2pre=0, tr1at=4, wo=2, ulead0=0,
)

VSLOT = 22528
VHALF = 11264
VS = [0, VSLOT, 2 * VSLOT]
FLAGS = 3 * VSLOT
WRING = FLAGS + 512
WWAVE = 18432
OROW = 6400
OUT = WRING
XST = OUT + 12 * OROW
PRE = XST + 4608
LDS_BYTES = PRE + 12288
NWORK = 56
CS = 11776

XBYTES = 224 * 224 * 384
WBYTES = 9 * 192 * 384
UBYTES = 24 * 36864

ORDERS = {
    2: [("A", 0, 0), ("A", 1, 0),
        ("B", 0, 0), ("B", 1, 0), ("B", 0, 1), ("B", 1, 1), ("B", 0, 2), ("B", 1, 2),
        ("A", 0, 1), ("A", 0, 2), ("A", 1, 1), ("A", 1, 2)],
    3: [("A", 0, 0), ("A", 1, 0), ("A", 0, 1),
        ("B", 0, 0), ("B", 1, 0), ("B", 0, 1), ("B", 1, 1), ("B", 0, 2), ("B", 1, 2),
        ("A", 0, 2), ("A", 1, 1), ("A", 1, 2)],
    1: [("A", 0, 0), ("A", 1, 0), ("A", 0, 1), ("A", 1, 1),
        ("B", 0, 0), ("B", 1, 0), ("B", 0, 1), ("B", 1, 1), ("B", 0, 2), ("B", 1, 2),
        ("A", 0, 2), ("A", 1, 2)],
}
UNITS = list(ORDERS[2])


def step_info(s):
    kind, st, pair = UNITS[s >> 1]
    return kind, st, 2 * pair + (s & 1)


sX, sW, sO, sU, sB = 4, 8, 12, 16, 20
sDBG, sWS, sKA = 24, 26, 28
sWAVE, sL, sSTRIP, sROW0, sHASX, sES, sEROW = 36, 37, 38, 39, 40, 41, 42
sF0, sF1, sF2, sIDX = 43, 44, 45, 46
sT0, sT1, sT2, sT3 = 47, 48, 49, 50
sMASK, sRING, sOFF, sOFF2, sPW = 51, 52, 53, 54, 55
sPC, sCNT, sINV = 56, 58, 59
sPOLL, sPEND = 3, 56
sST = 60


class Em:
    def __init__(self, opt, parent=None):
        self.L = []
        self.lg = list(parent.lg) if parent else []
        self.vm = list(parent.vm) if parent else []
        self.opt = opt
        self.nst = parent.nst if parent else 0

    def I(self, s):
        self.L.append("    " + s)

    def label(self, s):
        self.L.append(s + ":")

    def lds(self, s, name=None):
        self.I(s)
        self.lg.append(name)

    def vmem(self, s, name=None):
        self.I(s)
        self.vm.append(name)

    def need(self, names):
        if isinstance(names, str):
            names = [names]
        w = []
        k = max([i for i, n in enumerate(self.vm) if n in names], default=-1)
        if k >= 0:
            n = min(len(self.vm) - 1 - k, 63)
            w.append(f"vmcnt({n})")
            self.vm = self.vm[len(self.vm) - n:] if n else []
        k = max([i for i, n in enumerate(self.lg) if n in names], default=-1)
        if k >= 0:
            n = min(len(self.lg) - 1 - k, 15)
            w.append(f"lgkmcnt({n})")
            self.lg = self.lg[len(self.lg) - n:] if n else []
        if w:
            self.I("s_waitcnt " + " ".join(w))

    def drain_lg(self):
        self.I("s_waitcnt lgkmcnt(0)")
        self.lg = []

    def drain_vm(self):
        self.I("s_waitcnt vmcnt(0)")
        self.vm = []

    def stamp(self):
        o = self.opt
        if o["stamp"] == 4 and self.nst != o["spinref"]:
            self.nst += 1
        elif o["stamp"]:
            r = sST + 2 * self.nst
            assert r + 1 < 102, "too many stamps"
            self.I(f"s_memrealtime s[{r}:{r+1}]" if o["stamp"] in (1, 4) else f"s_memtime s[{r}:{r+1}]")
            self.nst += 1

    def dump_stamps(self, role):
        o = self.opt
        if not o["stamp"]:
            return
        self.I("s_waitcnt vmcnt(0) lgkmcnt(0)")
        if o["stamp"] == 4:
            if o["spinref"] and role != "c":
                return
            lab = f"L_SPIN{id(self)}"
            self.label(lab)
            self.I(f"s_memrealtime s[{sT1}:{sT1+1}]")
            self.I("s_waitcnt lgkmcnt(0)")
            self.I(f"s_sub_u32 s{sT0}, s{sT1}, s{sST + 2*o['spinref']}")
            self.I(f"s_cmp_lt_u32 s{sT0}, {o['spin']}")
            self.I(f"s_cbranch_scc1 {lab}")
            return
        self.I(f"s_lshl_b32 s{sT0}, s2, 3")
        self.I(f"s_add_u32 s{sT0}, s{sT0}, s{sWAVE}")
        self.I(f"s_lshl_b32 s{sT0}, s{sT0}, 8")
        self.I(f"s_add_u32 s{sT0}, s{sT0}, 0x100000")
        self.I(f"v_mov_b32 v1, s{sT0}")
        for i in range(self.nst):
            self.I(f"v_mov_b32 v2, s{sST + 2*i}")
            self.I(f"global_store_dword v1, v2, s[{sWS}:{sWS+1}] offset:{4*i}")
        self.I(f"v_mov_b32 v2, {self.nst}")
        self.I(f"global_store_dword v1, v2, s[{sWS}:{sWS+1}] offset:252")


def vr(a, n=4):
    return f"v[{a}:{a+n-1}]"


def srd(e, s, lo, nbytes, bias=0):
    if bias:
        e.I(f"s_sub_u32 s{s}, s{lo}, {bias}")
        e.I(f"s_subb_u32 s{s+1}, s{lo+1}, 0")
    else:
        e.I(f"s_mov_b32 s{s}, s{lo}")
        e.I(f"s_mov_b32 s{s+1}, s{lo+1}")
    e.I(f"s_mov_b32 s{s+2}, {nbytes + bias}")
    e.I(f"s_mov_b32 s{s+3}, 0x20000")


def decode_main(e):
    I = e.I
    I(f"s_and_b32 s{sT0}, s2, 7")
    I(f"s_lshl_b32 s{sT0}, s{sT0}, 5")
    I(f"s_add_u32 s{sT0}, s{sT0}, s{sIDX}")
    I(f"s_mul_i32 s{sT0}, s{sT0}, 7")
    I(f"s_lshr_b32 s{sSTRIP}, s{sT0}, 8")
    I(f"s_and_b32 s{sT0}, s{sT0}, 255")
    I(f"s_mul_i32 s{sT0}, s{sT0}, 293")
    I(f"s_lshr_b32 s{sT0}, s{sT0}, 11")
    I(f"s_mul_i32 s{sROW0}, s{sT0}, 6")


def decode_extra(e):
    I = e.I
    I(f"s_and_b32 s{sT0}, s2, 7")
    I(f"s_mul_i32 s{sT0}, s{sT0}, 12")
    I(f"s_sub_u32 s{sT3}, s{sIDX}, 7")
    I(f"s_add_u32 s{sT0}, s{sT0}, s{sT3}")
    I(f"s_mul_i32 s{sT1}, s{sT0}, 21846")
    I(f"s_lshr_b32 s{sT1}, s{sT1}, 16")
    I(f"s_mul_i32 s{sT2}, s{sT1}, 3")
    I(f"s_sub_u32 s{sF0}, s{sT0}, s{sT2}")
    I(f"s_cmp_lt_u32 s{sT3}, 12")
    I(f"s_cselect_b32 s{sHASX}, 1, 0")
    I(f"s_cselect_b32 s{sF0}, s{sF0}, 0")
    I(f"s_cselect_b32 s{sT1}, s{sT1}, 0")
    I(f"s_lshl_b32 s{sES}, s{sT1}, 1")
    I(f"s_and_b32 s{sES}, s{sES}, 12")
    I(f"s_lshr_b32 s{sES}, 0x5310, s{sES}")
    I(f"s_and_b32 s{sES}, s{sES}, 15")
    I(f"s_and_b32 s{sEROW}, s{sT1}, 1")
    I(f"s_add_u32 s{sEROW}, s{sEROW}, 222")
    I(f"s_lshr_b32 s{sT3}, s{sT1}, 3")
    I(f"s_lshl_b32 s{sT3}, s{sT3}, 1")
    I(f"s_and_b32 s{sT2}, s{sT1}, 7")
    I(f"s_add_u32 s{sT2}, s{sT2}, 216")
    I(f"s_cmp_lt_u32 s{sT1}, 8")
    I(f"s_cselect_b32 s{sES}, s{sES}, s{sT3}")
    I(f"s_cselect_b32 s{sEROW}, s{sEROW}, s{sT2}")


def consumer_pro(e, opt):
    I = e.I
    vV, vV2, vT = 1, 2, 3
    vD = [4, 5, 6]
    vU = [7, 253, 254]
    t0, t1, t2, t3, t4 = 8, 9, 10, 11, 12
    sF = [sF0, sF1, sF2]
    decode_extra(e)
    I(f"s_add_u32 s{sF1}, s{sF0}, 1")
    I(f"s_cmp_eq_u32 s{sF1}, 3")
    I(f"s_cselect_b32 s{sF1}, 0, s{sF1}")
    I(f"s_add_u32 s{sF2}, s{sF1}, 1")
    I(f"s_cmp_eq_u32 s{sF2}, 3")
    I(f"s_cselect_b32 s{sF2}, 0, s{sF2}")
    I(f"v_lshrrev_b32 v{t0}, 4, v0")
    I(f"s_mul_i32 s{sT0}, s{sWAVE}, 96")
    I(f"v_lshlrev_b32 v{t4}, 3, v{t0}")
    I(f"v_add_u32 v{t4}, s{sT0}, v{t4}")
    for s in range(3):
        I(f"s_lshl_b32 s{sT1}, s{sF[s]}, 5")
        I(f"v_add_u32 v{13+s}, s{sT1}, v{t4}")
    if opt["w_pf"]:
        I(f"s_mul_i32 s{sT1}, s{sIDX}, 36")
        I(f"v_min_u32 v{t1}, 35, v0")
        I(f"v_add_u32 v{t1}, s{sT1}, v{t1}")
        I(f"v_mul_u32_u24 v{t2}, 10923, v{t1}")
        I(f"v_lshrrev_b32 v{t2}, 21, v{t2}")
        I(f"v_add_u32 v{t3}, 1, v{t2}")
        I(f"v_lshrrev_b32 v{t3}, 1, v{t3}")
        I(f"v_mul_u32_u24 v{t3}, 576, v{t3}")
        I(f"v_mul_u32_u24 v{t2}, 384, v{t2}")
        I(f"v_add3_u32 v{t1}, v{t1}, v{t2}, v{t3}")
        I(f"s_mul_i32 s{sT1}, s{sWAVE}, {192*128}")
        I(f"s_add_u32 s{sT1}, s{sT1}, 2048")
        I(f"v_lshl_add_u32 v252, v{t1}, 7, s{sT1}")
    I("s_waitcnt lgkmcnt(0)")
    srd(e, sB, sKA + 4, 384)
    srd(e, sW, sKA + 2, WBYTES, 2048)
    srd(e, sU, sWS, UBYTES)
    if opt["w_pf"]:
        I(f"s_cmp_ge_u32 s{sWAVE}, {1 if opt['nraw'] == 4 else 2}")
        I("s_cbranch_scc1 L_NOWPF")
        I(f"buffer_load_dword v255, v252, s[{sW}:{sW+3}], 0 offen")
        e.label("L_NOWPF")
    if opt["code_pf"]:
        I(f"s_cmp_eq_u32 s{sWAVE}, 2")
        I("s_cbranch_scc0 L_NOCPF")
        I(f"s_getpc_b64 s[{sPC}:{sPC+1}]")
        e.label("L_PC0")
        I(f"s_sub_u32 s{sPC}, s{sPC}, L_PC0-{KNAME}")
        I(f"s_subb_u32 s{sPC+1}, s{sPC+1}, 0")
        I(f"s_mul_i32 s{sT1}, s{sIDX}, {opt['code_pf_lines']*128}")
        I(f"v_min_u32 v252, {opt['code_pf_lines']-1}, v0")
        I(f"v_lshl_add_u32 v252, v252, 7, s{sT1}")
        I(f"v_min_u32 v252, L_END-{KNAME}, v252")
        I(f"global_load_dword v255, v252, s[{sPC}:{sPC+1}]")
        e.label("L_NOCPF")
    for s in range(3):
        e.vmem(f"buffer_load_dwordx2 {vr(16+2*s, 2)}, v{13+s}, s[{sB}:{sB+3}], 0 offen", "bias")
    I(f"v_and_b32 v{t1}, 15, v0")
    I(f"v_xor_b32 v{t2}, v{t0}, v{t1}")
    I(f"v_lshl_add_u32 v{t2}, v{t0}, 4, v{t2}")
    I(f"v_lshlrev_b32 v{vV}, 4, v{t2}")
    I(f"v_add_u32 v{vV2}, 0x8000, v{vV}")
    I(f"s_mul_i32 s{sRING}, s{sWAVE}, {WWAVE}")
    I(f"s_add_u32 s{sRING}, s{sRING}, {WRING}")
    I(f"v_lshrrev_b32 v{t2}, 2, v0")
    I(f"v_mul_u32_u24 v{t2}, 96, v{t2}")
    I(f"v_and_b32 v{t3}, 3, v0")
    I(f"v_lshl_add_u32 v{t2}, v{t3}, 3, v{t2}")
    I(f"v_add_u32 v{vT}, s{sRING}, v{t2}")
    for d in range(3):
        I(f"v_add_u32 v{t1}, {64*d}, v0")
        I(f"v_mul_u32_u24 v{t2}, 43691, v{t1}")
        I(f"v_lshrrev_b32 v{t2}, 18, v{t2}")
        I(f"v_mul_u32_u24 v{t3}, 6, v{t2}")
        I(f"v_sub_u32 v{t1}, v{t1}, v{t3}")
        I(f"v_bfe_u32 v{t3}, v{t2}, 2, 2")
        I(f"v_lshlrev_b32 v{t3}, 3, v{t3}")
        I(f"v_lshrrev_b32 v{t4}, 4, v{t2}")
        I(f"v_lshl_add_u32 v{t3}, v{t4}, 2, v{t3}")
        I(f"v_and_b32 v{t2}, 3, v{t2}")
        I(f"v_add_u32 v{t2}, v{t2}, v{t3}")
        I(f"v_mul_u32_u24 v{t2}, 384, v{t2}")
        I(f"v_lshrrev_b32 v{t3}, 1, v{t1}")
        I(f"v_add_u32 v{t3}, s{sF0}, v{t3}")
        I(f"v_subrev_u32 v{t4}, 3, v{t3}")
        I(f"v_min_u32 v{t3}, v{t3}, v{t4}")
        I(f"v_lshl_add_u32 v{t2}, v{t3}, 5, v{t2}")
        I(f"v_and_b32 v{t1}, 1, v{t1}")
        I(f"v_lshl_add_u32 v{t2}, v{t1}, 4, v{t2}")
        I(f"v_add_u32 v{t2}, s{sT0}, v{t2}")
        I(f"v_add_u32 v{vD[d]}, {2048 - 1024*d}, v{t2}")
    I(f"s_mul_i32 s{sT1}, s{sWAVE}, 9216")
    for s in range(3):
        I(f"s_mul_i32 s{sT0}, s{sF[s]}, 3072")
        I(f"s_add_u32 s{sT0}, s{sT0}, s{sT1}")
        I(f"v_lshl_add_u32 v{vU[s]}, v0, 4, s{sT0}")
    I(f"s_cmp_eq_u32 s{sHASX}, 0")
    I("s_cbranch_scc1 L_CN")


def consumer(parent, opt, extra):
    e = Em(opt, parent)
    I = e.I
    vV, vV2, vT = 1, 2, 3
    vD = [4, 5, 6]
    vU = [7, 253, 254]
    vO = vD
    vOX, vFL, vONE, vCK = 3, 255, 252, 0
    VR = 8
    WB = [24, 60]
    ACC = 96
    acc = {}
    for m in range(6):
        for st in range(2):
            for s in range(3):
                acc[(m, st, s)] = ACC + 4 * ((m * 2 + st) * 3 + s)
    acc[("X", 0)] = 240
    acc[("X", 1)] = 244
    spare = [248]
    sF = [sF0, sF1, sF2]
    tag = "x" if extra else "n"

    def W(step, i, s):
        return WB[step & 1] + 4 * (i * 3 + s)

    def dma_ops(step, i):
        kind, st, c = step_info(step)
        slot = (step & 1) * 3 + i
        ops = [("S", lambda: I(f"s_add_u32 m0, s{sRING}, {slot*3072}")),
               ("S", lambda: I(f"s_mov_b32 s{sOFF2}, {(i*3+2*st)*73728 + c*12288}"))]
        for d in range(3):
            def f(d=d):
                e.need([f"w{step-2}_{i}"])
                e.vmem(f"buffer_load_dwordx4 v{vD[d]}, s[{sW}:{sW+3}], s{sOFF2} offen offset:{1024*d} lds", f"dma{step}_{i}")
            ops.append(("M", f))
        return ops

    def tr_ops(step, i):
        slot = (step & 1) * 3 + i
        ops = []
        for s in range(3):
            for h in range(2):
                def f(s=s, h=h):
                    e.need([f"dma{step}_{i}"])
                    e.lds(f"ds_read_b64_tr_b16 {vr(W(step, i, s) + 2*h, 2)}, v{vT} offset:{slot*3072 + h*1536 + s*32}", f"w{step}_{i}")
                ops.append(("WR" if s == 0 and h == 0 else "R", f))
        return ops

    def u_op(step, i, s):
        if opt["d_nou"] and step > 9:
            return ("S", lambda: I("s_nop 0"))
        return ("M", lambda: e.vmem(f"buffer_load_dwordx4 {vr(W(step, i, s))}, v{vU[s]}, s[{sU}:{sU+3}], s{sOFF} offen offset:{1024*i} {opt['uf']}", f"w{step}_{i}"))

    def u_off(step):
        kind, st, c = step_info(step)
        pos = st if kind == "B" else 2 + st
        return ("S", lambda: I(f"s_mov_b32 s{sOFF}, {(pos*6+c)*36864}"))

    I(f"v_lshlrev_b32 v8, 3, v0")
    I(f"v_add_u32 v8, {FLAGS}, v8")
    I(f"v_mov_b32 v10, 0")
    I(f"v_mov_b32 v11, 0")
    I(f"ds_write_b64 v8, v[10:11]")
    I("s_waitcnt lgkmcnt(0)")
    e.stamp()
    I("s_barrier")
    for i in range(3):
        for c, f in dma_ops(0, i):
            f()
    if opt["pro"] == "alpha":
        I("s_barrier")
    w1late = opt["w1late"] == 2 or (opt["w1late"] == 1 and not extra)
    if not w1late:
        for i in range(3):
            for c, f in dma_ops(1, i):
                f()
    e.need("bias")
    for s in range(3):
        a, b = acc[(5, 0, s)], acc[(5, 1, s)]
        I(f"v_lshlrev_b32 v{a}, 16, v{16+2*s}")
        I(f"v_and_b32 v{a+1}, s{sMASK}, v{16+2*s}")
        I(f"v_lshlrev_b32 v{a+2}, 16, v{17+2*s}")
        I(f"v_and_b32 v{a+3}, s{sMASK}, v{17+2*s}")
        for k in range(4):
            I(f"v_xor_b32 v{b+k}, s{sINV}, v{a+k}")
    for i in range(3):
        for c, f in tr_ops(0, i):
            f()
    if w1late:
        for i in range(3):
            for c, f in dma_ops(1, i):
                f()
    if opt["w2pre"]:
        for i in range(3):
            for c, f in dma_ops(2, i):
                f()
    I(f"s_lshl_b32 s{sT0}, s{sWAVE}, 2")
    I(f"s_add_u32 s{sT0}, s{sT0}, {FLAGS}")
    I(f"v_mov_b32 v{vFL}, s{sT0}")
    I(f"v_mov_b32 v{vONE}, 1")
    if opt["prio"]:
        I(f"s_setprio {opt['prio']}")
    e.stamp()

    groups = []

    def g_row(step, r):
        st = step_info(step)[1]
        mf = []
        for i in (2, 1, 0):
            m = r - i
            if 0 <= m <= 5:
                for s in range(3):
                    mf.append(((m, st, s), i, s))
        return dict(step=step, row=r, mf=mf)

    def g_x(step, i):
        return dict(step=step, row=8 + i, mf=[(("X", step_info(step)[1]), i, 0)])

    for step in range(22):
        seq = [g_row(step, 0), g_row(step, 1), g_x(step, 0), g_row(step, 2), g_x(step, 1), g_row(step, 3),
               g_x(step, 2), g_row(step, 4), g_row(step, 5), g_row(step, 6), g_row(step, 7)]
        groups += [g for g in seq if extra or g["row"] < 8]
    lag = opt["lag"]
    for r in range(8 + lag):
        if r < 8:
            groups.append(g_row(22, r))
            if extra and 1 <= r <= 3:
                groups.append(g_x(22, r - 1))
        if r >= lag:
            groups.append(g_row(23, r - lag))
            if extra and 2 <= r - lag <= 4:
                groups.append(g_x(23, r - lag - 2))

    stream = []
    gstart = []
    for gi, g in enumerate(groups):
        gstart.append(len(stream))
        for (key, i, s) in g["mf"]:
            stream.append((gi, key, i, s))
    N = len(stream)
    gend = [gstart[k + 1] - 1 if k + 1 < len(groups) else N - 1 for k in range(len(groups))]
    step_start, step_end = {}, {}
    last_use, last_acc, first_acc, first_tap = {}, {}, {}, {}
    for gi, g in enumerate(groups):
        step_start.setdefault(g["step"], gstart[gi])
        step_end[g["step"]] = gend[gi]
    for n, (gi, key, i, s) in enumerate(stream):
        st = groups[gi]["step"]
        last_use[(st, i, s)] = n
        last_acc[(st, key)] = n
        first_acc.setdefault((st, key), n)
        first_tap.setdefault((st, i), n)
    SL = step_start[1] - step_start[0]

    fill = [[] for _ in range(N + 1)]
    cl = [""] * (N + 1)
    endw = [""] * (N + 1)
    for gi in range(1, len(groups)):
        endw[gstart[gi] - 1] = "W"
    for (st, i), n in first_tap.items():
        if n:
            endw[n - 1] = "W"

    def put(g, op):
        fill[g].append(op[1])
        cl[g] += op[0]

    def addcost(g, c, cur):
        base = cur.get(g, cl[g])
        return gapcost(base + c + endw[g]) - gapcost(base + endw[g])

    def place(g0, ops, deadline=None, per=2, strict=False):
        for budget in range(0, len(ops) + 1):
            cur = {}
            res = []
            g, n, left = g0, 0, budget
            for c, f in ops:
                free = 4 if c == "D" else 0
                while g < N:
                    if n < per:
                        ac = addcost(g, c, cur)
                        if ac <= free:
                            break
                        if left and ac <= free + 4:
                            left -= 1
                            break
                    g += 1
                    n = 0
                g = min(g, N)
                cur[g] = cur.get(g, cl[g]) + c
                res.append(g)
                n += 1
            if deadline is None or res[-1] <= deadline:
                break
        else:
            assert not strict, (g0, deadline, res[-1])
        for g, op in zip(res, ops):
            put(g, op)
        return res[-1]

    def vread(gi):
        g = groups[gi]
        u = g["step"] >> 1
        off = VS[u % 3] + (g["step"] & 1) * VHALF + g["row"] * 1024
        base = vV
        if off >= 0x8000:
            base, off = vV2, off - 0x8000
        r = VR + 4 * (gi % 4)
        return ("R", lambda: e.lds(f"ds_read_b128 {vr(r)}, v{base} offset:{off}", f"v{gi}"))

    first_of_unit = {}
    for gi, g in enumerate(groups):
        first_of_unit.setdefault(g["step"] >> 1, gi)
    def flag(k):
        return ("d", lambda: e.lds(f"ds_write_b32 v{vFL}, v{vONE} offset:{k*16}"))

    def ckread(off, name):
        return ("R", lambda: e.lds(f"ds_read_b32 v{vCK}, v{vV2} offset:{FLAGS - 0x8000 + off}", name))

    def check1(name):
        def f():
            e.need(name)
            I(f"v_readfirstlane_b32 s{sT0}, v{vCK}")
        return f

    def check(off, val, name, st=False):
        def f():
            lab = f"L_CK{tag}{name}"
            I(f"s_cmp_eq_u32 s{sT0}, {val}")
            I(f"s_cbranch_scc0 {lab}_spin")
            e.label(lab)
            if st and opt["cst"] < 0:
                e.stamp()
            cold.append(f"{lab}_spin:")
            cold.append(f"    ds_read_b32 v{vCK}, v{vV2} offset:{FLAGS - 0x8000 + off}")
            cold.append("    s_waitcnt lgkmcnt(0)")
            cold.append(f"    v_readfirstlane_b32 s{sT0}, v{vCK}")
            cold.append(f"    s_cmp_eq_u32 s{sT0}, {val}")
            cold.append(f"    s_cbranch_scc0 {lab}_spin")
            cold.append(f"    s_branch {lab}")
        return f

    cold = []
    bar_gap = {}
    rpos = {}
    for gi in range(4, len(groups)):
        g = gend[gi - 4]
        if opt["rsh"] and len(groups[gi - 3]["mf"]) > 1 and g - 0 >= rpos.get(gi - 1, -1):
            g += 1
        g = max(g, rpos.get(gi - 1, -1) + 1)
        rpos[gi] = g
        put(g, vread(gi))
    for u in range(1, 12):
        gi = first_of_unit[u]
        gp = gend[gi - 4]
        bar_gap[u] = gp - 1
        put(gp - 2, ("WV", check1(f"rdy{u}")))
        put(gp - 1, ("SS", check(448 + 4 * u, 4, f"rdy{u}", True)))
        gq = gp - (7 if opt["rsh"] else 8)
        assert place(gq, [ckread(448 + 4 * u, f"rdy{u}")]) < gp - 4
        if u - 1 <= 8:
            place(gstart[gi - 1], [flag(16 + u - 1)])

    g = 0
    gtr1 = 0
    k = 0
    for step in ((3,) if opt["w2pre"] else (2, 3)):
        for i in range(3):
            if step == 3:
                gtr1 = place(max(gtr1, opt["tr1at"] + (14 if w1late else 0) + 8 * i), tr_ops(1, i), per=1) + 1
                g = max(g, gtr1 + opt['trd'])
            ops = dma_ops(step, i)
            g = place(max(g, int(k * opt["dsp"])), ops[:2])
            for d in range(3):
                g = place(max(g + 1, int(k * opt["dsp"]) + 1), [ops[2 + d]])
                k += 1
    place(g + 1, [flag(31)])
    NR = opt["nraw"]
    for step in range(2, NR):
        gt = step_start[step - 1] + SL - 24
        for i in range(3):
            gt = max(gt, max(last_use[(step - 2, i, s)] for s in range(3)))
            gt = place(gt, tr_ops(step, i), per=1, deadline=first_tap[(step, i)] - 4) + 1
            if step + 2 < NR:
                ops = dma_ops(step + 2, i)
                t0_ = step_start[step] + int(i * SL / 3)
                g = place(max(g, gt + opt["trd"], t0_), ops[:2])
                for d in range(3):
                    g = place(max(g + 1, t0_ + int(d * SL / 9) + 1), [ops[2 + d]])

    gchk = step_start[NR - 1] - opt["ulead0"] - 3

    place(gchk - 10, [ckread(240, "uflag")])
    put(gchk - 1, ("WV", check1("uflag")))
    put(gchk, ("SS", check(240, 1, "uflag")))
    g = gchk + 1
    go_gap = None
    for step in range(NR, 24):
        base = step_start[step - 1] - opt["ulead"]
        stp = opt["ustep"] * SL / 57
        if step == NR:
            base, stp = gchk + 2, opt["ustep0"]
        if step == 23:
            base, stp = last_use[(21, 0, 0)], 2
        k = 0
        for i in range(3):
            for s in range(3):
                tgt = max(base + int(k * stp), last_use[(step - 2, i, s)], g)
                if k == 0:
                    g = place(max(g, tgt - 2), [u_off(step)])
                    tgt = max(tgt, g + 1)
                g = place(tgt, [u_op(step, i, s)]) + 1
                k += 1
        if step == opt["go"]:
            go_gap = g

    def bfly_ops(k0, k1, first):
        ops = []
        if first:
            o0, o1, md = "v_sub_f32_e64", "v_add_f32_e64", " div:2"
        else:
            o0, o1, md = "v_add_f32", "v_sub_f32", ""
        for k in range(4):
            ops.append(("V", lambda k=k: I(f"{o0} v{spare[0]+k}, v{acc[k0]+k}, v{acc[k1]+k}{md}")))
        for k in range(4):
            def f(k=k):
                I(f"{o1} v{acc[k1]+k}, v{acc[k0]+k}, v{acc[k1]+k}{md}")
                if k == 3:
                    acc[k0], spare[0] = spare[0], acc[k0]
            ops.append(("V", f))
        return ops

    order = [0, 1, "X", 2, 3, 4, 5] if extra else [0, 1, 2, 3, 4, 5]
    fb = [u for u in range(12) if UNITS[u][0] == "B"]
    y0last = 2 * max(u for u in range(12) if UNITS[u][1] == 0) + 1
    for last, first in ((2 * fb[0] - 1, True), (2 * fb[-1] + 1, False)):
        blocks = []
        for m in order:
            keys = [((m, 0, s), (m, 1, s)) for s in range(3)] if m != "X" else [(("X", 0), ("X", 1))]
            for (k0, k1) in keys:
                rdy = max(n for (st_, k_), n in last_acc.items() if st_ <= last and k_ in (k0, k1))
                blocks.append((rdy + 8, first_acc[(last + 1, k0)] - 3, k0, k1))
        dl = [b[1] for b in blocks]
        for k in range(len(dl) - 2, -1, -1):
            dl[k] = min(dl[k], dl[k + 1] - opt.get("bsp", 4))
        g = 0
        for (rdy, _, k0, k1), d in zip(blocks, dl):
            g = place(max(g, rdy), bfly_ops(k0, k1, first), deadline=d, per=3)
            assert g <= _, (last, k0, g, _)

    def oaddr():
        ops = []
        A = lambda s: ops.append((s[0].upper(), lambda: I(s)))
        t, q = vO[1], vO[2]
        A(f"v_lshrrev_b32 v{q}, 8, v{vV}")
        A(f"v_bfe_u32 v{t}, v{vV}, 4, 4")
        A(f"v_xor_b32 v{t}, v{t}, v{q}")
        A(f"v_lshlrev_b32 v{q}, 3, v{q}")
        A(f"s_lshl_b32 s{sT1}, s{sWAVE}, 5")
        A(f"s_add_u32 s{sT1}, s{sT1}, {XST}")
        A(f"v_mul_u32_u24 v{vOX}, 144, v{t}")
        A(f"v_add3_u32 v{vOX}, v{vOX}, v{q}, s{sT1}")
        A(f"v_mul_u32_u24 v{t}, 400, v{t}")
        A(f"v_add_u32 v{q}, v{t}, v{q}")
        A(f"s_mul_i32 s{sT1}, s{sWAVE}, 96")
        A(f"s_add_u32 s{sT1}, s{sT1}, {OUT}")
        for s in range(3):
            A(f"s_lshl_b32 s{sT2}, s{sF[s]}, 5")
            A(f"s_add_u32 s{sT2}, s{sT2}, s{sT1}")
            A(f"v_add_u32 v{vO[s]}, s{sT2}, v{q}")
        return ops
    place(step_start[10], oaddr())

    def epi_ops(key, addr, off):
        return [("V", lambda: I(f"v_cvt_pk_bf16_f32 v{acc[key]}, v{acc[key]}, v{acc[key]+1}")),
                ("V", lambda: I(f"v_cvt_pk_bf16_f32 v{acc[key]+1}, v{acc[key]+2}, v{acc[key]+3}")),
                ("D", lambda: e.lds(f"ds_write_b64 v{addr}, {vr(acc[key], 2)} offset:{off}"))]

    place(go_gap, [flag(14)])
    g = 0
    tail_nop = False
    for st, last in ((0, y0last), (1, 23)):
        if st == 0:
            g = last_acc[(y0last, (0, 0, 0))] + opt["y0at"]
        if st == 1:
            g = place(g, [("V", lambda s=s: I(f"v_add_u32 v{vO[s]}, {6*OROW}, v{vO[s]}")) for s in range(3)])
        for m in order:
            if m == "X":
                g = max(g, last_acc[(last, ("X", st))] + 8)
                g = place(g, epi_ops(("X", st), vOX, 2304 * st) + [flag(12 + st)])
                continue
            ops = []
            n = max(last_acc[(last, (m, st, s))] for s in range(3)) - 2
            if n + 8 > N:
                if not tail_nop:
                    put(N, ("S", lambda: I("s_nop 7")))
                    tail_nop = True
                g = N
            g = max(g, min(n + 8, N))
            o3 = [epi_ops((m, st, s), vO[s], m * OROW) for s in range(3)]
            ops = o3[0] + o3[1] + o3[2] + [flag(6 * st + m)]
            g = place(g, ops)

    if opt["cst"] >= 0:
        for k in range(15):
            g = step_start[opt["cst"]] + k * opt["cev"]
            if g < N:
                fill[g].append(e.stamp)
    ckread(448, "rdy0")[1]()
    check1("rdy0")()
    check(448, 4, "rdy0")()
    e.stamp()
    for gi in range(4):
        vread(gi)[1]()
    started = set()
    for n, (gi, key, i, s) in enumerate(stream):
        step = groups[gi]["step"]
        kind, st, c = step_info(step)
        e.need([f"v{gi}", f"w{step}_{i}"])
        d = acc[key]
        cc = d
        if step in (0, 2) and key not in started:
            started.add(key)
            cc = acc[(5, st, s)]
        I(f"v_mfma_f32_16x16x32_bf16 {vr(d)}, {vr(W(step, i, s))}, {vr(VR + 4*(gi % 4))}, {vr(cc)}")
        for f in fill[n]:
            f()
    e.stamp()
    for f in fill[N]:
        f()
    e.stamp()
    e.dump_stamps("c")
    I("s_endpgm")
    return e.L + cold


xA, xB, xC, eA, eB, eC = 1, 2, 3, 4, 5, 6
wE = [7, 8, 9, 10]
wX = [11, 12]
TMP = 13
OB = 26
RAW = 58
RAWX = 178


def PD(p, j):
    return RAW + 40 * p + 4 * j


def PX(p, j):
    return RAWX + 24 * p + 4 * j


def xload(e, p, j):
    a, off = (xA, 0) if j == 0 else ((xC, 0) if j == 9 else (xB, (j - 1) * 384))
    e.vmem(f"buffer_load_dwordx4 {vr(PD(p, j))}, v{a}, s[{sX}:{sX+3}], 0 offen offset:{off + 128*p} {e.opt['xf']}", f"x{p}_{j&1}")


def eload(e, p, j):
    a, off = (eA, 0) if j == 0 else ((eC, 0) if j == 5 else (eB, (j - 1) * 384))
    e.vmem(f"buffer_load_dwordx4 {vr(PX(p, j))}, v{a}, s[{sX}:{sX+3}], 0 offen offset:{off + 128*p} {e.opt['xf']}", f"e{p}_{j&1}")


def worker_pre(e, opt):
    I = e.I
    t1, t2, t3 = 14, 15, 16
    I(f"s_and_b32 s{sT0}, s2, 7")
    I(f"s_cmp_lt_u32 s{sIDX}, 6")
    I(f"s_cselect_b32 s{sT2}, s{sIDX}, s{sT0}")
    I(f"s_cselect_b32 s{sT0}, s{sT0}, 8")
    I(f"s_mul_i32 s{sT1}, s{sT0}, 11")
    I(f"s_lshr_b32 s{sT1}, s{sT1}, 5")
    I(f"s_mul_i32 s{sT3}, s{sT1}, 3")
    I(f"s_sub_u32 s{sT0}, s{sT0}, s{sT3}")
    I(f"s_lshl_b32 s{sT0}, s{sT0}, 2")
    I(f"s_add_u32 s{sT0}, s{sT0}, s{sPW}")
    I(f"s_mul_i32 s{sOFF}, s{sT1}, {3*73728}")
    I(f"s_mul_i32 s{sOFF2}, s{sT2}, 12288")
    I(f"s_add_u32 s{sOFF}, s{sOFF}, s{sOFF2}")
    I(f"s_lshl_b32 s{sOFF2}, s{sT0}, 5")
    I(f"s_add_u32 s{sOFF}, s{sOFF}, s{sOFF2}")
    I(f"v_bfe_u32 v{t1}, v0, 3, 2")
    I(f"v_lshlrev_b32 v{t1}, 3, v{t1}")
    I(f"v_lshrrev_b32 v{t2}, 5, v0")
    I(f"v_lshl_add_u32 v{t1}, v{t2}, 2, v{t1}")
    I(f"v_bfe_u32 v{t2}, v0, 1, 2")
    I(f"v_add_u32 v{t1}, v{t1}, v{t2}")
    I(f"v_mul_u32_u24 v{t1}, 384, v{t1}")
    I(f"v_and_b32 v{t2}, 1, v0")
    I(f"v_lshl_add_u32 v{eA}, v{t2}, 4, v{t1}")
    I(f"s_mul_i32 s{sRING}, s{sPW}, 3072")
    I(f"s_add_u32 s{sRING}, s{sRING}, {PRE}")
    I(f"s_mov_b32 m0, s{sRING}")
    I("s_waitcnt lgkmcnt(0)")
    srd(e, sW, sKA + 2, WBYTES)
    for j in range(3):
        e.vmem(f"buffer_load_dwordx4 v{eA}, s[{sW}:{sW+3}], s{sOFF} offen lds", "pre")
        if j < 2:
            I(f"s_add_u32 m0, s{sRING}, {1024*(j+1)}")
            I(f"s_add_u32 s{sOFF}, s{sOFF}, 73728")
    I(f"s_cmp_lt_u32 s{sT2}, 6")
    I(f"s_cselect_b32 s{sCNT}, 0, s{sINV}")
    I(f"s_mul_i32 s{sOFF}, s{sT2}, 36864")
    I(f"s_mul_i32 s{sT0}, s{sT0}, 3")
    I(f"s_add_u32 s{sT0}, s{sT0}, s{sT1}")
    I(f"s_lshl_b32 s{sT0}, s{sT0}, 10")
    I(f"s_add_u32 s{sOFF}, s{sOFF}, s{sT0}")
    I(f"s_or_b32 s{sOFF}, s{sOFF}, s{sCNT}")
    I(f"v_lshl_add_u32 v{eB}, v0, 4, s{sOFF}")


def producer_main(e, opt):
    I = e.I
    t0, t1, t2, t3 = 13, 14, 15, 16
    decode_main(e)
    I(f"v_and_b32 v{t0}, 3, v0")
    I(f"v_bfe_u32 v{t1}, v0, 2, 2")
    I(f"v_bfe_u32 v{t2}, v0, 4, 1")
    I(f"v_lshrrev_b32 v{wE[0]}, 5, v0")
    I(f"s_lshl_b32 s{sT0}, s{sPW}, 1")
    I(f"s_add_u32 s{sT0}, s{sT0}, s{sROW0}")
    I(f"s_mul_i32 s{sT0}, s{sT0}, 86016")
    I(f"s_mul_i32 s{sT1}, s{sSTRIP}, 12288")
    I(f"s_add_u32 s{sT0}, s{sT0}, s{sT1}")
    I(f"s_sub_u32 s{sT0}, s{sT0}, 86016")
    I(f"v_mul_u32_u24 v{t3}, 86016, v{t2}")
    I(f"v_lshl_add_u32 v{t3}, v{t0}, 4, v{t3}")
    I(f"v_lshl_add_u32 v{t3}, v{wE[0]}, 6, v{t3}")
    I(f"v_mul_u32_u24 v{xB}, 3072, v{t1}")
    I(f"v_add3_u32 v{xB}, v{xB}, v{t3}, s{sT0}")
    I(f"v_cmp_gt_i32 vcc, 0, v{xB}")
    I(f"v_lshl_add_u32 v{t3}, s{sSTRIP}, 2, v{t1}")
    I(f"v_mov_b32 v{xC}, s{sINV}")
    I(f"v_cndmask_b32 v{xB}, v{xB}, v{xC}, vcc")
    I(f"v_cmp_ne_u32 vcc, 0, v{t3}")
    I(f"v_subrev_u32 v{xA}, 384, v{xB}")
    I(f"v_add_u32 v{wE[1]}, 3072, v{xB}")
    I(f"v_cndmask_b32 v{xA}, v{xC}, v{xA}, vcc")
    I(f"v_cmp_ne_u32 vcc, 27, v{t3}")
    I("s_waitcnt lgkmcnt(0)")
    srd(e, sX, sKA, XBYTES)
    I(f"v_cndmask_b32 v{xC}, v{xC}, v{wE[1]}, vcc")
    for j in (0, 2, 4, 6, 8):
        xload(e, 0, j)


def producer(parent, opt, kind):
    e = Em(opt, parent)
    I = e.I
    t0, t1, t2, t3, t4 = 13, 14, 15, 16, 17
    X = kind == "x"
    G = RAWX
    if kind == "w":
        if opt["wp1"]:
            I("s_barrier")
        srd(e, sU, sWS, UBYTES)
        I(f"v_lshrrev_b32 v{eC}, 2, v0")
        I(f"v_lshlrev_b32 v{eC}, 5, v{eC}")
        I(f"v_lshl_add_u32 v{eC}, v{t0}, 3, v{eC}")
        I(f"v_add_u32 v{eC}, s{sRING}, v{eC}")
        if opt["pst"] == 2:
            e.stamp()
        e.need("pre")
        if opt["pst"] == 2:
            e.stamp()
        for j in range(3):
            for h in range(2):
                e.lds(f"ds_read_b64_tr_b16 {vr(G + 4*j + 2*h, 2)}, v{eC} offset:{1024*j + 512*h}", f"pt{j}")
        U = G + 12
        for j in (0, 2, 1):
            e.need(f"pt{j}")
            for k in range(4):
                I(f"v_lshlrev_b32 v{U + 8*j + 2*k}, 16, v{G + 4*j + k}")
                I(f"v_and_b32 v{U + 8*j + 2*k + 1}, s{sMASK}, v{G + 4*j + k}")
            if j == 2:
                for kk in range(8):
                    I(f"v_add_f32 v{U+kk}, v{U+kk}, v{U+16+kk}")
        for kk in range(8):
            I(f"v_sub_f32_e64 v{U+16+kk}, v{U+kk}, v{U+8+kk} div:2")
            I(f"v_add_f32_e64 v{U+kk}, v{U+kk}, v{U+8+kk} div:2")
        for k in range(4):
            I(f"v_cvt_pk_bf16_f32 v{G+36+k}, v{U+2*k}, v{U+2*k+1}")
            I(f"v_cvt_pk_bf16_f32 v{G+40+k}, v{U+16+2*k}, v{U+16+2*k+1}")
        for pos, r in ((0, G + 36), (1, G + 40), (2, G), (3, G + 8)):
            I(f"s_mov_b32 s{sOFF}, {pos*6*36864}")
            e.vmem(f"buffer_store_dwordx4 {vr(r)}, v{eB}, s[{sU}:{sU+3}], s{sOFF} offen sc1", "ust")
        if opt["pst"]:
            e.stamp()
    if kind == "n" and opt["xo"] and opt["pro"] != "alpha":
        for j in (1, 3, 5, 7, 9):
            xload(e, 0, j)
    I(f"s_lshl_b32 s{sT0}, s{sPW}, 1")
    I(f"v_add_u32 v{t2}, s{sT0}, v{t2}")
    I(f"v_mul_u32_u24 v{wE[0]}, {VHALF}, v{wE[0]}")
    I(f"v_lshl_add_u32 v{wE[0]}, v{t2}, 10, v{wE[0]}")
    I(f"v_lshlrev_b32 v{t3}, 2, v{t1}")
    I(f"v_lshl_add_u32 v{t3}, v{t0}, 4, v{t3}")
    I(f"v_add_u32 v{t3}, v{t3}, v{t0}")
    I(f"v_lshl_add_u32 v{wE[0]}, v{t3}, 4, v{wE[0]}")
    for k in range(1, 4):
        I(f"v_xor_b32 v{wE[k]}, {16*k}, v{wE[0]}")
    decode_extra(e)
    srd(e, sO, sKA + 6, XBYTES)
    if X:
        I(f"v_bfe_u32 v{t1}, v0, 2, 1")
        I(f"v_lshlrev_b32 v{t1}, 1, v{t1}")
        I(f"v_bfe_u32 v{t2}, v0, 3, 1")
        I(f"v_bfe_u32 v{t3}, v0, 4, 1")
        I(f"v_lshlrev_b32 v{t3}, 2, v{t3}")
        I(f"v_or3_b32 v{t1}, v{t1}, v{t2}, v{t3}")
        I(f"s_add_u32 s{sT0}, s{sEROW}, s{sPW}")
        I(f"s_sub_u32 s{sT0}, s{sT0}, 1")
        I(f"s_mul_i32 s{sT1}, s{sT0}, 86016")
        I(f"s_cmp_lt_u32 s{sT0}, 224")
        I(f"s_cselect_b32 s{sT1}, s{sT1}, s{sINV}")
        I(f"s_lshl_b32 s{sT0}, s{sES}, 5")
        I(f"v_lshl_add_u32 v{t4}, v{t1}, 2, s{sT0}")
        I(f"v_mul_u32_u24 v{t2}, 384, v{t4}")
        I(f"v_lshl_add_u32 v{t2}, v{t0}, 4, v{t2}")
        I(f"v_lshrrev_b32 v{t3}, 5, v0")
        I(f"v_lshl_add_u32 v{t2}, v{t3}, 6, v{t2}")
        I(f"v_add_u32 v{eB}, s{sT1}, v{t2}")
        I(f"v_cmp_ne_u32 vcc, 0, v{t4}")
        I(f"v_subrev_u32 v{t2}, 384, v{eB}")
        I(f"v_mov_b32 v{eA}, s{sINV}")
        I(f"v_cndmask_b32 v{eA}, v{eA}, v{t2}, vcc")
        I(f"v_cmp_ne_u32 vcc, 220, v{t4}")
        I(f"v_add_u32 v{t2}, 1536, v{eB}")
        I(f"v_mov_b32 v{eC}, s{sINV}")
        I(f"v_cndmask_b32 v{eC}, v{eC}, v{t2}, vcc")
        for j in (0, 2, 4):
            eload(e, 0, j)
        if opt["pro"] != "alpha":
            if opt["xo"]:
                for j in (1, 3, 5, 7, 9):
                    xload(e, 0, j)
            for j in (1, 3, 5):
                eload(e, 0, j)
        I(f"v_lshlrev_b32 v{t1}, 1, v{t1}")
        I(f"v_xor_b32 v{t1}, v{t1}, v{t0}")
        I(f"v_lshl_add_u32 v{t1}, v{t0}, 4, v{t1}")
        I(f"v_lshlrev_b32 v{t1}, 4, v{t1}")
        I(f"v_mul_u32_u24 v{t3}, {VHALF}, v{t3}")
        I(f"s_add_u32 s{sT0}, s{sPW}, 8")
        I(f"s_lshl_b32 s{sT0}, s{sT0}, 10")
        I(f"v_add3_u32 v{wX[0]}, v{t1}, v{t3}, s{sT0}")
        I(f"v_xor_b32 v{wX[1]}, 16, v{wX[0]}")
    else:
        I(f"s_cmp_eq_u32 s{sPW}, 3")
        I(f"s_cselect_b32 s{sPEND}, 1, 0")
        if opt["rpf"] == 1:
            I(f"s_mul_i32 s{sT0}, s{sIDX}, {18*128}")
            I(f"v_min_u32 v253, 17, v0")
            I(f"v_lshl_add_u32 v253, v253, 7, s{sT0}")
        elif opt["rpf"] == 2:
            I(f"s_sub_u32 s{sT0}, s{sIDX}, 12")
            I(f"s_cmp_lt_u32 s{sIDX}, 7")
            I(f"s_cselect_b32 s{sT0}, s{sIDX}, s{sT0}")
            I(f"s_mul_i32 s{sT1}, s{sT0}, 13")
            I(f"s_lshr_b32 s{sT1}, s{sT1}, 6")
            I(f"s_mul_i32 s{sT2}, s{sT1}, 5")
            I(f"s_sub_u32 s{sL}, s{sT0}, s{sT2}")
            I(f"s_cmp_eq_u32 s{sHASX}, 0")
            I(f"s_cselect_b32 s{sL}, s{sL}, 9")
            I(f"s_cmp_eq_u32 s{sPW}, 3")
            I(f"s_cselect_b32 s{sL}, s{sL}, 9")
            I(f"s_mul_i32 s{sT1}, s{sT1}, {144*128}")
            I(f"v_min_u32 v253, 47, v0")
            I(f"v_lshl_add_u32 v253, v253, 7, s{sT1}")
        I(f"v_mov_b32 v250, {FLAGS + 15*16}")
        if kind == "n":
            srd(e, sU, sWS, UBYTES)
    I(f"v_mov_b32 v251, 1")
    I(f"v_mov_b32 v252, {FLAGS}")

    def pollflag(idx, lab, slp, r=16):
        e.label(lab)
        I(f"ds_read_b128 {vr(r)}, v252 offset:{idx*16}")
        I("s_waitcnt lgkmcnt(0)")
        e.lg = []
        I(f"v_and_b32 v{r}, v{r}, v{r+1}")
        I(f"v_and_b32 v{r+2}, v{r+2}, v{r+3}")
        I(f"v_and_b32 v{r}, v{r}, v{r+2}")
        I("s_nop 0")
        I(f"v_readfirstlane_b32 s{sT0}, v{r}")
        I(f"s_cmp_eq_u32 s{sT0}, 1")
        I(f"s_cbranch_scc1 {lab}_ok")
        if slp:
            I(f"s_sleep {slp}")
        I(f"s_branch {lab}")
        e.label(lab + "_ok")

    upf_from = [(3 if opt["order"] == 2 else opt["pollu"] + 1) + opt["rlead"]]
    upf_from[0] = max(upf_from[0], opt["nraw"] // 2)

    def upf(t, sfx=''):
        if X or not opt["rpf"]:
            return
        k, st, p = UNITS[t]
        base = ((st if k == "B" else 2 + st) * 6 + 2 * p) * 36864
        lab = f"L_UP{kind}{t}{sfx}"
        if opt["rpf"] == 1:
            I(f"s_cmp_eq_u32 s{sPW}, 3")
            I(f"s_cbranch_scc0 {lab}")
            I(f"s_mov_b32 s{sT1}, {base}")
            I(f"buffer_load_dword v254, v253, s[{sU}:{sU+3}], s{sT1} offen sc1")
        else:
            I(f"s_cmp_eq_u32 s{sL}, {t % 5}")
            I(f"s_cbranch_scc0 {lab}")
            for q in range(3):
                I(f"s_mov_b32 s{sT1}, {base + q*48*128}")
                I(f"buffer_load_dword v254, v253, s[{sU}:{sU+3}], s{sT1} offen sc1")
        e.label(lab)

    def waitfree(u, r=16):
        if u >= 3:
            pollflag(16 + u - 3, f"L_FR{kind}{u}", opt["psl"], r)
            if upf_from[0] <= u + opt["rlead"] <= 11:
                upf(u + opt["rlead"])

    def ready(u):
        I("s_mov_b64 exec, 1")
        e.lds(f"ds_add_u32 v252, v251 offset:{448 + 4*u}")
        I("s_mov_b64 exec, -1")
        if not opt["pst"] or e.nst < 15:
            e.stamp()

    def xl(p, par):
        for j in range(par, 10, 2):
            xload(e, p, j)
        if X:
            for j in range(par, 6, 2):
                eload(e, p, j)

    def parse(t):
        d = {}
        for item in t.split(","):
            when, what = item.split(":")
            d.setdefault(when, []).append((int(what[0]), 0 if what[1] == "e" else 1))
        return d
    xsX = parse(opt.get("xsx") or opt["xs"])
    xsN = parse(opt["xs"])
    xs = xsX if X else xsN
    seen = set()

    def xsched(when):
        if kind != "n":
            for p, par in xs.get(when, []):
                xl(p, par)
            return
        a, b = xsX.get(when, []), xsN.get(when, [])
        for it in a + [t for t in b if t not in a]:
            both = it in a and it in b
            if not both:
                lab = f"L_XS{when}_{it[0]}{it[1]}"
                I(f"s_cmp_eq_u32 s{sHASX}, {1 if it in a else 0}")
                I(f"s_cbranch_scc0 {lab}")
            keep = list(e.vm)
            xl(*it)
            if not both:
                e.label(lab)
                if it not in seen:
                    e.vm = keep
                seen.add(it)

    pend = []
    novalu = [False]
    pace = [0, 0]

    def xpace(per, nvalu):
        for p, par in xs.get(f"{per}p", []):
            pend.extend([lambda j=j, p=p: xload(e, p, j) for j in range(par, 10, 2)])
            if X:
                pend.extend([lambda j=j, p=p: eload(e, p, j) for j in range(par, 6, 2)])
        if pend:
            pace[0] = max(1, nvalu // len(pend))
            pace[1] = 0

    def V(s):
        if not (opt["d_nov"] and novalu[0]):
            I(s)
        pace[1] += 1
        if pend and pace[1] % pace[0] == 0:
            pend.pop(0)()

    def later(f):
        if not opt["wsp"]:
            return f()
        if not pend:
            pace[0], pace[1] = opt["wsp"], 0
        pend.append(f)

    def flush():
        while pend:
            pend.pop(0)()

    def unp(dst, src):
        V(f"v_lshlrev_b32 v{dst}, 16, v{src}")
        V(f"v_and_b32 v{dst+1}, s{sMASK}, v{src}")

    def vwrite(addr, src, u):
        if opt["d_now"] and u >= 2:
            return
        e.lds(f"ds_write_b128 v{addr}, {vr(src)} offset:{VS[u % 3]}")

    T16 = list(range(13, 26)) + [54, 55, 56]

    def chainA(D, n, par, neg, waddr, u, ob, wf=False):
        op = "v_subrev_f32" if neg else "v_sub_f32"
        A, B = T16[:8], T16[8:]

        def unp8(R, src):
            for k in range(4):
                V(f"v_lshlrev_b32 v{R[2*k]}, 16, v{src+k}")
                V(f"v_and_b32 v{R[2*k+1]}, s{sMASK}, v{src+k}")
        unp8(A, D(par))
        for j in range(n):
            unp8(B, D(par + 2 * j + 2))
            for k in range(8):
                V(f"{op} v{A[k]}, v{A[k]}, v{B[k]}")
            for k in range(4):
                V(f"v_cvt_pk_bf16_f32 v{ob + 4*(j & 1) + k}, v{A[2*k]}, v{A[2*k+1]}")
            if wf and j == 0:
                waitfree(u, 44)
            vwrite(waddr[j], ob + 4 * (j & 1), u)
            A, B = B, A

    def tA(u, main=True, ext=True):
        kind_, st, p = UNITS[u]
        neg = (st == 1 and any(UNITS[t][0] == "B" for t in range(u)))
        if main:
            e.need(f"x{p}_{st}")
            if opt["pst"] and u <= 1:
                e.stamp()
            chainA(lambda j: PD(p, j), 4, st, neg, wE, u, OB, True)
        if X and ext:
            e.need(f"e{p}_{st}")
            chainA(lambda j: PX(p, j), 2, st, neg, wX, u, OB + 8)

    def pairB(d1, d2, o1, o2):
        for k0 in (0, 2):
            for k in (k0, k0 + 1):
                a = TMP + 6 * (k & 1)
                unp(a, d1 + k); unp(a + 2, d2 + k)
            for k in (k0, k0 + 1):
                a = TMP + 6 * (k & 1)
                b, s = a + 2, a + 4
                V(f"v_add_f32 v{s}, v{a}, v{b}"); V(f"v_add_f32 v{s+1}, v{a+1}, v{b+1}")
                V(f"v_sub_f32 v{a}, v{b}, v{a}"); V(f"v_sub_f32 v{a+1}, v{b+1}, v{a+1}")
            for k in (k0, k0 + 1):
                a = TMP + 6 * (k & 1)
                V(f"v_cvt_pk_bf16_f32 v{o1+k}, v{a+4}, v{a+5}")
                V(f"v_cvt_pk_bf16_f32 v{o2+k}, v{a}, v{a+1}")

    npoll = [0]

    def trypoll(final=False):
        if X:
            return
        n = npoll[0]
        npoll[0] += 1
        lab = f"L_PL{kind}{n}"
        I(f"s_cmp_eq_u32 s{sPEND}, 0")
        I(f"s_cbranch_scc1 {lab}_skip")
        if n == 0:
            if opt["pdel"]:
                I(f"s_sleep {opt['pdel']}")
            I(f"s_load_dword s{sPOLL}, s[{sDBG}:{sDBG+1}], 0")
            e.label(lab + "_skip")
            return
        I("s_waitcnt lgkmcnt(0)")
        tgt = 0 if opt["noatom"] else NWORK
        if final:
            I(f"s_mov_b32 s{sCNT}, {n}")
            I(f"v_mov_b32 v255, 0")
            e.label(lab)
            I(f"s_cmp_ge_u32 s{sPOLL}, {tgt}")
            I(f"s_cbranch_scc1 {lab}_ok")
            I(f"s_sleep {opt['pslp']}")
            I(f"s_cmp_ge_u32 s{sCNT}, 4")
            I(f"s_cbranch_scc1 {lab}_v")
            I(f"s_lshl_b32 s{sT0}, s{sCNT}, 6")
            I(f"s_load_dword s{sPOLL}, s[{sDBG}:{sDBG+1}], s{sT0}")
            I(f"s_add_u32 s{sCNT}, s{sCNT}, 1")
            I("s_waitcnt lgkmcnt(0)")
            I(f"s_branch {lab}")
            e.label(lab + "_v")
            I(f"global_load_dword v254, v255, s[{sDBG}:{sDBG+1}] sc1")
            I(f"s_add_u32 s{sCNT}, s{sCNT}, 1")
            I("s_waitcnt vmcnt(0)")
            I(f"v_readfirstlane_b32 s{sPOLL}, v254")
            I(f"s_cmp_lt_u32 s{sCNT}, 20000")
            I(f"s_cbranch_scc1 {lab}")
        else:
            I(f"s_cmp_ge_u32 s{sPOLL}, {tgt}")
            I(f"s_cbranch_scc1 {lab}_ok")
            I(f"s_load_dword s{sPOLL}, s[{sDBG}:{sDBG+1}], {64*n}")
            I(f"s_branch {lab}_skip")
        e.label(lab + "_ok")
        if opt["pst"]:
            I(f"s_memrealtime s[{sST + 2*pslot[0]}:{sST + 2*pslot[0] + 1}]")
            I(f"s_mov_b32 s{sST + 2*pslot[0] + 2}, " + (f"s{sCNT}" if final else f"{n}"))
        I("ds_write_b32 v250, v251")
        I(f"s_mov_b32 s{sPEND}, 0")
        for t in range(opt["nraw"] // 2, upf_from[0]):
            upf(t, f"_{n}")
        e.label(lab + "_skip")

    pslot = [0]

    def wpoint():
        pollflag(31, f"L_WI{kind}", opt["psl"], 20)
        if opt["otlb"] == 2 or (opt["otlb"] == 1 and kind == "w"):
            I("s_mov_b64 exec, 1")
            e.vmem(f"buffer_load_dword v254, v{xB}, s[{sO}:{sO+3}], 0 offen")
            I("s_mov_b64 exec, -1")
        xsched("w")

    def tB1(u):
        p = UNITS[u][2]
        e.need([f"x{p}_0", f"x{p}_1"] + ([f"e{p}_0", f"e{p}_1"] if X else []))
        for ee in range(4):
            pairB(PD(p, 1 + 2 * ee), PD(p, 2 + 2 * ee), OB + 4 * (ee & 1), OB + 8 + 4 * ee)
            if ee == 0:
                waitfree(u)
                xpace(u, 200 if X else 120)
            vwrite(wE[ee], OB + 4 * (ee & 1), u)
            if u == 2 and ee == opt["wat"]:
                wpoint()
            if u == 2 and ee >= opt["pat"]:
                if ee == opt["pat"] and opt["pst"] and not X:
                    pslot[0] = e.nst
                    e.nst += 2
                trypoll()
                if ee == 3:
                    trypoll(final=True)
        if X:
            e.need([f"e{p}_0", f"e{p}_1"])
            for ee in range(2):
                pairB(PX(p, 1 + 2 * ee), PX(p, 2 + 2 * ee), OB + 4 * ee, OB + 24 + 4 * ee)
                vwrite(wX[ee], OB + 4 * ee, u)
        flush()
        ready(u)

    def tB2(u):
        waitfree(u + 1)
        xsched(f"f{u}")
        for ee in range(4):
            vwrite(wE[ee], OB + 8 + 4 * ee, u + 1)
        if X:
            for ee in range(2):
                vwrite(wX[ee], OB + 24 + 4 * ee, u + 1)
        ready(u + 1)

    n1 = 1 if X else opt["n1"]

    def bar():
        e.drain_lg()
        if not opt["pst"] or e.nst < 15:
            e.stamp()
        I("s_barrier")

    def signal():
        e.need("ust")
        if opt["pst"]:
            e.stamp()
        I(f"v_mov_b32 v{eA}, {FLAGS + 15*16 + 4}")
        I("s_mov_b64 exec, 1")
        I(f"ds_add_rtn_u32 v{eC}, v{eA}, v251")
        I("s_waitcnt lgkmcnt(0)")
        e.lg = []
        I(f"v_readfirstlane_b32 s{sT0}, v{eC}")
        I(f"s_cmp_eq_u32 s{sT0}, 3")
        I("s_cbranch_scc0 L_NOATOM")
        I("s_mov_b64 exec, 15")
        I(f"v_lshlrev_b32 v{eA}, 6, v0")
        if not opt["noatom"]:
            I(f"global_atomic_add v{eA}, v251, s[{sDBG}:{sDBG+1}] sc1")
        e.label("L_NOATOM")
        I("s_mov_b64 exec, -1")

    if opt["otlb"] == 1 and kind != "w":
        I("s_mov_b64 exec, 1")
        e.vmem(f"buffer_load_dword v254, v{xB}, s[{sO}:{sO+3}], 0 offen")
        I("s_mov_b64 exec, -1")
    e.drain_lg()
    e.stamp()
    if not (kind == "w" and opt["wp1"]):
        I("s_barrier")
    if opt["pro"] == "alpha":
        I("s_barrier")
        if kind != "w" and opt["aord"] == 0:
            xl(0, 1)
    if kind == "w":
        signal()
        xl(0, 1)
    tA(0)
    ready(0)
    if opt["pro"] == "alpha" and kind != "w" and opt["aord"] == 1:
        xl(0, 1)
    xsched("a0")
    tA(1)
    ready(1)
    xsched("a1")
    novalu[0] = True
    for u in range(2, 12):
        k, st, p = UNITS[u]
        if k == "A":
            if u == 2:
                wpoint()
            tA(u)
            ready(u)
            if u == opt["pollu"]:
                trypoll()
                trypoll(final=True)
            xsched(f"a{u}")
        elif st == 0:
            tB1(u)
            xsched(f"j{u}")
            tB2(u)
            xsched(f"k{u}")
    if True:
        if True:
            rA, rB, gA, gB, vXL, vXG = 1, 2, 3, 4, 5, 6
            I(f"s_mul_i32 s{sT0}, s{sROW0}, 86016")
            I(f"s_mul_i32 s{sT1}, s{sSTRIP}, 12288")
            I(f"s_add_u32 s{sT0}, s{sT0}, s{sT1}")
            I(f"s_mul_i32 s{sT1}, s{sPW}, 3072")
            I(f"s_add_u32 s{sT0}, s{sT0}, s{sT1}")
            I(f"s_mul_i32 s{sT1}, s{sPW}, 1600")
            I(f"s_add_u32 s{sT1}, s{sT1}, {OUT}")
            for (r, gg, add) in ((rA, gA, 0), (rB, gB, 64)):
                I(f"v_add_u32 v{t0}, {add}, v0")
                I(f"v_min_u32 v{t0}, 95, v{t0}")
                I(f"v_mul_u32_u24 v{t1}, 10923, v{t0}")
                I(f"v_lshrrev_b32 v{t1}, 18, v{t1}")
                I(f"v_mul_u32_u24 v{t2}, 24, v{t1}")
                I(f"v_sub_u32 v{t2}, v{t0}, v{t2}")
                I(f"v_lshlrev_b32 v{t2}, 4, v{t2}")
                I(f"v_mul_u32_u24 v{t3}, 400, v{t1}")
                I(f"v_add3_u32 v{r}, v{t3}, v{t2}, s{sT1}")
                I(f"v_mul_u32_u24 v{t3}, 768, v{t1}")
                I(f"v_add3_u32 v{gg}, v{t3}, v{t2}, s{sT0}")
            I(f"v_cmp_gt_u32 vcc, 32, v0")
            I(f"v_mov_b32 v{t4}, s{sINV}")
            I(f"v_add_u32 v250, {6*OROW}, v{rA}")
            I(f"v_cndmask_b32 v{gB}, v{t4}, v{gB}, vcc")
            I(f"v_add_u32 v251, {6*OROW}, v{rB}")
            I(f"s_lshl_b32 s{sT0}, s{sPW}, 2")
            I(f"v_bfe_u32 v{t0}, v0, 3, 2")
            I(f"v_add_u32 v{t0}, s{sT0}, v{t0}")
            I(f"v_and_b32 v{t1}, 7, v0")
            I(f"v_mul_u32_u24 v{t2}, 144, v{t0}")
            I(f"v_lshl_add_u32 v{t2}, v{t1}, 4, v{t2}")
            I(f"v_add_u32 v{vXL}, {XST}, v{t2}")
            I(f"v_mul_u32_u24 v{t0}, 768, v{t0}")
            I(f"v_lshrrev_b32 v{t2}, 1, v{t1}")
            I(f"v_mul_u32_u24 v{t2}, 96, v{t2}")
            I(f"v_and_b32 v{t1}, 1, v{t1}")
            I(f"v_lshl_add_u32 v{t2}, v{t1}, 4, v{t2}")
            I(f"s_mul_i32 s{sT0}, s{sEROW}, 86016")
            I(f"s_mul_i32 s{sT1}, s{sES}, 12288")
            I(f"s_add_u32 s{sT0}, s{sT0}, s{sT1}")
            I(f"s_lshl_b32 s{sT1}, s{sF0}, 5")
            I(f"s_add_u32 s{sT0}, s{sT0}, s{sT1}")
            I(f"v_add3_u32 v{vXG}, v{t0}, v{t2}, s{sT0}")
            I(f"v_cndmask_b32 v{vXG}, v{t4}, v{vXG}, vcc")
    rA, rB, gA, gB, vXL, vXG = 1, 2, 3, 4, 5, 6
    sf = opt["sf"]
    nb = [0]

    def rowread(st, m, b):
        a0, a1 = (rA, rB) if st == 0 else (250, 251)
        I(f"ds_read_b128 {vr(b)}, v{a0} offset:{m*OROW}")
        I(f"ds_read_b128 {vr(b+4)}, v{a1} offset:{m*OROW}")

    def rowstore(st, m, b, w0=None, w1=None):
        sf = opt["sfl"] if st == 1 and m >= 6 - opt["nlast"] else opt["sf"]
        I(f"s_mov_b32 s{sOFF}, {m*86016}")
        if w0: I(w0)
        I(f"buffer_store_dwordx4 {vr(b)}, v{gA}, s[{sO}:{sO+3}], s{sOFF} offen offset:{384*st} {sf}")
        if w1: I(w1)
        I(f"buffer_store_dwordx4 {vr(b+4)}, v{gB}, s[{sO}:{sO+3}], s{sOFF} offen offset:{384*st} {sf}")

    def xpart(st, b):
        if kind == "w":
            return
        if kind == "n":
            I(f"s_cmp_eq_u32 s{sHASX}, 0")
            I(f"s_cbranch_scc1 L_NOX{st}")
        pollflag(12 + st, f"L_F{kind}X{st}", opt["slp"])
        I(f"ds_read_b128 {vr(b)}, v{vXL} offset:{2304*st}")
        I("s_waitcnt lgkmcnt(0)")
        I(f"buffer_store_dwordx4 {vr(b)}, v{vXG}, s[{sO}:{sO+3}], 0 offen offset:{384*st}")
        if kind == "n":
            e.label(f"L_NOX{st}")

    pollflag(5, f"L_F{kind}0_5", opt["psl"])
    for m in range(6):
        rowread(0, m, 28 + 8 * m)
    pollflag(14, f"L_F{kind}GO", opt["slp"])
    if not opt["pst"]:
        e.stamp()
    for m in range(6):
        rowstore(0, m, 28 + 8 * m)
    xpart(0, 76)
    for m in [0, 1, "X", 2, 3, 4, 5]:
        if m == "X":
            xpart(1, 80)
            continue
        b = 84 + 8 * m
        pollflag(6 + m, f"L_F{kind}1_{m}", opt["slp"] if m < 4 else opt["slpl"])
        if m in (0, 5) and not opt["pst"]:
            e.stamp()
        rowread(1, m, b)
        rowstore(1, m, b, "s_waitcnt lgkmcnt(1)", "s_waitcnt lgkmcnt(0)")
    e.stamp()
    if opt["stamp"]:
        I("s_waitcnt vmcnt(0)")
        e.stamp()
    e.dump_stamps("p")
    I("s_endpgm")
    return e.L


def generate(**kw):
    opt = dict(DEF)
    opt.update(kw)
    opt["code_pf_lines"] = 18
    UNITS[:] = ORDERS[opt["order"]]
    L = []
    L.append(f"; @launch grid=(256,1,1) block=(512,1,1) lds={LDS_BYTES}")
    L.append('.amdgcn_target "amdgcn-amd-amdhsa--gfx950"')
    L.append(".text")
    L.append(f".globl {KNAME}")
    L.append(".p2align 8")
    L.append(f".type {KNAME},@function")
    L.append(f"{KNAME}:")
    e = Em(opt)
    I = e.I
    e.stamp()
    I(f"s_load_dwordx8 s[{sKA}:{sKA+7}], s[0:1], 0")
    I(f"s_load_dwordx4 s[{sDBG}:{sDBG+3}], s[0:1], 32")
    I("v_lshrrev_b32 v1, 6, v0")
    I("s_cmp_ge_u32 s2, 256")
    I("s_cbranch_scc1 L_END")
    I(f"v_readfirstlane_b32 s{sWAVE}, v1")
    I("v_and_b32 v0, 63, v0")
    if opt["epf"]:
        R = opt["epf"]
        I(f"s_getpc_b64 s[{sPC}:{sPC+1}]")
        I(f"s_bfe_u32 s{sT0}, s2, {3 | ((R.bit_length() - 1) << 16)}")
        I(f"v_min_u32 v2, {24 // R - 1}, v0")
        I(f"v_lshl_add_u32 v2, v2, {R.bit_length() - 1}, s{sT0}")
        I(f"v_mul_u32_u24 v1, {CS}, v1")
        I(f"v_lshl_add_u32 v2, v2, 7, v1")
        I(f"v_min_u32 v2, L_END-{KNAME}-256, v2")
        e.vmem(f"global_load_dword v255, v2, s[{sPC}:{sPC+1}]", "epf")
    I(f"s_mov_b32 s{sMASK}, 0xffff0000")
    I(f"s_mov_b32 s{sINV}, 0x80000000")
    I(f"s_lshr_b32 s{sIDX}, s2, 3")
    I(f"s_cmp_lt_u32 s{sWAVE}, 4")
    I("s_cbranch_scc1 L_CONS")
    I(f"s_sub_u32 s{sPW}, s{sWAVE}, 4")
    I(f"s_cmp_lt_u32 s{sIDX}, 7")
    I("s_cbranch_scc1 L_PW")
    L += e.L
    epw = Em(opt, e)
    worker_pre(epw, opt)
    producer_main(epw, opt)
    ep = Em(opt, e)
    producer_main(ep, opt)
    if not opt["xo"]:
        for j in (1, 3, 5, 7, 9):
            xload(ep, 0, j)
    ep.I(f"s_cmp_ge_u32 s{sIDX}, 19")
    ep.I("s_cbranch_scc1 L_PN")
    ep.I(f"s_cmp_eq_u32 s{sPW}, 3")
    ep.I("s_cbranch_scc1 L_PN")
    L += ep.L
    L += producer(ep, opt, "x")
    L.append(f".org {KNAME} + {1 * CS}, 0" if opt["epf"] else ".p2align 6")
    L.append("L_PN:")
    L += producer(ep, opt, "n")
    L.append(f".org {KNAME} + {2 * CS}, 0" if opt["epf"] else ".p2align 6")
    L.append("L_PW:")
    L += epw.L
    L += producer(epw, opt, "w")
    L.append(f".org {KNAME} + {3 * CS}, 0" if opt["epf"] else ".p2align 6")
    L.append("L_CONS:")
    ec = Em(opt, e)
    consumer_pro(ec, opt)
    L += ec.L
    L += consumer(ec, opt, True)
    L.append(f".org {KNAME} + {5 * CS}, 0" if opt["epf"] else ".p2align 6")
    L.append("L_CN:")
    L += consumer(ec, opt, False)
    L.append("L_END:")
    L.append("    s_endpgm")
    L.append('.section .rodata,"a"')
    L.append(".p2align 6")
    L.append(f".amdhsa_kernel {KNAME}")
    for d in ("next_free_vgpr 256", "next_free_sgpr 102", "accum_offset 256", "group_segment_fixed_size 0",
              "kernarg_size 48", "user_sgpr_count 2", "user_sgpr_kernarg_segment_ptr 1",
              "system_sgpr_workgroup_id_x 1", "ieee_mode 0", "float_denorm_mode_32 1"):
        L.append("  .amdhsa_" + d)
    L.append(".end_amdhsa_kernel")
    return "\n".join(L) + "\n"


if __name__ == "__main__":
    out = sys.argv[1]
    kw = {}
    for a in sys.argv[2:]:
        k, v = a.split("=", 1)
        try:
            kw[k] = int(v)
        except ValueError:
            try:
                kw[k] = float(v)
            except ValueError:
                kw[k] = v.replace("+", " ")
    open(out, "w").write(generate(**kw))
```

```python
import sys, os
sys.path.insert(0, os.path.dirname(os.path.abspath(__file__)))
from cost import gapcost

KNAME = "standalone__standard_2d_1d_3d_conv__vision_kernel"

DEF = dict(
    stamp=0, spin=4000, spinref=0, cst=-1, cev=8, pst=0,
    xf="nt", sf="nt", uf="sc1",
    code_pf=1, w_pf=1,
    prio=0, slp=1,
    pro="beta",
    xs="w:1e,w:1o,k2:2e,4p:2o",
    dsp=2.5,
    ustep=3, ulead=12,
    lag=-1,
    go=23,
    noatom=0, u_pf=0, pollp=1, pollat=-2, n1=1, y0at=0, gam=0, psl=2, epf=2, xo=1, w1late=0, otlb=0, aord=0, rsh=0, dd=0, wta=0, d_xcc=0, d_jit=0, d_st=0, par=1, wnear=0, w8=0, dedup=1, two=2, d_sl=0, ego=0, st2=1, wp1=0, pdel=0, nraw=4, pollu=2, pslp=8, trd=9, d_now=0, d_nov=0, d_nou=0, sfl='sc1', nlast=0, slpl=0, ustep0=5, order=2, wat=0, pat=3, rpf=1, rlead=0, wsp=10, pollw=0, w2pre=1, tr1at=4, wo=2, ulead0=0,
)

VSLOT = 22528
VHALF = 11264
VS = [0, VSLOT, 2 * VSLOT]
FLAGS = 3 * VSLOT
WRING = FLAGS + 512
WWAVE = 18432
OROW = 6400
OUT = WRING
XST = OUT + 12 * OROW
PRE = VS[1]
LDS_BYTES = XST + 4608
NW = [56]
CS = 12800

XBYTES = 224 * 224 * 384
WBYTES = 9 * 192 * 384
UBYTES = 24 * 36864

ORDERS = {
    2: [("A", 0, 0), ("A", 1, 0),
        ("B", 0, 0), ("B", 1, 0), ("B", 0, 1), ("B", 1, 1), ("B", 0, 2), ("B", 1, 2),
        ("A", 0, 1), ("A", 0, 2), ("A", 1, 1), ("A", 1, 2)],
    3: [("A", 0, 0), ("A", 1, 0), ("A", 0, 1),
        ("B", 0, 0), ("B", 1, 0), ("B", 0, 1), ("B", 1, 1), ("B", 0, 2), ("B", 1, 2),
        ("A", 0, 2), ("A", 1, 1), ("A", 1, 2)],
    1: [("A", 0, 0), ("A", 1, 0), ("A", 0, 1), ("A", 1, 1),
        ("B", 0, 0), ("B", 1, 0), ("B", 0, 1), ("B", 1, 1), ("B", 0, 2), ("B", 1, 2),
        ("A", 0, 2), ("A", 1, 2)],
}
UNITS = list(ORDERS[2])


def step_info(s):
    kind, st, pair = UNITS[s >> 1]
    return kind, st, 2 * pair + (s & 1)


sX, sW, sO, sU, sB = 4, 8, 12, 16, 20
sDBG, sWS, sKA = 24, 26, 28
sWAVE, sL, sSTRIP, sROW0, sHASX, sES, sEROW = 36, 37, 38, 39, 40, 41, 42
sF0, sF1, sF2, sIDX = 43, 44, 45, 46
sT0, sT1, sT2, sT3 = 47, 48, 49, 50
sMASK, sRING, sOFF, sOFF2, sPW = 51, 52, 53, 54, 55
sPC, sCNT, sINV = 56, 58, 59
sPOLL, sPEND = 3, 56
sST = 60


NSPIN = [0]


class Em:
    def __init__(self, opt, parent=None):
        self.L = []
        self.lg = list(parent.lg) if parent else []
        self.vm = list(parent.vm) if parent else []
        self.opt = opt
        self.nst = parent.nst if parent else 0

    def I(self, s):
        self.L.append("    " + s)

    def label(self, s):
        self.L.append(s + ":")

    def lds(self, s, name=None):
        self.I(s)
        self.lg.append(name)

    def vmem(self, s, name=None):
        self.I(s)
        self.vm.append(name)

    def need(self, names):
        if isinstance(names, str):
            names = [names]
        w = []
        k = max([i for i, n in enumerate(self.vm) if n in names], default=-1)
        if k >= 0:
            n = min(len(self.vm) - 1 - k, 63)
            w.append(f"vmcnt({n})")
            self.vm = self.vm[len(self.vm) - n:] if n else []
        k = max([i for i, n in enumerate(self.lg) if n in names], default=-1)
        if k >= 0:
            n = min(len(self.lg) - 1 - k, 15)
            w.append(f"lgkmcnt({n})")
            self.lg = self.lg[len(self.lg) - n:] if n else []
        if w:
            self.I("s_waitcnt " + " ".join(w))

    def drain_lg(self):
        self.I("s_waitcnt lgkmcnt(0)")
        self.lg = []

    def drain_vm(self):
        self.I("s_waitcnt vmcnt(0)")
        self.vm = []

    def stamp(self):
        o = self.opt
        if o["stamp"] == 4 and self.nst != o["spinref"]:
            self.nst += 1
        elif o["stamp"]:
            r = sST + 2 * self.nst
            assert r + 1 < 100, "too many stamps"
            self.I(f"s_memrealtime s[{r}:{r+1}]" if o["stamp"] in (1, 4) else f"s_memtime s[{r}:{r+1}]")
            self.nst += 1

    def jit(self, k):
        if not self.opt["d_jit"]:
            return
        NSPIN[0] += 1
        n = NSPIN[0]
        self.I(f"s_mul_i32 s98, s2, {7 + 2*k}")
        self.I(f"s_mul_i32 s99, s{sWAVE}, {5 + 6*k}")
        self.I("s_add_u32 s98, s98, s99")
        self.I(f"s_add_u32 s98, s98, {self.opt['d_jit'] * 3 + k}")
        self.I("s_and_b32 s98, s98, 7")
        self.I("s_cmp_lt_u32 s98, 5")
        self.I(f"s_cbranch_scc1 L_JIT{n}")
        self.I(f"s_sleep {20 + 9*(k % 5)}")
        self.label(f"L_JIT{n}")

    def dump_stamps(self, role):
        o = self.opt
        if not o["stamp"]:
            return
        self.I("s_waitcnt vmcnt(0) lgkmcnt(0)")
        if o["stamp"] == 4:
            if o["spinref"] and role != "c":
                return
            NSPIN[0] += 1
            lab = f"L_SPIN{NSPIN[0]}"
            self.label(lab)
            self.I(f"s_memrealtime s[{sT1}:{sT1+1}]")
            self.I("s_waitcnt lgkmcnt(0)")
            self.I(f"s_sub_u32 s{sT0}, s{sT1}, s{sST + 2*o['spinref']}")
            if o["d_xcc"] == 2:
                self.I(f"s_getreg_b32 s{sT3}, hwreg(HW_REG_XCC_ID)")
                self.I(f"s_and_b32 s{sT3}, s{sT3}, 15")
                self.I(f"s_mul_i32 s{sT3}, s{sT3}, 300")
                self.I(f"s_add_u32 s{sT3}, s{sT3}, {o['spin']}")
                self.I(f"s_cmp_eq_u32 s2, 0")
                self.I(f"s_cselect_b32 s{sT3}, s{sT3}, 0")
                self.I(f"s_cmp_lt_u32 s{sT0}, s{sT3}")
            else:
                self.I(f"s_cmp_lt_u32 s{sT0}, {o['spin']}")
            self.I(f"s_cbranch_scc1 {lab}")
            return
        self.I(f"s_lshl_b32 s{sT0}, s2, 3")
        self.I(f"s_add_u32 s{sT0}, s{sT0}, s{sWAVE}")
        self.I(f"s_lshl_b32 s{sT0}, s{sT0}, 8")
        self.I(f"s_add_u32 s{sT0}, s{sT0}, 0x100000")
        self.I(f"v_mov_b32 v1, s{sT0}")
        for i in range(self.nst):
            self.I(f"v_mov_b32 v2, s{sST + 2*i}")
            self.I(f"global_store_dword v1, v2, s[{sWS}:{sWS+1}] offset:{4*i}")
        self.I(f"v_mov_b32 v2, {self.nst}")
        self.I(f"global_store_dword v1, v2, s[{sWS}:{sWS+1}] offset:252")
        self.I(f"s_getreg_b32 s{sT0}, hwreg(HW_REG_XCC_ID)")
        self.I(f"v_mov_b32 v2, s{sT0}")
        self.I(f"global_store_dword v1, v2, s[{sWS}:{sWS+1}] offset:248")


def vr(a, n=4):
    return f"v[{a}:{a+n-1}]"


def srd(e, s, lo, nbytes, bias=0):
    if bias:
        e.I(f"s_sub_u32 s{s}, s{lo}, {bias}")
        e.I(f"s_subb_u32 s{s+1}, s{lo+1}, 0")
    else:
        e.I(f"s_mov_b32 s{s}, s{lo}")
        e.I(f"s_mov_b32 s{s+1}, s{lo+1}")
    e.I(f"s_mov_b32 s{s+2}, {nbytes + bias}")
    e.I(f"s_mov_b32 s{s+3}, 0x20000")


def decode_main(e):
    I = e.I
    I(f"s_and_b32 s{sT0}, s2, 7")
    I(f"s_lshl_b32 s{sT0}, s{sT0}, 5")
    I(f"s_add_u32 s{sT0}, s{sT0}, s{sIDX}")
    I(f"s_mul_i32 s{sT0}, s{sT0}, 7")
    I(f"s_lshr_b32 s{sSTRIP}, s{sT0}, 8")
    I(f"s_and_b32 s{sT0}, s{sT0}, 255")
    I(f"s_mul_i32 s{sT0}, s{sT0}, 293")
    I(f"s_lshr_b32 s{sT0}, s{sT0}, 11")
    I(f"s_mul_i32 s{sROW0}, s{sT0}, 6")


def decode_extra(e):
    I = e.I
    if e.opt["par"]:
        I(f"s_bfe_u32 s{sT0}, s2, {1 | (2 << 16)}")
        I(f"s_mul_i32 s{sT0}, s{sT0}, 24")
        I(f"s_add_u32 s{sT0}, s{sT0}, s{sIDX}")
        I(f"s_sub_u32 s{sT0}, s{sT0}, 8")
    else:
        I(f"s_and_b32 s{sT0}, s2, 7")
        I(f"s_mul_i32 s{sT0}, s{sT0}, 12")
        I(f"s_add_u32 s{sT0}, s{sT0}, s{sIDX}")
        I(f"s_sub_u32 s{sT0}, s{sT0}, 7")
    I(f"s_mul_i32 s{sT1}, s{sT0}, 21846")
    I(f"s_lshr_b32 s{sT1}, s{sT1}, 16")
    I(f"s_mul_i32 s{sT2}, s{sT1}, 3")
    I(f"s_sub_u32 s{sF0}, s{sT0}, s{sT2}")
    I(f"s_cmp_eq_u32 s{sHASX}, 1")
    I(f"s_cselect_b32 s{sF0}, s{sF0}, 0")
    I(f"s_cselect_b32 s{sT1}, s{sT1}, 0")
    I(f"s_lshl_b32 s{sES}, s{sT1}, 1")
    I(f"s_and_b32 s{sES}, s{sES}, 12")
    I(f"s_lshr_b32 s{sES}, 0x5310, s{sES}")
    I(f"s_and_b32 s{sES}, s{sES}, 15")
    I(f"s_and_b32 s{sEROW}, s{sT1}, 1")
    I(f"s_add_u32 s{sEROW}, s{sEROW}, 222")
    I(f"s_lshr_b32 s{sT3}, s{sT1}, 3")
    I(f"s_lshl_b32 s{sT3}, s{sT3}, 1")
    I(f"s_and_b32 s{sT2}, s{sT1}, 7")
    I(f"s_add_u32 s{sT2}, s{sT2}, 216")
    I(f"s_cmp_lt_u32 s{sT1}, 8")
    I(f"s_cselect_b32 s{sES}, s{sES}, s{sT3}")
    I(f"s_cselect_b32 s{sEROW}, s{sEROW}, s{sT2}")


def consumer_pro(e, opt):
    I = e.I
    vV, vV2, vT = 1, 2, 3
    vD = [4, 5, 6]
    vU = [7, 253, 254]
    t0, t1, t2, t3, t4 = 8, 9, 10, 11, 12
    sF = [sF0, sF1, sF2]
    if opt["w8"] == 2:
        I(f"s_cmp_eq_u32 s{sL}, 0")
        I("s_cbranch_scc1 L_CW0")
        keep = list(e.vm)
        worker_pre(e, opt, cons=True)
        e.vm = keep
        e.label("L_CW0")
    decode_extra(e)
    I(f"s_add_u32 s{sF1}, s{sF0}, 1")
    I(f"s_cmp_eq_u32 s{sF1}, 3")
    I(f"s_cselect_b32 s{sF1}, 0, s{sF1}")
    I(f"s_add_u32 s{sF2}, s{sF1}, 1")
    I(f"s_cmp_eq_u32 s{sF2}, 3")
    I(f"s_cselect_b32 s{sF2}, 0, s{sF2}")
    I(f"v_lshrrev_b32 v{t0}, 4, v0")
    I(f"s_mul_i32 s{sT0}, s{sWAVE}, 96")
    I(f"v_lshlrev_b32 v{t4}, 3, v{t0}")
    I(f"v_add_u32 v{t4}, s{sT0}, v{t4}")
    for s in range(3):
        I(f"s_lshl_b32 s{sT1}, s{sF[s]}, 5")
        I(f"v_add_u32 v{13+s}, s{sT1}, v{t4}")
    if opt["w_pf"]:
        I(f"s_mul_i32 s{sT1}, s{sIDX}, 36")
        I(f"v_min_u32 v{t1}, 35, v0")
        I(f"v_add_u32 v{t1}, s{sT1}, v{t1}")
        I(f"v_mul_u32_u24 v{t2}, 10923, v{t1}")
        I(f"v_lshrrev_b32 v{t2}, 21, v{t2}")
        I(f"v_add_u32 v{t3}, 1, v{t2}")
        I(f"v_lshrrev_b32 v{t3}, 1, v{t3}")
        I(f"v_mul_u32_u24 v{t3}, 576, v{t3}")
        I(f"v_mul_u32_u24 v{t2}, 384, v{t2}")
        I(f"v_add3_u32 v{t1}, v{t1}, v{t2}, v{t3}")
        I(f"s_mul_i32 s{sT1}, s{sWAVE}, {192*128}")
        I(f"s_add_u32 s{sT1}, s{sT1}, 2048")
        I(f"v_lshl_add_u32 v252, v{t1}, 7, s{sT1}")
    I("s_waitcnt lgkmcnt(0)")
    srd(e, sB, sKA + 4, 384)
    srd(e, sW, sKA + 2, WBYTES, 2048)
    srd(e, sU, sWS, UBYTES)
    if opt["w_pf"]:
        I(f"s_cmp_ge_u32 s{sWAVE}, {1 if opt['nraw'] == 4 else 2}")
        I("s_cbranch_scc1 L_NOWPF")
        I(f"buffer_load_dword v255, v252, s[{sW}:{sW+3}], 0 offen")
        e.label("L_NOWPF")
    if opt["code_pf"]:
        I(f"s_cmp_eq_u32 s{sWAVE}, 2")
        I("s_cbranch_scc0 L_NOCPF")
        I(f"s_getpc_b64 s[{sPC}:{sPC+1}]")
        e.label("L_PC0")
        I(f"s_sub_u32 s{sPC}, s{sPC}, L_PC0-{KNAME}")
        I(f"s_subb_u32 s{sPC+1}, s{sPC+1}, 0")
        I(f"s_mul_i32 s{sT1}, s{sIDX}, {opt['code_pf_lines']*128}")
        I(f"v_min_u32 v252, {opt['code_pf_lines']-1}, v0")
        I(f"v_lshl_add_u32 v252, v252, 7, s{sT1}")
        I(f"v_min_u32 v252, L_END-{KNAME}, v252")
        I(f"global_load_dword v255, v252, s[{sPC}:{sPC+1}]")
        e.label("L_NOCPF")
    if opt["d_xcc"] == 1:
        I(f"s_cmp_lt_u32 s2, 12")
        I("s_cbranch_scc0 L_NOXCC")
        I(f"s_getreg_b32 s{sT1}, hwreg(HW_REG_XCC_ID)")
        I(f"s_lshl_b32 s{sT2}, s2, 2")
        I(f"v_mov_b32 v22, s{sT1}")
        I(f"v_mov_b32 v23, s{sT2}")
        I(f"global_store_dword v23, v22, s[{sDBG}:{sDBG+1}] offset:16")
        e.label("L_NOXCC")
    for s in range(3):
        e.vmem(f"buffer_load_dwordx2 {vr(16+2*s, 2)}, v{13+s}, s[{sB}:{sB+3}], 0 offen", "bias")
    I(f"v_and_b32 v{t1}, 15, v0")
    I(f"v_xor_b32 v{t2}, v{t0}, v{t1}")
    I(f"v_lshl_add_u32 v{t2}, v{t0}, 4, v{t2}")
    I(f"v_lshlrev_b32 v{vV}, 4, v{t2}")
    I(f"v_add_u32 v{vV2}, 0x8000, v{vV}")
    I(f"s_mul_i32 s{sRING}, s{sWAVE}, {WWAVE}")
    I(f"s_add_u32 s{sRING}, s{sRING}, {WRING}")
    I(f"v_lshrrev_b32 v{t2}, 2, v0")
    I(f"v_mul_u32_u24 v{t2}, 96, v{t2}")
    I(f"v_and_b32 v{t3}, 3, v0")
    I(f"v_lshl_add_u32 v{t2}, v{t3}, 3, v{t2}")
    I(f"v_add_u32 v{vT}, s{sRING}, v{t2}")
    for d in range(3):
        I(f"v_add_u32 v{t1}, {64*d}, v0")
        I(f"v_mul_u32_u24 v{t2}, 43691, v{t1}")
        I(f"v_lshrrev_b32 v{t2}, 18, v{t2}")
        I(f"v_mul_u32_u24 v{t3}, 6, v{t2}")
        I(f"v_sub_u32 v{t1}, v{t1}, v{t3}")
        I(f"v_bfe_u32 v{t3}, v{t2}, 2, 2")
        I(f"v_lshlrev_b32 v{t3}, 3, v{t3}")
        I(f"v_lshrrev_b32 v{t4}, 4, v{t2}")
        I(f"v_lshl_add_u32 v{t3}, v{t4}, 2, v{t3}")
        I(f"v_and_b32 v{t2}, 3, v{t2}")
        I(f"v_add_u32 v{t2}, v{t2}, v{t3}")
        I(f"v_mul_u32_u24 v{t2}, 384, v{t2}")
        I(f"v_lshrrev_b32 v{t3}, 1, v{t1}")
        I(f"v_add_u32 v{t3}, s{sF0}, v{t3}")
        I(f"v_subrev_u32 v{t4}, 3, v{t3}")
        I(f"v_min_u32 v{t3}, v{t3}, v{t4}")
        I(f"v_lshl_add_u32 v{t2}, v{t3}, 5, v{t2}")
        I(f"v_and_b32 v{t1}, 1, v{t1}")
        I(f"v_lshl_add_u32 v{t2}, v{t1}, 4, v{t2}")
        I(f"v_add_u32 v{t2}, s{sT0}, v{t2}")
        I(f"v_add_u32 v{vD[d]}, {2048 - 1024*d}, v{t2}")
    I(f"s_mul_i32 s{sT1}, s{sWAVE}, 9216")
    for s in range(3):
        I(f"s_mul_i32 s{sT0}, s{sF[s]}, 3072")
        I(f"s_add_u32 s{sT0}, s{sT0}, s{sT1}")
        I(f"v_lshl_add_u32 v{vU[s]}, v0, 4, s{sT0}")
    if opt["w8"] == 2:
        I(f"s_cmp_eq_u32 s{sL}, 0")
        I("s_cbranch_scc1 L_CW1")
        w = Em(opt, e)
        w.vm = ["pre0"] + ["x"] * 3
        w.I(f"v_lshrrev_b32 v98, 2, v0")
        w.I(f"v_lshlrev_b32 v98, 5, v98")
        w.I(f"v_and_b32 v99, 3, v0")
        w.I(f"v_lshl_add_u32 v98, v99, 3, v98")
        w.I(f"v_add_u32 v98, s{sPOLL}, v98")
        prepass(w, dict(opt, pst=0), 0, 100, 120, 97, 98)
        e.L += w.L
        e.label("L_CW1")
    I(f"s_cmp_eq_u32 s{sHASX}, 0")
    I("s_cbranch_scc1 L_CN")


def consumer(parent, opt, extra):
    e = Em(opt, parent)
    I = e.I
    vV, vV2, vT = 1, 2, 3
    vD = [4, 5, 6]
    vU = [7, 253, 254]
    vO = vD
    vOX, vFL, vONE, vCK = 3, 255, 252, 0
    VR = 8
    WB = [24, 60]
    ACC = 96
    acc = {}
    for m in range(6):
        for st in range(2):
            for s in range(3):
                acc[(m, st, s)] = ACC + 4 * ((m * 2 + st) * 3 + s)
    acc[("X", 0)] = 240
    acc[("X", 1)] = 244
    spare = [248]
    sF = [sF0, sF1, sF2]
    tag = "x" if extra else "n"

    def W(step, i, s):
        return WB[step & 1] + 4 * (i * 3 + s)

    def dma_ops(step, i):
        kind, st, c = step_info(step)
        slot = (step & 1) * 3 + i
        ops = [("S", lambda: I(f"s_add_u32 m0, s{sRING}, {slot*3072}")),
               ("S", lambda: I(f"s_mov_b32 s{sOFF2}, {(i*3+2*st)*73728 + c*12288}"))]
        for d in range(3):
            def f(d=d):
                e.need([f"w{step-2}_{i}"])
                e.vmem(f"buffer_load_dwordx4 v{vD[d]}, s[{sW}:{sW+3}], s{sOFF2} offen offset:{1024*d} lds", f"dma{step}_{i}")
            ops.append(("M", f))
        return ops

    def tr_ops(step, i):
        slot = (step & 1) * 3 + i
        ops = []
        for s in range(3):
            for h in range(2):
                def f(s=s, h=h):
                    e.need([f"dma{step}_{i}"])
                    e.lds(f"ds_read_b64_tr_b16 {vr(W(step, i, s) + 2*h, 2)}, v{vT} offset:{slot*3072 + h*1536 + s*32}", f"w{step}_{i}")
                ops.append(("WR" if s == 0 and h == 0 else "R", f))
        return ops

    def u_op(step, i, s):
        if opt["d_nou"] and step > 9:
            return ("S", lambda: I("s_nop 0"))
        return ("M", lambda: e.vmem(f"buffer_load_dwordx4 {vr(W(step, i, s))}, v{vU[s]}, s[{sU}:{sU+3}], s{sOFF} offen offset:{1024*i} {opt['uf']}", f"w{step}_{i}"))

    def u_off(step):
        kind, st, c = step_info(step)
        pos = st if kind == "B" else 2 + st
        return ("S", lambda: I(f"s_mov_b32 s{sOFF}, {(pos*6+c)*36864}"))

    I(f"v_lshlrev_b32 v8, 3, v0")
    I(f"v_add_u32 v8, {FLAGS}, v8")
    I(f"v_mov_b32 v10, 0")
    I(f"v_mov_b32 v11, 0")
    I(f"ds_write_b64 v8, v[10:11]")
    I("s_waitcnt lgkmcnt(0)")
    e.stamp()
    I("s_barrier")
    for i in range(3):
        for c, f in dma_ops(0, i):
            f()
    if opt["pro"] == "alpha":
        I("s_barrier")
    w1late = opt["w1late"] == 2 or (opt["w1late"] == 1 and not extra)
    if not w1late:
        for i in range(3):
            for c, f in dma_ops(1, i):
                f()
    e.need("bias")
    if opt["w8"] == 2 and not extra:
        I(f"s_cmp_eq_u32 s{sL}, 0")
        I("s_cbranch_scc1 L_CW2")
        I(f"v_mov_b32 v8, {FLAGS + 15*16 + 4}")
        I(f"v_mov_b32 v9, 1")
        I("s_mov_b64 exec, 1")
        I("ds_add_u32 v8, v9")
        I("s_mov_b64 exec, -1")
        e.label("L_CW2")
    for s in range(3):
        a, b = acc[(5, 0, s)], acc[(5, 1, s)]
        I(f"v_lshlrev_b32 v{a}, 16, v{16+2*s}")
        I(f"v_and_b32 v{a+1}, s{sMASK}, v{16+2*s}")
        I(f"v_lshlrev_b32 v{a+2}, 16, v{17+2*s}")
        I(f"v_and_b32 v{a+3}, s{sMASK}, v{17+2*s}")
        for k in range(4):
            I(f"v_xor_b32 v{b+k}, s{sINV}, v{a+k}")
    for i in range(3):
        for c, f in tr_ops(0, i):
            f()
    if w1late:
        for i in range(3):
            for c, f in dma_ops(1, i):
                f()
    if opt["w2pre"]:
        for i in range(3):
            for c, f in dma_ops(2, i):
                f()
    I(f"s_lshl_b32 s{sT0}, s{sWAVE}, 2")
    I(f"s_add_u32 s{sT0}, s{sT0}, {FLAGS}")
    I(f"v_mov_b32 v{vFL}, s{sT0}")
    I(f"v_mov_b32 v{vONE}, 1")
    if opt["prio"]:
        I(f"s_setprio {opt['prio']}")
    e.stamp()

    groups = []

    def g_row(step, r):
        st = step_info(step)[1]
        mf = []
        for i in (2, 1, 0):
            m = r - i
            if 0 <= m <= 5:
                for s in range(3):
                    mf.append(((m, st, s), i, s))
        return dict(step=step, row=r, mf=mf)

    def g_x(step, i):
        return dict(step=step, row=8 + i, mf=[(("X", step_info(step)[1]), i, 0)])

    for step in range(22):
        seq = [g_row(step, 0), g_row(step, 1), g_x(step, 0), g_row(step, 2), g_x(step, 1), g_row(step, 3),
               g_x(step, 2), g_row(step, 4), g_row(step, 5), g_row(step, 6), g_row(step, 7)]
        groups += [g for g in seq if extra or g["row"] < 8]
    lag = opt["lag"]
    if lag >= 0:
        seq = []
        for r in range(8 + lag):
            if r < 8:
                seq.append((22, r))
            if r >= lag:
                seq.append((23, r - lag))
    else:
        seq = [(22, 0), (22, 1), (22, 2), (23, 0), (22, 3), (23, 1), (23, 2), (23, 3),
               (22, 4), (23, 4), (22, 5), (23, 5), (22, 6), (23, 6), (22, 7), (23, 7)]
    for (st_, r) in seq:
        groups.append(g_row(st_, r))
        if extra and st_ == 22 and 1 <= r <= 3:
            groups.append(g_x(22, r - 1))
        if extra and st_ == 23 and 1 <= r <= 3 and lag < 0:
            groups.append(g_x(23, r - 1))
        if extra and st_ == 23 and 2 <= r <= 4 and lag >= 0:
            groups.append(g_x(23, r - 2))

    stream = []
    gstart = []
    for gi, g in enumerate(groups):
        gstart.append(len(stream))
        for (key, i, s) in g["mf"]:
            stream.append((gi, key, i, s))
    N = len(stream)
    gend = [gstart[k + 1] - 1 if k + 1 < len(groups) else N - 1 for k in range(len(groups))]
    step_start, step_end = {}, {}
    last_use, last_acc, first_acc, first_tap = {}, {}, {}, {}
    for gi, g in enumerate(groups):
        step_start.setdefault(g["step"], gstart[gi])
        step_end[g["step"]] = gend[gi]
    for n, (gi, key, i, s) in enumerate(stream):
        st = groups[gi]["step"]
        last_use[(st, i, s)] = n
        last_acc[(st, key)] = n
        first_acc.setdefault((st, key), n)
        first_tap.setdefault((st, i), n)
    SL = step_start[1] - step_start[0]

    fill = [[] for _ in range(N + 1)]
    cl = [""] * (N + 1)
    endw = [""] * (N + 1)
    for gi in range(1, len(groups)):
        endw[gstart[gi] - 1] = "W"
    for (st, i), n in first_tap.items():
        if n:
            endw[n - 1] = "W"

    def put(g, op):
        fill[g].append(op[1])
        cl[g] += op[0]

    def addcost(g, c, cur):
        base = cur.get(g, cl[g])
        return gapcost(base + c + endw[g]) - gapcost(base + endw[g])

    def place(g0, ops, deadline=None, per=2, strict=False):
        for budget in range(0, len(ops) + 1):
            cur = {}
            res = []
            g, n, left = g0, 0, budget
            for c, f in ops:
                free = 4 if c == "D" else 0
                while g < N:
                    if n < per:
                        ac = addcost(g, c, cur)
                        if ac <= free:
                            break
                        if left and ac <= free + 4:
                            left -= 1
                            break
                    g += 1
                    n = 0
                g = min(g, N)
                cur[g] = cur.get(g, cl[g]) + c
                res.append(g)
                n += 1
            if deadline is None or res[-1] <= deadline:
                break
        else:
            assert not strict, (g0, deadline, res[-1])
        for g, op in zip(res, ops):
            put(g, op)
        return res[-1]

    def vread(gi):
        g = groups[gi]
        u = g["step"] >> 1
        off = VS[u % 3] + (g["step"] & 1) * VHALF + g["row"] * 1024
        base = vV
        if off >= 0x8000:
            base, off = vV2, off - 0x8000
        r = VR + 4 * (gi % 4)
        return ("R", lambda: e.lds(f"ds_read_b128 {vr(r)}, v{base} offset:{off}", f"v{gi}"))

    first_of_unit = {}
    for gi, g in enumerate(groups):
        first_of_unit.setdefault(g["step"] >> 1, gi)
    def flag(k):
        return ("d", lambda: e.jit(70 + k) or e.lds(f"ds_write_b32 v{vFL}, v{vONE} offset:{k*16}"))

    def ckread(off, name):
        return ("R", lambda: e.lds(f"ds_read_b32 v{vCK}, v{vV2} offset:{FLAGS - 0x8000 + off}", name))

    def check1(name):
        def f():
            e.jit(len(name) + len(e.L) % 13)
            e.need(name)
            I(f"v_readfirstlane_b32 s{sT0}, v{vCK}")
        return f

    def check(off, val, name, st=False):
        def f():
            lab = f"L_CK{tag}{name}"
            I(f"s_cmp_eq_u32 s{sT0}, {val}")
            I(f"s_cbranch_scc0 {lab}_spin")
            e.label(lab)
            if st and opt["cst"] < 0:
                e.stamp()
            cold.append(f"{lab}_spin:")
            cold.append(f"    ds_read_b32 v{vCK}, v{vV2} offset:{FLAGS - 0x8000 + off}")
            cold.append("    s_waitcnt lgkmcnt(0)")
            cold.append(f"    v_readfirstlane_b32 s{sT0}, v{vCK}")
            cold.append(f"    s_cmp_eq_u32 s{sT0}, {val}")
            cold.append(f"    s_cbranch_scc0 {lab}_spin")
            cold.append(f"    s_branch {lab}")
        return f

    cold = []
    bar_gap = {}
    rpos = {}
    for gi in range(4, len(groups)):
        g = gend[gi - 4]
        if opt["rsh"] and len(groups[gi - 3]["mf"]) > 1 and g - 0 >= rpos.get(gi - 1, -1):
            g += 1
        g = max(g, rpos.get(gi - 1, -1) + 1)
        rpos[gi] = g
        put(g, vread(gi))
    for u in range(1, 12):
        gi = first_of_unit[u]
        gp = gend[gi - 4]
        bar_gap[u] = gp - 1
        put(gp - 2, ("WV", check1(f"rdy{u}")))
        put(gp - 1, ("SS", check(448 + 4 * u, 4, f"rdy{u}", True)))
        gq = gp - (7 if opt["rsh"] else 8)
        assert place(gq, [ckread(448 + 4 * u, f"rdy{u}")]) < gp - 4
        if u - 1 <= 8:
            place(gstart[gi - 1], [flag(16 + u - 1)])

    g = 0
    gtr1 = 0
    k = 0
    for step in ((3,) if opt["w2pre"] else (2, 3)):
        for i in range(3):
            if step == 3:
                gtr1 = place(max(gtr1, opt["tr1at"] + (14 if w1late else 0) + 8 * i), tr_ops(1, i), per=1) + 1
                g = max(g, gtr1 + opt['trd'])
            ops = dma_ops(step, i)
            g = place(max(g, int(k * opt["dsp"])), ops[:2])
            for d in range(3):
                g = place(max(g + 1, int(k * opt["dsp"]) + 1), [ops[2 + d]])
                k += 1
    place(g + 1, [flag(31)])
    NR = opt["nraw"]
    for step in range(2, NR):
        gt = step_start[step - 1] + SL - 24
        for i in range(3):
            gt = max(gt, max(last_use[(step - 2, i, s)] for s in range(3)))
            gt = place(gt, tr_ops(step, i), per=1, deadline=first_tap[(step, i)] - 4) + 1
            if step + 2 < NR:
                ops = dma_ops(step + 2, i)
                t0_ = step_start[step] + int(i * SL / 3)
                g = place(max(g, gt + opt["trd"], t0_), ops[:2])
                for d in range(3):
                    g = place(max(g + 1, t0_ + int(d * SL / 9) + 1), [ops[2 + d]])

    gchk = step_start[NR - 1] - opt["ulead0"] - 3

    place(gchk - 10, [ckread(240, "uflag")])
    put(gchk - 1, ("WV", check1("uflag")))
    put(gchk, ("SS", check(240, 1, "uflag")))
    g = gchk + 1
    go_gap = None
    early_go = []
    for step in range(NR, 24):
        base = step_start[step - 1] - opt["ulead"]
        stp = opt["ustep"] * SL / 57
        if step == NR:
            base, stp = gchk + 2, opt["ustep0"]
        if step == 23:
            base, stp = last_use[(21, 0, 0)], 2
        k = 0
        for i in range(3):
            for s in range(3):
                tgt = max(base + int(k * stp), last_use[(step - 2, i, s)], g)
                if k == 0:
                    g = place(max(g, tgt - 2), [u_off(step)])
                    tgt = max(tgt, g + 1)
                g = place(tgt, [u_op(step, i, s)]) + 1
                k += 1
        if step == opt["go"]:
            go_gap = g
        if opt["ego"] and step in (21, 22):
            early_go.append((g, 25 + step - 21))

    def bfly_ops(k0, k1, first):
        ops = []
        if first:
            o0, o1, md = "v_sub_f32_e64", "v_add_f32_e64", " div:2"
        else:
            o0, o1, md = "v_add_f32", "v_sub_f32", ""
        for k in range(4):
            ops.append(("V", lambda k=k: I(f"{o0} v{spare[0]+k}, v{acc[k0]+k}, v{acc[k1]+k}{md}")))
        for k in range(4):
            def f(k=k):
                I(f"{o1} v{acc[k1]+k}, v{acc[k0]+k}, v{acc[k1]+k}{md}")
                if k == 3:
                    acc[k0], spare[0] = spare[0], acc[k0]
            ops.append(("V", f))
        return ops

    order = [0, 1, "X", 2, 3, 4, 5] if extra else [0, 1, 2, 3, 4, 5]
    fb = [u for u in range(12) if UNITS[u][0] == "B"]
    y0last = 2 * max(u for u in range(12) if UNITS[u][1] == 0) + 1
    for last, first in ((2 * fb[0] - 1, True), (2 * fb[-1] + 1, False)):
        blocks = []
        for m in order:
            keys = [((m, 0, s), (m, 1, s)) for s in range(3)] if m != "X" else [(("X", 0), ("X", 1))]
            for (k0, k1) in keys:
                rdy = max(n for (st_, k_), n in last_acc.items() if st_ <= last and k_ in (k0, k1))
                blocks.append((rdy + 8, first_acc[(last + 1, k0)] - 3, k0, k1))
        dl = [b[1] for b in blocks]
        for k in range(len(dl) - 2, -1, -1):
            dl[k] = min(dl[k], dl[k + 1] - opt.get("bsp", 4))
        g = 0
        for (rdy, _, k0, k1), d in zip(blocks, dl):
            g = place(max(g, rdy), bfly_ops(k0, k1, first), deadline=d, per=3)
            assert g <= _, (last, k0, g, _)

    def oaddr():
        ops = []
        A = lambda s: ops.append((s[0].upper(), lambda: I(s)))
        t, q = vO[1], vO[2]
        A(f"v_lshrrev_b32 v{q}, 8, v{vV}")
        A(f"v_bfe_u32 v{t}, v{vV}, 4, 4")
        A(f"v_xor_b32 v{t}, v{t}, v{q}")
        A(f"v_lshlrev_b32 v{q}, 3, v{q}")
        A(f"s_lshl_b32 s{sT1}, s{sWAVE}, 5")
        A(f"s_add_u32 s{sT1}, s{sT1}, {XST}")
        A(f"v_mul_u32_u24 v{vOX}, 144, v{t}")
        A(f"v_add3_u32 v{vOX}, v{vOX}, v{q}, s{sT1}")
        A(f"v_mul_u32_u24 v{t}, 400, v{t}")
        A(f"v_add_u32 v{q}, v{t}, v{q}")
        A(f"s_mul_i32 s{sT1}, s{sWAVE}, 96")
        A(f"s_add_u32 s{sT1}, s{sT1}, {OUT}")
        for s in range(3):
            A(f"s_lshl_b32 s{sT2}, s{sF[s]}, 5")
            A(f"s_add_u32 s{sT2}, s{sT2}, s{sT1}")
            A(f"v_add_u32 v{vO[s]}, s{sT2}, v{q}")
        return ops
    place(step_start[10], oaddr())

    def epi_ops(key, addr, off):
        return [("V", lambda: I(f"v_cvt_pk_bf16_f32 v{acc[key]}, v{acc[key]}, v{acc[key]+1}")),
                ("V", lambda: I(f"v_cvt_pk_bf16_f32 v{acc[key]+1}, v{acc[key]+2}, v{acc[key]+3}")),
                ("D", lambda: e.lds(f"ds_write_b64 v{addr}, {vr(acc[key], 2)} offset:{off}"))]

    place(go_gap, [flag(14)])
    for g_, k_ in early_go:
        place(g_, [flag(k_)])
    def after(n):
        g, c = n, 0
        while g < N:
            c += sum(1 for ch in cl[g] if ch != "W")
            if c >= 8:
                return g
            g += 1
            c += 1
            if c >= 8:
                return g
        return None

    def epi2(key, addr, off):
        return [("V", lambda: I(f"v_cvt_pk_bf16_f32 v{acc[key]}, v{acc[key]}, v{acc[key]+1}")),
                ("V", lambda: I(f"v_cvt_pk_bf16_f32 v{acc[key]+1}, v{acc[key]+2}, v{acc[key]+3}")),
                ("d", lambda: e.lds(f"ds_write_b32 v{addr}, v{acc[key]} offset:{off}")),
                ("d", lambda: e.lds(f"ds_write_b32 v{addr}, v{acc[key]+1} offset:{off+4}"))]

    g = 0
    for st, last in ((0, y0last), (1, 23)):
        if st == 0:
            g = last_acc[(y0last, (0, 0, 0))] + opt["y0at"]
        if st == 1:
            g = place(g, [("V", lambda s=s: I(f"v_add_u32 v{vO[s]}, {6*OROW}, v{vO[s]}")) for s in range(3)])
        done = {m: (last_acc[(last, ("X", st))] if m == "X" else last_acc[(last, (m, st, 0))]) for m in order}
        ep = epi2 if (st == 0 and opt["dd"] >= 1) else epi_ops
        for m in sorted(order, key=lambda m: done[m]):
            if st == 1 and opt["dd"] >= 2:
                ep = epi2 if m in ("X", 0, 1, 2) else epi_ops
            if m == "X":
                g = place(max(g, after(done[m])), ep(("X", st), vOX, 2304 * st) + [flag(12 + st)])
                continue
            o3 = [ep((m, st, s), vO[s], m * OROW) for s in range(3)]
            g0 = after(done[m] + 2)
            if g0 is None or g >= N:
                have = (N - 1 - (done[m] + 2)) + sum(sum(1 for ch in cl[k] if ch != "W") for k in range(done[m] + 2, N + 1))
                if have < 8:
                    put(N, ("S", lambda n_=8 - have: I(f"s_nop {n_ - 1}")))
                for op in [o for t in o3 for o in t if o[0] == "V"] + [o for t in o3 for o in t if o[0] != "V"] + [flag(6 * st + m)]:
                    put(N, op)
                g = N
                continue
            g = max(g, after(done[m]))
            g = place(g, o3[0])
            g = place(max(g, after(done[m] + 1) or N), o3[1])
            g = place(max(g, g0), o3[2] + [flag(6 * st + m)])

    if opt["cst"] >= 0:
        for k in range(15):
            g = step_start[opt["cst"]] + k * opt["cev"]
            if g < N:
                fill[g].append(e.stamp)
    ckread(448, "rdy0")[1]()
    check1("rdy0")()
    check(448, 4, "rdy0")()
    e.stamp()
    for gi in range(4):
        vread(gi)[1]()
    started = set()
    for n, (gi, key, i, s) in enumerate(stream):
        step = groups[gi]["step"]
        kind, st, c = step_info(step)
        e.need([f"v{gi}", f"w{step}_{i}"])
        d = acc[key]
        cc = d
        if step in (0, 2) and key not in started:
            started.add(key)
            cc = acc[(5, st, s)]
        I(f"v_mfma_f32_16x16x32_bf16 {vr(d)}, {vr(W(step, i, s))}, {vr(VR + 4*(gi % 4))}, {vr(cc)}")
        for f in fill[n]:
            f()
    e.stamp()
    for f in fill[N]:
        f()
    e.stamp()
    e.dump_stamps("c")
    I("s_endpgm")
    return e.L + cold


xA, xB, xC, eA, eB, eC = 1, 2, 3, 4, 5, 6
wE = [7, 8, 9, 10]
wX = [11, 12]
TMP = 13
OB = 26
RAW = 58
RAWX = 178


def PD(p, j):
    return RAW + 40 * p + 4 * j


def PX(p, j):
    return RAWX + 24 * p + 4 * j


sEM = 100


def masked(e, on):
    if on:
        e.I(f"s_mov_b64 exec, s[{sEM}:{sEM+1}]")


def unmask(e, on):
    if on:
        e.I("s_mov_b64 exec, -1")


def xload(e, p, j):
    a, off = (xA, 0) if j == 0 else ((xC, 0) if j == 9 else (xB, (j - 1) * 384))
    m = e.opt["dedup"] and j >= 8
    masked(e, m)
    e.vmem(f"buffer_load_dwordx4 {vr(PD(p, j))}, v{a}, s[{sX}:{sX+3}], 0 offen offset:{off + 128*p} {e.opt['xf']}", f"x{p}_{j&1}")
    unmask(e, m)


def eload(e, p, j):
    a, off = (eA, 0) if j == 0 else ((eC, 0) if j == 5 else (eB, (j - 1) * 384))
    m = e.opt["dedup"] and j >= 4
    masked(e, m)
    e.vmem(f"buffer_load_dwordx4 {vr(PX(p, j))}, v{a}, s[{sX}:{sX+3}], 0 offen offset:{off + 128*p} {e.opt['xf']}", f"e{p}_{j&1}")
    unmask(e, m)


sW0, sW1, sW2, sW3 = 41, 42, 43, 44


def worker_pre(e, opt, part=3, cons=False):
    I = e.I
    t1, t2, t3 = 18, 19, 20
    eA, eB = (96, 97) if cons else (4, 5)
    sPW = sWAVE if cons else 55
    sRING = sPOLL if cons else 52
    if part & 1:
        if opt["w8"]:
            I(f"s_bfe_u32 s{sW0}, s2, {1 | (2 << 16)}")
            I(f"s_mul_i32 s{sW0}, s{sW0}, 7")
            I(f"s_add_u32 s{sW2}, s{sW0}, s{sIDX}")
            I(f"s_mul_i32 s{sW0}, s{sW2}, 43")
            I(f"s_lshr_b32 s{sW0}, s{sW0}, 7")
            I(f"s_mul_i32 s{sW3}, s{sW0}, 3")
            I(f"s_sub_u32 s{sW2}, s{sW2}, s{sW3}")
            I(f"s_lshl_b32 s{sW2}, s{sW2}, 1")
            if cons:
                I(f"s_add_u32 s{sW2}, s{sW2}, 1")
            I(f"s_cmp_lt_u32 s{sW0}, 9")
            I(f"s_cselect_b32 s{sCNT}, 0, s{sINV}")
        else:
            I(f"s_and_b32 s{sW0}, s2, 7")
            I(f"s_cmp_lt_u32 s{sIDX}, 6")
            I(f"s_cselect_b32 s{sW2}, s{sIDX}, s{sW0}")
            I(f"s_cselect_b32 s{sW0}, s{sW0}, 8")
            I(f"s_cmp_lt_u32 s{sW2}, 6")
            I(f"s_cselect_b32 s{sCNT}, 0, s{sINV}")
        I(f"s_mul_i32 s{sW1}, s{sW0}, 11")
        I(f"s_lshr_b32 s{sW1}, s{sW1}, 5")
        I(f"s_mul_i32 s{sW3}, s{sW1}, 3")
        I(f"s_sub_u32 s{sW0}, s{sW0}, s{sW3}")
        I(f"s_lshl_b32 s{sW0}, s{sW0}, 2")
        I(f"s_add_u32 s{sW0}, s{sW0}, s{sPW}")
        I(f"s_mul_i32 s{sOFF}, s{sW1}, {3*73728}")
        I(f"s_mul_i32 s{sOFF2}, s{sW2}, 12288")
        I(f"s_add_u32 s{sOFF}, s{sOFF}, s{sOFF2}")
        I(f"s_lshl_b32 s{sOFF2}, s{sW0}, 5")
        I(f"s_add_u32 s{sOFF}, s{sOFF}, s{sOFF2}")
        I(f"v_bfe_u32 v{t1}, v0, 3, 2")
        I(f"v_lshlrev_b32 v{t1}, 3, v{t1}")
        I(f"v_lshrrev_b32 v{t2}, 5, v0")
        I(f"v_lshl_add_u32 v{t1}, v{t2}, 2, v{t1}")
        I(f"v_bfe_u32 v{t2}, v0, 1, 2")
        I(f"v_add_u32 v{t1}, v{t1}, v{t2}")
        I(f"v_mul_u32_u24 v{t1}, 384, v{t1}")
        I(f"v_and_b32 v{t2}, 1, v0")
        I(f"v_lshl_add_u32 v{eA}, v{t2}, 4, v{t1}")
        I(f"s_mul_i32 s{sRING}, s{sPW}, 6144")
        I(f"s_add_u32 s{sRING}, s{sRING}, {PRE + (3072 if cons else 0)}")
        I(f"s_mov_b32 m0, s{sRING}")
    if not part & 2:
        return
    if part & 1:
        I("s_waitcnt lgkmcnt(0)")
    srd(e, sW, sKA + 2, WBYTES)
    nu = 2 if opt["w8"] == 1 else 1
    for k in range(3 * nu):
        e.vmem(f"buffer_load_dwordx4 v{eA}, s[{sW}:{sW+3}], s{sOFF} offen lds", f"pre{k // 3}")
        if k < 3 * nu - 1:
            I(f"s_add_u32 m0, s{sRING}, {1024*(k+1)}")
            if k == 2:
                I(f"s_sub_u32 s{sOFF}, s{sOFF}, {2*73728 - 12288}")
            else:
                I(f"s_add_u32 s{sOFF}, s{sOFF}, 73728")
    I(f"s_mul_i32 s{sOFF}, s{sW2}, 36864")
    I(f"s_mul_i32 s{sW0}, s{sW0}, 3")
    I(f"s_add_u32 s{sW0}, s{sW0}, s{sW1}")
    I(f"s_lshl_b32 s{sW0}, s{sW0}, 10")
    I(f"s_add_u32 s{sOFF}, s{sOFF}, s{sW0}")
    I(f"s_or_b32 s{sOFF}, s{sOFF}, s{sCNT}")
    I(f"v_lshl_add_u32 v{eB}, v0, 4, s{sOFF}")


def prepass(e, opt, un, G, U, eB, eC):
    I = e.I
    e.need(f"pre{un}")
    if opt["pst"] == 2 and un == 0:
        e.stamp()
    for j in range(3):
        for h in range(2):
            e.lds(f"ds_read_b64_tr_b16 {vr(G + 4*j + 2*h, 2)}, v{eC} offset:{3072*un + 1024*j + 512*h}", f"pt{j}")
    for j in (0, 2, 1):
        e.need(f"pt{j}")
        for k in range(4):
            I(f"v_lshlrev_b32 v{U + 8*j + 2*k}, 16, v{G + 4*j + k}")
            I(f"v_and_b32 v{U + 8*j + 2*k + 1}, s{sMASK}, v{G + 4*j + k}")
        if j == 2:
            for kk in range(8):
                I(f"v_add_f32 v{U+kk}, v{U+kk}, v{U+16+kk}")
    for kk in range(8):
        I(f"v_sub_f32_e64 v{U+16+kk}, v{U+kk}, v{U+8+kk} div:2")
        I(f"v_add_f32_e64 v{U+kk}, v{U+kk}, v{U+8+kk} div:2")
    for k in range(4):
        I(f"v_cvt_pk_bf16_f32 v{G+12+k}, v{U+2*k}, v{U+2*k+1}")
        I(f"v_cvt_pk_bf16_f32 v{G+16+k}, v{U+16+2*k}, v{U+16+2*k+1}")
    for pos, r in ((0, G + 12), (1, G + 16), (2, G), (3, G + 8)):
        I(f"s_mov_b32 s{sOFF}, {(pos*6 + un)*36864}")
        e.vmem(f"buffer_store_dwordx4 {vr(r)}, v{eB}, s[{sU}:{sU+3}], s{sOFF} offen sc1", "ust")


def producer_main(e, opt, loads=True, mid=None):
    I = e.I
    t0, t1, t2, t3 = 13, 14, 15, 16
    decode_main(e)
    I(f"v_and_b32 v{t0}, 3, v0")
    I(f"v_bfe_u32 v{t1}, v0, 2, 2")
    I(f"v_bfe_u32 v{t2}, v0, 4, 1")
    I(f"v_lshrrev_b32 v{wE[0]}, 5, v0")
    I(f"s_lshl_b32 s{sT0}, s{sPW}, 1")
    I(f"s_add_u32 s{sT0}, s{sT0}, s{sROW0}")
    I(f"s_mul_i32 s{sT0}, s{sT0}, 86016")
    I(f"s_mul_i32 s{sT1}, s{sSTRIP}, 12288")
    I(f"s_add_u32 s{sT0}, s{sT0}, s{sT1}")
    I(f"s_sub_u32 s{sT0}, s{sT0}, 86016")
    I(f"v_mul_u32_u24 v{t3}, 86016, v{t2}")
    I(f"v_lshl_add_u32 v{t3}, v{t0}, 4, v{t3}")
    I(f"v_lshl_add_u32 v{t3}, v{wE[0]}, 6, v{t3}")
    I(f"v_mul_u32_u24 v{xB}, 3072, v{t1}")
    I(f"v_add3_u32 v{xB}, v{xB}, v{t3}, s{sT0}")
    I(f"v_cmp_gt_i32 vcc, 0, v{xB}")
    I(f"v_lshl_add_u32 v{t3}, s{sSTRIP}, 2, v{t1}")
    I(f"v_mov_b32 v{xC}, s{sINV}")
    I(f"v_cndmask_b32 v{xB}, v{xB}, v{xC}, vcc")
    I(f"v_cmp_ne_u32 vcc, 0, v{t3}")
    I(f"v_subrev_u32 v{xA}, 384, v{xB}")
    I(f"v_add_u32 v{wE[1]}, 3072, v{xB}")
    I(f"v_cndmask_b32 v{xA}, v{xC}, v{xA}, vcc")
    I(f"v_cmp_ne_u32 vcc, 27, v{t3}")
    if opt["dedup"]:
        I(f"s_mov_b32 s{sEM}, 0xf000f000")
        I(f"s_mov_b32 s{sEM+1}, 0xf000f000")
    I("s_waitcnt lgkmcnt(0)")
    srd(e, sX, sKA, XBYTES)
    I(f"v_cndmask_b32 v{xC}, v{xC}, v{wE[1]}, vcc")
    if opt["d_st"] and loads:
        I(f"s_sleep {opt['d_st']}")
    if mid:
        mid()
    for j in (0, 2, 4, 6, 8) if loads else ():
        xload(e, 0, j)


def producer(parent, opt, kind):
    e = Em(opt, parent)
    I = e.I
    t0, t1, t2, t3, t4 = 13, 14, 15, 16, 17
    X = kind == "x"
    G = RAWX
    if kind == "w":
        if opt["wo"] == -1:
            for j in (1, 3, 5, 7, 9):
                xload(e, 0, j)
        if opt["wp1"]:
            I("s_barrier")
        srd(e, sU, sWS, UBYTES)
        I(f"v_lshrrev_b32 v{eC}, 2, v0")
        I(f"v_lshlrev_b32 v{eC}, 5, v{eC}")
        I(f"v_lshl_add_u32 v{eC}, v{t0}, 3, v{eC}")
        I(f"v_add_u32 v{eC}, s{sRING}, v{eC}")
        if opt["pst"] == 2:
            e.stamp()
        for un in range(2 if opt["w8"] == 1 else 1):
            prepass(e, opt, un, RAWX + 20 * un, RAWX + 40, eB, eC)
        if opt["wo"] == -2:
            for j in (0, 2, 4, 6, 8, 1, 3, 5, 7, 9):
                xload(e, 0, j)
        if opt["pst"]:
            e.stamp()
    if kind == "n" and opt["xo"] and opt["pro"] != "alpha":
        for j in (1, 3, 5, 7, 9):
            xload(e, 0, j)
    I(f"s_lshl_b32 s{sT0}, s{sPW}, 1")
    I(f"v_add_u32 v{t2}, s{sT0}, v{t2}")
    I(f"v_mul_u32_u24 v{wE[0]}, {VHALF}, v{wE[0]}")
    I(f"v_lshl_add_u32 v{wE[0]}, v{t2}, 10, v{wE[0]}")
    I(f"v_lshlrev_b32 v{t3}, 2, v{t1}")
    I(f"v_lshl_add_u32 v{t3}, v{t0}, 4, v{t3}")
    I(f"v_add_u32 v{t3}, v{t3}, v{t0}")
    I(f"v_lshl_add_u32 v{wE[0]}, v{t3}, 4, v{wE[0]}")
    for k in range(1, 4):
        I(f"v_xor_b32 v{wE[k]}, {16*k}, v{wE[0]}")
    decode_extra(e)
    srd(e, sO, sKA + 6, XBYTES)
    if X:
        if opt["dedup"]:
            I(f"v_bfe_u32 v{t1}, v0, 2, 3")
        else:
            I(f"v_bfe_u32 v{t1}, v0, 2, 1")
            I(f"v_lshlrev_b32 v{t1}, 1, v{t1}")
            I(f"v_bfe_u32 v{t2}, v0, 3, 1")
            I(f"v_bfe_u32 v{t3}, v0, 4, 1")
            I(f"v_lshlrev_b32 v{t3}, 2, v{t3}")
            I(f"v_or3_b32 v{t1}, v{t1}, v{t2}, v{t3}")
        I(f"s_add_u32 s{sT0}, s{sEROW}, s{sPW}")
        I(f"s_sub_u32 s{sT0}, s{sT0}, 1")
        I(f"s_mul_i32 s{sT1}, s{sT0}, 86016")
        I(f"s_cmp_lt_u32 s{sT0}, 224")
        I(f"s_cselect_b32 s{sT1}, s{sT1}, s{sINV}")
        I(f"s_lshl_b32 s{sT0}, s{sES}, 5")
        I(f"v_lshl_add_u32 v{t4}, v{t1}, 2, s{sT0}")
        I(f"v_mul_u32_u24 v{t2}, 384, v{t4}")
        I(f"v_lshl_add_u32 v{t2}, v{t0}, 4, v{t2}")
        I(f"v_lshrrev_b32 v{t3}, 5, v0")
        I(f"v_lshl_add_u32 v{t2}, v{t3}, 6, v{t2}")
        I(f"v_add_u32 v{eB}, s{sT1}, v{t2}")
        I(f"v_cmp_ne_u32 vcc, 0, v{t4}")
        I(f"v_subrev_u32 v{t2}, 384, v{eB}")
        I(f"v_mov_b32 v{eA}, s{sINV}")
        I(f"v_cndmask_b32 v{eA}, v{eA}, v{t2}, vcc")
        I(f"v_cmp_ne_u32 vcc, 220, v{t4}")
        I(f"v_add_u32 v{t2}, 1536, v{eB}")
        I(f"v_mov_b32 v{eC}, s{sINV}")
        I(f"v_cndmask_b32 v{eC}, v{eC}, v{t2}, vcc")
        for j in (0, 2, 4):
            eload(e, 0, j)
        if opt["pro"] != "alpha":
            if opt["xo"]:
                for j in (1, 3, 5, 7, 9):
                    xload(e, 0, j)
            for j in (1, 3, 5):
                eload(e, 0, j)
        I(f"v_lshlrev_b32 v{t1}, 1, v{t1}")
        I(f"v_xor_b32 v{t1}, v{t1}, v{t0}")
        I(f"v_lshl_add_u32 v{t1}, v{t0}, 4, v{t1}")
        I(f"v_lshlrev_b32 v{t1}, 4, v{t1}")
        I(f"v_mul_u32_u24 v{t3}, {VHALF}, v{t3}")
        I(f"s_add_u32 s{sT0}, s{sPW}, 8")
        I(f"s_lshl_b32 s{sT0}, s{sT0}, 10")
        I(f"v_add3_u32 v{wX[0]}, v{t1}, v{t3}, s{sT0}")
        I(f"v_xor_b32 v{wX[1]}, 16, v{wX[0]}")
    else:
        I(f"s_cmp_eq_u32 s{sPW}, 3")
        I(f"s_cselect_b32 s{sPEND}, 1, 0")
        if opt["rpf"] == 1:
            I(f"s_mul_i32 s{sT0}, s{sIDX}, {18*128}")
            I(f"v_min_u32 v253, 17, v0")
            I(f"v_lshl_add_u32 v253, v253, 7, s{sT0}")
        elif opt["rpf"] == 2:
            I(f"s_sub_u32 s{sT0}, s{sIDX}, 12")
            I(f"s_cmp_lt_u32 s{sIDX}, 7")
            I(f"s_cselect_b32 s{sT0}, s{sIDX}, s{sT0}")
            I(f"s_mul_i32 s{sT1}, s{sT0}, 13")
            I(f"s_lshr_b32 s{sT1}, s{sT1}, 6")
            I(f"s_mul_i32 s{sT2}, s{sT1}, 5")
            I(f"s_sub_u32 s{sL}, s{sT0}, s{sT2}")
            I(f"s_cmp_eq_u32 s{sHASX}, 0")
            I(f"s_cselect_b32 s{sL}, s{sL}, 9")
            I(f"s_cmp_eq_u32 s{sPW}, 3")
            I(f"s_cselect_b32 s{sL}, s{sL}, 9")
            I(f"s_mul_i32 s{sT1}, s{sT1}, {144*128}")
            I(f"v_min_u32 v253, 47, v0")
            I(f"v_lshl_add_u32 v253, v253, 7, s{sT1}")
        I(f"v_mov_b32 v250, {FLAGS + 15*16}")
        if kind == "n":
            srd(e, sU, sWS, UBYTES)
    I(f"v_mov_b32 v251, 1")
    I(f"v_mov_b32 v252, {FLAGS}")

    def pollflag(idx, lab, slp, r=16):
        e.label(lab)
        I(f"ds_read_b128 {vr(r)}, v252 offset:{idx*16}")
        I("s_waitcnt lgkmcnt(0)")
        e.lg = []
        I(f"v_and_b32 v{r}, v{r}, v{r+1}")
        I(f"v_and_b32 v{r+2}, v{r+2}, v{r+3}")
        I(f"v_and_b32 v{r}, v{r}, v{r+2}")
        I("s_nop 0")
        I(f"v_readfirstlane_b32 s{sT0}, v{r}")
        I(f"s_cmp_eq_u32 s{sT0}, 1")
        I(f"s_cbranch_scc1 {lab}_ok")
        if slp:
            I(f"s_sleep {slp}")
        I(f"s_branch {lab}")
        e.label(lab + "_ok")

    upf_from = [(3 if opt["order"] == 2 else opt["pollu"] + 1) + opt["rlead"]]
    upf_from[0] = max(upf_from[0], opt["nraw"] // 2)

    def upf(t, sfx=''):
        if X or not opt["rpf"]:
            return
        k, st, p = UNITS[t]
        base = ((st if k == "B" else 2 + st) * 6 + 2 * p) * 36864
        lab = f"L_UP{kind}{t}{sfx}"
        if opt["rpf"] == 1:
            I(f"s_cmp_eq_u32 s{sPW}, 3")
            I(f"s_cbranch_scc0 {lab}")
            I(f"s_mov_b32 s{sT1}, {base}")
            I(f"buffer_load_dword v254, v253, s[{sU}:{sU+3}], s{sT1} offen sc1")
        else:
            I(f"s_cmp_eq_u32 s{sL}, {t % 5}")
            I(f"s_cbranch_scc0 {lab}")
            for q in range(3):
                I(f"s_mov_b32 s{sT1}, {base + q*48*128}")
                I(f"buffer_load_dword v254, v253, s[{sU}:{sU+3}], s{sT1} offen sc1")
        e.label(lab)

    def waitfree(u, r=16):
        e.jit(20 + u)
        if u >= 3:
            pollflag(16 + u - 3, f"L_FR{kind}{u}", opt["psl"], r)
            if upf_from[0] <= u + opt["rlead"] <= 11:
                upf(u + opt["rlead"])

    def ready(u):
        e.jit(u)
        I("s_mov_b64 exec, 1")
        e.lds(f"ds_add_u32 v252, v251 offset:{448 + 4*u}")
        I("s_mov_b64 exec, -1")
        if not opt["pst"] or e.nst < 15:
            e.stamp()

    def xl(p, par):
        sl = opt["d_sl"] if p == 2 else 0
        for j in range(par, 10, 2):
            xload(e, p, j)
            if sl:
                I(f"s_sleep {sl if X else (sl * 8) // 5}")
        if X:
            for j in range(par, 6, 2):
                eload(e, p, j)
                if sl:
                    I(f"s_sleep {sl}")

    def parse(t):
        d = {}
        for item in t.split(","):
            when, what = item.split(":")
            d.setdefault(when, []).append((int(what[0]), 0 if what[1] == "e" else 1))
        return d
    xsX = parse(opt.get("xsx") or opt["xs"])
    xsN = parse(opt["xs"])
    xs = xsX if X else xsN
    seen = set()

    def xsched(when):
        if kind != "n":
            for p, par in xs.get(when, []):
                xl(p, par)
            return
        a, b = xsX.get(when, []), xsN.get(when, [])
        for it in a + [t for t in b if t not in a]:
            both = it in a and it in b
            if not both:
                lab = f"L_XS{when}_{it[0]}{it[1]}"
                I(f"s_cmp_eq_u32 s{sHASX}, {1 if it in a else 0}")
                I(f"s_cbranch_scc0 {lab}")
            keep = list(e.vm)
            xl(*it)
            if not both:
                e.label(lab)
                if it not in seen:
                    e.vm = keep
                seen.add(it)

    pend = []
    novalu = [False]
    pace = [0, 0]

    def xpace(per, nvalu):
        for p, par in xs.get(f"{per}p", []):
            pend.extend([lambda j=j, p=p: xload(e, p, j) for j in range(par, 10, 2)])
            if X:
                pend.extend([lambda j=j, p=p: eload(e, p, j) for j in range(par, 6, 2)])
        if pend:
            pace[0] = max(1, nvalu // len(pend))
            pace[1] = 0

    def V(s):
        if not (opt["d_nov"] and novalu[0]):
            I(s)
        pace[1] += 1
        if pend and pace[1] % pace[0] == 0:
            pend.pop(0)()

    def later(f):
        if not opt["wsp"]:
            return f()
        if not pend:
            pace[0], pace[1] = opt["wsp"], 0
        pend.append(f)

    def flush():
        while pend:
            pend.pop(0)()

    def unp(dst, src):
        V(f"v_lshlrev_b32 v{dst}, 16, v{src}")
        V(f"v_and_b32 v{dst+1}, s{sMASK}, v{src}")

    def vwrite(addr, src, u):
        if opt["d_now"] and u >= 2:
            return
        e.lds(f"ds_write_b128 v{addr}, {vr(src)} offset:{VS[u % 3]}")

    T16 = list(range(13, 26)) + [54, 55, 56]

    def chainA(D, n, par, neg, waddr, u, ob, wf=False):
        op = "v_subrev_f32" if neg else "v_sub_f32"
        A, B = T16[:8], T16[8:]

        def unp8(R, src):
            for k in range(4):
                V(f"v_lshlrev_b32 v{R[2*k]}, 16, v{src+k}")
                V(f"v_and_b32 v{R[2*k+1]}, s{sMASK}, v{src+k}")
        unp8(A, D(par))
        for j in range(n):
            unp8(B, D(par + 2 * j + 2))
            for k in range(8):
                V(f"{op} v{A[k]}, v{A[k]}, v{B[k]}")
            for k in range(4):
                V(f"v_cvt_pk_bf16_f32 v{ob + 4*(j & 1) + k}, v{A[2*k]}, v{A[2*k+1]}")
            if wf and j == 0:
                waitfree(u, 44)
            vwrite(waddr[j], ob + 4 * (j & 1), u)
            if kind == "w" and u == 1 and opt["wta"] == 10 + j:
                signal()
            if kind == "w" and u == 1 and opt["two"] == 10 + j:
                publish()
            A, B = B, A

    fixed = set()

    def needx(p, pars, ext):
        e.need([f"{'e' if ext else 'x'}{p}_{par}" for par in pars])
        for par in pars:
            if opt["dedup"] and (p, par, ext) not in fixed:
                fixed.add((p, par, ext))
                dst, src = (PX(p, 4 + par), PX(p, par)) if ext else (PD(p, 8 + par), PD(p, par))
                for k in range(4):
                    V(f"v_mov_b32_dpp v{dst+k}, v{src+k} row_shl:4 row_mask:0xf bank_mask:0x7")

    def tA(u, main=True, ext=True):
        kind_, st, p = UNITS[u]
        neg = (st == 1 and any(UNITS[t][0] == "B" for t in range(u)))
        if main:
            needx(p, [st], False)
            if opt["pst"] and u <= 1:
                e.stamp()
            chainA(lambda j: PD(p, j), 4, st, neg, wE, u, OB, True)
        if X and ext:
            needx(p, [st], True)
            chainA(lambda j: PX(p, j), 2, st, neg, wX, u, OB + 8)

    def pairB(d1, d2, o1, o2):
        for k0 in (0, 2):
            for k in (k0, k0 + 1):
                a = TMP + 6 * (k & 1)
                unp(a, d1 + k); unp(a + 2, d2 + k)
            for k in (k0, k0 + 1):
                a = TMP + 6 * (k & 1)
                b, s = a + 2, a + 4
                V(f"v_add_f32 v{s}, v{a}, v{b}"); V(f"v_add_f32 v{s+1}, v{a+1}, v{b+1}")
                V(f"v_sub_f32 v{a}, v{b}, v{a}"); V(f"v_sub_f32 v{a+1}, v{b+1}, v{a+1}")
            for k in (k0, k0 + 1):
                a = TMP + 6 * (k & 1)
                V(f"v_cvt_pk_bf16_f32 v{o1+k}, v{a+4}, v{a+5}")
                V(f"v_cvt_pk_bf16_f32 v{o2+k}, v{a}, v{a+1}")

    npoll = [0]

    def trypoll(final=False):
        if X:
            return
        n = npoll[0]
        npoll[0] += 1
        lab = f"L_PL{kind}{n}"
        I(f"s_cmp_eq_u32 s{sPEND}, 0")
        I(f"s_cbranch_scc1 {lab}_skip")
        if n == 0:
            if opt["pdel"]:
                I(f"s_sleep {opt['pdel']}")
            I(f"s_load_dword s{sPOLL}, s[{sDBG}:{sDBG+1}], {128 if opt['two'] else 0}")
            e.label(lab + "_skip")
            return
        I("s_waitcnt lgkmcnt(0)")
        tgt = 0 if opt["noatom"] else NW[0]
        if final:
            I(f"s_mov_b32 s{sCNT}, {n}")
            I(f"v_mov_b32 v255, 0")
            e.label(lab)
            I(f"s_cmp_ge_u32 s{sPOLL}, {tgt}")
            I(f"s_cbranch_scc1 {lab}_ok")
            I(f"s_sleep {opt['pslp']}")
            I(f"s_cmp_ge_u32 s{sCNT}, {2 if opt['two'] else 4}")
            I(f"s_cbranch_scc1 {lab}_v")
            I(f"s_lshl_b32 s{sT0}, s{sCNT}, 6")
            if opt["two"]:
                I(f"s_add_u32 s{sT0}, s{sT0}, 128")
            I(f"s_load_dword s{sPOLL}, s[{sDBG}:{sDBG+1}], s{sT0}")
            I(f"s_add_u32 s{sCNT}, s{sCNT}, 1")
            I("s_waitcnt lgkmcnt(0)")
            I(f"s_branch {lab}")
            e.label(lab + "_v")
            I(f"global_load_dword v254, v255, s[{sDBG}:{sDBG+1}] offset:{128 if opt['two'] else 0} sc1")
            I(f"s_add_u32 s{sCNT}, s{sCNT}, 1")
            I("s_waitcnt vmcnt(0)")
            I(f"v_readfirstlane_b32 s{sPOLL}, v254")
            I(f"s_cmp_lt_u32 s{sCNT}, 20000")
            I(f"s_cbranch_scc1 {lab}")
        else:
            I(f"s_cmp_ge_u32 s{sPOLL}, {tgt}")
            I(f"s_cbranch_scc1 {lab}_ok")
            I(f"s_load_dword s{sPOLL}, s[{sDBG}:{sDBG+1}], {64*n + (128 if opt['two'] else 0)}")
            I(f"s_branch {lab}_skip")
        e.label(lab + "_ok")
        if opt["pst"]:
            I(f"s_memrealtime s[{sST + 2*pslot[0]}:{sST + 2*pslot[0] + 1}]")
            I(f"s_mov_b32 s{sST + 2*pslot[0] + 2}, " + (f"s{sCNT}" if final else f"{n}"))
        I("ds_write_b32 v250, v251")
        I(f"s_mov_b32 s{sPEND}, 0")
        for t in range(opt["nraw"] // 2, upf_from[0]):
            upf(t, f"_{n}")
        e.label(lab + "_skip")

    pslot = [0]

    def wpoint():
        pollflag(31, f"L_WI{kind}", opt["psl"], 20)
        if opt["otlb"] == 2 or (opt["otlb"] == 1 and kind == "w"):
            I("s_mov_b64 exec, 1")
            e.vmem(f"buffer_load_dword v254, v{xB}, s[{sO}:{sO+3}], 0 offen")
            I("s_mov_b64 exec, -1")
        xsched("w")

    def tB1(u):
        p = UNITS[u][2]
        e.need([f"x{p}_0", f"x{p}_1"] + ([f"e{p}_0", f"e{p}_1"] if X else []))
        needx(p, [0], False)
        if X:
            needx(p, [0], True)
        for ee in range(4):
            pairB(PD(p, 1 + 2 * ee), PD(p, 2 + 2 * ee), OB + 4 * (ee & 1), OB + 8 + 4 * ee)
            if ee == 0:
                waitfree(u)
                xpace(u, 200 if X else 120)
            vwrite(wE[ee], OB + 4 * (ee & 1), u)
            if u == 2 and ee == opt["wat"]:
                wpoint()
            if u == 2 and ee >= opt["pat"]:
                if ee == opt["pat"] and opt["pst"] and not X:
                    pslot[0] = e.nst
                    e.nst += 2
                trypoll()
                if ee == 3:
                    trypoll(final=True)
        if X:
            e.need([f"e{p}_0", f"e{p}_1"])
            for ee in range(2):
                pairB(PX(p, 1 + 2 * ee), PX(p, 2 + 2 * ee), OB + 4 * ee, OB + 24 + 4 * ee)
                vwrite(wX[ee], OB + 4 * ee, u)
        flush()
        ready(u)

    def tB2(u):
        waitfree(u + 1)
        xsched(f"f{u}")
        for ee in range(4):
            vwrite(wE[ee], OB + 8 + 4 * ee, u + 1)
        if X:
            for ee in range(2):
                vwrite(wX[ee], OB + 24 + 4 * ee, u + 1)
        ready(u + 1)

    n1 = 1 if X else opt["n1"]

    def bar():
        e.drain_lg()
        if not opt["pst"] or e.nst < 15:
            e.stamp()
        I("s_barrier")

    def atom_mark():
        assert not e.vm
        e.vm.append("atom")

    def signal():
        e.jit(60)
        e.need("ust")
        if opt["pst"]:
            e.stamp()
        I(f"v_mov_b32 v{eA}, {FLAGS + 15*16 + 4}")
        I("s_mov_b64 exec, 1")
        I(f"ds_add_rtn_u32 v{eC}, v{eA}, v251")
        I("s_waitcnt lgkmcnt(0)")
        e.lg = []
        I(f"v_readfirstlane_b32 s{sT0}, v{eC}")
        if opt["w8"] == 2:
            I(f"s_mov_b32 s{sT0}, 0")
            I(f"s_cmp_eq_u32 s{sPW}, 3")
            I("s_cbranch_scc0 L_W8B")
            e.label("L_W8A")
            I(f"ds_read_b32 v{eC}, v{eA}")
            I("s_waitcnt lgkmcnt(0)")
            I(f"v_readfirstlane_b32 s{sT0}, v{eC}")
            I(f"s_cmp_eq_u32 s{sT0}, 8")
            I("s_cbranch_scc0 L_W8A")
            I(f"s_mov_b32 s{sT0}, 3")
            e.label("L_W8B")
        if opt["two"] == 3:
            I("s_mov_b64 exec, -1")
            I(f"s_cmp_eq_u32 s{sT0}, 3")
            I("s_cbranch_scc0 L_NOATOM")
            I(f"s_mov_b32 s{sT0}, 1")
            I(f"s_atomic_add s{sT0}, s[{sDBG}:{sDBG+1}], 0 glc")
            I("s_waitcnt lgkmcnt(0)")
            I(f"s_cmp_eq_u32 s{sT0}, {NW[0] - 1}")
            I("s_cbranch_scc0 L_NOATOM")
            I(f"s_mov_b32 s{sT0}, {NW[0]}")
            I(f"s_mov_b32 s{sT1}, {NW[0]}")
            I(f"s_atomic_add s{sT0}, s[{sDBG}:{sDBG+1}], 128 glc")
            I(f"s_atomic_add s{sT1}, s[{sDBG}:{sDBG+1}], 192 glc")
            I("s_waitcnt lgkmcnt(0)")
            e.label("L_NOATOM")
            return
        if opt["two"]:
            I(f"v_mov_b32 v{eC}, 0")
        I(f"s_cmp_eq_u32 s{sT0}, 3")
        I("s_cbranch_scc0 L_NOATOM")
        if opt["two"]:
            I(f"v_mov_b32 v{eA}, 0")
            I(f"v_mov_b32 v{eC}, 1")
            I(f"global_atomic_add v{eC}, v{eA}, v{eC}, s[{sDBG}:{sDBG+1}] sc0 sc1")
        else:
            I("s_mov_b64 exec, 15")
            I(f"v_lshlrev_b32 v{eA}, 6, v0")
            if not opt["noatom"]:
                I(f"global_atomic_add v{eA}, v251, s[{sDBG}:{sDBG+1}] sc1")
        e.label("L_NOATOM")
        I("s_mov_b64 exec, -1")
        atom_mark()

    def publish():
        if kind != "w" or not opt["two"]:
            return
        e.need("atom")
        I(f"v_readfirstlane_b32 s{sT0}, v{eC}")
        I(f"s_cmp_eq_u32 s{sT0}, {NW[0] - 1}")
        I("s_cbranch_scc0 L_NOPUB")
        I("s_mov_b64 exec, 3")
        I(f"v_lshlrev_b32 v{eA}, 6, v0")
        I(f"v_mov_b32 v{eC}, {NW[0]}")
        I(f"global_store_dword v{eA}, v{eC}, s[{sDBG}:{sDBG+1}] offset:128 sc1")
        I("s_mov_b64 exec, -1")
        e.label("L_NOPUB")

    if opt["otlb"] == 1 and kind != "w":
        I("s_mov_b64 exec, 1")
        e.vmem(f"buffer_load_dword v254, v{xB}, s[{sO}:{sO+3}], 0 offen")
        I("s_mov_b64 exec, -1")
    if kind == "w" and opt["wo"] == 0:
        xl(0, 1)
    e.drain_lg()
    e.stamp()
    if not (kind == "w" and opt["wp1"]):
        I("s_barrier")
    if opt["pro"] == "alpha":
        I("s_barrier")
        if kind != "w" and opt["aord"] == 0:
            xl(0, 1)
    if kind == "w" and opt["wta"] == 0:
        signal()
        if opt["two"] == 1:
            publish()
        if opt["wo"] > 0:
            xl(0, 1)
    tA(0)
    ready(0)
    if opt["two"] == 2:
        publish()
    if kind == "w" and opt["wta"] == 1:
        signal()
        if opt["two"] == 1:
            publish()
        if opt["wo"] > 0:
            xl(0, 1)
    if opt["pro"] == "alpha" and kind != "w" and opt["aord"] == 1:
        xl(0, 1)
    xsched("a0")
    tA(1)
    ready(1)
    if kind == "w" and opt["wta"] == 2:
        signal()
    xsched("a1")
    novalu[0] = True
    for u in range(2, 12):
        k, st, p = UNITS[u]
        if k == "A":
            if u == 2:
                wpoint()
            tA(u)
            ready(u)
            if u == opt["pollu"]:
                trypoll()
                trypoll(final=True)
            xsched(f"a{u}")
        elif st == 0:
            tB1(u)
            xsched(f"j{u}")
            tB2(u)
            xsched(f"k{u}")
    if True:
        if True:
            rA, rB, gA, gB, vXL, vXG = 1, 2, 3, 4, 5, 6
            I(f"s_mul_i32 s{sT0}, s{sROW0}, 86016")
            I(f"s_mul_i32 s{sT1}, s{sSTRIP}, 12288")
            I(f"s_add_u32 s{sT0}, s{sT0}, s{sT1}")
            I(f"s_mul_i32 s{sT1}, s{sPW}, 3072")
            I(f"s_add_u32 s{sT0}, s{sT0}, s{sT1}")
            I(f"s_mul_i32 s{sT1}, s{sPW}, 1600")
            I(f"s_add_u32 s{sT1}, s{sT1}, {OUT}")
            for j in range(3 if opt["st2"] else 0):
                I(f"v_add_u32 v{t0}, {64*j}, v0")
                I(f"v_mul_u32_u24 v{t1}, 1366, v{t0}")
                I(f"v_lshrrev_b32 v{t1}, 16, v{t1}")
                I(f"v_mul_u32_u24 v{t2}, 48, v{t1}")
                I(f"v_sub_u32 v{t2}, v{t0}, v{t2}")
                I(f"v_lshlrev_b32 v{t2}, 3, v{t2}")
                I(f"v_mul_u32_u24 v{t3}, 400, v{t1}")
                I(f"v_add3_u32 v{7+j}, v{t3}, v{t2}, s{sT1}")
                I(f"v_mul_u32_u24 v{t3}, 768, v{t1}")
                I(f"v_add3_u32 v{10+j}, v{t3}, v{t2}, s{sT0}")
                I(f"v_add_u32 v{20+j}, {6*OROW}, v{7+j}")
            for (r, gg, add) in ((rA, gA, 0), (rB, gB, 64)):
                I(f"v_add_u32 v{t0}, {add}, v0")
                I(f"v_min_u32 v{t0}, 95, v{t0}")
                I(f"v_mul_u32_u24 v{t1}, 10923, v{t0}")
                I(f"v_lshrrev_b32 v{t1}, 18, v{t1}")
                I(f"v_mul_u32_u24 v{t2}, 24, v{t1}")
                I(f"v_sub_u32 v{t2}, v{t0}, v{t2}")
                I(f"v_lshlrev_b32 v{t2}, 4, v{t2}")
                I(f"v_mul_u32_u24 v{t3}, 400, v{t1}")
                I(f"v_add3_u32 v{r}, v{t3}, v{t2}, s{sT1}")
                I(f"v_mul_u32_u24 v{t3}, 768, v{t1}")
                I(f"v_add3_u32 v{gg}, v{t3}, v{t2}, s{sT0}")
            I(f"v_cmp_gt_u32 vcc, 32, v0")
            I(f"v_mov_b32 v{t4}, s{sINV}")
            I(f"v_add_u32 v250, {6*OROW}, v{rA}")
            I(f"v_cndmask_b32 v{gB}, v{t4}, v{gB}, vcc")
            I(f"v_add_u32 v251, {6*OROW}, v{rB}")
            I(f"s_lshl_b32 s{sT0}, s{sPW}, 2")
            I(f"v_bfe_u32 v{t0}, v0, 3, 2")
            I(f"v_add_u32 v{t0}, s{sT0}, v{t0}")
            I(f"v_and_b32 v{t1}, 7, v0")
            I(f"v_mul_u32_u24 v{t2}, 144, v{t0}")
            I(f"v_lshl_add_u32 v{t2}, v{t1}, 4, v{t2}")
            I(f"v_add_u32 v{vXL}, {XST}, v{t2}")
            I(f"v_mul_u32_u24 v{t0}, 768, v{t0}")
            I(f"v_lshrrev_b32 v{t2}, 1, v{t1}")
            I(f"v_mul_u32_u24 v{t2}, 96, v{t2}")
            I(f"v_and_b32 v{t1}, 1, v{t1}")
            I(f"v_lshl_add_u32 v{t2}, v{t1}, 4, v{t2}")
            I(f"s_mul_i32 s{sT0}, s{sEROW}, 86016")
            I(f"s_mul_i32 s{sT1}, s{sES}, 12288")
            I(f"s_add_u32 s{sT0}, s{sT0}, s{sT1}")
            I(f"s_lshl_b32 s{sT1}, s{sF0}, 5")
            I(f"s_add_u32 s{sT0}, s{sT0}, s{sT1}")
            I(f"v_add3_u32 v{vXG}, v{t0}, v{t2}, s{sT0}")
            I(f"v_cndmask_b32 v{vXG}, v{t4}, v{vXG}, vcc")
    rA, rB, gA, gB, vXL, vXG = 1, 2, 3, 4, 5, 6
    sf = opt["sf"]
    nb = [0]

    def rowread(st, m, b):
        e.jit(40 + m + 6 * st)
        if opt["st2"]:
            for j in range(3):
                I(f"ds_read_b64 {vr(b + 2*j, 2)}, v{(7 if st == 0 else 20) + j} offset:{m*OROW}")
            return
        a0, a1 = (rA, rB) if st == 0 else (250, 251)
        I(f"ds_read_b128 {vr(b)}, v{a0} offset:{m*OROW}")
        I(f"ds_read_b128 {vr(b+4)}, v{a1} offset:{m*OROW}")

    def rowstore(st, m, b, w0=None, w1=None):
        sf = opt["sfl"] if st == 1 and m >= 6 - opt["nlast"] else opt["sf"]
        I(f"s_mov_b32 s{sOFF}, {m*86016}")
        if opt["st2"]:
            for j in range(3):
                if w0: I(f"s_waitcnt lgkmcnt({2-j})")
                I(f"buffer_store_dwordx2 {vr(b + 2*j, 2)}, v{10+j}, s[{sO}:{sO+3}], s{sOFF} offen offset:{384*st} {sf}")
            return
        if w0: I(w0)
        I(f"buffer_store_dwordx4 {vr(b)}, v{gA}, s[{sO}:{sO+3}], s{sOFF} offen offset:{384*st} {sf}")
        if w1: I(w1)
        I(f"buffer_store_dwordx4 {vr(b+4)}, v{gB}, s[{sO}:{sO+3}], s{sOFF} offen offset:{384*st} {sf}")

    def xpart(st, b):
        if kind == "w":
            return
        if kind == "n":
            I(f"s_cmp_eq_u32 s{sHASX}, 0")
            I(f"s_cbranch_scc1 L_NOX{st}")
        pollflag(12 + st, f"L_F{kind}X{st}", opt["slp"])
        I(f"ds_read_b128 {vr(b)}, v{vXL} offset:{2304*st}")
        I("s_waitcnt lgkmcnt(0)")
        I(f"buffer_store_dwordx4 {vr(b)}, v{vXG}, s[{sO}:{sO+3}], 0 offen offset:{384*st}")
        if kind == "n":
            e.label(f"L_NOX{st}")

    batches = [(14, range(6))]
    if opt["ego"]:
        a_, b_ = int(str(opt["ego"])[1]), int(str(opt["ego"])[2])
        batches = [(25, tuple(range(a_))), (26, tuple(range(a_, a_ + b_))), (14, tuple(range(a_ + b_, 6)))]
        batches = [t for t in batches if t[1] or t[0] == 14]
    for k_, rows in batches:
        if rows:
            pollflag(rows[-1], f"L_F{kind}0_{rows[-1]}", opt["psl"])
        for m in rows:
            rowread(0, m, 28 + 8 * m)
        pollflag(k_, f"L_F{kind}GO{k_}", opt["slp"])
        if k_ == 14 and not opt["pst"]:
            e.stamp()
        for m in rows:
            rowstore(0, m, 28 + 8 * m)
    xpart(0, 76)
    for m in [0, 1, "X", 2, 3, 4, 5]:
        if m == "X":
            xpart(1, 80)
            continue
        b = 84 + 8 * m
        pollflag(6 + m, f"L_F{kind}1_{m}", opt["slp"] if m < 4 else opt["slpl"])
        if m in (0, 5) and not opt["pst"]:
            e.stamp()
        rowread(1, m, b)
        rowstore(1, m, b, "s_waitcnt lgkmcnt(1)", "s_waitcnt lgkmcnt(0)")
    e.stamp()
    if opt["stamp"]:
        I("s_waitcnt vmcnt(0)")
        e.stamp()
    e.dump_stamps("p")
    I("s_endpgm")
    return e.L


def generate(**kw):
    opt = dict(DEF)
    opt.update(kw)
    opt["code_pf_lines"] = 20
    UNITS[:] = ORDERS[opt["order"]]
    NW[0] = 28 if opt["w8"] else 56
    assert not opt["wp1"]
    L = []
    L.append("; one 512-thread workgroup per CU: waves 0-3 MFMA, waves 4-7 input transform / output stores.")
    L.append(f"; @launch grid=(256,1,1) block=(512,1,1) lds={LDS_BYTES}")
    L.append('.amdgcn_target "amdgcn-amd-amdhsa--gfx950"')
    L.append(".text")
    L.append(f".globl {KNAME}")
    L.append(".p2align 8")
    L.append(f".type {KNAME},@function")
    L.append(f"{KNAME}:")
    e = Em(opt)
    I = e.I
    e.stamp()
    I(f"s_load_dwordx8 s[{sKA}:{sKA+7}], s[0:1], 0")
    I(f"s_load_dwordx4 s[{sDBG}:{sDBG+3}], s[0:1], 32")
    I("v_lshrrev_b32 v1, 6, v0")
    I("s_cmp_ge_u32 s2, 256")
    I("s_cbranch_scc1 L_END")
    I(f"v_readfirstlane_b32 s{sWAVE}, v1")
    I("v_and_b32 v0, 63, v0")
    if opt["epf"]:
        R = opt["epf"]
        I(f"s_getpc_b64 s[{sPC}:{sPC+1}]")
        I(f"s_bfe_u32 s{sT0}, s2, {3 | ((R.bit_length() - 1) << 16)}")
        I(f"v_min_u32 v2, {24 // R - 1}, v0")
        I(f"v_lshl_add_u32 v2, v2, {R.bit_length() - 1}, s{sT0}")
        I(f"v_mul_u32_u24 v1, {CS}, v1")
        I(f"v_lshl_add_u32 v2, v2, 7, v1")
        I(f"v_min_u32 v2, L_END-{KNAME}-256, v2")
        e.vmem(f"global_load_dword v255, v2, s[{sPC}:{sPC+1}]", "epf")
    I(f"s_mov_b32 s{sMASK}, 0xffff0000")
    I(f"s_mov_b32 s{sINV}, 0x80000000")
    I(f"s_lshr_b32 s{sIDX}, s2, 3")
    if opt["par"]:
        I(f"s_and_b32 s{sHASX}, s2, 1")
        I(f"s_xor_b32 s{sHASX}, s{sHASX}, {1 if opt['par'] == 1 else 0}")
        I(f"s_cmp_ge_u32 s{sIDX}, 8")
        I(f"s_cselect_b32 s{sHASX}, s{sHASX}, 0")
    else:
        I(f"s_sub_u32 s{sT0}, s{sIDX}, 7")
        I(f"s_cmp_lt_u32 s{sT0}, 12")
        I(f"s_cselect_b32 s{sHASX}, 1, 0")
    if opt["w8"] == 2:
        I(f"s_and_b32 s{sT0}, s2, 1")
        I(f"s_lshl_b32 s{sT0}, s{sT0}, 5")
        I(f"s_or_b32 s{sT0}, s{sT0}, s{sIDX}")
        I(f"s_cmp_lt_u32 s{sT0}, 7")
        I(f"s_cselect_b32 s{sL}, 1, 0")
    I(f"s_cmp_lt_u32 s{sWAVE}, 4")
    I("s_cbranch_scc1 L_CONS")
    I(f"s_sub_u32 s{sPW}, s{sWAVE}, 4")
    if opt["w8"] == 2:
        I(f"s_cmp_eq_u32 s{sL}, 1")
    elif opt["w8"]:
        I(f"s_and_b32 s{sT0}, s2, 1")
        I(f"s_lshl_b32 s{sT0}, s{sT0}, 5")
        I(f"s_or_b32 s{sT0}, s{sT0}, s{sIDX}")
        I(f"s_cmp_lt_u32 s{sT0}, 7")
    else:
        I(f"s_cmp_lt_u32 s{sIDX}, 7")
    if opt["wnear"] == 3:
        I(f"s_cselect_b32 s{sL}, 1, 0")
        L += e.L
        ep = Em(opt, e)
        worker_pre(ep, opt, 1)
        box = []

        def mid():
            ep.I(f"s_cmp_eq_u32 s{sL}, 0")
            ep.I("s_cbranch_scc1 L_PMAIN")
            w = Em(opt, ep)
            worker_pre(w, opt, 2)
            ep.L += w.L + ["    s_branch L_PW", "L_PMAIN:"]
            w.L = []
            if opt["wo"] != -2:
                for j in (0, 2, 4, 6, 8):
                    xload(w, 0, j)
            box.append(w)
        producer_main(ep, opt, mid=mid)
        epw = box[0]
    else:
        I({0: "s_cbranch_scc1 L_PW", 1: "s_cbranch_scc0 L_PMAIN", 2: "s_cbranch_scc1 L_WPRE"}[opt["wnear"]])
        L += e.L
        epw = Em(opt, e)
        worker_pre(epw, opt)
        wpre = []
        if opt["wnear"]:
            wpre, epw.L = epw.L + ["    s_branch L_PW"], []
        if opt["wnear"] == 1:
            L += wpre + ["L_PMAIN:"]
        producer_main(epw, opt, loads=opt["wo"] != -2)
        ep = Em(opt, e)
        producer_main(ep, opt)
    if not opt["xo"]:
        for j in (1, 3, 5, 7, 9):
            xload(ep, 0, j)
    ep.I(f"s_cmp_eq_u32 s{sHASX}, 0")
    ep.I("s_cbranch_scc1 L_PN")
    ep.I(f"s_cmp_eq_u32 s{sPW}, 3")
    ep.I("s_cbranch_scc1 L_PN")
    L += ep.L
    if opt["wnear"] == 2:
        L += ["    s_branch L_PX", "L_WPRE:"] + wpre + ["L_PX:"]
    L += producer(ep, opt, "x")
    L.append(f".org {KNAME} + {1 * CS}, 0" if opt["epf"] else ".p2align 6")
    L.append("L_PN:")
    L += producer(ep, opt, "n")
    L.append(f".org {KNAME} + {2 * CS}, 0" if opt["epf"] else ".p2align 6")
    L.append("L_PW:")
    L += epw.L
    L += producer(epw, opt, "w")
    L.append(f".org {KNAME} + {3 * CS}, 0" if opt["epf"] else ".p2align 6")
    L.append("L_CONS:")
    ec = Em(opt, e)
    consumer_pro(ec, opt)
    L += ec.L
    L += consumer(ec, opt, True)
    L.append(f".org {KNAME} + {5 * CS}, 0" if opt["epf"] else ".p2align 6")
    L.append("L_CN:")
    L += consumer(ec, opt, False)
    L.append("L_END:")
    L.append("    s_endpgm")
    L.append('.section .rodata,"a"')
    L.append(".p2align 6")
    L.append(f".amdhsa_kernel {KNAME}")
    for d in ("next_free_vgpr 256", "next_free_sgpr 102", "accum_offset 256", "group_segment_fixed_size 0",
              "kernarg_size 48", "user_sgpr_count 2", "user_sgpr_kernarg_segment_ptr 1",
              "system_sgpr_workgroup_id_x 1", "ieee_mode 0", "float_denorm_mode_32 1"):
        L.append("  .amdhsa_" + d)
    L.append(".end_amdhsa_kernel")
    return "\n".join(L) + "\n"


if __name__ == "__main__":
    out = sys.argv[1]
    kw = {}
    for a in sys.argv[2:]:
        k, v = a.split("=", 1)
        try:
            kw[k] = int(v)
        except ValueError:
            try:
                kw[k] = float(v)
            except ValueError:
                kw[k] = v.replace("+", " ")
    open(out, "w").write(generate(**kw))
```

```python
import sys, os
sys.path.insert(0, os.path.dirname(os.path.abspath(__file__)))
from cost import gapcost

KNAME = "standalone__standard_2d_1d_3d_conv__vision_kernel"

HEADER = """
3x3 same-padding convolution + bias, NHWC bf16, 224x224x192 -> 192 (kernarg: x, w, b, out, debug, ws).
Written out by the author's generator script (gen/gen7.py); no compiler output.

Method: exact Winograd F(2,3) along W. For an output pixel pair (y0, y1) and inputs d0..d3 of one row:
  V0=d0-d2  V1=d1+d2  V2=d2-d1  V3=d1-d3      U0=g0  U1=(g0+g1+g2)/2  U2=(g0-g1+g2)/2  U3=g2
  m_p = sum over (kernel row i, channel) of V_p * U_p ;  y0 = m0+m1+m2+b ,  y1 = m1-m2-m3+b
V and U are formed in fp32 and rounded once to bf16; all sums are fp32 MFMA accumulations.
Two accumulator sets are enough: m0/m3 ("A" units) add in the (y0, y1) basis, m1/m2 ("B" units) in the
((y0+y1)/2, (y0-y1)/2) basis; one butterfly switches basis each way (unit order A A | B x6 | A x4).

One workgroup per CU: 6 rows x 32 pixels x 192 channels; 96 workgroups also take one third of the
channels of one of the 32 rows left over. Waves 0-3: v_mfma_f32_16x16x32_bf16, 48 channels each; a V row
fragment is used for the three kernel rows. Waves 4-7: load x, form V into a 3-slot LDS ring, and at the
end move the staged bf16 output from LDS to memory in whole lines. The waves meet through LDS flags.
Weights: the first two units transpose raw w through LDS (ds_read_b64_tr_b16); meanwhile 56 workgroups
write U in fragment order to ws (write-through), count themselves in debug[0], and the last one raises
debug[32]/[48]; each workgroup looks at that word before its first read of U. Single-dword loads whose
result is not used only bring code or weight lines into L2. Sleeps occur only inside wait loops.
"""

DEF = dict(
    stamp=0, spin=4000, spinref=0, cst=-1, cev=8, pst=0,
    xf="", sf="nt", uf="sc1",
    code_pf=1, w_pf=1,
    prio=0, slp=1,
    pro="beta",
    xs="w:1e,w:1o,4p:2e,k4:2o",
    dsp=4.5,
    ustep=3, ulead=12,
    lag=-1,
    go=23,
    noatom=0, u_pf=0, pollp=1, pollat=-2, n1=1, y0at=0, gam=0, psl=2, epf=2, xo=1, w1late=0, otlb=0, aord=0, rsh=0, dd=0, wta=0, d_xcc=0, d_jit=0, d_st=0, par=0, wnear=0, w8=0, dedup=0, two=2, d_sl=0, ego=0, st2=1, wp1=0, pdel=0, nraw=4, pollu=2, pslp=8, trd=9, d_now=0, d_nov=0, d_nou=0, sfl='sc1', nlast=0, slpl=0, ustep0=5, order=2, wat=1, pat=3, rpf=1, rlead=0, wsp=10, pollw=0, w2pre=0, tr1at=4, wo=2, ulead0=0,
)

VSLOT = 22528
VHALF = 11264
VS = [0, VSLOT, 2 * VSLOT]
FLAGS = 3 * VSLOT
WRING = FLAGS + 512
WWAVE = 18432
OROW = 6400
OUT = WRING
XST = OUT + 12 * OROW
PRE = VS[1]
LDS_BYTES = XST + 4608
NW = [56]
CS = 12800

XBYTES = 224 * 224 * 384
WBYTES = 9 * 192 * 384
UBYTES = 24 * 36864

ORDERS = {
    2: [("A", 0, 0), ("A", 1, 0),
        ("B", 0, 0), ("B", 1, 0), ("B", 0, 1), ("B", 1, 1), ("B", 0, 2), ("B", 1, 2),
        ("A", 0, 1), ("A", 0, 2), ("A", 1, 1), ("A", 1, 2)],
    3: [("A", 0, 0), ("A", 1, 0), ("A", 0, 1),
        ("B", 0, 0), ("B", 1, 0), ("B", 0, 1), ("B", 1, 1), ("B", 0, 2), ("B", 1, 2),
        ("A", 0, 2), ("A", 1, 1), ("A", 1, 2)],
    1: [("A", 0, 0), ("A", 1, 0), ("A", 0, 1), ("A", 1, 1),
        ("B", 0, 0), ("B", 1, 0), ("B", 0, 1), ("B", 1, 1), ("B", 0, 2), ("B", 1, 2),
        ("A", 0, 2), ("A", 1, 2)],
}
UNITS = list(ORDERS[2])


def step_info(s):
    kind, st, pair = UNITS[s >> 1]
    return kind, st, 2 * pair + (s & 1)


sX, sW, sO, sU, sB = 4, 8, 12, 16, 20
sDBG, sWS, sKA = 24, 26, 28
sWAVE, sL, sSTRIP, sROW0, sHASX, sES, sEROW = 36, 37, 38, 39, 40, 41, 42
sF0, sF1, sF2, sIDX = 43, 44, 45, 46
sT0, sT1, sT2, sT3 = 47, 48, 49, 50
sMASK, sRING, sOFF, sOFF2, sPW = 51, 52, 53, 54, 55
sPC, sCNT, sINV = 56, 58, 59
sPOLL, sPEND = 3, 56
sST = 60


NSPIN = [0]


class Em:
    def __init__(self, opt, parent=None):
        self.L = []
        self.lg = list(parent.lg) if parent else []
        self.vm = list(parent.vm) if parent else []
        self.opt = opt
        self.nst = parent.nst if parent else 0

    def I(self, s):
        self.L.append("    " + s)

    def label(self, s):
        self.L.append(s + ":")

    def lds(self, s, name=None):
        self.I(s)
        self.lg.append(name)

    def vmem(self, s, name=None):
        self.I(s)
        self.vm.append(name)

    def need(self, names):
        if isinstance(names, str):
            names = [names]
        w = []
        k = max([i for i, n in enumerate(self.vm) if n in names], default=-1)
        if k >= 0:
            n = min(len(self.vm) - 1 - k, 63)
            w.append(f"vmcnt({n})")
            self.vm = self.vm[len(self.vm) - n:] if n else []
        k = max([i for i, n in enumerate(self.lg) if n in names], default=-1)
        if k >= 0:
            n = min(len(self.lg) - 1 - k, 15)
            w.append(f"lgkmcnt({n})")
            self.lg = self.lg[len(self.lg) - n:] if n else []
        if w:
            self.I("s_waitcnt " + " ".join(w))

    def drain_lg(self):
        self.I("s_waitcnt lgkmcnt(0)")
        self.lg = []

    def drain_vm(self):
        self.I("s_waitcnt vmcnt(0)")
        self.vm = []

    def stamp(self):
        o = self.opt
        if o["stamp"] == 4 and self.nst != o["spinref"]:
            self.nst += 1
        elif o["stamp"]:
            r = sST + 2 * self.nst
            assert r + 1 < 100, "too many stamps"
            self.I(f"s_memrealtime s[{r}:{r+1}]" if o["stamp"] in (1, 4) else f"s_memtime s[{r}:{r+1}]")
            self.nst += 1

    def jit(self, k):
        if not self.opt["d_jit"]:
            return
        NSPIN[0] += 1
        n = NSPIN[0]
        self.I(f"s_mul_i32 s98, s2, {7 + 2*k}")
        self.I(f"s_mul_i32 s99, s{sWAVE}, {5 + 6*k}")
        self.I("s_add_u32 s98, s98, s99")
        self.I(f"s_add_u32 s98, s98, {self.opt['d_jit'] * 3 + k}")
        self.I("s_and_b32 s98, s98, 7")
        self.I("s_cmp_lt_u32 s98, 5")
        self.I(f"s_cbranch_scc1 L_JIT{n}")
        self.I(f"s_sleep {20 + 9*(k % 5)}")
        self.label(f"L_JIT{n}")

    def dump_stamps(self, role):
        o = self.opt
        if not o["stamp"]:
            return
        self.I("s_waitcnt vmcnt(0) lgkmcnt(0)")
        if o["stamp"] == 4:
            if o["spinref"] and role != "c":
                return
            NSPIN[0] += 1
            lab = f"L_SPIN{NSPIN[0]}"
            self.label(lab)
            self.I(f"s_memrealtime s[{sT1}:{sT1+1}]")
            self.I("s_waitcnt lgkmcnt(0)")
            self.I(f"s_sub_u32 s{sT0}, s{sT1}, s{sST + 2*o['spinref']}")
            if o["d_xcc"] == 2:
                self.I(f"s_getreg_b32 s{sT3}, hwreg(HW_REG_XCC_ID)")
                self.I(f"s_and_b32 s{sT3}, s{sT3}, 15")
                self.I(f"s_mul_i32 s{sT3}, s{sT3}, 300")
                self.I(f"s_add_u32 s{sT3}, s{sT3}, {o['spin']}")
                self.I(f"s_cmp_eq_u32 s2, 0")
                self.I(f"s_cselect_b32 s{sT3}, s{sT3}, 0")
                self.I(f"s_cmp_lt_u32 s{sT0}, s{sT3}")
            else:
                self.I(f"s_cmp_lt_u32 s{sT0}, {o['spin']}")
            self.I(f"s_cbranch_scc1 {lab}")
            return
        self.I(f"s_lshl_b32 s{sT0}, s2, 3")
        self.I(f"s_add_u32 s{sT0}, s{sT0}, s{sWAVE}")
        self.I(f"s_lshl_b32 s{sT0}, s{sT0}, 8")
        self.I(f"s_add_u32 s{sT0}, s{sT0}, 0x100000")
        self.I(f"v_mov_b32 v1, s{sT0}")
        for i in range(self.nst):
            self.I(f"v_mov_b32 v2, s{sST + 2*i}")
            self.I(f"global_store_dword v1, v2, s[{sWS}:{sWS+1}] offset:{4*i}")
        self.I(f"v_mov_b32 v2, {self.nst}")
        self.I(f"global_store_dword v1, v2, s[{sWS}:{sWS+1}] offset:252")
        self.I(f"s_getreg_b32 s{sT0}, hwreg(HW_REG_XCC_ID)")
        self.I(f"v_mov_b32 v2, s{sT0}")
        self.I(f"global_store_dword v1, v2, s[{sWS}:{sWS+1}] offset:248")


def vr(a, n=4):
    return f"v[{a}:{a+n-1}]"


def srd(e, s, lo, nbytes, bias=0):
    if bias:
        e.I(f"s_sub_u32 s{s}, s{lo}, {bias}")
        e.I(f"s_subb_u32 s{s+1}, s{lo+1}, 0")
    else:
        e.I(f"s_mov_b32 s{s}, s{lo}")
        e.I(f"s_mov_b32 s{s+1}, s{lo+1}")
    e.I(f"s_mov_b32 s{s+2}, {nbytes + bias}")
    e.I(f"s_mov_b32 s{s+3}, 0x20000")


def decode_main(e):
    I = e.I
    I(f"s_and_b32 s{sT0}, s2, 7")
    I(f"s_lshl_b32 s{sT0}, s{sT0}, 5")
    I(f"s_add_u32 s{sT0}, s{sT0}, s{sIDX}")
    I(f"s_mul_i32 s{sT0}, s{sT0}, 7")
    I(f"s_lshr_b32 s{sSTRIP}, s{sT0}, 8")
    I(f"s_and_b32 s{sT0}, s{sT0}, 255")
    I(f"s_mul_i32 s{sT0}, s{sT0}, 293")
    I(f"s_lshr_b32 s{sT0}, s{sT0}, 11")
    I(f"s_mul_i32 s{sROW0}, s{sT0}, 6")


def decode_extra(e):
    I = e.I
    if e.opt["par"]:
        I(f"s_bfe_u32 s{sT0}, s2, {1 | (2 << 16)}")
        I(f"s_mul_i32 s{sT0}, s{sT0}, 24")
        I(f"s_add_u32 s{sT0}, s{sT0}, s{sIDX}")
        I(f"s_sub_u32 s{sT0}, s{sT0}, 8")
    else:
        I(f"s_and_b32 s{sT0}, s2, 7")
        I(f"s_mul_i32 s{sT0}, s{sT0}, 12")
        I(f"s_add_u32 s{sT0}, s{sT0}, s{sIDX}")
        I(f"s_sub_u32 s{sT0}, s{sT0}, 7")
    I(f"s_mul_i32 s{sT1}, s{sT0}, 21846")
    I(f"s_lshr_b32 s{sT1}, s{sT1}, 16")
    I(f"s_mul_i32 s{sT2}, s{sT1}, 3")
    I(f"s_sub_u32 s{sF0}, s{sT0}, s{sT2}")
    I(f"s_cmp_eq_u32 s{sHASX}, 1")
    I(f"s_cselect_b32 s{sF0}, s{sF0}, 0")
    I(f"s_cselect_b32 s{sT1}, s{sT1}, 0")
    I(f"s_lshl_b32 s{sES}, s{sT1}, 1")
    I(f"s_and_b32 s{sES}, s{sES}, 12")
    I(f"s_lshr_b32 s{sES}, 0x5310, s{sES}")
    I(f"s_and_b32 s{sES}, s{sES}, 15")
    I(f"s_and_b32 s{sEROW}, s{sT1}, 1")
    I(f"s_add_u32 s{sEROW}, s{sEROW}, 222")
    I(f"s_lshr_b32 s{sT3}, s{sT1}, 3")
    I(f"s_lshl_b32 s{sT3}, s{sT3}, 1")
    I(f"s_and_b32 s{sT2}, s{sT1}, 7")
    I(f"s_add_u32 s{sT2}, s{sT2}, 216")
    I(f"s_cmp_lt_u32 s{sT1}, 8")
    I(f"s_cselect_b32 s{sES}, s{sES}, s{sT3}")
    I(f"s_cselect_b32 s{sEROW}, s{sEROW}, s{sT2}")


def consumer_pro(e, opt):
    I = e.I
    vV, vV2, vT = 1, 2, 3
    vD = [4, 5, 6]
    vU = [7, 253, 254]
    t0, t1, t2, t3, t4 = 8, 9, 10, 11, 12
    sF = [sF0, sF1, sF2]
    if opt["w8"] == 2:
        I(f"s_cmp_eq_u32 s{sL}, 0")
        I("s_cbranch_scc1 L_CW0")
        keep = list(e.vm)
        worker_pre(e, opt, cons=True)
        e.vm = keep
        e.label("L_CW0")
    decode_extra(e)
    I(f"s_add_u32 s{sF1}, s{sF0}, 1")
    I(f"s_cmp_eq_u32 s{sF1}, 3")
    I(f"s_cselect_b32 s{sF1}, 0, s{sF1}")
    I(f"s_add_u32 s{sF2}, s{sF1}, 1")
    I(f"s_cmp_eq_u32 s{sF2}, 3")
    I(f"s_cselect_b32 s{sF2}, 0, s{sF2}")
    I(f"v_lshrrev_b32 v{t0}, 4, v0")
    I(f"s_mul_i32 s{sT0}, s{sWAVE}, 96")
    I(f"v_lshlrev_b32 v{t4}, 3, v{t0}")
    I(f"v_add_u32 v{t4}, s{sT0}, v{t4}")
    for s in range(3):
        I(f"s_lshl_b32 s{sT1}, s{sF[s]}, 5")
        I(f"v_add_u32 v{13+s}, s{sT1}, v{t4}")
    if opt["w_pf"]:
        I(f"s_mul_i32 s{sT1}, s{sIDX}, 36")
        I(f"v_min_u32 v{t1}, 35, v0")
        I(f"v_add_u32 v{t1}, s{sT1}, v{t1}")
        I(f"v_mul_u32_u24 v{t2}, 10923, v{t1}")
        I(f"v_lshrrev_b32 v{t2}, 21, v{t2}")
        I(f"v_add_u32 v{t3}, 1, v{t2}")
        I(f"v_lshrrev_b32 v{t3}, 1, v{t3}")
        I(f"v_mul_u32_u24 v{t3}, 576, v{t3}")
        I(f"v_mul_u32_u24 v{t2}, 384, v{t2}")
        I(f"v_add3_u32 v{t1}, v{t1}, v{t2}, v{t3}")
        I(f"s_mul_i32 s{sT1}, s{sWAVE}, {192*128}")
        I(f"s_add_u32 s{sT1}, s{sT1}, 2048")
        I(f"v_lshl_add_u32 v252, v{t1}, 7, s{sT1}")
    I("s_waitcnt lgkmcnt(0)")
    srd(e, sB, sKA + 4, 384)
    srd(e, sW, sKA + 2, WBYTES, 2048)
    srd(e, sU, sWS, UBYTES)
    if opt["w_pf"]:
        I(f"s_cmp_ge_u32 s{sWAVE}, {1 if opt['nraw'] == 4 else 2}")
        I("s_cbranch_scc1 L_NOWPF")
        I(f"buffer_load_dword v255, v252, s[{sW}:{sW+3}], 0 offen")
        e.label("L_NOWPF")
    if opt["code_pf"]:
        I(f"s_cmp_eq_u32 s{sWAVE}, 2")
        I("s_cbranch_scc0 L_NOCPF")
        I(f"s_getpc_b64 s[{sPC}:{sPC+1}]")
        e.label("L_PC0")
        I(f"s_sub_u32 s{sPC}, s{sPC}, L_PC0-{KNAME}")
        I(f"s_subb_u32 s{sPC+1}, s{sPC+1}, 0")
        I(f"s_mul_i32 s{sT1}, s{sIDX}, {opt['code_pf_lines']*128}")
        I(f"v_min_u32 v252, {opt['code_pf_lines']-1}, v0")
        I(f"v_lshl_add_u32 v252, v252, 7, s{sT1}")
        I(f"v_min_u32 v252, L_END-{KNAME}, v252")
        I(f"global_load_dword v255, v252, s[{sPC}:{sPC+1}]")
        e.label("L_NOCPF")
    if opt["d_xcc"] == 1:
        I(f"s_cmp_lt_u32 s2, 12")
        I("s_cbranch_scc0 L_NOXCC")
        I(f"s_getreg_b32 s{sT1}, hwreg(HW_REG_XCC_ID)")
        I(f"s_lshl_b32 s{sT2}, s2, 2")
        I(f"v_mov_b32 v22, s{sT1}")
        I(f"v_mov_b32 v23, s{sT2}")
        I(f"global_store_dword v23, v22, s[{sDBG}:{sDBG+1}] offset:16")
        e.label("L_NOXCC")
    for s in range(3):
        e.vmem(f"buffer_load_dwordx2 {vr(16+2*s, 2)}, v{13+s}, s[{sB}:{sB+3}], 0 offen", "bias")
    I(f"v_and_b32 v{t1}, 15, v0")
    I(f"v_xor_b32 v{t2}, v{t0}, v{t1}")
    I(f"v_lshl_add_u32 v{t2}, v{t0}, 4, v{t2}")
    I(f"v_lshlrev_b32 v{vV}, 4, v{t2}")
    I(f"v_add_u32 v{vV2}, 0x8000, v{vV}")
    I(f"s_mul_i32 s{sRING}, s{sWAVE}, {WWAVE}")
    I(f"s_add_u32 s{sRING}, s{sRING}, {WRING}")
    I(f"v_lshrrev_b32 v{t2}, 2, v0")
    I(f"v_mul_u32_u24 v{t2}, 96, v{t2}")
    I(f"v_and_b32 v{t3}, 3, v0")
    I(f"v_lshl_add_u32 v{t2}, v{t3}, 3, v{t2}")
    I(f"v_add_u32 v{vT}, s{sRING}, v{t2}")
    for d in range(3):
        I(f"v_add_u32 v{t1}, {64*d}, v0")
        I(f"v_mul_u32_u24 v{t2}, 43691, v{t1}")
        I(f"v_lshrrev_b32 v{t2}, 18, v{t2}")
        I(f"v_mul_u32_u24 v{t3}, 6, v{t2}")
        I(f"v_sub_u32 v{t1}, v{t1}, v{t3}")
        I(f"v_bfe_u32 v{t3}, v{t2}, 2, 2")
        I(f"v_lshlrev_b32 v{t3}, 3, v{t3}")
        I(f"v_lshrrev_b32 v{t4}, 4, v{t2}")
        I(f"v_lshl_add_u32 v{t3}, v{t4}, 2, v{t3}")
        I(f"v_and_b32 v{t2}, 3, v{t2}")
        I(f"v_add_u32 v{t2}, v{t2}, v{t3}")
        I(f"v_mul_u32_u24 v{t2}, 384, v{t2}")
        I(f"v_lshrrev_b32 v{t3}, 1, v{t1}")
        I(f"v_add_u32 v{t3}, s{sF0}, v{t3}")
        I(f"v_subrev_u32 v{t4}, 3, v{t3}")
        I(f"v_min_u32 v{t3}, v{t3}, v{t4}")
        I(f"v_lshl_add_u32 v{t2}, v{t3}, 5, v{t2}")
        I(f"v_and_b32 v{t1}, 1, v{t1}")
        I(f"v_lshl_add_u32 v{t2}, v{t1}, 4, v{t2}")
        I(f"v_add_u32 v{t2}, s{sT0}, v{t2}")
        I(f"v_add_u32 v{vD[d]}, {2048 - 1024*d}, v{t2}")
    I(f"s_mul_i32 s{sT1}, s{sWAVE}, 9216")
    for s in range(3):
        I(f"s_mul_i32 s{sT0}, s{sF[s]}, 3072")
        I(f"s_add_u32 s{sT0}, s{sT0}, s{sT1}")
        I(f"v_lshl_add_u32 v{vU[s]}, v0, 4, s{sT0}")
    if opt["w8"] == 2:
        I(f"s_cmp_eq_u32 s{sL}, 0")
        I("s_cbranch_scc1 L_CW1")
        w = Em(opt, e)
        w.vm = ["pre0"] + ["x"] * 3
        w.I(f"v_lshrrev_b32 v98, 2, v0")
        w.I(f"v_lshlrev_b32 v98, 5, v98")
        w.I(f"v_and_b32 v99, 3, v0")
        w.I(f"v_lshl_add_u32 v98, v99, 3, v98")
        w.I(f"v_add_u32 v98, s{sPOLL}, v98")
        prepass(w, dict(opt, pst=0), 0, 100, 120, 97, 98)
        e.L += w.L
        e.label("L_CW1")
    I(f"s_cmp_eq_u32 s{sHASX}, 0")
    I("s_cbranch_scc1 L_CN")


def consumer(parent, opt, extra):
    e = Em(opt, parent)
    I = e.I
    vV, vV2, vT = 1, 2, 3
    vD = [4, 5, 6]
    vU = [7, 253, 254]
    vO = vD
    vOX, vFL, vONE, vCK = 3, 255, 252, 0
    VR = 8
    WB = [24, 60]
    ACC = 96
    acc = {}
    for m in range(6):
        for st in range(2):
            for s in range(3):
                acc[(m, st, s)] = ACC + 4 * ((m * 2 + st) * 3 + s)
    acc[("X", 0)] = 240
    acc[("X", 1)] = 244
    spare = [248]
    sF = [sF0, sF1, sF2]
    tag = "x" if extra else "n"

    def W(step, i, s):
        return WB[step & 1] + 4 * (i * 3 + s)

    def dma_ops(step, i):
        kind, st, c = step_info(step)
        slot = (step & 1) * 3 + i
        ops = [("S", lambda: I(f"s_add_u32 m0, s{sRING}, {slot*3072}")),
               ("S", lambda: I(f"s_mov_b32 s{sOFF2}, {(i*3+2*st)*73728 + c*12288}"))]
        for d in range(3):
            def f(d=d):
                e.need([f"w{step-2}_{i}"])
                e.vmem(f"buffer_load_dwordx4 v{vD[d]}, s[{sW}:{sW+3}], s{sOFF2} offen offset:{1024*d} lds", f"dma{step}_{i}")
            ops.append(("M", f))
        return ops

    def tr_ops(step, i):
        slot = (step & 1) * 3 + i
        ops = []
        for s in range(3):
            for h in range(2):
                def f(s=s, h=h):
                    e.need([f"dma{step}_{i}"])
                    e.lds(f"ds_read_b64_tr_b16 {vr(W(step, i, s) + 2*h, 2)}, v{vT} offset:{slot*3072 + h*1536 + s*32}", f"w{step}_{i}")
                ops.append(("WR" if s == 0 and h == 0 else "R", f))
        return ops

    def u_op(step, i, s):
        if opt["d_nou"] and step > 9:
            return ("S", lambda: I("s_nop 0"))
        return ("M", lambda: e.vmem(f"buffer_load_dwordx4 {vr(W(step, i, s))}, v{vU[s]}, s[{sU}:{sU+3}], s{sOFF} offen offset:{1024*i} {opt['uf']}", f"w{step}_{i}"))

    def u_off(step):
        kind, st, c = step_info(step)
        pos = st if kind == "B" else 2 + st
        return ("S", lambda: I(f"s_mov_b32 s{sOFF}, {(pos*6+c)*36864}"))

    I(f"v_lshlrev_b32 v8, 3, v0")
    I(f"v_add_u32 v8, {FLAGS}, v8")
    I(f"v_mov_b32 v10, 0")
    I(f"v_mov_b32 v11, 0")
    I(f"ds_write_b64 v8, v[10:11]")
    I("s_waitcnt lgkmcnt(0)")
    e.stamp()
    I("s_barrier")
    for i in range(3):
        for c, f in dma_ops(0, i):
            f()
    if opt["pro"] == "alpha":
        I("s_barrier")
    w1late = opt["w1late"] == 2 or (opt["w1late"] == 1 and not extra)
    if not w1late:
        for i in range(3):
            for c, f in dma_ops(1, i):
                f()
    e.need("bias")
    if opt["w8"] == 2 and not extra:
        I(f"s_cmp_eq_u32 s{sL}, 0")
        I("s_cbranch_scc1 L_CW2")
        I(f"v_mov_b32 v8, {FLAGS + 15*16 + 4}")
        I(f"v_mov_b32 v9, 1")
        I("s_mov_b64 exec, 1")
        I("ds_add_u32 v8, v9")
        I("s_mov_b64 exec, -1")
        e.label("L_CW2")
    for s in range(3):
        a, b = acc[(5, 0, s)], acc[(5, 1, s)]
        I(f"v_lshlrev_b32 v{a}, 16, v{16+2*s}")
        I(f"v_and_b32 v{a+1}, s{sMASK}, v{16+2*s}")
        I(f"v_lshlrev_b32 v{a+2}, 16, v{17+2*s}")
        I(f"v_and_b32 v{a+3}, s{sMASK}, v{17+2*s}")
        for k in range(4):
            I(f"v_xor_b32 v{b+k}, s{sINV}, v{a+k}")
    for i in range(3):
        for c, f in tr_ops(0, i):
            f()
    if w1late:
        for i in range(3):
            for c, f in dma_ops(1, i):
                f()
    if opt["w2pre"]:
        for i in range(3):
            for c, f in dma_ops(2, i):
                f()
    I(f"s_lshl_b32 s{sT0}, s{sWAVE}, 2")
    I(f"s_add_u32 s{sT0}, s{sT0}, {FLAGS}")
    I(f"v_mov_b32 v{vFL}, s{sT0}")
    I(f"v_mov_b32 v{vONE}, 1")
    if opt["prio"]:
        I(f"s_setprio {opt['prio']}")
    e.stamp()

    groups = []

    def g_row(step, r):
        st = step_info(step)[1]
        mf = []
        for i in (2, 1, 0):
            m = r - i
            if 0 <= m <= 5:
                for s in range(3):
                    mf.append(((m, st, s), i, s))
        return dict(step=step, row=r, mf=mf)

    def g_x(step, i):
        return dict(step=step, row=8 + i, mf=[(("X", step_info(step)[1]), i, 0)])

    for step in range(22):
        seq = [g_row(step, 0), g_row(step, 1), g_x(step, 0), g_row(step, 2), g_x(step, 1), g_row(step, 3),
               g_x(step, 2), g_row(step, 4), g_row(step, 5), g_row(step, 6), g_row(step, 7)]
        groups += [g for g in seq if extra or g["row"] < 8]
    lag = opt["lag"]
    if lag >= 0:
        seq = []
        for r in range(8 + lag):
            if r < 8:
                seq.append((22, r))
            if r >= lag:
                seq.append((23, r - lag))
    else:
        seq = [(22, 0), (22, 1), (22, 2), (23, 0), (22, 3), (23, 1), (23, 2), (23, 3),
               (22, 4), (23, 4), (22, 5), (23, 5), (22, 6), (23, 6), (22, 7), (23, 7)]
    for (st_, r) in seq:
        groups.append(g_row(st_, r))
        if extra and st_ == 22 and 1 <= r <= 3:
            groups.append(g_x(22, r - 1))
        if extra and st_ == 23 and 1 <= r <= 3 and lag < 0:
            groups.append(g_x(23, r - 1))
        if extra and st_ == 23 and 2 <= r <= 4 and lag >= 0:
            groups.append(g_x(23, r - 2))

    stream = []
    gstart = []
    for gi, g in enumerate(groups):
        gstart.append(len(stream))
        for (key, i, s) in g["mf"]:
            stream.append((gi, key, i, s))
    N = len(stream)
    gend = [gstart[k + 1] - 1 if k + 1 < len(groups) else N - 1 for k in range(len(groups))]
    step_start, step_end = {}, {}
    last_use, last_acc, first_acc, first_tap = {}, {}, {}, {}
    for gi, g in enumerate(groups):
        step_start.setdefault(g["step"], gstart[gi])
        step_end[g["step"]] = gend[gi]
    for n, (gi, key, i, s) in enumerate(stream):
        st = groups[gi]["step"]
        last_use[(st, i, s)] = n
        last_acc[(st, key)] = n
        first_acc.setdefault((st, key), n)
        first_tap.setdefault((st, i), n)
    SL = step_start[1] - step_start[0]

    fill = [[] for _ in range(N + 1)]
    cl = [""] * (N + 1)
    endw = [""] * (N + 1)
    for gi in range(1, len(groups)):
        endw[gstart[gi] - 1] = "W"
    for (st, i), n in first_tap.items():
        if n:
            endw[n - 1] = "W"

    def put(g, op):
        fill[g].append(op[1])
        cl[g] += op[0]

    def addcost(g, c, cur):
        base = cur.get(g, cl[g])
        return gapcost(base + c + endw[g]) - gapcost(base + endw[g])

    def place(g0, ops, deadline=None, per=2, strict=False):
        for budget in range(0, len(ops) + 1):
            cur = {}
            res = []
            g, n, left = g0, 0, budget
            for c, f in ops:
                free = 4 if c == "D" else 0
                while g < N:
                    if n < per:
                        ac = addcost(g, c, cur)
                        if ac <= free:
                            break
                        if left and ac <= free + 4:
                            left -= 1
                            break
                    g += 1
                    n = 0
                g = min(g, N)
                cur[g] = cur.get(g, cl[g]) + c
                res.append(g)
                n += 1
            if deadline is None or res[-1] <= deadline:
                break
        else:
            assert not strict, (g0, deadline, res[-1])
        for g, op in zip(res, ops):
            put(g, op)
        return res[-1]

    def vread(gi):
        g = groups[gi]
        u = g["step"] >> 1
        off = VS[u % 3] + (g["step"] & 1) * VHALF + g["row"] * 1024
        base = vV
        if off >= 0x8000:
            base, off = vV2, off - 0x8000
        r = VR + 4 * (gi % 4)
        return ("R", lambda: e.lds(f"ds_read_b128 {vr(r)}, v{base} offset:{off}", f"v{gi}"))

    first_of_unit = {}
    for gi, g in enumerate(groups):
        first_of_unit.setdefault(g["step"] >> 1, gi)
    def flag(k):
        return ("d", lambda: e.jit(70 + k) or e.lds(f"ds_write_b32 v{vFL}, v{vONE} offset:{k*16}"))

    def ckread(off, name):
        return ("R", lambda: e.lds(f"ds_read_b32 v{vCK}, v{vV2} offset:{FLAGS - 0x8000 + off}", name))

    def check1(name):
        def f():
            e.jit(len(name) + len(e.L) % 13)
            e.need(name)
            I(f"v_readfirstlane_b32 s{sT0}, v{vCK}")
        return f

    def check(off, val, name, st=False):
        def f():
            lab = f"L_CK{tag}{name}"
            I(f"s_cmp_eq_u32 s{sT0}, {val}")
            I(f"s_cbranch_scc0 {lab}_spin")
            e.label(lab)
            if st and opt["cst"] < 0:
                e.stamp()
            cold.append(f"{lab}_spin:")
            cold.append(f"    ds_read_b32 v{vCK}, v{vV2} offset:{FLAGS - 0x8000 + off}")
            cold.append("    s_waitcnt lgkmcnt(0)")
            cold.append(f"    v_readfirstlane_b32 s{sT0}, v{vCK}")
            cold.append(f"    s_cmp_eq_u32 s{sT0}, {val}")
            cold.append(f"    s_cbranch_scc0 {lab}_spin")
            cold.append(f"    s_branch {lab}")
        return f

    cold = []
    bar_gap = {}
    rpos = {}
    for gi in range(4, len(groups)):
        g = gend[gi - 4]
        if opt["rsh"] and len(groups[gi - 3]["mf"]) > 1 and g - 0 >= rpos.get(gi - 1, -1):
            g += 1
        g = max(g, rpos.get(gi - 1, -1) + 1)
        rpos[gi] = g
        put(g, vread(gi))
    for u in range(1, 12):
        gi = first_of_unit[u]
        gp = gend[gi - 4]
        bar_gap[u] = gp - 1
        put(gp - 2, ("WV", check1(f"rdy{u}")))
        put(gp - 1, ("SS", check(448 + 4 * u, 4, f"rdy{u}", True)))
        gq = gp - (7 if opt["rsh"] else 8)
        assert place(gq, [ckread(448 + 4 * u, f"rdy{u}")]) < gp - 4
        if u - 1 <= 8:
            place(gstart[gi - 1], [flag(16 + u - 1)])

    g = 0
    gtr1 = 0
    k = 0
    for step in ((3,) if opt["w2pre"] else (2, 3)):
        for i in range(3):
            if step == 3:
                gtr1 = place(max(gtr1, opt["tr1at"] + (14 if w1late else 0) + 8 * i), tr_ops(1, i), per=1) + 1
                g = max(g, gtr1 + opt['trd'])
            ops = dma_ops(step, i)
            g = place(max(g, int(k * opt["dsp"])), ops[:2])
            for d in range(3):
                g = place(max(g + 1, int(k * opt["dsp"]) + 1), [ops[2 + d]])
                k += 1
    place(g + 1, [flag(31)])
    NR = opt["nraw"]
    for step in range(2, NR):
        gt = step_start[step - 1] + SL - 24
        for i in range(3):
            gt = max(gt, max(last_use[(step - 2, i, s)] for s in range(3)))
            gt = place(gt, tr_ops(step, i), per=1, deadline=first_tap[(step, i)] - 4) + 1
            if step + 2 < NR:
                ops = dma_ops(step + 2, i)
                t0_ = step_start[step] + int(i * SL / 3)
                g = place(max(g, gt + opt["trd"], t0_), ops[:2])
                for d in range(3):
                    g = place(max(g + 1, t0_ + int(d * SL / 9) + 1), [ops[2 + d]])

    gchk = step_start[NR - 1] - opt["ulead0"] - 3

    place(gchk - 10, [ckread(240, "uflag")])
    put(gchk - 1, ("WV", check1("uflag")))
    put(gchk, ("SS", check(240, 1, "uflag")))
    g = gchk + 1
    go_gap = None
    early_go = []
    for step in range(NR, 24):
        base = step_start[step - 1] - opt["ulead"]
        stp = opt["ustep"] * SL / 57
        if step == NR:
            base, stp = gchk + 2, opt["ustep0"]
        if step == 23:
            base, stp = last_use[(21, 0, 0)], 2
        k = 0
        for i in range(3):
            for s in range(3):
                tgt = max(base + int(k * stp), last_use[(step - 2, i, s)], g)
                if k == 0:
                    g = place(max(g, tgt - 2), [u_off(step)])
                    tgt = max(tgt, g + 1)
                g = place(tgt, [u_op(step, i, s)]) + 1
                k += 1
        if step == opt["go"]:
            go_gap = g
        if opt["ego"] and step in (21, 22):
            early_go.append((g, 25 + step - 21))

    def bfly_ops(k0, k1, first):
        ops = []
        if first:
            o0, o1, md = "v_sub_f32_e64", "v_add_f32_e64", " div:2"
        else:
            o0, o1, md = "v_add_f32", "v_sub_f32", ""
        for k in range(4):
            ops.append(("V", lambda k=k: I(f"{o0} v{spare[0]+k}, v{acc[k0]+k}, v{acc[k1]+k}{md}")))
        for k in range(4):
            def f(k=k):
                I(f"{o1} v{acc[k1]+k}, v{acc[k0]+k}, v{acc[k1]+k}{md}")
                if k == 3:
                    acc[k0], spare[0] = spare[0], acc[k0]
            ops.append(("V", f))
        return ops

    order = [0, 1, "X", 2, 3, 4, 5] if extra else [0, 1, 2, 3, 4, 5]
    fb = [u for u in range(12) if UNITS[u][0] == "B"]
    y0last = 2 * max(u for u in range(12) if UNITS[u][1] == 0) + 1
    for last, first in ((2 * fb[0] - 1, True), (2 * fb[-1] + 1, False)):
        blocks = []
        for m in order:
            keys = [((m, 0, s), (m, 1, s)) for s in range(3)] if m != "X" else [(("X", 0), ("X", 1))]
            for (k0, k1) in keys:
                rdy = max(n for (st_, k_), n in last_acc.items() if st_ <= last and k_ in (k0, k1))
                blocks.append((rdy + 8, first_acc[(last + 1, k0)] - 3, k0, k1))
        dl = [b[1] for b in blocks]
        for k in range(len(dl) - 2, -1, -1):
            dl[k] = min(dl[k], dl[k + 1] - opt.get("bsp", 4))
        g = 0
        for (rdy, _, k0, k1), d in zip(blocks, dl):
            g = place(max(g, rdy), bfly_ops(k0, k1, first), deadline=d, per=3)
            assert g <= _, (last, k0, g, _)

    def oaddr():
        ops = []
        A = lambda s: ops.append((s[0].upper(), lambda: I(s)))
        t, q = vO[1], vO[2]
        A(f"v_lshrrev_b32 v{q}, 8, v{vV}")
        A(f"v_bfe_u32 v{t}, v{vV}, 4, 4")
        A(f"v_xor_b32 v{t}, v{t}, v{q}")
        A(f"v_lshlrev_b32 v{q}, 3, v{q}")
        A(f"s_lshl_b32 s{sT1}, s{sWAVE}, 5")
        A(f"s_add_u32 s{sT1}, s{sT1}, {XST}")
        A(f"v_mul_u32_u24 v{vOX}, 144, v{t}")
        A(f"v_add3_u32 v{vOX}, v{vOX}, v{q}, s{sT1}")
        A(f"v_mul_u32_u24 v{t}, 400, v{t}")
        A(f"v_add_u32 v{q}, v{t}, v{q}")
        A(f"s_mul_i32 s{sT1}, s{sWAVE}, 96")
        A(f"s_add_u32 s{sT1}, s{sT1}, {OUT}")
        for s in range(3):
            A(f"s_lshl_b32 s{sT2}, s{sF[s]}, 5")
            A(f"s_add_u32 s{sT2}, s{sT2}, s{sT1}")
            A(f"v_add_u32 v{vO[s]}, s{sT2}, v{q}")
        return ops
    place(step_start[10], oaddr())

    def epi_ops(key, addr, off):
        return [("V", lambda: I(f"v_cvt_pk_bf16_f32 v{acc[key]}, v{acc[key]}, v{acc[key]+1}")),
                ("V", lambda: I(f"v_cvt_pk_bf16_f32 v{acc[key]+1}, v{acc[key]+2}, v{acc[key]+3}")),
                ("D", lambda: e.lds(f"ds_write_b64 v{addr}, {vr(acc[key], 2)} offset:{off}"))]

    place(go_gap, [flag(14)])
    for g_, k_ in early_go:
        place(g_, [flag(k_)])
    def after(n):
        g, c = n, 0
        while g < N:
            c += sum(1 for ch in cl[g] if ch != "W")
            if c >= 8:
                return g
            g += 1
            c += 1
            if c >= 8:
                return g
        return None

    def epi2(key, addr, off):
        return [("V", lambda: I(f"v_cvt_pk_bf16_f32 v{acc[key]}, v{acc[key]}, v{acc[key]+1}")),
                ("V", lambda: I(f"v_cvt_pk_bf16_f32 v{acc[key]+1}, v{acc[key]+2}, v{acc[key]+3}")),
                ("d", lambda: e.lds(f"ds_write_b32 v{addr}, v{acc[key]} offset:{off}")),
                ("d", lambda: e.lds(f"ds_write_b32 v{addr}, v{acc[key]+1} offset:{off+4}"))]

    g = 0
    for st, last in ((0, y0last), (1, 23)):
        if st == 0:
            g = last_acc[(y0last, (0, 0, 0))] + opt["y0at"]
        if st == 1:
            g = place(g, [("V", lambda s=s: I(f"v_add_u32 v{vO[s]}, {6*OROW}, v{vO[s]}")) for s in range(3)])
        done = {m: (last_acc[(last, ("X", st))] if m == "X" else last_acc[(last, (m, st, 0))]) for m in order}
        ep = epi2 if (st == 0 and opt["dd"] >= 1) else epi_ops
        for m in sorted(order, key=lambda m: done[m]):
            if st == 1 and opt["dd"] >= 2:
                ep = epi2 if m in ("X", 0, 1, 2) else epi_ops
            if m == "X":
                g = place(max(g, after(done[m])), ep(("X", st), vOX, 2304 * st) + [flag(12 + st)])
                continue
            o3 = [ep((m, st, s), vO[s], m * OROW) for s in range(3)]
            g0 = after(done[m] + 2)
            if g0 is None or g >= N:
                have = (N - 1 - (done[m] + 2)) + sum(sum(1 for ch in cl[k] if ch != "W") for k in range(done[m] + 2, N + 1))
                if have < 8:
                    put(N, ("S", lambda n_=8 - have: I(f"s_nop {n_ - 1}")))
                for op in [o for t in o3 for o in t if o[0] == "V"] + [o for t in o3 for o in t if o[0] != "V"] + [flag(6 * st + m)]:
                    put(N, op)
                g = N
                continue
            g = max(g, after(done[m]))
            g = place(g, o3[0])
            g = place(max(g, after(done[m] + 1) or N), o3[1])
            g = place(max(g, g0), o3[2] + [flag(6 * st + m)])

    if opt["cst"] >= 0:
        for k in range(15):
            g = step_start[opt["cst"]] + k * opt["cev"]
            if g < N:
                fill[g].append(e.stamp)
    ckread(448, "rdy0")[1]()
    check1("rdy0")()
    check(448, 4, "rdy0")()
    e.stamp()
    for gi in range(4):
        vread(gi)[1]()
    started = set()
    for n, (gi, key, i, s) in enumerate(stream):
        step = groups[gi]["step"]
        kind, st, c = step_info(step)
        e.need([f"v{gi}", f"w{step}_{i}"])
        d = acc[key]
        cc = d
        if step in (0, 2) and key not in started:
            started.add(key)
            cc = acc[(5, st, s)]
        I(f"v_mfma_f32_16x16x32_bf16 {vr(d)}, {vr(W(step, i, s))}, {vr(VR + 4*(gi % 4))}, {vr(cc)}")
        for f in fill[n]:
            f()
    e.stamp()
    for f in fill[N]:
        f()
    e.stamp()
    e.dump_stamps("c")
    I("s_endpgm")
    return e.L + cold


xA, xB, xC, eA, eB, eC = 1, 2, 3, 4, 5, 6
wE = [7, 8, 9, 10]
wX = [11, 12]
TMP = 13
OB = 26
RAW = 58
RAWX = 178


def PD(p, j):
    return RAW + 40 * p + 4 * j


def PX(p, j):
    return RAWX + 24 * p + 4 * j


sEM = 100


def masked(e, on):
    if on:
        e.I(f"s_mov_b64 exec, s[{sEM}:{sEM+1}]")


def unmask(e, on):
    if on:
        e.I("s_mov_b64 exec, -1")


def xload(e, p, j):
    a, off = (xA, 0) if j == 0 else ((xC, 0) if j == 9 else (xB, (j - 1) * 384))
    m = e.opt["dedup"] and j >= 8
    masked(e, m)
    e.vmem(f"buffer_load_dwordx4 {vr(PD(p, j))}, v{a}, s[{sX}:{sX+3}], 0 offen offset:{off + 128*p} {e.opt['xf']}", f"x{p}_{j&1}")
    unmask(e, m)


def eload(e, p, j):
    a, off = (eA, 0) if j == 0 else ((eC, 0) if j == 5 else (eB, (j - 1) * 384))
    m = e.opt["dedup"] and j >= 4
    masked(e, m)
    e.vmem(f"buffer_load_dwordx4 {vr(PX(p, j))}, v{a}, s[{sX}:{sX+3}], 0 offen offset:{off + 128*p} {e.opt['xf']}", f"e{p}_{j&1}")
    unmask(e, m)


sW0, sW1, sW2, sW3 = 41, 42, 43, 44


def worker_pre(e, opt, part=3, cons=False):
    I = e.I
    t1, t2, t3 = 18, 19, 20
    eA, eB = (96, 97) if cons else (4, 5)
    sPW = sWAVE if cons else 55
    sRING = sPOLL if cons else 52
    if part & 1:
        if opt["w8"]:
            I(f"s_bfe_u32 s{sW0}, s2, {1 | (2 << 16)}")
            I(f"s_mul_i32 s{sW0}, s{sW0}, 7")
            I(f"s_add_u32 s{sW2}, s{sW0}, s{sIDX}")
            I(f"s_mul_i32 s{sW0}, s{sW2}, 43")
            I(f"s_lshr_b32 s{sW0}, s{sW0}, 7")
            I(f"s_mul_i32 s{sW3}, s{sW0}, 3")
            I(f"s_sub_u32 s{sW2}, s{sW2}, s{sW3}")
            I(f"s_lshl_b32 s{sW2}, s{sW2}, 1")
            if cons:
                I(f"s_add_u32 s{sW2}, s{sW2}, 1")
            I(f"s_cmp_lt_u32 s{sW0}, 9")
            I(f"s_cselect_b32 s{sCNT}, 0, s{sINV}")
        else:
            I(f"s_and_b32 s{sW0}, s2, 7")
            I(f"s_cmp_lt_u32 s{sIDX}, 6")
            I(f"s_cselect_b32 s{sW2}, s{sIDX}, s{sW0}")
            I(f"s_cselect_b32 s{sW0}, s{sW0}, 8")
            I(f"s_cmp_lt_u32 s{sW2}, 6")
            I(f"s_cselect_b32 s{sCNT}, 0, s{sINV}")
        I(f"s_mul_i32 s{sW1}, s{sW0}, 11")
        I(f"s_lshr_b32 s{sW1}, s{sW1}, 5")
        I(f"s_mul_i32 s{sW3}, s{sW1}, 3")
        I(f"s_sub_u32 s{sW0}, s{sW0}, s{sW3}")
        I(f"s_lshl_b32 s{sW0}, s{sW0}, 2")
        I(f"s_add_u32 s{sW0}, s{sW0}, s{sPW}")
        I(f"s_mul_i32 s{sOFF}, s{sW1}, {3*73728}")
        I(f"s_mul_i32 s{sOFF2}, s{sW2}, 12288")
        I(f"s_add_u32 s{sOFF}, s{sOFF}, s{sOFF2}")
        I(f"s_lshl_b32 s{sOFF2}, s{sW0}, 5")
        I(f"s_add_u32 s{sOFF}, s{sOFF}, s{sOFF2}")
        I(f"v_bfe_u32 v{t1}, v0, 3, 2")
        I(f"v_lshlrev_b32 v{t1}, 3, v{t1}")
        I(f"v_lshrrev_b32 v{t2}, 5, v0")
        I(f"v_lshl_add_u32 v{t1}, v{t2}, 2, v{t1}")
        I(f"v_bfe_u32 v{t2}, v0, 1, 2")
        I(f"v_add_u32 v{t1}, v{t1}, v{t2}")
        I(f"v_mul_u32_u24 v{t1}, 384, v{t1}")
        I(f"v_and_b32 v{t2}, 1, v0")
        I(f"v_lshl_add_u32 v{eA}, v{t2}, 4, v{t1}")
        I(f"s_mul_i32 s{sRING}, s{sPW}, 6144")
        I(f"s_add_u32 s{sRING}, s{sRING}, {PRE + (3072 if cons else 0)}")
        I(f"s_mov_b32 m0, s{sRING}")
    if not part & 2:
        return
    if part & 1:
        I("s_waitcnt lgkmcnt(0)")
    srd(e, sW, sKA + 2, WBYTES)
    nu = 2 if opt["w8"] == 1 else 1
    for k in range(3 * nu):
        e.vmem(f"buffer_load_dwordx4 v{eA}, s[{sW}:{sW+3}], s{sOFF} offen lds", f"pre{k // 3}")
        if k < 3 * nu - 1:
            I(f"s_add_u32 m0, s{sRING}, {1024*(k+1)}")
            if k == 2:
                I(f"s_sub_u32 s{sOFF}, s{sOFF}, {2*73728 - 12288}")
            else:
                I(f"s_add_u32 s{sOFF}, s{sOFF}, 73728")
    I(f"s_mul_i32 s{sOFF}, s{sW2}, 36864")
    I(f"s_mul_i32 s{sW0}, s{sW0}, 3")
    I(f"s_add_u32 s{sW0}, s{sW0}, s{sW1}")
    I(f"s_lshl_b32 s{sW0}, s{sW0}, 10")
    I(f"s_add_u32 s{sOFF}, s{sOFF}, s{sW0}")
    I(f"s_or_b32 s{sOFF}, s{sOFF}, s{sCNT}")
    I(f"v_lshl_add_u32 v{eB}, v0, 4, s{sOFF}")


def prepass(e, opt, un, G, U, eB, eC):
    I = e.I
    e.need(f"pre{un}")
    if opt["pst"] == 2 and un == 0:
        e.stamp()
    for j in range(3):
        for h in range(2):
            e.lds(f"ds_read_b64_tr_b16 {vr(G + 4*j + 2*h, 2)}, v{eC} offset:{3072*un + 1024*j + 512*h}", f"pt{j}")
    for j in (0, 2, 1):
        e.need(f"pt{j}")
        for k in range(4):
            I(f"v_lshlrev_b32 v{U + 8*j + 2*k}, 16, v{G + 4*j + k}")
            I(f"v_and_b32 v{U + 8*j + 2*k + 1}, s{sMASK}, v{G + 4*j + k}")
        if j == 2:
            for kk in range(8):
                I(f"v_add_f32 v{U+kk}, v{U+kk}, v{U+16+kk}")
    for kk in range(8):
        I(f"v_sub_f32_e64 v{U+16+kk}, v{U+kk}, v{U+8+kk} div:2")
        I(f"v_add_f32_e64 v{U+kk}, v{U+kk}, v{U+8+kk} div:2")
    for k in range(4):
        I(f"v_cvt_pk_bf16_f32 v{G+12+k}, v{U+2*k}, v{U+2*k+1}")
        I(f"v_cvt_pk_bf16_f32 v{G+16+k}, v{U+16+2*k}, v{U+16+2*k+1}")
    for pos, r in ((0, G + 12), (1, G + 16), (2, G), (3, G + 8)):
        I(f"s_mov_b32 s{sOFF}, {(pos*6 + un)*36864}")
        e.vmem(f"buffer_store_dwordx4 {vr(r)}, v{eB}, s[{sU}:{sU+3}], s{sOFF} offen sc1", "ust")


def producer_main(e, opt, loads=True, mid=None):
    I = e.I
    t0, t1, t2, t3 = 13, 14, 15, 16
    decode_main(e)
    I(f"v_and_b32 v{t0}, 3, v0")
    I(f"v_bfe_u32 v{t1}, v0, 2, 2")
    I(f"v_bfe_u32 v{t2}, v0, 4, 1")
    I(f"v_lshrrev_b32 v{wE[0]}, 5, v0")
    I(f"s_lshl_b32 s{sT0}, s{sPW}, 1")
    I(f"s_add_u32 s{sT0}, s{sT0}, s{sROW0}")
    I(f"s_mul_i32 s{sT0}, s{sT0}, 86016")
    I(f"s_mul_i32 s{sT1}, s{sSTRIP}, 12288")
    I(f"s_add_u32 s{sT0}, s{sT0}, s{sT1}")
    I(f"s_sub_u32 s{sT0}, s{sT0}, 86016")
    I(f"v_mul_u32_u24 v{t3}, 86016, v{t2}")
    I(f"v_lshl_add_u32 v{t3}, v{t0}, 4, v{t3}")
    I(f"v_lshl_add_u32 v{t3}, v{wE[0]}, 6, v{t3}")
    I(f"v_mul_u32_u24 v{xB}, 3072, v{t1}")
    I(f"v_add3_u32 v{xB}, v{xB}, v{t3}, s{sT0}")
    I(f"v_cmp_gt_i32 vcc, 0, v{xB}")
    I(f"v_lshl_add_u32 v{t3}, s{sSTRIP}, 2, v{t1}")
    I(f"v_mov_b32 v{xC}, s{sINV}")
    I(f"v_cndmask_b32 v{xB}, v{xB}, v{xC}, vcc")
    I(f"v_cmp_ne_u32 vcc, 0, v{t3}")
    I(f"v_subrev_u32 v{xA}, 384, v{xB}")
    I(f"v_add_u32 v{wE[1]}, 3072, v{xB}")
    I(f"v_cndmask_b32 v{xA}, v{xC}, v{xA}, vcc")
    I(f"v_cmp_ne_u32 vcc, 27, v{t3}")
    if opt["dedup"]:
        I(f"s_mov_b32 s{sEM}, 0xf000f000")
        I(f"s_mov_b32 s{sEM+1}, 0xf000f000")
    I("s_waitcnt lgkmcnt(0)")
    srd(e, sX, sKA, XBYTES)
    I(f"v_cndmask_b32 v{xC}, v{xC}, v{wE[1]}, vcc")
    if opt["d_st"] and loads:
        I(f"s_sleep {opt['d_st']}")
    if mid:
        mid()
    for j in (0, 2, 4, 6, 8) if loads else ():
        xload(e, 0, j)


def producer(parent, opt, kind):
    e = Em(opt, parent)
    I = e.I
    t0, t1, t2, t3, t4 = 13, 14, 15, 16, 17
    X = kind == "x"
    G = RAWX
    if kind == "w":
        if opt["wo"] == -1:
            for j in (1, 3, 5, 7, 9):
                xload(e, 0, j)
        if opt["wp1"]:
            I("s_barrier")
        srd(e, sU, sWS, UBYTES)
        I(f"v_lshrrev_b32 v{eC}, 2, v0")
        I(f"v_lshlrev_b32 v{eC}, 5, v{eC}")
        I(f"v_lshl_add_u32 v{eC}, v{t0}, 3, v{eC}")
        I(f"v_add_u32 v{eC}, s{sRING}, v{eC}")
        if opt["pst"] == 2:
            e.stamp()
        for un in range(2 if opt["w8"] == 1 else 1):
            prepass(e, opt, un, RAWX + 20 * un, RAWX + 40, eB, eC)
        if opt["wo"] == -2:
            for j in (0, 2, 4, 6, 8, 1, 3, 5, 7, 9):
                xload(e, 0, j)
        if opt["pst"]:
            e.stamp()
    if kind == "n" and opt["xo"] and opt["pro"] != "alpha":
        for j in (1, 3, 5, 7, 9):
            xload(e, 0, j)
    I(f"s_lshl_b32 s{sT0}, s{sPW}, 1")
    I(f"v_add_u32 v{t2}, s{sT0}, v{t2}")
    I(f"v_mul_u32_u24 v{wE[0]}, {VHALF}, v{wE[0]}")
    I(f"v_lshl_add_u32 v{wE[0]}, v{t2}, 10, v{wE[0]}")
    I(f"v_lshlrev_b32 v{t3}, 2, v{t1}")
    I(f"v_lshl_add_u32 v{t3}, v{t0}, 4, v{t3}")
    I(f"v_add_u32 v{t3}, v{t3}, v{t0}")
    I(f"v_lshl_add_u32 v{wE[0]}, v{t3}, 4, v{wE[0]}")
    for k in range(1, 4):
        I(f"v_xor_b32 v{wE[k]}, {16*k}, v{wE[0]}")
    decode_extra(e)
    srd(e, sO, sKA + 6, XBYTES)
    if X:
        if opt["dedup"]:
            I(f"v_bfe_u32 v{t1}, v0, 2, 3")
        else:
            I(f"v_bfe_u32 v{t1}, v0, 2, 1")
            I(f"v_lshlrev_b32 v{t1}, 1, v{t1}")
            I(f"v_bfe_u32 v{t2}, v0, 3, 1")
            I(f"v_bfe_u32 v{t3}, v0, 4, 1")
            I(f"v_lshlrev_b32 v{t3}, 2, v{t3}")
            I(f"v_or3_b32 v{t1}, v{t1}, v{t2}, v{t3}")
        I(f"s_add_u32 s{sT0}, s{sEROW}, s{sPW}")
        I(f"s_sub_u32 s{sT0}, s{sT0}, 1")
        I(f"s_mul_i32 s{sT1}, s{sT0}, 86016")
        I(f"s_cmp_lt_u32 s{sT0}, 224")
        I(f"s_cselect_b32 s{sT1}, s{sT1}, s{sINV}")
        I(f"s_lshl_b32 s{sT0}, s{sES}, 5")
        I(f"v_lshl_add_u32 v{t4}, v{t1}, 2, s{sT0}")
        I(f"v_mul_u32_u24 v{t2}, 384, v{t4}")
        I(f"v_lshl_add_u32 v{t2}, v{t0}, 4, v{t2}")
        I(f"v_lshrrev_b32 v{t3}, 5, v0")
        I(f"v_lshl_add_u32 v{t2}, v{t3}, 6, v{t2}")
        I(f"v_add_u32 v{eB}, s{sT1}, v{t2}")
        I(f"v_cmp_ne_u32 vcc, 0, v{t4}")
        I(f"v_subrev_u32 v{t2}, 384, v{eB}")
        I(f"v_mov_b32 v{eA}, s{sINV}")
        I(f"v_cndmask_b32 v{eA}, v{eA}, v{t2}, vcc")
        I(f"v_cmp_ne_u32 vcc, 220, v{t4}")
        I(f"v_add_u32 v{t2}, 1536, v{eB}")
        I(f"v_mov_b32 v{eC}, s{sINV}")
        I(f"v_cndmask_b32 v{eC}, v{eC}, v{t2}, vcc")
        for j in (0, 2, 4):
            eload(e, 0, j)
        if opt["pro"] != "alpha":
            if opt["xo"]:
                for j in (1, 3, 5, 7, 9):
                    xload(e, 0, j)
            for j in (1, 3, 5):
                eload(e, 0, j)
        I(f"v_lshlrev_b32 v{t1}, 1, v{t1}")
        I(f"v_xor_b32 v{t1}, v{t1}, v{t0}")
        I(f"v_lshl_add_u32 v{t1}, v{t0}, 4, v{t1}")
        I(f"v_lshlrev_b32 v{t1}, 4, v{t1}")
        I(f"v_mul_u32_u24 v{t3}, {VHALF}, v{t3}")
        I(f"s_add_u32 s{sT0}, s{sPW}, 8")
        I(f"s_lshl_b32 s{sT0}, s{sT0}, 10")
        I(f"v_add3_u32 v{wX[0]}, v{t1}, v{t3}, s{sT0}")
        I(f"v_xor_b32 v{wX[1]}, 16, v{wX[0]}")
    else:
        I(f"s_cmp_eq_u32 s{sPW}, 3")
        I(f"s_cselect_b32 s{sPEND}, 1, 0")
        if opt["rpf"] == 1:
            I(f"s_mul_i32 s{sT0}, s{sIDX}, {18*128}")
            I(f"v_min_u32 v253, 17, v0")
            I(f"v_lshl_add_u32 v253, v253, 7, s{sT0}")
        elif opt["rpf"] == 2:
            I(f"s_sub_u32 s{sT0}, s{sIDX}, 12")
            I(f"s_cmp_lt_u32 s{sIDX}, 7")
            I(f"s_cselect_b32 s{sT0}, s{sIDX}, s{sT0}")
            I(f"s_mul_i32 s{sT1}, s{sT0}, 13")
            I(f"s_lshr_b32 s{sT1}, s{sT1}, 6")
            I(f"s_mul_i32 s{sT2}, s{sT1}, 5")
            I(f"s_sub_u32 s{sL}, s{sT0}, s{sT2}")
            I(f"s_cmp_eq_u32 s{sHASX}, 0")
            I(f"s_cselect_b32 s{sL}, s{sL}, 9")
            I(f"s_cmp_eq_u32 s{sPW}, 3")
            I(f"s_cselect_b32 s{sL}, s{sL}, 9")
            I(f"s_mul_i32 s{sT1}, s{sT1}, {144*128}")
            I(f"v_min_u32 v253, 47, v0")
            I(f"v_lshl_add_u32 v253, v253, 7, s{sT1}")
        I(f"v_mov_b32 v250, {FLAGS + 15*16}")
        if kind == "n":
            srd(e, sU, sWS, UBYTES)
    I(f"v_mov_b32 v251, 1")
    I(f"v_mov_b32 v252, {FLAGS}")

    def pollflag(idx, lab, slp, r=16):
        e.label(lab)
        I(f"ds_read_b128 {vr(r)}, v252 offset:{idx*16}")
        I("s_waitcnt lgkmcnt(0)")
        e.lg = []
        I(f"v_and_b32 v{r}, v{r}, v{r+1}")
        I(f"v_and_b32 v{r+2}, v{r+2}, v{r+3}")
        I(f"v_and_b32 v{r}, v{r}, v{r+2}")
        I("s_nop 0")
        I(f"v_readfirstlane_b32 s{sT0}, v{r}")
        I(f"s_cmp_eq_u32 s{sT0}, 1")
        I(f"s_cbranch_scc1 {lab}_ok")
        if slp:
            I(f"s_sleep {slp}")
        I(f"s_branch {lab}")
        e.label(lab + "_ok")

    upf_from = [(3 if opt["order"] == 2 else opt["pollu"] + 1) + opt["rlead"]]
    upf_from[0] = max(upf_from[0], opt["nraw"] // 2)

    def upf(t, sfx=''):
        if X or not opt["rpf"]:
            return
        k, st, p = UNITS[t]
        base = ((st if k == "B" else 2 + st) * 6 + 2 * p) * 36864
        lab = f"L_UP{kind}{t}{sfx}"
        if opt["rpf"] == 1:
            I(f"s_cmp_eq_u32 s{sPW}, 3")
            I(f"s_cbranch_scc0 {lab}")
            I(f"s_mov_b32 s{sT1}, {base}")
            I(f"buffer_load_dword v254, v253, s[{sU}:{sU+3}], s{sT1} offen sc1")
        else:
            I(f"s_cmp_eq_u32 s{sL}, {t % 5}")
            I(f"s_cbranch_scc0 {lab}")
            for q in range(3):
                I(f"s_mov_b32 s{sT1}, {base + q*48*128}")
                I(f"buffer_load_dword v254, v253, s[{sU}:{sU+3}], s{sT1} offen sc1")
        e.label(lab)

    def waitfree(u, r=16):
        e.jit(20 + u)
        if u >= 3:
            pollflag(16 + u - 3, f"L_FR{kind}{u}", opt["psl"], r)
            if upf_from[0] <= u + opt["rlead"] <= 11:
                upf(u + opt["rlead"])

    def ready(u):
        e.jit(u)
        I("s_mov_b64 exec, 1")
        e.lds(f"ds_add_u32 v252, v251 offset:{448 + 4*u}")
        I("s_mov_b64 exec, -1")
        if not opt["pst"] or e.nst < 15:
            e.stamp()

    def xl(p, par):
        sl = opt["d_sl"] if p == 2 else 0
        for j in range(par, 10, 2):
            xload(e, p, j)
            if sl:
                I(f"s_sleep {sl if X else (sl * 8) // 5}")
        if X:
            for j in range(par, 6, 2):
                eload(e, p, j)
                if sl:
                    I(f"s_sleep {sl}")

    def parse(t):
        d = {}
        for item in t.split(","):
            when, what = item.split(":")
            d.setdefault(when, []).append((int(what[0]), 0 if what[1] == "e" else 1))
        return d
    xsX = parse(opt.get("xsx") or opt["xs"])
    xsN = parse(opt["xs"])
    xs = xsX if X else xsN
    seen = set()

    def xsched(when):
        if kind != "n":
            for p, par in xs.get(when, []):
                xl(p, par)
            return
        a, b = xsX.get(when, []), xsN.get(when, [])
        for it in a + [t for t in b if t not in a]:
            both = it in a and it in b
            if not both:
                lab = f"L_XS{when}_{it[0]}{it[1]}"
                I(f"s_cmp_eq_u32 s{sHASX}, {1 if it in a else 0}")
                I(f"s_cbranch_scc0 {lab}")
            keep = list(e.vm)
            xl(*it)
            if not both:
                e.label(lab)
                if it not in seen:
                    e.vm = keep
                seen.add(it)

    pend = []
    novalu = [False]
    pace = [0, 0]

    def xpace(per, nvalu):
        for p, par in xs.get(f"{per}p", []):
            pend.extend([lambda j=j, p=p: xload(e, p, j) for j in range(par, 10, 2)])
            if X:
                pend.extend([lambda j=j, p=p: eload(e, p, j) for j in range(par, 6, 2)])
        if pend:
            pace[0] = max(1, nvalu // len(pend))
            pace[1] = 0

    def V(s):
        if not (opt["d_nov"] and novalu[0]):
            I(s)
        pace[1] += 1
        if pend and pace[1] % pace[0] == 0:
            pend.pop(0)()

    def later(f):
        if not opt["wsp"]:
            return f()
        if not pend:
            pace[0], pace[1] = opt["wsp"], 0
        pend.append(f)

    def flush():
        while pend:
            pend.pop(0)()

    def unp(dst, src):
        V(f"v_lshlrev_b32 v{dst}, 16, v{src}")
        V(f"v_and_b32 v{dst+1}, s{sMASK}, v{src}")

    def vwrite(addr, src, u):
        if opt["d_now"] and u >= 2:
            return
        e.lds(f"ds_write_b128 v{addr}, {vr(src)} offset:{VS[u % 3]}")

    T16 = list(range(13, 26)) + [54, 55, 56]

    def chainA(D, n, par, neg, waddr, u, ob, wf=False):
        op = "v_subrev_f32" if neg else "v_sub_f32"
        A, B = T16[:8], T16[8:]

        def unp8(R, src):
            for k in range(4):
                V(f"v_lshlrev_b32 v{R[2*k]}, 16, v{src+k}")
                V(f"v_and_b32 v{R[2*k+1]}, s{sMASK}, v{src+k}")
        unp8(A, D(par))
        for j in range(n):
            unp8(B, D(par + 2 * j + 2))
            for k in range(8):
                V(f"{op} v{A[k]}, v{A[k]}, v{B[k]}")
            for k in range(4):
                V(f"v_cvt_pk_bf16_f32 v{ob + 4*(j & 1) + k}, v{A[2*k]}, v{A[2*k+1]}")
            if wf and j == 0:
                waitfree(u, 44)
            vwrite(waddr[j], ob + 4 * (j & 1), u)
            if kind == "w" and u == 1 and opt["wta"] == 10 + j:
                signal()
            if kind == "w" and u == 1 and opt["two"] == 10 + j:
                publish()
            A, B = B, A

    fixed = set()

    def needx(p, pars, ext):
        e.need([f"{'e' if ext else 'x'}{p}_{par}" for par in pars])
        for par in pars:
            if opt["dedup"] and (p, par, ext) not in fixed:
                fixed.add((p, par, ext))
                dst, src = (PX(p, 4 + par), PX(p, par)) if ext else (PD(p, 8 + par), PD(p, par))
                for k in range(4):
                    V(f"v_mov_b32_dpp v{dst+k}, v{src+k} row_shl:4 row_mask:0xf bank_mask:0x7")

    def tA(u, main=True, ext=True):
        kind_, st, p = UNITS[u]
        neg = (st == 1 and any(UNITS[t][0] == "B" for t in range(u)))
        if main:
            needx(p, [st], False)
            if opt["pst"] and u <= 1:
                e.stamp()
            chainA(lambda j: PD(p, j), 4, st, neg, wE, u, OB, True)
        if X and ext:
            needx(p, [st], True)
            chainA(lambda j: PX(p, j), 2, st, neg, wX, u, OB + 8)

    def pairB(d1, d2, o1, o2):
        for k0 in (0, 2):
            for k in (k0, k0 + 1):
                a = TMP + 6 * (k & 1)
                unp(a, d1 + k); unp(a + 2, d2 + k)
            for k in (k0, k0 + 1):
                a = TMP + 6 * (k & 1)
                b, s = a + 2, a + 4
                V(f"v_add_f32 v{s}, v{a}, v{b}"); V(f"v_add_f32 v{s+1}, v{a+1}, v{b+1}")
                V(f"v_sub_f32 v{a}, v{b}, v{a}"); V(f"v_sub_f32 v{a+1}, v{b+1}, v{a+1}")
            for k in (k0, k0 + 1):
                a = TMP + 6 * (k & 1)
                V(f"v_cvt_pk_bf16_f32 v{o1+k}, v{a+4}, v{a+5}")
                V(f"v_cvt_pk_bf16_f32 v{o2+k}, v{a}, v{a+1}")

    npoll = [0]

    def trypoll(final=False):
        if X:
            return
        n = npoll[0]
        npoll[0] += 1
        lab = f"L_PL{kind}{n}"
        I(f"s_cmp_eq_u32 s{sPEND}, 0")
        I(f"s_cbranch_scc1 {lab}_skip")
        if n == 0:
            if opt["pdel"]:
                I(f"s_sleep {opt['pdel']}")
            I(f"s_load_dword s{sPOLL}, s[{sDBG}:{sDBG+1}], {128 if opt['two'] else 0}")
            e.label(lab + "_skip")
            return
        I("s_waitcnt lgkmcnt(0)")
        tgt = 0 if opt["noatom"] else NW[0]
        if final:
            I(f"s_mov_b32 s{sCNT}, {n}")
            I(f"v_mov_b32 v255, 0")
            e.label(lab)
            I(f"s_cmp_ge_u32 s{sPOLL}, {tgt}")
            I(f"s_cbranch_scc1 {lab}_ok")
            I(f"s_sleep {opt['pslp']}")
            I(f"s_cmp_ge_u32 s{sCNT}, {2 if opt['two'] else 4}")
            I(f"s_cbranch_scc1 {lab}_v")
            I(f"s_lshl_b32 s{sT0}, s{sCNT}, 6")
            if opt["two"]:
                I(f"s_add_u32 s{sT0}, s{sT0}, 128")
            I(f"s_load_dword s{sPOLL}, s[{sDBG}:{sDBG+1}], s{sT0}")
            I(f"s_add_u32 s{sCNT}, s{sCNT}, 1")
            I("s_waitcnt lgkmcnt(0)")
            I(f"s_branch {lab}")
            e.label(lab + "_v")
            I(f"global_load_dword v254, v255, s[{sDBG}:{sDBG+1}] offset:{128 if opt['two'] else 0} sc1")
            I(f"s_add_u32 s{sCNT}, s{sCNT}, 1")
            I("s_waitcnt vmcnt(0)")
            I(f"v_readfirstlane_b32 s{sPOLL}, v254")
            I(f"s_cmp_lt_u32 s{sCNT}, 20000")
            I(f"s_cbranch_scc1 {lab}")
        else:
            I(f"s_cmp_ge_u32 s{sPOLL}, {tgt}")
            I(f"s_cbranch_scc1 {lab}_ok")
            I(f"s_load_dword s{sPOLL}, s[{sDBG}:{sDBG+1}], {64*n + (128 if opt['two'] else 0)}")
            I(f"s_branch {lab}_skip")
        e.label(lab + "_ok")
        if opt["pst"]:
            I(f"s_memrealtime s[{sST + 2*pslot[0]}:{sST + 2*pslot[0] + 1}]")
            I(f"s_mov_b32 s{sST + 2*pslot[0] + 2}, " + (f"s{sCNT}" if final else f"{n}"))
        I("ds_write_b32 v250, v251")
        I(f"s_mov_b32 s{sPEND}, 0")
        for t in range(opt["nraw"] // 2, upf_from[0]):
            upf(t, f"_{n}")
        e.label(lab + "_skip")

    pslot = [0]

    def wpoint():
        pollflag(31, f"L_WI{kind}", opt["psl"], 20)
        if opt["otlb"] == 2 or (opt["otlb"] == 1 and kind == "w"):
            I("s_mov_b64 exec, 1")
            e.vmem(f"buffer_load_dword v254, v{xB}, s[{sO}:{sO+3}], 0 offen")
            I("s_mov_b64 exec, -1")
        xsched("w")

    def tB1(u):
        p = UNITS[u][2]
        e.need([f"x{p}_0", f"x{p}_1"] + ([f"e{p}_0", f"e{p}_1"] if X else []))
        needx(p, [0], False)
        if X:
            needx(p, [0], True)
        for ee in range(4):
            pairB(PD(p, 1 + 2 * ee), PD(p, 2 + 2 * ee), OB + 4 * (ee & 1), OB + 8 + 4 * ee)
            if ee == 0:
                waitfree(u)
                xpace(u, 200 if X else 120)
            vwrite(wE[ee], OB + 4 * (ee & 1), u)
            if u == 2 and ee == opt["wat"]:
                wpoint()
            if u == 2 and ee >= opt["pat"]:
                if ee == opt["pat"] and opt["pst"] and not X:
                    pslot[0] = e.nst
                    e.nst += 2
                trypoll()
                if ee == 3:
                    trypoll(final=True)
        if X:
            e.need([f"e{p}_0", f"e{p}_1"])
            for ee in range(2):
                pairB(PX(p, 1 + 2 * ee), PX(p, 2 + 2 * ee), OB + 4 * ee, OB + 24 + 4 * ee)
                vwrite(wX[ee], OB + 4 * ee, u)
        flush()
        ready(u)

    def tB2(u):
        waitfree(u + 1)
        xsched(f"f{u}")
        for ee in range(4):
            vwrite(wE[ee], OB + 8 + 4 * ee, u + 1)
        if X:
            for ee in range(2):
                vwrite(wX[ee], OB + 24 + 4 * ee, u + 1)
        ready(u + 1)

    n1 = 1 if X else opt["n1"]

    def bar():
        e.drain_lg()
        if not opt["pst"] or e.nst < 15:
            e.stamp()
        I("s_barrier")

    def atom_mark():
        assert not e.vm
        e.vm.append("atom")

    def signal():
        e.jit(60)
        e.need("ust")
        if opt["pst"]:
            e.stamp()
        I(f"v_mov_b32 v{eA}, {FLAGS + 15*16 + 4}")
        I("s_mov_b64 exec, 1")
        I(f"ds_add_rtn_u32 v{eC}, v{eA}, v251")
        I("s_waitcnt lgkmcnt(0)")
        e.lg = []
        I(f"v_readfirstlane_b32 s{sT0}, v{eC}")
        if opt["w8"] == 2:
            I(f"s_mov_b32 s{sT0}, 0")
            I(f"s_cmp_eq_u32 s{sPW}, 3")
            I("s_cbranch_scc0 L_W8B")
            e.label("L_W8A")
            I(f"ds_read_b32 v{eC}, v{eA}")
            I("s_waitcnt lgkmcnt(0)")
            I(f"v_readfirstlane_b32 s{sT0}, v{eC}")
            I(f"s_cmp_eq_u32 s{sT0}, 8")
            I("s_cbranch_scc0 L_W8A")
            I(f"s_mov_b32 s{sT0}, 3")
            e.label("L_W8B")
        if opt["two"] == 3:
            I("s_mov_b64 exec, -1")
            I(f"s_cmp_eq_u32 s{sT0}, 3")
            I("s_cbranch_scc0 L_NOATOM")
            I(f"s_mov_b32 s{sT0}, 1")
            I(f"s_atomic_add s{sT0}, s[{sDBG}:{sDBG+1}], 0 glc")
            I("s_waitcnt lgkmcnt(0)")
            I(f"s_cmp_eq_u32 s{sT0}, {NW[0] - 1}")
            I("s_cbranch_scc0 L_NOATOM")
            I(f"s_mov_b32 s{sT0}, {NW[0]}")
            I(f"s_mov_b32 s{sT1}, {NW[0]}")
            I(f"s_atomic_add s{sT0}, s[{sDBG}:{sDBG+1}], 128 glc")
            I(f"s_atomic_add s{sT1}, s[{sDBG}:{sDBG+1}], 192 glc")
            I("s_waitcnt lgkmcnt(0)")
            e.label("L_NOATOM")
            return
        if opt["two"]:
            I(f"v_mov_b32 v{eC}, 0")
        I(f"s_cmp_eq_u32 s{sT0}, 3")
        I("s_cbranch_scc0 L_NOATOM")
        if opt["two"]:
            I(f"v_mov_b32 v{eA}, 0")
            I(f"v_mov_b32 v{eC}, 1")
            I(f"global_atomic_add v{eC}, v{eA}, v{eC}, s[{sDBG}:{sDBG+1}] sc0 sc1")
        else:
            I("s_mov_b64 exec, 15")
            I(f"v_lshlrev_b32 v{eA}, 6, v0")
            if not opt["noatom"]:
                I(f"global_atomic_add v{eA}, v251, s[{sDBG}:{sDBG+1}] sc1")
        e.label("L_NOATOM")
        I("s_mov_b64 exec, -1")
        atom_mark()

    def publish():
        if kind != "w" or not opt["two"]:
            return
        e.need("atom")
        I(f"v_readfirstlane_b32 s{sT0}, v{eC}")
        I(f"s_cmp_eq_u32 s{sT0}, {NW[0] - 1}")
        I("s_cbranch_scc0 L_NOPUB")
        I("s_mov_b64 exec, 3")
        I(f"v_lshlrev_b32 v{eA}, 6, v0")
        I(f"v_mov_b32 v{eC}, {NW[0]}")
        I(f"global_store_dword v{eA}, v{eC}, s[{sDBG}:{sDBG+1}] offset:128 sc1")
        I("s_mov_b64 exec, -1")
        e.label("L_NOPUB")

    if opt["otlb"] == 1 and kind != "w":
        I("s_mov_b64 exec, 1")
        e.vmem(f"buffer_load_dword v254, v{xB}, s[{sO}:{sO+3}], 0 offen")
        I("s_mov_b64 exec, -1")
    if kind == "w" and opt["wo"] == 0:
        xl(0, 1)
    e.drain_lg()
    e.stamp()
    if not (kind == "w" and opt["wp1"]):
        I("s_barrier")
    if opt["pro"] == "alpha":
        I("s_barrier")
        if kind != "w" and opt["aord"] == 0:
            xl(0, 1)
    if kind == "w" and opt["wta"] == 0:
        signal()
        if opt["two"] == 1:
            publish()
        if opt["wo"] > 0:
            xl(0, 1)
    tA(0)
    ready(0)
    if opt["two"] == 2:
        publish()
    if kind == "w" and opt["wta"] == 1:
        signal()
        if opt["two"] == 1:
            publish()
        if opt["wo"] > 0:
            xl(0, 1)
    if opt["pro"] == "alpha" and kind != "w" and opt["aord"] == 1:
        xl(0, 1)
    xsched("a0")
    tA(1)
    ready(1)
    if kind == "w" and opt["wta"] == 2:
        signal()
    xsched("a1")
    novalu[0] = True
    for u in range(2, 12):
        k, st, p = UNITS[u]
        if k == "A":
            if u == 2:
                wpoint()
            tA(u)
            ready(u)
            if u == opt["pollu"]:
                trypoll()
                trypoll(final=True)
            xsched(f"a{u}")
        elif st == 0:
            tB1(u)
            xsched(f"j{u}")
            tB2(u)
            xsched(f"k{u}")
    if True:
        if True:
            rA, rB, gA, gB, vXL, vXG = 1, 2, 3, 4, 5, 6
            I(f"s_mul_i32 s{sT0}, s{sROW0}, 86016")
            I(f"s_mul_i32 s{sT1}, s{sSTRIP}, 12288")
            I(f"s_add_u32 s{sT0}, s{sT0}, s{sT1}")
            I(f"s_mul_i32 s{sT1}, s{sPW}, 3072")
            I(f"s_add_u32 s{sT0}, s{sT0}, s{sT1}")
            I(f"s_mul_i32 s{sT1}, s{sPW}, 1600")
            I(f"s_add_u32 s{sT1}, s{sT1}, {OUT}")
            for j in range(3 if opt["st2"] else 0):
                I(f"v_add_u32 v{t0}, {64*j}, v0")
                I(f"v_mul_u32_u24 v{t1}, 1366, v{t0}")
                I(f"v_lshrrev_b32 v{t1}, 16, v{t1}")
                I(f"v_mul_u32_u24 v{t2}, 48, v{t1}")
                I(f"v_sub_u32 v{t2}, v{t0}, v{t2}")
                I(f"v_lshlrev_b32 v{t2}, 3, v{t2}")
                I(f"v_mul_u32_u24 v{t3}, 400, v{t1}")
                I(f"v_add3_u32 v{7+j}, v{t3}, v{t2}, s{sT1}")
                I(f"v_mul_u32_u24 v{t3}, 768, v{t1}")
                I(f"v_add3_u32 v{10+j}, v{t3}, v{t2}, s{sT0}")
                I(f"v_add_u32 v{20+j}, {6*OROW}, v{7+j}")
            for (r, gg, add) in ((rA, gA, 0), (rB, gB, 64)):
                I(f"v_add_u32 v{t0}, {add}, v0")
                I(f"v_min_u32 v{t0}, 95, v{t0}")
                I(f"v_mul_u32_u24 v{t1}, 10923, v{t0}")
                I(f"v_lshrrev_b32 v{t1}, 18, v{t1}")
                I(f"v_mul_u32_u24 v{t2}, 24, v{t1}")
                I(f"v_sub_u32 v{t2}, v{t0}, v{t2}")
                I(f"v_lshlrev_b32 v{t2}, 4, v{t2}")
                I(f"v_mul_u32_u24 v{t3}, 400, v{t1}")
                I(f"v_add3_u32 v{r}, v{t3}, v{t2}, s{sT1}")
                I(f"v_mul_u32_u24 v{t3}, 768, v{t1}")
                I(f"v_add3_u32 v{gg}, v{t3}, v{t2}, s{sT0}")
            I(f"v_cmp_gt_u32 vcc, 32, v0")
            I(f"v_mov_b32 v{t4}, s{sINV}")
            I(f"v_add_u32 v250, {6*OROW}, v{rA}")
            I(f"v_cndmask_b32 v{gB}, v{t4}, v{gB}, vcc")
            I(f"v_add_u32 v251, {6*OROW}, v{rB}")
            I(f"s_lshl_b32 s{sT0}, s{sPW}, 2")
            I(f"v_bfe_u32 v{t0}, v0, 3, 2")
            I(f"v_add_u32 v{t0}, s{sT0}, v{t0}")
            I(f"v_and_b32 v{t1}, 7, v0")
            I(f"v_mul_u32_u24 v{t2}, 144, v{t0}")
            I(f"v_lshl_add_u32 v{t2}, v{t1}, 4, v{t2}")
            I(f"v_add_u32 v{vXL}, {XST}, v{t2}")
            I(f"v_mul_u32_u24 v{t0}, 768, v{t0}")
            I(f"v_lshrrev_b32 v{t2}, 1, v{t1}")
            I(f"v_mul_u32_u24 v{t2}, 96, v{t2}")
            I(f"v_and_b32 v{t1}, 1, v{t1}")
            I(f"v_lshl_add_u32 v{t2}, v{t1}, 4, v{t2}")
            I(f"s_mul_i32 s{sT0}, s{sEROW}, 86016")
            I(f"s_mul_i32 s{sT1}, s{sES}, 12288")
            I(f"s_add_u32 s{sT0}, s{sT0}, s{sT1}")
            I(f"s_lshl_b32 s{sT1}, s{sF0}, 5")
            I(f"s_add_u32 s{sT0}, s{sT0}, s{sT1}")
            I(f"v_add3_u32 v{vXG}, v{t0}, v{t2}, s{sT0}")
            I(f"v_cndmask_b32 v{vXG}, v{t4}, v{vXG}, vcc")
    rA, rB, gA, gB, vXL, vXG = 1, 2, 3, 4, 5, 6
    sf = opt["sf"]
    nb = [0]

    def rowread(st, m, b):
        e.jit(40 + m + 6 * st)
        if opt["st2"]:
            for j in range(3):
                I(f"ds_read_b64 {vr(b + 2*j, 2)}, v{(7 if st == 0 else 20) + j} offset:{m*OROW}")
            return
        a0, a1 = (rA, rB) if st == 0 else (250, 251)
        I(f"ds_read_b128 {vr(b)}, v{a0} offset:{m*OROW}")
        I(f"ds_read_b128 {vr(b+4)}, v{a1} offset:{m*OROW}")

    def rowstore(st, m, b, w0=None, w1=None):
        sf = opt["sfl"] if st == 1 and m >= 6 - opt["nlast"] else opt["sf"]
        I(f"s_mov_b32 s{sOFF}, {m*86016}")
        if opt["st2"]:
            for j in range(3):
                if w0: I(f"s_waitcnt lgkmcnt({2-j})")
                I(f"buffer_store_dwordx2 {vr(b + 2*j, 2)}, v{10+j}, s[{sO}:{sO+3}], s{sOFF} offen offset:{384*st} {sf}")
            return
        if w0: I(w0)
        I(f"buffer_store_dwordx4 {vr(b)}, v{gA}, s[{sO}:{sO+3}], s{sOFF} offen offset:{384*st} {sf}")
        if w1: I(w1)
        I(f"buffer_store_dwordx4 {vr(b+4)}, v{gB}, s[{sO}:{sO+3}], s{sOFF} offen offset:{384*st} {sf}")

    def xpart(st, b):
        if kind == "w":
            return
        if kind == "n":
            I(f"s_cmp_eq_u32 s{sHASX}, 0")
            I(f"s_cbranch_scc1 L_NOX{st}")
        pollflag(12 + st, f"L_F{kind}X{st}", opt["slp"])
        I(f"ds_read_b128 {vr(b)}, v{vXL} offset:{2304*st}")
        I("s_waitcnt lgkmcnt(0)")
        I(f"buffer_store_dwordx4 {vr(b)}, v{vXG}, s[{sO}:{sO+3}], 0 offen offset:{384*st}")
        if kind == "n":
            e.label(f"L_NOX{st}")

    batches = [(14, range(6))]
    if opt["ego"]:
        a_, b_ = int(str(opt["ego"])[1]), int(str(opt["ego"])[2])
        batches = [(25, tuple(range(a_))), (26, tuple(range(a_, a_ + b_))), (14, tuple(range(a_ + b_, 6)))]
        batches = [t for t in batches if t[1] or t[0] == 14]
    for k_, rows in batches:
        if rows:
            pollflag(rows[-1], f"L_F{kind}0_{rows[-1]}", opt["psl"])
        for m in rows:
            rowread(0, m, 28 + 8 * m)
        pollflag(k_, f"L_F{kind}GO{k_}", opt["slp"])
        if k_ == 14 and not opt["pst"]:
            e.stamp()
        for m in rows:
            rowstore(0, m, 28 + 8 * m)
    xpart(0, 76)
    for m in [0, 1, "X", 2, 3, 4, 5]:
        if m == "X":
            xpart(1, 80)
            continue
        b = 84 + 8 * m
        pollflag(6 + m, f"L_F{kind}1_{m}", opt["slp"] if m < 4 else opt["slpl"])
        if m in (0, 5) and not opt["pst"]:
            e.stamp()
        rowread(1, m, b)
        rowstore(1, m, b, "s_waitcnt lgkmcnt(1)", "s_waitcnt lgkmcnt(0)")
    e.stamp()
    if opt["stamp"]:
        I("s_waitcnt vmcnt(0)")
        e.stamp()
    e.dump_stamps("p")
    I("s_endpgm")
    return e.L


def generate(**kw):
    opt = dict(DEF)
    opt.update(kw)
    opt["code_pf_lines"] = 20
    UNITS[:] = ORDERS[opt["order"]]
    NW[0] = 28 if opt["w8"] else 56
    assert not opt["wp1"]
    L = []
    L.append(f"; @launch grid=(256,1,1) block=(512,1,1) lds={LDS_BYTES}")
    for t in HEADER.strip("\n").split("\n"):
        L.append(("; " + t).rstrip())
    L.append('.amdgcn_target "amdgcn-amd-amdhsa--gfx950"')
    L.append(".text")
    L.append(f".globl {KNAME}")
    L.append(".p2align 8")
    L.append(f".type {KNAME},@function")
    L.append(f"{KNAME}:")
    e = Em(opt)
    I = e.I
    e.stamp()
    I(f"s_load_dwordx8 s[{sKA}:{sKA+7}], s[0:1], 0")
    I(f"s_load_dwordx4 s[{sDBG}:{sDBG+3}], s[0:1], 32")
    I("v_lshrrev_b32 v1, 6, v0")
    I("s_cmp_ge_u32 s2, 256")
    I("s_cbranch_scc1 L_END")
    I(f"v_readfirstlane_b32 s{sWAVE}, v1")
    I("v_and_b32 v0, 63, v0")
    if opt["epf"]:
        R = opt["epf"]
        I(f"s_getpc_b64 s[{sPC}:{sPC+1}]")
        I(f"s_bfe_u32 s{sT0}, s2, {3 | ((R.bit_length() - 1) << 16)}")
        I(f"v_min_u32 v2, {24 // R - 1}, v0")
        I(f"v_lshl_add_u32 v2, v2, {R.bit_length() - 1}, s{sT0}")
        I(f"v_mul_u32_u24 v1, {CS}, v1")
        I(f"v_lshl_add_u32 v2, v2, 7, v1")
        I(f"v_min_u32 v2, L_END-{KNAME}-256, v2")
        e.vmem(f"global_load_dword v255, v2, s[{sPC}:{sPC+1}]", "epf")
    I(f"s_mov_b32 s{sMASK}, 0xffff0000")
    I(f"s_mov_b32 s{sINV}, 0x80000000")
    I(f"s_lshr_b32 s{sIDX}, s2, 3")
    if opt["par"]:
        I(f"s_and_b32 s{sHASX}, s2, 1")
        I(f"s_xor_b32 s{sHASX}, s{sHASX}, {1 if opt['par'] == 1 else 0}")
        I(f"s_cmp_ge_u32 s{sIDX}, 8")
        I(f"s_cselect_b32 s{sHASX}, s{sHASX}, 0")
    else:
        I(f"s_sub_u32 s{sT0}, s{sIDX}, 7")
        I(f"s_cmp_lt_u32 s{sT0}, 12")
        I(f"s_cselect_b32 s{sHASX}, 1, 0")
    if opt["w8"] == 2:
        I(f"s_and_b32 s{sT0}, s2, 1")
        I(f"s_lshl_b32 s{sT0}, s{sT0}, 5")
        I(f"s_or_b32 s{sT0}, s{sT0}, s{sIDX}")
        I(f"s_cmp_lt_u32 s{sT0}, 7")
        I(f"s_cselect_b32 s{sL}, 1, 0")
    I(f"s_cmp_lt_u32 s{sWAVE}, 4")
    I("s_cbranch_scc1 L_CONS")
    I(f"s_sub_u32 s{sPW}, s{sWAVE}, 4")
    if opt["w8"] == 2:
        I(f"s_cmp_eq_u32 s{sL}, 1")
    elif opt["w8"]:
        I(f"s_and_b32 s{sT0}, s2, 1")
        I(f"s_lshl_b32 s{sT0}, s{sT0}, 5")
        I(f"s_or_b32 s{sT0}, s{sT0}, s{sIDX}")
        I(f"s_cmp_lt_u32 s{sT0}, 7")
    else:
        I(f"s_cmp_lt_u32 s{sIDX}, 7")
    if opt["wnear"] == 3:
        I(f"s_cselect_b32 s{sL}, 1, 0")
        L += e.L
        ep = Em(opt, e)
        worker_pre(ep, opt, 1)
        box = []

        def mid():
            ep.I(f"s_cmp_eq_u32 s{sL}, 0")
            ep.I("s_cbranch_scc1 L_PMAIN")
            w = Em(opt, ep)
            worker_pre(w, opt, 2)
            ep.L += w.L + ["    s_branch L_PW", "L_PMAIN:"]
            w.L = []
            if opt["wo"] != -2:
                for j in (0, 2, 4, 6, 8):
                    xload(w, 0, j)
            box.append(w)
        producer_main(ep, opt, mid=mid)
        epw = box[0]
    else:
        I({0: "s_cbranch_scc1 L_PW", 1: "s_cbranch_scc0 L_PMAIN", 2: "s_cbranch_scc1 L_WPRE"}[opt["wnear"]])
        L += e.L
        epw = Em(opt, e)
        worker_pre(epw, opt)
        wpre = []
        if opt["wnear"]:
            wpre, epw.L = epw.L + ["    s_branch L_PW"], []
        if opt["wnear"] == 1:
            L += wpre + ["L_PMAIN:"]
        producer_main(epw, opt, loads=opt["wo"] != -2)
        ep = Em(opt, e)
        producer_main(ep, opt)
    if not opt["xo"]:
        for j in (1, 3, 5, 7, 9):
            xload(ep, 0, j)
    ep.I(f"s_cmp_eq_u32 s{sHASX}, 0")
    ep.I("s_cbranch_scc1 L_PN")
    ep.I(f"s_cmp_eq_u32 s{sPW}, 3")
    ep.I("s_cbranch_scc1 L_PN")
    L += ep.L
    if opt["wnear"] == 2:
        L += ["    s_branch L_PX", "L_WPRE:"] + wpre + ["L_PX:"]
    L += producer(ep, opt, "x")
    L.append(f".org {KNAME} + {1 * CS}, 0" if opt["epf"] else ".p2align 6")
    L.append("L_PN:")
    L += producer(ep, opt, "n")
    L.append(f".org {KNAME} + {2 * CS}, 0" if opt["epf"] else ".p2align 6")
    L.append("L_PW:")
    L += epw.L
    L += producer(epw, opt, "w")
    L.append(f".org {KNAME} + {3 * CS}, 0" if opt["epf"] else ".p2align 6")
    L.append("L_CONS:")
    ec = Em(opt, e)
    consumer_pro(ec, opt)
    L += ec.L
    L += consumer(ec, opt, True)
    L.append(f".org {KNAME} + {5 * CS}, 0" if opt["epf"] else ".p2align 6")
    L.append("L_CN:")
    L += consumer(ec, opt, False)
    L.append("L_END:")
    L.append("    s_endpgm")
    L.append('.section .rodata,"a"')
    L.append(".p2align 6")
    L.append(f".amdhsa_kernel {KNAME}")
    for d in ("next_free_vgpr 256", "next_free_sgpr 102", "accum_offset 256", "group_segment_fixed_size 0",
              "kernarg_size 48", "user_sgpr_count 2", "user_sgpr_kernarg_segment_ptr 1",
              "system_sgpr_workgroup_id_x 1", "ieee_mode 0", "float_denorm_mode_32 1"):
        L.append("  .amdhsa_" + d)
    L.append(".end_amdhsa_kernel")
    return "\n".join(L) + "\n"


if __name__ == "__main__":
    out = sys.argv[1]
    kw = {}
    for a in sys.argv[2:]:
        k, v = a.split("=", 1)
        try:
            kw[k] = int(v)
        except ValueError:
            try:
                kw[k] = float(v)
            except ValueError:
                kw[k] = v.replace("+", " ")
    open(out, "w").write(generate(**kw))
```

```python
import sys, os
sys.path.insert(0, os.path.dirname(os.path.abspath(__file__)))
from cost import gapcost

KNAME = "standalone__standard_2d_1d_3d_conv__vision_kernel"

HEADER = """
3x3 same-padding convolution + bias, NHWC bf16, 224x224x192 -> 192 (kernarg: x, w, b, out, debug, ws).
Written out by the author's generator script (gen/gen7.py); no compiler output.

Method: exact Winograd F(2,3) along W. For an output pixel pair (y0, y1) and inputs d0..d3 of one row:
  V0=d0-d2  V1=d1+d2  V2=d2-d1  V3=d1-d3      U0=g0  U1=(g0+g1+g2)/2  U2=(g0-g1+g2)/2  U3=g2
  m_p = sum over (kernel row i, channel) of V_p * U_p ;  y0 = m0+m1+m2+b ,  y1 = m1-m2-m3+b
V and U are formed in fp32 and rounded once to bf16; all sums are fp32 MFMA accumulations.
Two accumulator sets are enough: m0/m3 ("A" units) add in the (y0, y1) basis, m1/m2 ("B" units) in the
((y0+y1)/2, (y0-y1)/2) basis; one butterfly switches basis each way (unit order A A | B x6 | A x4).

One workgroup per CU: 6 rows x 32 pixels x 192 channels; 96 workgroups also take one third of the
channels of one of the 32 rows left over. Waves 0-3: v_mfma_f32_16x16x32_bf16, 48 channels each; a V row
fragment is used for the three kernel rows. Waves 4-7: load x, form V into a 3-slot LDS ring, and at the
end move the staged bf16 output from LDS to memory in whole lines. The waves meet through LDS flags.
Weights: the first two units transpose raw w through LDS (ds_read_b64_tr_b16); meanwhile 56 workgroups
write U in fragment order to ws (write-through), count themselves in debug[0], and the last one raises
debug[32]/[48]; each workgroup looks at that word before its first read of U. Single-dword loads whose
result is not used only bring code or weight lines into L2. Sleeps occur only inside wait loops.
"""

DEF = dict(
    stamp=0, spin=4000, spinref=0, cst=-1, cev=8, pst=0,
    xf="", sf="nt", uf="sc1",
    code_pf=1, w_pf=1,
    prio=0, slp=1,
    pro="beta",
    xs="w:1e,w:1o,4p:2e,k4:2o",
    dsp=4.5,
    ustep=3, ulead=12,
    lag=-1,
    go=23,
    noatom=0, u_pf=0, pollp=1, pollat=-2, n1=1, y0at=0, gam=0, psl=2, epf=2, xo=1, w1late=0, otlb=0, aord=0, rsh=0, dd=0, wta=0, d_xcc=0, d_jit=0, d_st=0, four=0, d_skew=0, p1x=0, xon=5, par=0, wnear=0, w8=0, dedup=0, two=2, d_sl=0, ego=0, st2=1, wp1=0, pdel=0, nraw=4, pollu=2, pslp=8, trd=9, d_now=0, d_nov=0, d_nou=0, sfl='sc1', nlast=0, slpl=0, ustep0=5, order=2, wat=1, pat=3, rpf=1, rlead=0, wsp=10, pollw=0, w2pre=0, tr1at=4, wo=2, ulead0=0,
)

VSLOT = 22528
VHALF = 11264
VS = [0, VSLOT, 2 * VSLOT]
FLAGS = 3 * VSLOT
WRING = FLAGS + 512
WWAVE = 18432
OROW = 6400
OUT = WRING
XST = OUT + 12 * OROW
PRE = VS[1]
LDS_BYTES = XST + 4608
NW = [56]
CS = 12800

XBYTES = 224 * 224 * 384
WBYTES = 9 * 192 * 384
UBYTES = 24 * 36864

ORDERS = {
    2: [("A", 0, 0), ("A", 1, 0),
        ("B", 0, 0), ("B", 1, 0), ("B", 0, 1), ("B", 1, 1), ("B", 0, 2), ("B", 1, 2),
        ("A", 0, 1), ("A", 0, 2), ("A", 1, 1), ("A", 1, 2)],
    3: [("A", 0, 0), ("A", 1, 0), ("A", 0, 1),
        ("B", 0, 0), ("B", 1, 0), ("B", 0, 1), ("B", 1, 1), ("B", 0, 2), ("B", 1, 2),
        ("A", 0, 2), ("A", 1, 1), ("A", 1, 2)],
    1: [("A", 0, 0), ("A", 1, 0), ("A", 0, 1), ("A", 1, 1),
        ("B", 0, 0), ("B", 1, 0), ("B", 0, 1), ("B", 1, 1), ("B", 0, 2), ("B", 1, 2),
        ("A", 0, 2), ("A", 1, 2)],
}
UNITS = list(ORDERS[2])


def step_info(s):
    kind, st, pair = UNITS[s >> 1]
    return kind, st, 2 * pair + (s & 1)


sX, sW, sO, sU, sB = 4, 8, 12, 16, 20
sDBG, sWS, sKA = 24, 26, 28
sWAVE, sL, sSTRIP, sROW0, sHASX, sES, sEROW = 36, 37, 38, 39, 40, 41, 42
sF0, sF1, sF2, sIDX = 43, 44, 45, 46
sT0, sT1, sT2, sT3 = 47, 48, 49, 50
sMASK, sRING, sOFF, sOFF2, sPW = 51, 52, 53, 54, 55
sPC, sCNT, sINV = 56, 58, 59
sPOLL, sPEND = 3, 56
sST = 60


NSPIN = [0]


class Em:
    def __init__(self, opt, parent=None):
        self.L = []
        self.lg = list(parent.lg) if parent else []
        self.vm = list(parent.vm) if parent else []
        self.opt = opt
        self.nst = parent.nst if parent else 0

    def I(self, s):
        self.L.append("    " + s)

    def label(self, s):
        self.L.append(s + ":")

    def lds(self, s, name=None):
        self.I(s)
        self.lg.append(name)

    def vmem(self, s, name=None):
        self.I(s)
        self.vm.append(name)

    def need(self, names):
        if isinstance(names, str):
            names = [names]
        w = []
        k = max([i for i, n in enumerate(self.vm) if n in names], default=-1)
        if k >= 0:
            n = min(len(self.vm) - 1 - k, 63)
            w.append(f"vmcnt({n})")
            self.vm = self.vm[len(self.vm) - n:] if n else []
        k = max([i for i, n in enumerate(self.lg) if n in names], default=-1)
        if k >= 0:
            n = min(len(self.lg) - 1 - k, 15)
            w.append(f"lgkmcnt({n})")
            self.lg = self.lg[len(self.lg) - n:] if n else []
        if w:
            self.I("s_waitcnt " + " ".join(w))

    def drain_lg(self):
        self.I("s_waitcnt lgkmcnt(0)")
        self.lg = []

    def drain_vm(self):
        self.I("s_waitcnt vmcnt(0)")
        self.vm = []

    def stamp(self):
        o = self.opt
        if o["stamp"] == 4 and self.nst != o["spinref"]:
            self.nst += 1
        elif o["stamp"]:
            r = sST + 2 * self.nst
            assert r + 1 < 100, "too many stamps"
            self.I(f"s_memrealtime s[{r}:{r+1}]" if o["stamp"] in (1, 4) else f"s_memtime s[{r}:{r+1}]")
            self.nst += 1

    def jit(self, k):
        if not self.opt["d_jit"]:
            return
        NSPIN[0] += 1
        n = NSPIN[0]
        self.I(f"s_mul_i32 s98, s2, {7 + 2*k}")
        self.I(f"s_mul_i32 s99, s{sWAVE}, {5 + 6*k}")
        self.I("s_add_u32 s98, s98, s99")
        self.I(f"s_add_u32 s98, s98, {self.opt['d_jit'] * 3 + k}")
        self.I("s_and_b32 s98, s98, 7")
        self.I("s_cmp_lt_u32 s98, 5")
        self.I(f"s_cbranch_scc1 L_JIT{n}")
        self.I(f"s_sleep {20 + 9*(k % 5)}")
        self.label(f"L_JIT{n}")

    def dump_stamps(self, role):
        o = self.opt
        if not o["stamp"]:
            return
        self.I("s_waitcnt vmcnt(0) lgkmcnt(0)")
        if o["stamp"] == 4:
            if o["spinref"] and role != "c":
                return
            NSPIN[0] += 1
            lab = f"L_SPIN{NSPIN[0]}"
            self.label(lab)
            self.I(f"s_memrealtime s[{sT1}:{sT1+1}]")
            self.I("s_waitcnt lgkmcnt(0)")
            self.I(f"s_sub_u32 s{sT0}, s{sT1}, s{sST + 2*o['spinref']}")
            if o["d_xcc"] == 2:
                self.I(f"s_getreg_b32 s{sT3}, hwreg(HW_REG_XCC_ID)")
                self.I(f"s_and_b32 s{sT3}, s{sT3}, 15")
                self.I(f"s_mul_i32 s{sT3}, s{sT3}, 300")
                self.I(f"s_add_u32 s{sT3}, s{sT3}, {o['spin']}")
                self.I(f"s_cmp_eq_u32 s2, 0")
                self.I(f"s_cselect_b32 s{sT3}, s{sT3}, 0")
                self.I(f"s_cmp_lt_u32 s{sT0}, s{sT3}")
            else:
                self.I(f"s_cmp_lt_u32 s{sT0}, {o['spin']}")
            self.I(f"s_cbranch_scc1 {lab}")
            return
        self.I(f"s_lshl_b32 s{sT0}, s2, 3")
        self.I(f"s_add_u32 s{sT0}, s{sT0}, s{sWAVE}")
        self.I(f"s_lshl_b32 s{sT0}, s{sT0}, 8")
        self.I(f"s_add_u32 s{sT0}, s{sT0}, 0x100000")
        self.I(f"v_mov_b32 v1, s{sT0}")
        for i in range(self.nst):
            self.I(f"v_mov_b32 v2, s{sST + 2*i}")
            self.I(f"global_store_dword v1, v2, s[{sWS}:{sWS+1}] offset:{4*i}")
        self.I(f"v_mov_b32 v2, {self.nst}")
        self.I(f"global_store_dword v1, v2, s[{sWS}:{sWS+1}] offset:252")
        self.I(f"s_getreg_b32 s{sT0}, hwreg(HW_REG_XCC_ID)")
        self.I(f"v_mov_b32 v2, s{sT0}")
        self.I(f"global_store_dword v1, v2, s[{sWS}:{sWS+1}] offset:248")


def vr(a, n=4):
    return f"v[{a}:{a+n-1}]"


def srd(e, s, lo, nbytes, bias=0):
    if bias:
        e.I(f"s_sub_u32 s{s}, s{lo}, {bias}")
        e.I(f"s_subb_u32 s{s+1}, s{lo+1}, 0")
    else:
        e.I(f"s_mov_b32 s{s}, s{lo}")
        e.I(f"s_mov_b32 s{s+1}, s{lo+1}")
    e.I(f"s_mov_b32 s{s+2}, {nbytes + bias}")
    e.I(f"s_mov_b32 s{s+3}, 0x20000")


def decode_main(e):
    I = e.I
    I(f"s_and_b32 s{sT0}, s2, 7")
    I(f"s_lshl_b32 s{sT0}, s{sT0}, 5")
    I(f"s_add_u32 s{sT0}, s{sT0}, s{sIDX}")
    I(f"s_mul_i32 s{sT0}, s{sT0}, 7")
    I(f"s_lshr_b32 s{sSTRIP}, s{sT0}, 8")
    I(f"s_and_b32 s{sT0}, s{sT0}, 255")
    I(f"s_mul_i32 s{sT0}, s{sT0}, 293")
    I(f"s_lshr_b32 s{sT0}, s{sT0}, 11")
    I(f"s_mul_i32 s{sROW0}, s{sT0}, 6")


def decode_extra(e):
    I = e.I
    if e.opt["par"]:
        I(f"s_bfe_u32 s{sT0}, s2, {1 | (2 << 16)}")
        I(f"s_mul_i32 s{sT0}, s{sT0}, 24")
        I(f"s_add_u32 s{sT0}, s{sT0}, s{sIDX}")
        I(f"s_sub_u32 s{sT0}, s{sT0}, 8")
    else:
        I(f"s_and_b32 s{sT0}, s2, 7")
        I(f"s_mul_i32 s{sT0}, s{sT0}, 12")
        I(f"s_add_u32 s{sT0}, s{sT0}, s{sIDX}")
        I(f"s_sub_u32 s{sT0}, s{sT0}, 7")
    I(f"s_mul_i32 s{sT1}, s{sT0}, 21846")
    I(f"s_lshr_b32 s{sT1}, s{sT1}, 16")
    I(f"s_mul_i32 s{sT2}, s{sT1}, 3")
    I(f"s_sub_u32 s{sF0}, s{sT0}, s{sT2}")
    I(f"s_cmp_eq_u32 s{sHASX}, 1")
    I(f"s_cselect_b32 s{sF0}, s{sF0}, 0")
    I(f"s_cselect_b32 s{sT1}, s{sT1}, 0")
    I(f"s_lshl_b32 s{sES}, s{sT1}, 1")
    I(f"s_and_b32 s{sES}, s{sES}, 12")
    I(f"s_lshr_b32 s{sES}, 0x5310, s{sES}")
    I(f"s_and_b32 s{sES}, s{sES}, 15")
    I(f"s_and_b32 s{sEROW}, s{sT1}, 1")
    I(f"s_add_u32 s{sEROW}, s{sEROW}, 222")
    I(f"s_lshr_b32 s{sT3}, s{sT1}, 3")
    I(f"s_lshl_b32 s{sT3}, s{sT3}, 1")
    I(f"s_and_b32 s{sT2}, s{sT1}, 7")
    I(f"s_add_u32 s{sT2}, s{sT2}, 216")
    I(f"s_cmp_lt_u32 s{sT1}, 8")
    I(f"s_cselect_b32 s{sES}, s{sES}, s{sT3}")
    I(f"s_cselect_b32 s{sEROW}, s{sEROW}, s{sT2}")


def consumer_pro(e, opt):
    I = e.I
    vV, vV2, vT = 1, 2, 3
    vD = [4, 5, 6]
    vU = [7, 253, 254]
    t0, t1, t2, t3, t4 = 8, 9, 10, 11, 12
    sF = [sF0, sF1, sF2]
    if opt["w8"] == 2:
        I(f"s_cmp_eq_u32 s{sL}, 0")
        I("s_cbranch_scc1 L_CW0")
        keep = list(e.vm)
        worker_pre(e, opt, cons=True)
        e.vm = keep
        e.label("L_CW0")
    decode_extra(e)
    I(f"s_add_u32 s{sF1}, s{sF0}, 1")
    I(f"s_cmp_eq_u32 s{sF1}, 3")
    I(f"s_cselect_b32 s{sF1}, 0, s{sF1}")
    I(f"s_add_u32 s{sF2}, s{sF1}, 1")
    I(f"s_cmp_eq_u32 s{sF2}, 3")
    I(f"s_cselect_b32 s{sF2}, 0, s{sF2}")
    I(f"v_lshrrev_b32 v{t0}, 4, v0")
    I(f"s_mul_i32 s{sT0}, s{sWAVE}, 96")
    I(f"v_lshlrev_b32 v{t4}, 3, v{t0}")
    I(f"v_add_u32 v{t4}, s{sT0}, v{t4}")
    for s in range(3):
        I(f"s_lshl_b32 s{sT1}, s{sF[s]}, 5")
        I(f"v_add_u32 v{13+s}, s{sT1}, v{t4}")
    if opt["w_pf"]:
        I(f"s_mul_i32 s{sT1}, s{sIDX}, 36")
        I(f"v_min_u32 v{t1}, 35, v0")
        I(f"v_add_u32 v{t1}, s{sT1}, v{t1}")
        I(f"v_mul_u32_u24 v{t2}, 10923, v{t1}")
        I(f"v_lshrrev_b32 v{t2}, 21, v{t2}")
        I(f"v_add_u32 v{t3}, 1, v{t2}")
        I(f"v_lshrrev_b32 v{t3}, 1, v{t3}")
        I(f"v_mul_u32_u24 v{t3}, 576, v{t3}")
        I(f"v_mul_u32_u24 v{t2}, 384, v{t2}")
        I(f"v_add3_u32 v{t1}, v{t1}, v{t2}, v{t3}")
        I(f"s_mul_i32 s{sT1}, s{sWAVE}, {192*128}")
        I(f"s_add_u32 s{sT1}, s{sT1}, 2048")
        I(f"v_lshl_add_u32 v252, v{t1}, 7, s{sT1}")
    I("s_waitcnt lgkmcnt(0)")
    srd(e, sB, sKA + 4, 384)
    srd(e, sW, sKA + 2, WBYTES, 2048)
    srd(e, sU, sWS, UBYTES)
    if opt["w_pf"]:
        I(f"s_cmp_ge_u32 s{sWAVE}, {1 if opt['nraw'] == 4 else 2}")
        I("s_cbranch_scc1 L_NOWPF")
        I(f"buffer_load_dword v255, v252, s[{sW}:{sW+3}], 0 offen")
        e.label("L_NOWPF")
    if opt["code_pf"]:
        I(f"s_cmp_eq_u32 s{sWAVE}, 2")
        I("s_cbranch_scc0 L_NOCPF")
        I(f"s_getpc_b64 s[{sPC}:{sPC+1}]")
        e.label("L_PC0")
        I(f"s_sub_u32 s{sPC}, s{sPC}, L_PC0-{KNAME}")
        I(f"s_subb_u32 s{sPC+1}, s{sPC+1}, 0")
        I(f"s_mul_i32 s{sT1}, s{sIDX}, {opt['code_pf_lines']*128}")
        I(f"v_min_u32 v252, {opt['code_pf_lines']-1}, v0")
        I(f"v_lshl_add_u32 v252, v252, 7, s{sT1}")
        I(f"v_min_u32 v252, L_END-{KNAME}, v252")
        I(f"global_load_dword v255, v252, s[{sPC}:{sPC+1}]")
        e.label("L_NOCPF")
    if opt["d_xcc"] == 1:
        I(f"s_cmp_lt_u32 s2, 12")
        I("s_cbranch_scc0 L_NOXCC")
        I(f"s_getreg_b32 s{sT1}, hwreg(HW_REG_XCC_ID)")
        I(f"s_lshl_b32 s{sT2}, s2, 2")
        I(f"v_mov_b32 v22, s{sT1}")
        I(f"v_mov_b32 v23, s{sT2}")
        I(f"global_store_dword v23, v22, s[{sDBG}:{sDBG+1}] offset:16")
        e.label("L_NOXCC")
    for s in range(3):
        e.vmem(f"buffer_load_dwordx2 {vr(16+2*s, 2)}, v{13+s}, s[{sB}:{sB+3}], 0 offen", "bias")
    I(f"v_and_b32 v{t1}, 15, v0")
    I(f"v_xor_b32 v{t2}, v{t0}, v{t1}")
    I(f"v_lshl_add_u32 v{t2}, v{t0}, 4, v{t2}")
    I(f"v_lshlrev_b32 v{vV}, 4, v{t2}")
    I(f"v_add_u32 v{vV2}, 0x8000, v{vV}")
    I(f"s_mul_i32 s{sRING}, s{sWAVE}, {WWAVE}")
    I(f"s_add_u32 s{sRING}, s{sRING}, {WRING}")
    I(f"v_lshrrev_b32 v{t2}, 2, v0")
    I(f"v_mul_u32_u24 v{t2}, 96, v{t2}")
    I(f"v_and_b32 v{t3}, 3, v0")
    I(f"v_lshl_add_u32 v{t2}, v{t3}, 3, v{t2}")
    I(f"v_add_u32 v{vT}, s{sRING}, v{t2}")
    for d in range(3):
        I(f"v_add_u32 v{t1}, {64*d}, v0")
        I(f"v_mul_u32_u24 v{t2}, 43691, v{t1}")
        I(f"v_lshrrev_b32 v{t2}, 18, v{t2}")
        I(f"v_mul_u32_u24 v{t3}, 6, v{t2}")
        I(f"v_sub_u32 v{t1}, v{t1}, v{t3}")
        I(f"v_bfe_u32 v{t3}, v{t2}, 2, 2")
        I(f"v_lshlrev_b32 v{t3}, 3, v{t3}")
        I(f"v_lshrrev_b32 v{t4}, 4, v{t2}")
        I(f"v_lshl_add_u32 v{t3}, v{t4}, 2, v{t3}")
        I(f"v_and_b32 v{t2}, 3, v{t2}")
        I(f"v_add_u32 v{t2}, v{t2}, v{t3}")
        I(f"v_mul_u32_u24 v{t2}, 384, v{t2}")
        I(f"v_lshrrev_b32 v{t3}, 1, v{t1}")
        I(f"v_add_u32 v{t3}, s{sF0}, v{t3}")
        I(f"v_subrev_u32 v{t4}, 3, v{t3}")
        I(f"v_min_u32 v{t3}, v{t3}, v{t4}")
        I(f"v_lshl_add_u32 v{t2}, v{t3}, 5, v{t2}")
        I(f"v_and_b32 v{t1}, 1, v{t1}")
        I(f"v_lshl_add_u32 v{t2}, v{t1}, 4, v{t2}")
        I(f"v_add_u32 v{t2}, s{sT0}, v{t2}")
        I(f"v_add_u32 v{vD[d]}, {2048 - 1024*d}, v{t2}")
    I(f"s_mul_i32 s{sT1}, s{sWAVE}, 9216")
    for s in range(3):
        I(f"s_mul_i32 s{sT0}, s{sF[s]}, 3072")
        I(f"s_add_u32 s{sT0}, s{sT0}, s{sT1}")
        I(f"v_lshl_add_u32 v{vU[s]}, v0, 4, s{sT0}")
    if opt["w8"] == 2:
        I(f"s_cmp_eq_u32 s{sL}, 0")
        I("s_cbranch_scc1 L_CW1")
        w = Em(opt, e)
        w.vm = ["pre0"] + ["x"] * 3
        w.I(f"v_lshrrev_b32 v98, 2, v0")
        w.I(f"v_lshlrev_b32 v98, 5, v98")
        w.I(f"v_and_b32 v99, 3, v0")
        w.I(f"v_lshl_add_u32 v98, v99, 3, v98")
        w.I(f"v_add_u32 v98, s{sPOLL}, v98")
        prepass(w, dict(opt, pst=0), 0, 100, 120, 97, 98)
        e.L += w.L
        e.label("L_CW1")
    I(f"s_cmp_eq_u32 s{sHASX}, 0")
    I("s_cbranch_scc1 L_CN")


def consumer(parent, opt, extra):
    e = Em(opt, parent)
    I = e.I
    vV, vV2, vT = 1, 2, 3
    vD = [4, 5, 6]
    vU = [7, 253, 254]
    vO = vD
    vOX, vFL, vONE, vCK = 3, 255, 252, 0
    VR = 8
    WB = [24, 60]
    ACC = 96
    acc = {}
    for m in range(6):
        for st in range(2):
            for s in range(3):
                acc[(m, st, s)] = ACC + 4 * ((m * 2 + st) * 3 + s)
    acc[("X", 0)] = 240
    acc[("X", 1)] = 244
    spare = [248]
    sF = [sF0, sF1, sF2]
    tag = "x" if extra else "n"

    def W(step, i, s):
        return WB[step & 1] + 4 * (i * 3 + s)

    def dma_ops(step, i):
        kind, st, c = step_info(step)
        slot = (step & 1) * 3 + i
        ops = [("S", lambda: I(f"s_add_u32 m0, s{sRING}, {slot*3072}")),
               ("S", lambda: I(f"s_mov_b32 s{sOFF2}, {(i*3+2*st)*73728 + c*12288}"))]
        for d in range(3):
            def f(d=d):
                e.need([f"w{step-2}_{i}"])
                e.vmem(f"buffer_load_dwordx4 v{vD[d]}, s[{sW}:{sW+3}], s{sOFF2} offen offset:{1024*d} lds", f"dma{step}_{i}")
            ops.append(("M", f))
        return ops

    def tr_ops(step, i):
        slot = (step & 1) * 3 + i
        ops = []
        for s in range(3):
            for h in range(2):
                def f(s=s, h=h):
                    e.need([f"dma{step}_{i}"])
                    e.lds(f"ds_read_b64_tr_b16 {vr(W(step, i, s) + 2*h, 2)}, v{vT} offset:{slot*3072 + h*1536 + s*32}", f"w{step}_{i}")
                ops.append(("WR" if s == 0 and h == 0 else "R", f))
        return ops

    def u_op(step, i, s):
        if opt["d_nou"] and step > 9:
            return ("S", lambda: I("s_nop 0"))
        return ("M", lambda: e.vmem(f"buffer_load_dwordx4 {vr(W(step, i, s))}, v{vU[s]}, s[{sU}:{sU+3}], s{sOFF} offen offset:{1024*i} {opt['uf']}", f"w{step}_{i}"))

    def u_off(step):
        kind, st, c = step_info(step)
        pos = st if kind == "B" else 2 + st
        return ("S", lambda: I(f"s_mov_b32 s{sOFF}, {(pos*6+c)*36864}"))

    I(f"v_lshlrev_b32 v8, 3, v0")
    I(f"v_add_u32 v8, {FLAGS}, v8")
    I(f"v_mov_b32 v10, 0")
    I(f"v_mov_b32 v11, 0")
    I(f"ds_write_b64 v8, v[10:11]")
    I("s_waitcnt lgkmcnt(0)")
    e.stamp()
    I("s_barrier")
    for i in range(3):
        for c, f in dma_ops(0, i):
            f()
    if opt["pro"] == "alpha":
        I("s_barrier")
    w1late = opt["w1late"] == 2 or (opt["w1late"] == 1 and not extra)
    if not w1late:
        for i in range(3):
            for c, f in dma_ops(1, i):
                f()
    e.need("bias")
    if opt["w8"] == 2 and not extra:
        I(f"s_cmp_eq_u32 s{sL}, 0")
        I("s_cbranch_scc1 L_CW2")
        I(f"v_mov_b32 v8, {FLAGS + 15*16 + 4}")
        I(f"v_mov_b32 v9, 1")
        I("s_mov_b64 exec, 1")
        I("ds_add_u32 v8, v9")
        I("s_mov_b64 exec, -1")
        e.label("L_CW2")
    for s in range(3):
        a, b = acc[(5, 0, s)], acc[(5, 1, s)]
        I(f"v_lshlrev_b32 v{a}, 16, v{16+2*s}")
        I(f"v_and_b32 v{a+1}, s{sMASK}, v{16+2*s}")
        I(f"v_lshlrev_b32 v{a+2}, 16, v{17+2*s}")
        I(f"v_and_b32 v{a+3}, s{sMASK}, v{17+2*s}")
        for k in range(4):
            I(f"v_xor_b32 v{b+k}, s{sINV}, v{a+k}")
    for i in range(3):
        for c, f in tr_ops(0, i):
            f()
    if w1late:
        for i in range(3):
            for c, f in dma_ops(1, i):
                f()
    if opt["w2pre"]:
        for i in range(3):
            for c, f in dma_ops(2, i):
                f()
    I(f"s_lshl_b32 s{sT0}, s{sWAVE}, 2")
    I(f"s_add_u32 s{sT0}, s{sT0}, {FLAGS}")
    I(f"v_mov_b32 v{vFL}, s{sT0}")
    I(f"v_mov_b32 v{vONE}, 1")
    if opt["prio"]:
        I(f"s_setprio {opt['prio']}")
    e.stamp()

    groups = []

    def g_row(step, r):
        st = step_info(step)[1]
        mf = []
        for i in (2, 1, 0):
            m = r - i
            if 0 <= m <= 5:
                for s in range(3):
                    mf.append(((m, st, s), i, s))
        return dict(step=step, row=r, mf=mf)

    def g_x(step, i):
        return dict(step=step, row=8 + i, mf=[(("X", step_info(step)[1]), i, 0)])

    for step in range(22):
        seq = [g_row(step, 0), g_row(step, 1), g_x(step, 0), g_row(step, 2), g_x(step, 1), g_row(step, 3),
               g_x(step, 2), g_row(step, 4), g_row(step, 5), g_row(step, 6), g_row(step, 7)]
        groups += [g for g in seq if extra or g["row"] < 8]
    lag = opt["lag"]
    if lag >= 0:
        seq = []
        for r in range(8 + lag):
            if r < 8:
                seq.append((22, r))
            if r >= lag:
                seq.append((23, r - lag))
    else:
        seq = [(22, 0), (22, 1), (22, 2), (23, 0), (22, 3), (23, 1), (23, 2), (23, 3),
               (22, 4), (23, 4), (22, 5), (23, 5), (22, 6), (23, 6), (22, 7), (23, 7)]
    for (st_, r) in seq:
        groups.append(g_row(st_, r))
        if extra and st_ == 22 and 1 <= r <= 3:
            groups.append(g_x(22, r - 1))
        if extra and st_ == 23 and 1 <= r <= 3 and lag < 0:
            groups.append(g_x(23, r - 1))
        if extra and st_ == 23 and 2 <= r <= 4 and lag >= 0:
            groups.append(g_x(23, r - 2))

    stream = []
    gstart = []
    for gi, g in enumerate(groups):
        gstart.append(len(stream))
        for (key, i, s) in g["mf"]:
            stream.append((gi, key, i, s))
    N = len(stream)
    gend = [gstart[k + 1] - 1 if k + 1 < len(groups) else N - 1 for k in range(len(groups))]
    step_start, step_end = {}, {}
    last_use, last_acc, first_acc, first_tap = {}, {}, {}, {}
    for gi, g in enumerate(groups):
        step_start.setdefault(g["step"], gstart[gi])
        step_end[g["step"]] = gend[gi]
    for n, (gi, key, i, s) in enumerate(stream):
        st = groups[gi]["step"]
        last_use[(st, i, s)] = n
        last_acc[(st, key)] = n
        first_acc.setdefault((st, key), n)
        first_tap.setdefault((st, i), n)
    SL = step_start[1] - step_start[0]

    fill = [[] for _ in range(N + 1)]
    cl = [""] * (N + 1)
    endw = [""] * (N + 1)
    for gi in range(1, len(groups)):
        endw[gstart[gi] - 1] = "W"
    for (st, i), n in first_tap.items():
        if n:
            endw[n - 1] = "W"

    def put(g, op):
        fill[g].append(op[1])
        cl[g] += op[0]

    def addcost(g, c, cur):
        base = cur.get(g, cl[g])
        return gapcost(base + c + endw[g]) - gapcost(base + endw[g])

    def place(g0, ops, deadline=None, per=2, strict=False):
        for budget in range(0, len(ops) + 1):
            cur = {}
            res = []
            g, n, left = g0, 0, budget
            for c, f in ops:
                free = 4 if c == "D" else 0
                while g < N:
                    if n < per:
                        ac = addcost(g, c, cur)
                        if ac <= free:
                            break
                        if left and ac <= free + 4:
                            left -= 1
                            break
                    g += 1
                    n = 0
                g = min(g, N)
                cur[g] = cur.get(g, cl[g]) + c
                res.append(g)
                n += 1
            if deadline is None or res[-1] <= deadline:
                break
        else:
            assert not strict, (g0, deadline, res[-1])
        for g, op in zip(res, ops):
            put(g, op)
        return res[-1]

    def vread(gi):
        g = groups[gi]
        u = g["step"] >> 1
        off = VS[u % 3] + (g["step"] & 1) * VHALF + g["row"] * 1024
        base = vV
        if off >= 0x8000:
            base, off = vV2, off - 0x8000
        r = VR + 4 * (gi % 4)
        return ("R", lambda: e.lds(f"ds_read_b128 {vr(r)}, v{base} offset:{off}", f"v{gi}"))

    first_of_unit = {}
    for gi, g in enumerate(groups):
        first_of_unit.setdefault(g["step"] >> 1, gi)
    def flag(k):
        return ("d", lambda: e.jit(70 + k) or e.lds(f"ds_write_b32 v{vFL}, v{vONE} offset:{k*16}"))

    def ckread(off, name):
        return ("R", lambda: e.lds(f"ds_read_b32 v{vCK}, v{vV2} offset:{FLAGS - 0x8000 + off}", name))

    def check1(name):
        def f():
            e.jit(len(name) + len(e.L) % 13)
            e.need(name)
            I(f"v_readfirstlane_b32 s{sT0}, v{vCK}")
        return f

    def check(off, val, name, st=False):
        def f():
            lab = f"L_CK{tag}{name}"
            I(f"s_cmp_eq_u32 s{sT0}, {val}")
            I(f"s_cbranch_scc0 {lab}_spin")
            e.label(lab)
            if st and opt["cst"] < 0:
                e.stamp()
            cold.append(f"{lab}_spin:")
            cold.append(f"    ds_read_b32 v{vCK}, v{vV2} offset:{FLAGS - 0x8000 + off}")
            cold.append("    s_waitcnt lgkmcnt(0)")
            cold.append(f"    v_readfirstlane_b32 s{sT0}, v{vCK}")
            cold.append(f"    s_cmp_eq_u32 s{sT0}, {val}")
            cold.append(f"    s_cbranch_scc0 {lab}_spin")
            cold.append(f"    s_branch {lab}")
        return f

    cold = []
    bar_gap = {}
    rpos = {}
    for gi in range(4, len(groups)):
        g = gend[gi - 4]
        if opt["rsh"] and len(groups[gi - 3]["mf"]) > 1 and g - 0 >= rpos.get(gi - 1, -1):
            g += 1
        g = max(g, rpos.get(gi - 1, -1) + 1)
        rpos[gi] = g
        put(g, vread(gi))
    for u in range(1, 12):
        gi = first_of_unit[u]
        gp = gend[gi - 4]
        bar_gap[u] = gp - 1
        put(gp - 2, ("WV", check1(f"rdy{u}")))
        put(gp - 1, ("SS", check(448 + 4 * u, 4, f"rdy{u}", True)))
        gq = gp - (7 if opt["rsh"] else 8)
        assert place(gq, [ckread(448 + 4 * u, f"rdy{u}")]) < gp - 4
        if u - 1 <= 8:
            place(gstart[gi - 1], [flag(16 + u - 1)])

    g = 0
    gtr1 = 0
    k = 0
    for step in ((3,) if opt["w2pre"] else (2, 3)):
        for i in range(3):
            if step == 3:
                gtr1 = place(max(gtr1, opt["tr1at"] + (14 if w1late else 0) + 8 * i), tr_ops(1, i), per=1) + 1
                g = max(g, gtr1 + opt['trd'])
            ops = dma_ops(step, i)
            g = place(max(g, int(k * opt["dsp"])), ops[:2])
            for d in range(3):
                g = place(max(g + 1, int(k * opt["dsp"]) + 1), [ops[2 + d]])
                k += 1
    place(g + 1, [flag(31)])
    NR = opt["nraw"]
    for step in range(2, NR):
        gt = step_start[step - 1] + SL - 24
        for i in range(3):
            gt = max(gt, max(last_use[(step - 2, i, s)] for s in range(3)))
            gt = place(gt, tr_ops(step, i), per=1, deadline=first_tap[(step, i)] - 4) + 1
            if step + 2 < NR:
                ops = dma_ops(step + 2, i)
                t0_ = step_start[step] + int(i * SL / 3)
                g = place(max(g, gt + opt["trd"], t0_), ops[:2])
                for d in range(3):
                    g = place(max(g + 1, t0_ + int(d * SL / 9) + 1), [ops[2 + d]])

    gchk = step_start[NR - 1] - opt["ulead0"] - 3

    place(gchk - 10, [ckread(240, "uflag")])
    put(gchk - 1, ("WV", check1("uflag")))
    put(gchk, ("SS", check(240, 1, "uflag")))
    g = gchk + 1
    go_gap = None
    early_go = []
    for step in range(NR, 24):
        base = step_start[step - 1] - opt["ulead"]
        stp = opt["ustep"] * SL / 57
        if step == NR:
            base, stp = gchk + 2, opt["ustep0"]
        if step == 23:
            base, stp = last_use[(21, 0, 0)], 2
        k = 0
        for i in range(3):
            for s in range(3):
                tgt = max(base + int(k * stp), last_use[(step - 2, i, s)], g)
                if k == 0:
                    g = place(max(g, tgt - 2), [u_off(step)])
                    tgt = max(tgt, g + 1)
                g = place(tgt, [u_op(step, i, s)]) + 1
                k += 1
        if step == opt["go"]:
            go_gap = g
        if opt["ego"] and step in (21, 22):
            early_go.append((g, 25 + step - 21))

    def bfly_ops(k0, k1, first):
        ops = []
        if first:
            o0, o1, md = "v_sub_f32_e64", "v_add_f32_e64", " div:2"
        else:
            o0, o1, md = "v_add_f32", "v_sub_f32", ""
        for k in range(4):
            ops.append(("V", lambda k=k: I(f"{o0} v{spare[0]+k}, v{acc[k0]+k}, v{acc[k1]+k}{md}")))
        for k in range(4):
            def f(k=k):
                I(f"{o1} v{acc[k1]+k}, v{acc[k0]+k}, v{acc[k1]+k}{md}")
                if k == 3:
                    acc[k0], spare[0] = spare[0], acc[k0]
            ops.append(("V", f))
        return ops

    order = [0, 1, "X", 2, 3, 4, 5] if extra else [0, 1, 2, 3, 4, 5]
    fb = [u for u in range(12) if UNITS[u][0] == "B"]
    y0last = 2 * max(u for u in range(12) if UNITS[u][1] == 0) + 1
    for last, first in ((2 * fb[0] - 1, True), (2 * fb[-1] + 1, False)):
        blocks = []
        for m in order:
            keys = [((m, 0, s), (m, 1, s)) for s in range(3)] if m != "X" else [(("X", 0), ("X", 1))]
            for (k0, k1) in keys:
                rdy = max(n for (st_, k_), n in last_acc.items() if st_ <= last and k_ in (k0, k1))
                blocks.append((rdy + 8, first_acc[(last + 1, k0)] - 3, k0, k1))
        dl = [b[1] for b in blocks]
        for k in range(len(dl) - 2, -1, -1):
            dl[k] = min(dl[k], dl[k + 1] - opt.get("bsp", 4))
        g = 0
        for (rdy, _, k0, k1), d in zip(blocks, dl):
            g = place(max(g, rdy), bfly_ops(k0, k1, first), deadline=d, per=3)
            assert g <= _, (last, k0, g, _)

    def oaddr():
        ops = []
        A = lambda s: ops.append((s[0].upper(), lambda: I(s)))
        t, q = vO[1], vO[2]
        A(f"v_lshrrev_b32 v{q}, 8, v{vV}")
        A(f"v_bfe_u32 v{t}, v{vV}, 4, 4")
        A(f"v_xor_b32 v{t}, v{t}, v{q}")
        A(f"v_lshlrev_b32 v{q}, 3, v{q}")
        A(f"s_lshl_b32 s{sT1}, s{sWAVE}, 5")
        A(f"s_add_u32 s{sT1}, s{sT1}, {XST}")
        A(f"v_mul_u32_u24 v{vOX}, 144, v{t}")
        A(f"v_add3_u32 v{vOX}, v{vOX}, v{q}, s{sT1}")
        A(f"v_mul_u32_u24 v{t}, 400, v{t}")
        A(f"v_add_u32 v{q}, v{t}, v{q}")
        A(f"s_mul_i32 s{sT1}, s{sWAVE}, 96")
        A(f"s_add_u32 s{sT1}, s{sT1}, {OUT}")
        for s in range(3):
            A(f"s_lshl_b32 s{sT2}, s{sF[s]}, 5")
            A(f"s_add_u32 s{sT2}, s{sT2}, s{sT1}")
            A(f"v_add_u32 v{vO[s]}, s{sT2}, v{q}")
        return ops
    place(step_start[10], oaddr())

    def epi_ops(key, addr, off):
        return [("V", lambda: I(f"v_cvt_pk_bf16_f32 v{acc[key]}, v{acc[key]}, v{acc[key]+1}")),
                ("V", lambda: I(f"v_cvt_pk_bf16_f32 v{acc[key]+1}, v{acc[key]+2}, v{acc[key]+3}")),
                ("D", lambda: e.lds(f"ds_write_b64 v{addr}, {vr(acc[key], 2)} offset:{off}"))]

    place(go_gap, [flag(14)])
    for g_, k_ in early_go:
        place(g_, [flag(k_)])
    def after(n):
        g, c = n, 0
        while g < N:
            c += sum(1 for ch in cl[g] if ch != "W")
            if c >= 8:
                return g
            g += 1
            c += 1
            if c >= 8:
                return g
        return None

    def epi2(key, addr, off):
        return [("V", lambda: I(f"v_cvt_pk_bf16_f32 v{acc[key]}, v{acc[key]}, v{acc[key]+1}")),
                ("V", lambda: I(f"v_cvt_pk_bf16_f32 v{acc[key]+1}, v{acc[key]+2}, v{acc[key]+3}")),
                ("d", lambda: e.lds(f"ds_write_b32 v{addr}, v{acc[key]} offset:{off}")),
                ("d", lambda: e.lds(f"ds_write_b32 v{addr}, v{acc[key]+1} offset:{off+4}"))]

    g = 0
    for st, last in ((0, y0last), (1, 23)):
        if st == 0:
            g = last_acc[(y0last, (0, 0, 0))] + opt["y0at"]
        if st == 1:
            g = place(g, [("V", lambda s=s: I(f"v_add_u32 v{vO[s]}, {6*OROW}, v{vO[s]}")) for s in range(3)])
        done = {m: (last_acc[(last, ("X", st))] if m == "X" else last_acc[(last, (m, st, 0))]) for m in order}
        ep = epi2 if (st == 0 and opt["dd"] >= 1) else epi_ops
        for m in sorted(order, key=lambda m: done[m]):
            if st == 1 and opt["dd"] >= 2:
                ep = epi2 if m in ("X", 0, 1, 2) else epi_ops
            if m == "X":
                g = place(max(g, after(done[m])), ep(("X", st), vOX, 2304 * st) + [flag(12 + st)])
                continue
            o3 = [ep((m, st, s), vO[s], m * OROW) for s in range(3)]
            g0 = after(done[m] + 2)
            if g0 is None or g >= N:
                have = (N - 1 - (done[m] + 2)) + sum(sum(1 for ch in cl[k] if ch != "W") for k in range(done[m] + 2, N + 1))
                if have < 8:
                    put(N, ("S", lambda n_=8 - have: I(f"s_nop {n_ - 1}")))
                for op in [o for t in o3 for o in t if o[0] == "V"] + [o for t in o3 for o in t if o[0] != "V"] + [flag(6 * st + m)]:
                    put(N, op)
                g = N
                continue
            g = max(g, after(done[m]))
            g = place(g, o3[0])
            g = place(max(g, after(done[m] + 1) or N), o3[1])
            g = place(max(g, g0), o3[2] + [flag(6 * st + m)])

    if opt["cst"] >= 0:
        for k in range(15):
            g = step_start[opt["cst"]] + k * opt["cev"]
            if g < N:
                fill[g].append(e.stamp)
    ckread(448, "rdy0")[1]()
    check1("rdy0")()
    check(448, 4, "rdy0")()
    e.stamp()
    if opt["d_skew"]:
        for k in range(1, 4):
            I(f"s_cmp_lt_u32 s{sWAVE}, {k}")
            I(f"s_cbranch_scc1 L_SK{tag}")
            for z in range(opt["d_skew"]):
                I("s_nop 3")
        e.label(f"L_SK{tag}")
    for gi in range(4):
        vread(gi)[1]()
    started = set()
    for n, (gi, key, i, s) in enumerate(stream):
        step = groups[gi]["step"]
        kind, st, c = step_info(step)
        e.need([f"v{gi}", f"w{step}_{i}"])
        d = acc[key]
        cc = d
        if step in (0, 2) and key not in started:
            started.add(key)
            cc = acc[(5, st, s)]
        I(f"v_mfma_f32_16x16x32_bf16 {vr(d)}, {vr(W(step, i, s))}, {vr(VR + 4*(gi % 4))}, {vr(cc)}")
        for f in fill[n]:
            f()
    e.stamp()
    for f in fill[N]:
        f()
    e.stamp()
    e.dump_stamps("c")
    I("s_endpgm")
    return e.L + cold


xA, xB, xC, eA, eB, eC = 1, 2, 3, 4, 5, 6
wE = [7, 8, 9, 10]
wX = [11, 12]
TMP = 13
OB = 26
RAW = 58
RAWX = 178


def PD(p, j):
    return RAW + 40 * p + 4 * j


def PX(p, j):
    return RAWX + 24 * p + 4 * j


sEM = 100


def masked(e, on):
    if on:
        e.I(f"s_mov_b64 exec, s[{sEM}:{sEM+1}]")


def unmask(e, on):
    if on:
        e.I("s_mov_b64 exec, -1")


def xload(e, p, j):
    a, off = (xA, 0) if j == 0 else ((xC, 0) if j == 9 else (xB, (j - 1) * 384))
    m = e.opt["dedup"] and j >= 8
    masked(e, m)
    e.vmem(f"buffer_load_dwordx4 {vr(PD(p, j))}, v{a}, s[{sX}:{sX+3}], 0 offen offset:{off + 128*p} {e.opt['xf']}", f"x{p}_{j&1}")
    unmask(e, m)


def eload(e, p, j):
    a, off = (eA, 0) if j == 0 else ((eC, 0) if j == 5 else (eB, (j - 1) * 384))
    m = e.opt["dedup"] and j >= 4
    masked(e, m)
    e.vmem(f"buffer_load_dwordx4 {vr(PX(p, j))}, v{a}, s[{sX}:{sX+3}], 0 offen offset:{off + 128*p} {e.opt['xf']}", f"e{p}_{j&1}")
    unmask(e, m)


sW0, sW1, sW2, sW3 = 41, 42, 43, 44


def worker_pre(e, opt, part=3, cons=False):
    I = e.I
    t1, t2, t3 = 18, 19, 20
    eA, eB = (96, 97) if cons else (4, 5)
    sPW = sWAVE if cons else 55
    sRING = sPOLL if cons else 52
    if part & 1:
        if opt["w8"]:
            I(f"s_bfe_u32 s{sW0}, s2, {1 | (2 << 16)}")
            I(f"s_mul_i32 s{sW0}, s{sW0}, 7")
            I(f"s_add_u32 s{sW2}, s{sW0}, s{sIDX}")
            I(f"s_mul_i32 s{sW0}, s{sW2}, 43")
            I(f"s_lshr_b32 s{sW0}, s{sW0}, 7")
            I(f"s_mul_i32 s{sW3}, s{sW0}, 3")
            I(f"s_sub_u32 s{sW2}, s{sW2}, s{sW3}")
            I(f"s_lshl_b32 s{sW2}, s{sW2}, 1")
            if cons:
                I(f"s_add_u32 s{sW2}, s{sW2}, 1")
            I(f"s_cmp_lt_u32 s{sW0}, 9")
            I(f"s_cselect_b32 s{sCNT}, 0, s{sINV}")
        else:
            I(f"s_and_b32 s{sW0}, s2, 7")
            I(f"s_cmp_lt_u32 s{sIDX}, 6")
            I(f"s_cselect_b32 s{sW2}, s{sIDX}, s{sW0}")
            I(f"s_cselect_b32 s{sW0}, s{sW0}, 8")
            I(f"s_cmp_lt_u32 s{sW2}, 6")
            I(f"s_cselect_b32 s{sCNT}, 0, s{sINV}")
        I(f"s_mul_i32 s{sW1}, s{sW0}, 11")
        I(f"s_lshr_b32 s{sW1}, s{sW1}, 5")
        I(f"s_mul_i32 s{sW3}, s{sW1}, 3")
        I(f"s_sub_u32 s{sW0}, s{sW0}, s{sW3}")
        I(f"s_lshl_b32 s{sW0}, s{sW0}, 2")
        I(f"s_add_u32 s{sW0}, s{sW0}, s{sPW}")
        I(f"s_mul_i32 s{sOFF}, s{sW1}, {3*73728}")
        I(f"s_mul_i32 s{sOFF2}, s{sW2}, 12288")
        I(f"s_add_u32 s{sOFF}, s{sOFF}, s{sOFF2}")
        I(f"s_lshl_b32 s{sOFF2}, s{sW0}, 5")
        I(f"s_add_u32 s{sOFF}, s{sOFF}, s{sOFF2}")
        I(f"v_bfe_u32 v{t1}, v0, 3, 2")
        I(f"v_lshlrev_b32 v{t1}, 3, v{t1}")
        I(f"v_lshrrev_b32 v{t2}, 5, v0")
        I(f"v_lshl_add_u32 v{t1}, v{t2}, 2, v{t1}")
        I(f"v_bfe_u32 v{t2}, v0, 1, 2")
        I(f"v_add_u32 v{t1}, v{t1}, v{t2}")
        I(f"v_mul_u32_u24 v{t1}, 384, v{t1}")
        I(f"v_and_b32 v{t2}, 1, v0")
        I(f"v_lshl_add_u32 v{eA}, v{t2}, 4, v{t1}")
        I(f"s_mul_i32 s{sRING}, s{sPW}, 6144")
        I(f"s_add_u32 s{sRING}, s{sRING}, {PRE + (3072 if cons else 0)}")
        I(f"s_mov_b32 m0, s{sRING}")
    if not part & 2:
        return
    if part & 1:
        I("s_waitcnt lgkmcnt(0)")
    srd(e, sW, sKA + 2, WBYTES)
    nu = 2 if opt["w8"] == 1 else 1
    for k in range(3 * nu):
        e.vmem(f"buffer_load_dwordx4 v{eA}, s[{sW}:{sW+3}], s{sOFF} offen lds", f"pre{k // 3}")
        if k < 3 * nu - 1:
            I(f"s_add_u32 m0, s{sRING}, {1024*(k+1)}")
            if k == 2:
                I(f"s_sub_u32 s{sOFF}, s{sOFF}, {2*73728 - 12288}")
            else:
                I(f"s_add_u32 s{sOFF}, s{sOFF}, 73728")
    I(f"s_mul_i32 s{sOFF}, s{sW2}, 36864")
    I(f"s_mul_i32 s{sW0}, s{sW0}, 3")
    I(f"s_add_u32 s{sW0}, s{sW0}, s{sW1}")
    I(f"s_lshl_b32 s{sW0}, s{sW0}, 10")
    I(f"s_add_u32 s{sOFF}, s{sOFF}, s{sW0}")
    I(f"s_or_b32 s{sOFF}, s{sOFF}, s{sCNT}")
    I(f"v_lshl_add_u32 v{eB}, v0, 4, s{sOFF}")


def prepass(e, opt, un, G, U, eB, eC):
    I = e.I
    e.need(f"pre{un}")
    if opt["pst"] == 2 and un == 0:
        e.stamp()
    for j in range(3):
        for h in range(2):
            e.lds(f"ds_read_b64_tr_b16 {vr(G + 4*j + 2*h, 2)}, v{eC} offset:{3072*un + 1024*j + 512*h}", f"pt{j}")
    for j in (0, 2, 1):
        e.need(f"pt{j}")
        for k in range(4):
            I(f"v_lshlrev_b32 v{U + 8*j + 2*k}, 16, v{G + 4*j + k}")
            I(f"v_and_b32 v{U + 8*j + 2*k + 1}, s{sMASK}, v{G + 4*j + k}")
        if j == 2:
            for kk in range(8):
                I(f"v_add_f32 v{U+kk}, v{U+kk}, v{U+16+kk}")
    for kk in range(8):
        I(f"v_sub_f32_e64 v{U+16+kk}, v{U+kk}, v{U+8+kk} div:2")
        I(f"v_add_f32_e64 v{U+kk}, v{U+kk}, v{U+8+kk} div:2")
    for k in range(4):
        I(f"v_cvt_pk_bf16_f32 v{G+12+k}, v{U+2*k}, v{U+2*k+1}")
        I(f"v_cvt_pk_bf16_f32 v{G+16+k}, v{U+16+2*k}, v{U+16+2*k+1}")
    for pos, r in ((0, G + 12), (1, G + 16), (2, G), (3, G + 8)):
        I(f"s_mov_b32 s{sOFF}, {(pos*6 + un)*36864}")
        e.vmem(f"buffer_store_dwordx4 {vr(r)}, v{eB}, s[{sU}:{sU+3}], s{sOFF} offen sc1", "ust")


def producer_main(e, opt, loads=True, mid=None):
    I = e.I
    t0, t1, t2, t3 = 13, 14, 15, 16
    decode_main(e)
    I(f"v_and_b32 v{t0}, 3, v0")
    I(f"v_bfe_u32 v{t1}, v0, 2, 2")
    I(f"v_bfe_u32 v{t2}, v0, 4, 1")
    I(f"v_lshrrev_b32 v{wE[0]}, 5, v0")
    I(f"s_lshl_b32 s{sT0}, s{sPW}, 1")
    I(f"s_add_u32 s{sT0}, s{sT0}, s{sROW0}")
    I(f"s_mul_i32 s{sT0}, s{sT0}, 86016")
    I(f"s_mul_i32 s{sT1}, s{sSTRIP}, 12288")
    I(f"s_add_u32 s{sT0}, s{sT0}, s{sT1}")
    I(f"s_sub_u32 s{sT0}, s{sT0}, 86016")
    I(f"v_mul_u32_u24 v{t3}, 86016, v{t2}")
    I(f"v_lshl_add_u32 v{t3}, v{t0}, 4, v{t3}")
    I(f"v_lshl_add_u32 v{t3}, v{wE[0]}, 6, v{t3}")
    I(f"v_mul_u32_u24 v{xB}, 3072, v{t1}")
    I(f"v_add3_u32 v{xB}, v{xB}, v{t3}, s{sT0}")
    I(f"v_cmp_gt_i32 vcc, 0, v{xB}")
    I(f"v_lshl_add_u32 v{t3}, s{sSTRIP}, 2, v{t1}")
    I(f"v_mov_b32 v{xC}, s{sINV}")
    I(f"v_cndmask_b32 v{xB}, v{xB}, v{xC}, vcc")
    I(f"v_cmp_ne_u32 vcc, 0, v{t3}")
    I(f"v_subrev_u32 v{xA}, 384, v{xB}")
    I(f"v_add_u32 v{wE[1]}, 3072, v{xB}")
    I(f"v_cndmask_b32 v{xA}, v{xC}, v{xA}, vcc")
    I(f"v_cmp_ne_u32 vcc, 27, v{t3}")
    if opt["dedup"]:
        I(f"s_mov_b32 s{sEM}, 0xf000f000")
        I(f"s_mov_b32 s{sEM+1}, 0xf000f000")
    I("s_waitcnt lgkmcnt(0)")
    srd(e, sX, sKA, XBYTES)
    I(f"v_cndmask_b32 v{xC}, v{xC}, v{wE[1]}, vcc")
    if opt["d_st"] and loads:
        I(f"s_sleep {opt['d_st']}")
    if mid:
        mid()
    for j in (0, 2, 4, 6, 8) if loads else ():
        xload(e, 0, j)


def producer(parent, opt, kind):
    e = Em(opt, parent)
    I = e.I
    t0, t1, t2, t3, t4 = 13, 14, 15, 16, 17
    X = kind == "x"
    G = RAWX
    if kind == "w":
        if opt["wo"] == -1:
            for j in (1, 3, 5, 7, 9):
                xload(e, 0, j)
        if opt["wp1"]:
            I("s_barrier")
        srd(e, sU, sWS, UBYTES)
        I(f"v_lshrrev_b32 v{eC}, 2, v0")
        I(f"v_lshlrev_b32 v{eC}, 5, v{eC}")
        I(f"v_lshl_add_u32 v{eC}, v{t0}, 3, v{eC}")
        I(f"v_add_u32 v{eC}, s{sRING}, v{eC}")
        if opt["pst"] == 2:
            e.stamp()
        for un in range(2 if opt["w8"] == 1 else 1):
            prepass(e, opt, un, RAWX + 20 * un, RAWX + 40, eB, eC)
        if opt["wo"] == -2:
            for j in (0, 2, 4, 6, 8, 1, 3, 5, 7, 9):
                xload(e, 0, j)
        if opt["pst"]:
            e.stamp()
    if kind == "n" and opt["xo"] and opt["pro"] != "alpha":
        for j in (1, 3, 5, 7, 9)[:opt["xon"]]:
            xload(e, 0, j)
    I(f"s_lshl_b32 s{sT0}, s{sPW}, 1")
    I(f"v_add_u32 v{t2}, s{sT0}, v{t2}")
    I(f"v_mul_u32_u24 v{wE[0]}, {VHALF}, v{wE[0]}")
    I(f"v_lshl_add_u32 v{wE[0]}, v{t2}, 10, v{wE[0]}")
    I(f"v_lshlrev_b32 v{t3}, 2, v{t1}")
    I(f"v_lshl_add_u32 v{t3}, v{t0}, 4, v{t3}")
    I(f"v_add_u32 v{t3}, v{t3}, v{t0}")
    I(f"v_lshl_add_u32 v{wE[0]}, v{t3}, 4, v{wE[0]}")
    for k in range(1, 4):
        I(f"v_xor_b32 v{wE[k]}, {16*k}, v{wE[0]}")
    decode_extra(e)
    srd(e, sO, sKA + 6, XBYTES)
    if X:
        if opt["dedup"]:
            I(f"v_bfe_u32 v{t1}, v0, 2, 3")
        else:
            I(f"v_bfe_u32 v{t1}, v0, 2, 1")
            I(f"v_lshlrev_b32 v{t1}, 1, v{t1}")
            I(f"v_bfe_u32 v{t2}, v0, 3, 1")
            I(f"v_bfe_u32 v{t3}, v0, 4, 1")
            I(f"v_lshlrev_b32 v{t3}, 2, v{t3}")
            I(f"v_or3_b32 v{t1}, v{t1}, v{t2}, v{t3}")
        I(f"s_add_u32 s{sT0}, s{sEROW}, s{sPW}")
        I(f"s_sub_u32 s{sT0}, s{sT0}, 1")
        I(f"s_mul_i32 s{sT1}, s{sT0}, 86016")
        I(f"s_cmp_lt_u32 s{sT0}, 224")
        I(f"s_cselect_b32 s{sT1}, s{sT1}, s{sINV}")
        I(f"s_lshl_b32 s{sT0}, s{sES}, 5")
        I(f"v_lshl_add_u32 v{t4}, v{t1}, 2, s{sT0}")
        I(f"v_mul_u32_u24 v{t2}, 384, v{t4}")
        I(f"v_lshl_add_u32 v{t2}, v{t0}, 4, v{t2}")
        I(f"v_lshrrev_b32 v{t3}, 5, v0")
        I(f"v_lshl_add_u32 v{t2}, v{t3}, 6, v{t2}")
        I(f"v_add_u32 v{eB}, s{sT1}, v{t2}")
        I(f"v_cmp_ne_u32 vcc, 0, v{t4}")
        I(f"v_subrev_u32 v{t2}, 384, v{eB}")
        I(f"v_mov_b32 v{eA}, s{sINV}")
        I(f"v_cndmask_b32 v{eA}, v{eA}, v{t2}, vcc")
        I(f"v_cmp_ne_u32 vcc, 220, v{t4}")
        I(f"v_add_u32 v{t2}, 1536, v{eB}")
        I(f"v_mov_b32 v{eC}, s{sINV}")
        I(f"v_cndmask_b32 v{eC}, v{eC}, v{t2}, vcc")
        for j in (0, 2, 4):
            eload(e, 0, j)
        if opt["pro"] != "alpha":
            if opt["xo"]:
                for j in (1, 3, 5, 7, 9)[:opt["xon"]]:
                    xload(e, 0, j)
            for j in (1, 3, 5) if not opt["p1x"] else ():
                eload(e, 0, j)
        I(f"v_lshlrev_b32 v{t1}, 1, v{t1}")
        I(f"v_xor_b32 v{t1}, v{t1}, v{t0}")
        I(f"v_lshl_add_u32 v{t1}, v{t0}, 4, v{t1}")
        I(f"v_lshlrev_b32 v{t1}, 4, v{t1}")
        I(f"v_mul_u32_u24 v{t3}, {VHALF}, v{t3}")
        I(f"s_add_u32 s{sT0}, s{sPW}, 8")
        I(f"s_lshl_b32 s{sT0}, s{sT0}, 10")
        I(f"v_add3_u32 v{wX[0]}, v{t1}, v{t3}, s{sT0}")
        I(f"v_xor_b32 v{wX[1]}, 16, v{wX[0]}")
    else:
        I(f"s_cmp_eq_u32 s{sPW}, 3")
        I(f"s_cselect_b32 s{sPEND}, 1, 0")
        if opt["rpf"] == 1:
            I(f"s_mul_i32 s{sT0}, s{sIDX}, {18*128}")
            I(f"v_min_u32 v253, 17, v0")
            I(f"v_lshl_add_u32 v253, v253, 7, s{sT0}")
        elif opt["rpf"] == 2:
            I(f"s_sub_u32 s{sT0}, s{sIDX}, 12")
            I(f"s_cmp_lt_u32 s{sIDX}, 7")
            I(f"s_cselect_b32 s{sT0}, s{sIDX}, s{sT0}")
            I(f"s_mul_i32 s{sT1}, s{sT0}, 13")
            I(f"s_lshr_b32 s{sT1}, s{sT1}, 6")
            I(f"s_mul_i32 s{sT2}, s{sT1}, 5")
            I(f"s_sub_u32 s{sL}, s{sT0}, s{sT2}")
            I(f"s_cmp_eq_u32 s{sHASX}, 0")
            I(f"s_cselect_b32 s{sL}, s{sL}, 9")
            I(f"s_cmp_eq_u32 s{sPW}, 3")
            I(f"s_cselect_b32 s{sL}, s{sL}, 9")
            I(f"s_mul_i32 s{sT1}, s{sT1}, {144*128}")
            I(f"v_min_u32 v253, 47, v0")
            I(f"v_lshl_add_u32 v253, v253, 7, s{sT1}")
        I(f"v_mov_b32 v250, {FLAGS + 15*16}")
        if kind == "n":
            srd(e, sU, sWS, UBYTES)
    I(f"v_mov_b32 v251, 1")
    I(f"v_mov_b32 v252, {FLAGS}")

    def pollflag(idx, lab, slp, r=16):
        e.label(lab)
        I(f"ds_read_b128 {vr(r)}, v252 offset:{idx*16}")
        I("s_waitcnt lgkmcnt(0)")
        e.lg = []
        I(f"v_and_b32 v{r}, v{r}, v{r+1}")
        I(f"v_and_b32 v{r+2}, v{r+2}, v{r+3}")
        I(f"v_and_b32 v{r}, v{r}, v{r+2}")
        I("s_nop 0")
        I(f"v_readfirstlane_b32 s{sT0}, v{r}")
        I(f"s_cmp_eq_u32 s{sT0}, 1")
        I(f"s_cbranch_scc1 {lab}_ok")
        if slp:
            I(f"s_sleep {slp}")
        I(f"s_branch {lab}")
        e.label(lab + "_ok")

    upf_from = [(3 if opt["order"] == 2 else opt["pollu"] + 1) + opt["rlead"]]
    upf_from[0] = max(upf_from[0], opt["nraw"] // 2)

    def upf(t, sfx=''):
        if X or not opt["rpf"]:
            return
        k, st, p = UNITS[t]
        base = ((st if k == "B" else 2 + st) * 6 + 2 * p) * 36864
        lab = f"L_UP{kind}{t}{sfx}"
        if opt["rpf"] == 1:
            I(f"s_cmp_eq_u32 s{sPW}, 3")
            I(f"s_cbranch_scc0 {lab}")
            I(f"s_mov_b32 s{sT1}, {base}")
            I(f"buffer_load_dword v254, v253, s[{sU}:{sU+3}], s{sT1} offen sc1")
        else:
            I(f"s_cmp_eq_u32 s{sL}, {t % 5}")
            I(f"s_cbranch_scc0 {lab}")
            for q in range(3):
                I(f"s_mov_b32 s{sT1}, {base + q*48*128}")
                I(f"buffer_load_dword v254, v253, s[{sU}:{sU+3}], s{sT1} offen sc1")
        e.label(lab)

    def waitfree(u, r=16):
        e.jit(20 + u)
        if u >= 3:
            pollflag(16 + u - 3, f"L_FR{kind}{u}", opt["psl"], r)
            if upf_from[0] <= u + opt["rlead"] <= 11:
                upf(u + opt["rlead"])

    def ready(u):
        e.jit(u)
        I("s_mov_b64 exec, 1")
        e.lds(f"ds_add_u32 v252, v251 offset:{448 + 4*u}")
        I("s_mov_b64 exec, -1")
        if not opt["pst"] or e.nst < 15:
            e.stamp()

    def xl(p, par):
        sl = opt["d_sl"] if p == 2 else 0
        for j in range(par, 10, 2):
            xload(e, p, j)
            if sl:
                I(f"s_sleep {sl if X else (sl * 8) // 5}")
        if X:
            for j in range(par, 6, 2):
                eload(e, p, j)
                if sl:
                    I(f"s_sleep {sl}")

    def parse(t):
        d = {}
        for item in t.split(","):
            when, what = item.split(":")
            d.setdefault(when, []).append((int(what[0]), 0 if what[1] == "e" else 1))
        return d
    xsX = parse(opt.get("xsx") or opt["xs"])
    xsN = parse(opt["xs"])
    xs = xsX if X else xsN
    seen = set()

    def xsched(when):
        if kind != "n":
            for p, par in xs.get(when, []):
                xl(p, par)
            return
        a, b = xsX.get(when, []), xsN.get(when, [])
        for it in a + [t for t in b if t not in a]:
            both = it in a and it in b
            if not both:
                lab = f"L_XS{when}_{it[0]}{it[1]}"
                I(f"s_cmp_eq_u32 s{sHASX}, {1 if it in a else 0}")
                I(f"s_cbranch_scc0 {lab}")
            keep = list(e.vm)
            xl(*it)
            if not both:
                e.label(lab)
                if it not in seen:
                    e.vm = keep
                seen.add(it)

    pend = []
    novalu = [False]
    pace = [0, 0]

    def xpace(per, nvalu):
        for p, par in xs.get(f"{per}p", []):
            pend.extend([lambda j=j, p=p: xload(e, p, j) for j in range(par, 10, 2)])
            if X:
                pend.extend([lambda j=j, p=p: eload(e, p, j) for j in range(par, 6, 2)])
        if pend:
            pace[0] = max(1, nvalu // len(pend))
            pace[1] = 0

    def V(s):
        if not (opt["d_nov"] and novalu[0]):
            I(s)
        pace[1] += 1
        if pend and pace[1] % pace[0] == 0:
            pend.pop(0)()

    def later(f):
        if not opt["wsp"]:
            return f()
        if not pend:
            pace[0], pace[1] = opt["wsp"], 0
        pend.append(f)

    def flush():
        while pend:
            pend.pop(0)()

    def unp(dst, src):
        V(f"v_lshlrev_b32 v{dst}, 16, v{src}")
        V(f"v_and_b32 v{dst+1}, s{sMASK}, v{src}")

    def vwrite(addr, src, u):
        if opt["d_now"] and u >= 2:
            return
        e.lds(f"ds_write_b128 v{addr}, {vr(src)} offset:{VS[u % 3]}")

    T16 = list(range(13, 26)) + [54, 55, 56]

    def chainA(D, n, par, neg, waddr, u, ob, wf=False):
        op = "v_subrev_f32" if neg else "v_sub_f32"
        A, B = T16[:8], T16[8:]

        def unp8(R, src):
            for k in range(4):
                V(f"v_lshlrev_b32 v{R[2*k]}, 16, v{src+k}")
                V(f"v_and_b32 v{R[2*k+1]}, s{sMASK}, v{src+k}")
        unp8(A, D(par))
        for j in range(n):
            unp8(B, D(par + 2 * j + 2))
            for k in range(8):
                V(f"{op} v{A[k]}, v{A[k]}, v{B[k]}")
            for k in range(4):
                V(f"v_cvt_pk_bf16_f32 v{ob + 4*(j & 1) + k}, v{A[2*k]}, v{A[2*k+1]}")
            if wf and j == 0:
                waitfree(u, 44)
            vwrite(waddr[j], ob + 4 * (j & 1), u)
            if kind == "w" and u == 1 and opt["wta"] == 10 + j:
                signal()
            if kind == "w" and u == 1 and opt["two"] == 10 + j:
                publish()
            A, B = B, A

    fixed = set()

    def needx(p, pars, ext):
        e.need([f"{'e' if ext else 'x'}{p}_{par}" for par in pars])
        for par in pars:
            if opt["dedup"] and (p, par, ext) not in fixed:
                fixed.add((p, par, ext))
                dst, src = (PX(p, 4 + par), PX(p, par)) if ext else (PD(p, 8 + par), PD(p, par))
                for k in range(4):
                    V(f"v_mov_b32_dpp v{dst+k}, v{src+k} row_shl:4 row_mask:0xf bank_mask:0x7")

    def tA(u, main=True, ext=True):
        kind_, st, p = UNITS[u]
        neg = (st == 1 and any(UNITS[t][0] == "B" for t in range(u)))
        if main:
            needx(p, [st], False)
            if opt["pst"] and u <= 1:
                e.stamp()
            chainA(lambda j: PD(p, j), 4, st, neg, wE, u, OB, True)
        if X and ext:
            needx(p, [st], True)
            chainA(lambda j: PX(p, j), 2, st, neg, wX, u, OB + 8)

    def pairB(d1, d2, o1, o2):
        for k0 in (0, 2):
            for k in (k0, k0 + 1):
                a = TMP + 6 * (k & 1)
                unp(a, d1 + k); unp(a + 2, d2 + k)
            for k in (k0, k0 + 1):
                a = TMP + 6 * (k & 1)
                b, s = a + 2, a + 4
                V(f"v_add_f32 v{s}, v{a}, v{b}"); V(f"v_add_f32 v{s+1}, v{a+1}, v{b+1}")
                V(f"v_sub_f32 v{a}, v{b}, v{a}"); V(f"v_sub_f32 v{a+1}, v{b+1}, v{a+1}")
            for k in (k0, k0 + 1):
                a = TMP + 6 * (k & 1)
                V(f"v_cvt_pk_bf16_f32 v{o1+k}, v{a+4}, v{a+5}")
                V(f"v_cvt_pk_bf16_f32 v{o2+k}, v{a}, v{a+1}")

    npoll = [0]

    def trypoll(final=False):
        if X:
            return
        n = npoll[0]
        npoll[0] += 1
        lab = f"L_PL{kind}{n}"
        I(f"s_cmp_eq_u32 s{sPEND}, 0")
        I(f"s_cbranch_scc1 {lab}_skip")
        if n == 0:
            if opt["pdel"]:
                I(f"s_sleep {opt['pdel']}")
            if opt["four"]:
                I(f"s_getreg_b32 s{sT0}, hwreg(HW_REG_HW_ID, 8, 1)")
                I(f"s_cmp_eq_u32 s{sT0}, 0")
                if opt["four"] == 2:
                    I(f"s_mov_b32 s57, 0x0080c040")
                    I(f"s_cselect_b32 s57, 0x40c08000, s57")
                else:
                    I(f"s_mov_b32 s57, 0x004080c0")
                    I(f"s_cselect_b32 s57, 0x0040c080, s57")
                I(f"s_and_b32 s{sT0}, s57, 255")
                I(f"s_load_dword s{sPOLL}, s[{sDBG}:{sDBG+1}], s{sT0}")
            else:
                I(f"s_load_dword s{sPOLL}, s[{sDBG}:{sDBG+1}], {128 if opt['two'] else 0}")
            e.label(lab + "_skip")
            return
        I("s_waitcnt lgkmcnt(0)")
        tgt = 0 if opt["noatom"] else NW[0]
        if final:
            I(f"s_mov_b32 s{sCNT}, {n}")
            I(f"v_mov_b32 v255, 0")
            e.label(lab)
            I(f"s_cmp_ge_u32 s{sPOLL}, {tgt}")
            I(f"s_cbranch_scc1 {lab}_ok")
            I(f"s_sleep {opt['pslp']}")
            I(f"s_cmp_ge_u32 s{sCNT}, {2 if opt['two'] and not opt['four'] else 4}")
            I(f"s_cbranch_scc1 {lab}_v")
            if opt["four"]:
                I(f"s_lshr_b32 s57, s57, 8")
                I(f"s_and_b32 s{sT0}, s57, 255")
            else:
                I(f"s_lshl_b32 s{sT0}, s{sCNT}, 6")
            if opt["two"] and not opt["four"]:
                I(f"s_add_u32 s{sT0}, s{sT0}, 128")
            I(f"s_load_dword s{sPOLL}, s[{sDBG}:{sDBG+1}], s{sT0}")
            I(f"s_add_u32 s{sCNT}, s{sCNT}, 1")
            I("s_waitcnt lgkmcnt(0)")
            I(f"s_branch {lab}")
            e.label(lab + "_v")
            I(f"global_load_dword v254, v255, s[{sDBG}:{sDBG+1}] offset:{128 if opt['two'] else 0} sc1")
            I(f"s_add_u32 s{sCNT}, s{sCNT}, 1")
            I("s_waitcnt vmcnt(0)")
            I(f"v_readfirstlane_b32 s{sPOLL}, v254")
            I(f"s_cmp_lt_u32 s{sCNT}, 20000")
            I(f"s_cbranch_scc1 {lab}")
        else:
            I(f"s_cmp_ge_u32 s{sPOLL}, {tgt}")
            I(f"s_cbranch_scc1 {lab}_ok")
            I(f"s_load_dword s{sPOLL}, s[{sDBG}:{sDBG+1}], {64*n + (128 if opt['two'] else 0)}")
            I(f"s_branch {lab}_skip")
        e.label(lab + "_ok")
        if opt["pst"]:
            I(f"s_memrealtime s[{sST + 2*pslot[0]}:{sST + 2*pslot[0] + 1}]")
            I(f"s_mov_b32 s{sST + 2*pslot[0] + 2}, " + (f"s{sCNT}" if final else f"{n}"))
        I("ds_write_b32 v250, v251")
        I(f"s_mov_b32 s{sPEND}, 0")
        for t in range(opt["nraw"] // 2, upf_from[0]):
            upf(t, f"_{n}")
        e.label(lab + "_skip")

    pslot = [0]

    def wpoint():
        pollflag(31, f"L_WI{kind}", opt["psl"], 20)
        if opt["otlb"] == 2 or (opt["otlb"] == 1 and kind == "w"):
            I("s_mov_b64 exec, 1")
            e.vmem(f"buffer_load_dword v254, v{xB}, s[{sO}:{sO+3}], 0 offen")
            I("s_mov_b64 exec, -1")
        xsched("w")

    def tB1(u):
        p = UNITS[u][2]
        e.need([f"x{p}_0", f"x{p}_1"] + ([f"e{p}_0", f"e{p}_1"] if X else []))
        needx(p, [0], False)
        if X:
            needx(p, [0], True)
        for ee in range(4):
            pairB(PD(p, 1 + 2 * ee), PD(p, 2 + 2 * ee), OB + 4 * (ee & 1), OB + 8 + 4 * ee)
            if ee == 0:
                waitfree(u)
                xpace(u, 200 if X else 120)
            vwrite(wE[ee], OB + 4 * (ee & 1), u)
            if u == 2 and ee == opt["wat"]:
                wpoint()
            if u == 2 and ee >= opt["pat"]:
                if ee == opt["pat"] and opt["pst"] and not X:
                    pslot[0] = e.nst
                    e.nst += 2
                trypoll()
                if ee == 3:
                    trypoll(final=True)
        if X:
            e.need([f"e{p}_0", f"e{p}_1"])
            for ee in range(2):
                pairB(PX(p, 1 + 2 * ee), PX(p, 2 + 2 * ee), OB + 4 * ee, OB + 24 + 4 * ee)
                vwrite(wX[ee], OB + 4 * ee, u)
        flush()
        ready(u)

    def tB2(u):
        waitfree(u + 1)
        xsched(f"f{u}")
        for ee in range(4):
            vwrite(wE[ee], OB + 8 + 4 * ee, u + 1)
        if X:
            for ee in range(2):
                vwrite(wX[ee], OB + 24 + 4 * ee, u + 1)
        ready(u + 1)

    n1 = 1 if X else opt["n1"]

    def bar():
        e.drain_lg()
        if not opt["pst"] or e.nst < 15:
            e.stamp()
        I("s_barrier")

    def atom_mark():
        assert not e.vm
        e.vm.append("atom")

    def signal():
        e.jit(60)
        e.need("ust")
        if opt["pst"]:
            e.stamp()
        I(f"v_mov_b32 v{eA}, {FLAGS + 15*16 + 4}")
        I("s_mov_b64 exec, 1")
        I(f"ds_add_rtn_u32 v{eC}, v{eA}, v251")
        I("s_waitcnt lgkmcnt(0)")
        e.lg = []
        I(f"v_readfirstlane_b32 s{sT0}, v{eC}")
        if opt["w8"] == 2:
            I(f"s_mov_b32 s{sT0}, 0")
            I(f"s_cmp_eq_u32 s{sPW}, 3")
            I("s_cbranch_scc0 L_W8B")
            e.label("L_W8A")
            I(f"ds_read_b32 v{eC}, v{eA}")
            I("s_waitcnt lgkmcnt(0)")
            I(f"v_readfirstlane_b32 s{sT0}, v{eC}")
            I(f"s_cmp_eq_u32 s{sT0}, 8")
            I("s_cbranch_scc0 L_W8A")
            I(f"s_mov_b32 s{sT0}, 3")
            e.label("L_W8B")
        if opt["two"] == 3:
            I("s_mov_b64 exec, -1")
            I(f"s_cmp_eq_u32 s{sT0}, 3")
            I("s_cbranch_scc0 L_NOATOM")
            I(f"s_mov_b32 s{sT0}, 1")
            I(f"s_atomic_add s{sT0}, s[{sDBG}:{sDBG+1}], 0 glc")
            I("s_waitcnt lgkmcnt(0)")
            I(f"s_cmp_eq_u32 s{sT0}, {NW[0] - 1}")
            I("s_cbranch_scc0 L_NOATOM")
            I(f"s_mov_b32 s{sT0}, {NW[0]}")
            I(f"s_mov_b32 s{sT1}, {NW[0]}")
            I(f"s_atomic_add s{sT0}, s[{sDBG}:{sDBG+1}], 128 glc")
            I(f"s_atomic_add s{sT1}, s[{sDBG}:{sDBG+1}], 192 glc")
            I("s_waitcnt lgkmcnt(0)")
            e.label("L_NOATOM")
            return
        if opt["two"]:
            I(f"v_mov_b32 v{eC}, 0")
        I(f"s_cmp_eq_u32 s{sT0}, 3")
        I("s_cbranch_scc0 L_NOATOM")
        if opt["two"]:
            if opt["four"] == 2:
                I("s_mov_b64 exec, 3")
            I(f"v_lshlrev_b32 v{eA}, 6, v0")
            I(f"v_mov_b32 v{eC}, 1")
            I(f"global_atomic_add v{eC}, v{eA}, v{eC}, s[{sDBG}:{sDBG+1}] sc0 sc1")
        else:
            I("s_mov_b64 exec, 15")
            I(f"v_lshlrev_b32 v{eA}, 6, v0")
            if not opt["noatom"]:
                I(f"global_atomic_add v{eA}, v251, s[{sDBG}:{sDBG+1}] sc1")
        e.label("L_NOATOM")
        I("s_mov_b64 exec, -1")
        atom_mark()

    def publish():
        if kind != "w" or not opt["two"]:
            return
        e.need("atom")
        I(f"v_readfirstlane_b32 s{sT0}, v{eC}")
        I(f"s_cmp_eq_u32 s{sT0}, {NW[0] - 1}")
        I("s_cbranch_scc0 L_NOPUB")
        I(f"s_mov_b64 exec, {7 if opt['four'] == 1 else 3}")
        I(f"v_lshlrev_b32 v{eA}, 6, v0")
        I(f"v_mov_b32 v{eC}, {NW[0]}")
        I(f"global_store_dword v{eA}, v{eC}, s[{sDBG}:{sDBG+1}] offset:{64 if opt['four'] == 1 else 128} sc1")
        I("s_mov_b64 exec, -1")
        e.label("L_NOPUB")

    if opt["otlb"] == 1 and kind != "w":
        I("s_mov_b64 exec, 1")
        e.vmem(f"buffer_load_dword v254, v{xB}, s[{sO}:{sO+3}], 0 offen")
        I("s_mov_b64 exec, -1")
    if kind == "w" and opt["wo"] == 0:
        xl(0, 1)
    e.drain_lg()
    e.stamp()
    if not (kind == "w" and opt["wp1"]):
        I("s_barrier")
    if X and opt["p1x"] == 1:
        for j in (1, 3, 5):
            eload(e, 0, j)
    if opt["pro"] == "alpha":
        I("s_barrier")
        if kind != "w" and opt["aord"] == 0:
            xl(0, 1)
    if kind == "w" and opt["wta"] == 0:
        signal()
        if opt["two"] == 1:
            publish()
        if opt["wo"] > 0:
            xl(0, 1)
    tA(0)
    ready(0)
    if kind != "w":
        for j in (1, 3, 5, 7, 9)[opt["xon"]:]:
            xload(e, 0, j)
    if X and opt["p1x"] == 2:
        for j in (1, 3, 5):
            eload(e, 0, j)
    if opt["two"] == 2:
        publish()
    if kind == "w" and opt["wta"] == 1:
        signal()
        if opt["two"] == 1:
            publish()
        if opt["wo"] > 0:
            xl(0, 1)
    if opt["pro"] == "alpha" and kind != "w" and opt["aord"] == 1:
        xl(0, 1)
    xsched("a0")
    tA(1)
    ready(1)
    if kind == "w" and opt["wta"] == 2:
        signal()
    xsched("a1")
    novalu[0] = True
    for u in range(2, 12):
        k, st, p = UNITS[u]
        if k == "A":
            if u == 2:
                wpoint()
            tA(u)
            ready(u)
            if u == opt["pollu"]:
                trypoll()
                trypoll(final=True)
            xsched(f"a{u}")
        elif st == 0:
            tB1(u)
            xsched(f"j{u}")
            tB2(u)
            xsched(f"k{u}")
    if True:
        if True:
            rA, rB, gA, gB, vXL, vXG = 1, 2, 3, 4, 5, 6
            I(f"s_mul_i32 s{sT0}, s{sROW0}, 86016")
            I(f"s_mul_i32 s{sT1}, s{sSTRIP}, 12288")
            I(f"s_add_u32 s{sT0}, s{sT0}, s{sT1}")
            I(f"s_mul_i32 s{sT1}, s{sPW}, 3072")
            I(f"s_add_u32 s{sT0}, s{sT0}, s{sT1}")
            I(f"s_mul_i32 s{sT1}, s{sPW}, 1600")
            I(f"s_add_u32 s{sT1}, s{sT1}, {OUT}")
            for j in range(3 if opt["st2"] else 0):
                I(f"v_add_u32 v{t0}, {64*j}, v0")
                I(f"v_mul_u32_u24 v{t1}, 1366, v{t0}")
                I(f"v_lshrrev_b32 v{t1}, 16, v{t1}")
                I(f"v_mul_u32_u24 v{t2}, 48, v{t1}")
                I(f"v_sub_u32 v{t2}, v{t0}, v{t2}")
                I(f"v_lshlrev_b32 v{t2}, 3, v{t2}")
                I(f"v_mul_u32_u24 v{t3}, 400, v{t1}")
                I(f"v_add3_u32 v{7+j}, v{t3}, v{t2}, s{sT1}")
                I(f"v_mul_u32_u24 v{t3}, 768, v{t1}")
                I(f"v_add3_u32 v{10+j}, v{t3}, v{t2}, s{sT0}")
                I(f"v_add_u32 v{20+j}, {6*OROW}, v{7+j}")
            for (r, gg, add) in ((rA, gA, 0), (rB, gB, 64)):
                I(f"v_add_u32 v{t0}, {add}, v0")
                I(f"v_min_u32 v{t0}, 95, v{t0}")
                I(f"v_mul_u32_u24 v{t1}, 10923, v{t0}")
                I(f"v_lshrrev_b32 v{t1}, 18, v{t1}")
                I(f"v_mul_u32_u24 v{t2}, 24, v{t1}")
                I(f"v_sub_u32 v{t2}, v{t0}, v{t2}")
                I(f"v_lshlrev_b32 v{t2}, 4, v{t2}")
                I(f"v_mul_u32_u24 v{t3}, 400, v{t1}")
                I(f"v_add3_u32 v{r}, v{t3}, v{t2}, s{sT1}")
                I(f"v_mul_u32_u24 v{t3}, 768, v{t1}")
                I(f"v_add3_u32 v{gg}, v{t3}, v{t2}, s{sT0}")
            I(f"v_cmp_gt_u32 vcc, 32, v0")
            I(f"v_mov_b32 v{t4}, s{sINV}")
            I(f"v_add_u32 v250, {6*OROW}, v{rA}")
            I(f"v_cndmask_b32 v{gB}, v{t4}, v{gB}, vcc")
            I(f"v_add_u32 v251, {6*OROW}, v{rB}")
            I(f"s_lshl_b32 s{sT0}, s{sPW}, 2")
            I(f"v_bfe_u32 v{t0}, v0, 3, 2")
            I(f"v_add_u32 v{t0}, s{sT0}, v{t0}")
            I(f"v_and_b32 v{t1}, 7, v0")
            I(f"v_mul_u32_u24 v{t2}, 144, v{t0}")
            I(f"v_lshl_add_u32 v{t2}, v{t1}, 4, v{t2}")
            I(f"v_add_u32 v{vXL}, {XST}, v{t2}")
            I(f"v_mul_u32_u24 v{t0}, 768, v{t0}")
            I(f"v_lshrrev_b32 v{t2}, 1, v{t1}")
            I(f"v_mul_u32_u24 v{t2}, 96, v{t2}")
            I(f"v_and_b32 v{t1}, 1, v{t1}")
            I(f"v_lshl_add_u32 v{t2}, v{t1}, 4, v{t2}")
            I(f"s_mul_i32 s{sT0}, s{sEROW}, 86016")
            I(f"s_mul_i32 s{sT1}, s{sES}, 12288")
            I(f"s_add_u32 s{sT0}, s{sT0}, s{sT1}")
            I(f"s_lshl_b32 s{sT1}, s{sF0}, 5")
            I(f"s_add_u32 s{sT0}, s{sT0}, s{sT1}")
            I(f"v_add3_u32 v{vXG}, v{t0}, v{t2}, s{sT0}")
            I(f"v_cndmask_b32 v{vXG}, v{t4}, v{vXG}, vcc")
    rA, rB, gA, gB, vXL, vXG = 1, 2, 3, 4, 5, 6
    sf = opt["sf"]
    nb = [0]

    def rowread(st, m, b):
        e.jit(40 + m + 6 * st)
        if opt["st2"]:
            for j in range(3):
                I(f"ds_read_b64 {vr(b + 2*j, 2)}, v{(7 if st == 0 else 20) + j} offset:{m*OROW}")
            return
        a0, a1 = (rA, rB) if st == 0 else (250, 251)
        I(f"ds_read_b128 {vr(b)}, v{a0} offset:{m*OROW}")
        I(f"ds_read_b128 {vr(b+4)}, v{a1} offset:{m*OROW}")

    def rowstore(st, m, b, w0=None, w1=None):
        sf = opt["sfl"] if st == 1 and m >= 6 - opt["nlast"] else opt["sf"]
        I(f"s_mov_b32 s{sOFF}, {m*86016}")
        if opt["st2"]:
            for j in range(3):
                if w0: I(f"s_waitcnt lgkmcnt({2-j})")
                I(f"buffer_store_dwordx2 {vr(b + 2*j, 2)}, v{10+j}, s[{sO}:{sO+3}], s{sOFF} offen offset:{384*st} {sf}")
            return
        if w0: I(w0)
        I(f"buffer_store_dwordx4 {vr(b)}, v{gA}, s[{sO}:{sO+3}], s{sOFF} offen offset:{384*st} {sf}")
        if w1: I(w1)
        I(f"buffer_store_dwordx4 {vr(b+4)}, v{gB}, s[{sO}:{sO+3}], s{sOFF} offen offset:{384*st} {sf}")

    def xpart(st, b):
        if kind == "w":
            return
        if kind == "n":
            I(f"s_cmp_eq_u32 s{sHASX}, 0")
            I(f"s_cbranch_scc1 L_NOX{st}")
        pollflag(12 + st, f"L_F{kind}X{st}", opt["slp"])
        I(f"ds_read_b128 {vr(b)}, v{vXL} offset:{2304*st}")
        I("s_waitcnt lgkmcnt(0)")
        I(f"buffer_store_dwordx4 {vr(b)}, v{vXG}, s[{sO}:{sO+3}], 0 offen offset:{384*st}")
        if kind == "n":
            e.label(f"L_NOX{st}")

    batches = [(14, range(6))]
    if opt["ego"]:
        a_, b_ = int(str(opt["ego"])[1]), int(str(opt["ego"])[2])
        batches = [(25, tuple(range(a_))), (26, tuple(range(a_, a_ + b_))), (14, tuple(range(a_ + b_, 6)))]
        batches = [t for t in batches if t[1] or t[0] == 14]
    for k_, rows in batches:
        if rows:
            pollflag(rows[-1], f"L_F{kind}0_{rows[-1]}", opt["psl"])
        for m in rows:
            rowread(0, m, 28 + 8 * m)
        pollflag(k_, f"L_F{kind}GO{k_}", opt["slp"])
        if k_ == 14 and not opt["pst"]:
            e.stamp()
        for m in rows:
            rowstore(0, m, 28 + 8 * m)
    xpart(0, 76)
    for m in [0, 1, "X", 2, 3, 4, 5]:
        if m == "X":
            xpart(1, 80)
            continue
        b = 84 + 8 * m
        pollflag(6 + m, f"L_F{kind}1_{m}", opt["slp"] if m < 4 else opt["slpl"])
        if m in (0, 5) and not opt["pst"]:
            e.stamp()
        rowread(1, m, b)
        rowstore(1, m, b, "s_waitcnt lgkmcnt(1)", "s_waitcnt lgkmcnt(0)")
    e.stamp()
    if opt["stamp"]:
        I("s_waitcnt vmcnt(0)")
        e.stamp()
    e.dump_stamps("p")
    I("s_endpgm")
    return e.L


def generate(**kw):
    opt = dict(DEF)
    opt.update(kw)
    opt["code_pf_lines"] = 20
    UNITS[:] = ORDERS[opt["order"]]
    NW[0] = 28 if opt["w8"] else 56
    assert not opt["wp1"]
    L = []
    L.append(f"; @launch grid=(256,1,1) block=(512,1,1) lds={LDS_BYTES}")
    for t in HEADER.strip("\n").split("\n"):
        L.append(("; " + t).rstrip())
    L.append('.amdgcn_target "amdgcn-amd-amdhsa--gfx950"')
    L.append(".text")
    L.append(f".globl {KNAME}")
    L.append(".p2align 8")
    L.append(f".type {KNAME},@function")
    L.append(f"{KNAME}:")
    e = Em(opt)
    I = e.I
    e.stamp()
    I(f"s_load_dwordx8 s[{sKA}:{sKA+7}], s[0:1], 0")
    I(f"s_load_dwordx4 s[{sDBG}:{sDBG+3}], s[0:1], 32")
    I("v_lshrrev_b32 v1, 6, v0")
    I("s_cmp_ge_u32 s2, 256")
    I("s_cbranch_scc1 L_END")
    I(f"v_readfirstlane_b32 s{sWAVE}, v1")
    I("v_and_b32 v0, 63, v0")
    if opt["epf"]:
        R = opt["epf"]
        I(f"s_getpc_b64 s[{sPC}:{sPC+1}]")
        I(f"s_bfe_u32 s{sT0}, s2, {3 | ((R.bit_length() - 1) << 16)}")
        I(f"v_min_u32 v2, {24 // R - 1}, v0")
        I(f"v_lshl_add_u32 v2, v2, {R.bit_length() - 1}, s{sT0}")
        I(f"v_mul_u32_u24 v1, {CS}, v1")
        I(f"v_lshl_add_u32 v2, v2, 7, v1")
        I(f"v_min_u32 v2, L_END-{KNAME}-256, v2")
        e.vmem(f"global_load_dword v255, v2, s[{sPC}:{sPC+1}]", "epf")
    I(f"s_mov_b32 s{sMASK}, 0xffff0000")
    I(f"s_mov_b32 s{sINV}, 0x80000000")
    I(f"s_lshr_b32 s{sIDX}, s2, 3")
    if opt["par"]:
        I(f"s_and_b32 s{sHASX}, s2, 1")
        I(f"s_xor_b32 s{sHASX}, s{sHASX}, {1 if opt['par'] == 1 else 0}")
        I(f"s_cmp_ge_u32 s{sIDX}, 8")
        I(f"s_cselect_b32 s{sHASX}, s{sHASX}, 0")
    else:
        I(f"s_sub_u32 s{sT0}, s{sIDX}, 7")
        I(f"s_cmp_lt_u32 s{sT0}, 12")
        I(f"s_cselect_b32 s{sHASX}, 1, 0")
    if opt["w8"] == 2:
        I(f"s_and_b32 s{sT0}, s2, 1")
        I(f"s_lshl_b32 s{sT0}, s{sT0}, 5")
        I(f"s_or_b32 s{sT0}, s{sT0}, s{sIDX}")
        I(f"s_cmp_lt_u32 s{sT0}, 7")
        I(f"s_cselect_b32 s{sL}, 1, 0")
    I(f"s_cmp_lt_u32 s{sWAVE}, 4")
    I("s_cbranch_scc1 L_CONS")
    I(f"s_sub_u32 s{sPW}, s{sWAVE}, 4")
    if opt["w8"] == 2:
        I(f"s_cmp_eq_u32 s{sL}, 1")
    elif opt["w8"]:
        I(f"s_and_b32 s{sT0}, s2, 1")
        I(f"s_lshl_b32 s{sT0}, s{sT0}, 5")
        I(f"s_or_b32 s{sT0}, s{sT0}, s{sIDX}")
        I(f"s_cmp_lt_u32 s{sT0}, 7")
    else:
        I(f"s_cmp_lt_u32 s{sIDX}, 7")
    if opt["wnear"] == 3:
        I(f"s_cselect_b32 s{sL}, 1, 0")
        L += e.L
        ep = Em(opt, e)
        worker_pre(ep, opt, 1)
        box = []

        def mid():
            ep.I(f"s_cmp_eq_u32 s{sL}, 0")
            ep.I("s_cbranch_scc1 L_PMAIN")
            w = Em(opt, ep)
            worker_pre(w, opt, 2)
            ep.L += w.L + ["    s_branch L_PW", "L_PMAIN:"]
            w.L = []
            if opt["wo"] != -2:
                for j in (0, 2, 4, 6, 8):
                    xload(w, 0, j)
            box.append(w)
        producer_main(ep, opt, mid=mid)
        epw = box[0]
    else:
        I({0: "s_cbranch_scc1 L_PW", 1: "s_cbranch_scc0 L_PMAIN", 2: "s_cbranch_scc1 L_WPRE"}[opt["wnear"]])
        L += e.L
        epw = Em(opt, e)
        worker_pre(epw, opt)
        wpre = []
        if opt["wnear"]:
            wpre, epw.L = epw.L + ["    s_branch L_PW"], []
        if opt["wnear"] == 1:
            L += wpre + ["L_PMAIN:"]
        producer_main(epw, opt, loads=opt["wo"] != -2)
        ep = Em(opt, e)
        producer_main(ep, opt)
    if not opt["xo"]:
        for j in (1, 3, 5, 7, 9):
            xload(ep, 0, j)
    ep.I(f"s_cmp_eq_u32 s{sHASX}, 0")
    ep.I("s_cbranch_scc1 L_PN")
    ep.I(f"s_cmp_eq_u32 s{sPW}, 3")
    ep.I("s_cbranch_scc1 L_PN")
    L += ep.L
    if opt["wnear"] == 2:
        L += ["    s_branch L_PX", "L_WPRE:"] + wpre + ["L_PX:"]
    L += producer(ep, opt, "x")
    L.append(f".org {KNAME} + {1 * CS}, 0" if opt["epf"] else ".p2align 6")
    L.append("L_PN:")
    L += producer(ep, opt, "n")
    L.append(f".org {KNAME} + {2 * CS}, 0" if opt["epf"] else ".p2align 6")
    L.append("L_PW:")
    L += epw.L
    L += producer(epw, opt, "w")
    L.append(f".org {KNAME} + {3 * CS}, 0" if opt["epf"] else ".p2align 6")
    L.append("L_CONS:")
    ec = Em(opt, e)
    consumer_pro(ec, opt)
    L += ec.L
    L += consumer(ec, opt, True)
    L.append(f".org {KNAME} + {5 * CS}, 0" if opt["epf"] else ".p2align 6")
    L.append("L_CN:")
    L += consumer(ec, opt, False)
    L.append("L_END:")
    L.append("    s_endpgm")
    L.append('.section .rodata,"a"')
    L.append(".p2align 6")
    L.append(f".amdhsa_kernel {KNAME}")
    for d in ("next_free_vgpr 256", "next_free_sgpr 102", "accum_offset 256", "group_segment_fixed_size 0",
              "kernarg_size 48", "user_sgpr_count 2", "user_sgpr_kernarg_segment_ptr 1",
              "system_sgpr_workgroup_id_x 1", "ieee_mode 0", "float_denorm_mode_32 1"):
        L.append("  .amdhsa_" + d)
    L.append(".end_amdhsa_kernel")
    return "\n".join(L) + "\n"


if __name__ == "__main__":
    out = sys.argv[1]
    kw = {}
    for a in sys.argv[2:]:
        k, v = a.split("=", 1)
        try:
            kw[k] = int(v)
        except ValueError:
            try:
                kw[k] = float(v)
            except ValueError:
                kw[k] = v.replace("+", " ")
    open(out, "w").write(generate(**kw))
```

```python
import sys, os
sys.path.insert(0, os.path.dirname(os.path.abspath(__file__)))
from cost import gapcost

KNAME = "standalone__standard_2d_1d_3d_conv__vision_kernel"

HEADER = """
3x3 same-padding convolution + bias, NHWC bf16, 224x224x192 -> 192 (kernarg: x, w, b, out, debug, ws).
Written out by the author's generator script (gen/gen7.py); no compiler output.

Method: exact Winograd F(2,3) along W. For an output pixel pair (y0, y1) and inputs d0..d3 of one row:
  V0=d0-d2  V1=d1+d2  V2=d2-d1  V3=d1-d3      U0=g0  U1=(g0+g1+g2)/2  U2=(g0-g1+g2)/2  U3=g2
  m_p = sum over (kernel row i, channel) of V_p * U_p ;  y0 = m0+m1+m2+b ,  y1 = m1-m2-m3+b
V and U are formed in fp32 and rounded once to bf16; all sums are fp32 MFMA accumulations.
Two accumulator sets are enough: m0/m3 ("A" units) add in the (y0, y1) basis, m1/m2 ("B" units) in the
((y0+y1)/2, (y0-y1)/2) basis; one butterfly switches basis each way (unit order A A | B x6 | A x4).

One workgroup per CU: 6 rows x 32 pixels x 192 channels; 96 workgroups also take one third of the
channels of one of the 32 rows left over. Waves 0-3: v_mfma_f32_16x16x32_bf16, 48 channels each; a V row
fragment is used for the three kernel rows. Waves 4-7: load x, form V into a 3-slot LDS ring, and at the
end move the staged bf16 output from LDS to memory in whole lines. The waves meet through LDS flags.
Weights: the first two units transpose raw w through LDS (ds_read_b64_tr_b16); meanwhile 56 workgroups
write U in fragment order to ws (write-through), count themselves in debug[0], and the last one raises
debug[16]/[32]/[48]; each workgroup looks at one of these words before its first read of U. Single-dword loads whose
result is not used only bring code or weight lines into L2. Sleeps occur only inside wait loops.
"""

DEF = dict(
    stamp=0, spin=4000, spinref=0, cst=-1, cev=8, pst=0,
    xf="", sf="nt", uf="sc1",
    code_pf=1, w_pf=1,
    prio=0, slp=1,
    pro="beta",
    xs="w:1e,w:1o,4p:2e,k4:2o",
    dsp=4.5,
    ustep=3, ulead=12,
    lag=-1,
    go=23,
    noatom=0, u_pf=0, pollp=1, pollat=-2, n1=1, y0at=0, gam=0, psl=2, epf=2, xo=1, w1late=0, otlb=0, aord=0, rsh=0, dd=0, wta=0, d_xcc=0, d_jit=0, d_st=0, four=1, d_skew=0, p1x=0, xon=5, par=0, wnear=0, w8=0, dedup=0, two=2, d_sl=0, ego=0, st2=1, wp1=0, pdel=0, nraw=4, pollu=2, pslp=4, trd=9, d_now=0, d_nov=0, d_nou=0, sfl='sc1', nlast=0, slpl=0, ustep0=5, order=2, wat=1, pat=3, rpf=1, rlead=0, wsp=10, pollw=0, w2pre=0, tr1at=4, wo=2, ulead0=0,
)

VSLOT = 22528
VHALF = 11264
VS = [0, VSLOT, 2 * VSLOT]
FLAGS = 3 * VSLOT
WRING = FLAGS + 512
WWAVE = 18432
OROW = 6400
OUT = WRING
XST = OUT + 12 * OROW
PRE = VS[1]
LDS_BYTES = XST + 4608
NW = [56]
CS = 12800

XBYTES = 224 * 224 * 384
WBYTES = 9 * 192 * 384
UBYTES = 24 * 36864

ORDERS = {
    2: [("A", 0, 0), ("A", 1, 0),
        ("B", 0, 0), ("B", 1, 0), ("B", 0, 1), ("B", 1, 1), ("B", 0, 2), ("B", 1, 2),
        ("A", 0, 1), ("A", 0, 2), ("A", 1, 1), ("A", 1, 2)],
    3: [("A", 0, 0), ("A", 1, 0), ("A", 0, 1),
        ("B", 0, 0), ("B", 1, 0), ("B", 0, 1), ("B", 1, 1), ("B", 0, 2), ("B", 1, 2),
        ("A", 0, 2), ("A", 1, 1), ("A", 1, 2)],
    1: [("A", 0, 0), ("A", 1, 0), ("A", 0, 1), ("A", 1, 1),
        ("B", 0, 0), ("B", 1, 0), ("B", 0, 1), ("B", 1, 1), ("B", 0, 2), ("B", 1, 2),
        ("A", 0, 2), ("A", 1, 2)],
}
UNITS = list(ORDERS[2])


def step_info(s):
    kind, st, pair = UNITS[s >> 1]
    return kind, st, 2 * pair + (s & 1)


sX, sW, sO, sU, sB = 4, 8, 12, 16, 20
sDBG, sWS, sKA = 24, 26, 28
sWAVE, sL, sSTRIP, sROW0, sHASX, sES, sEROW = 36, 37, 38, 39, 40, 41, 42
sF0, sF1, sF2, sIDX = 43, 44, 45, 46
sT0, sT1, sT2, sT3 = 47, 48, 49, 50
sMASK, sRING, sOFF, sOFF2, sPW = 51, 52, 53, 54, 55
sPC, sCNT, sINV = 56, 58, 59
sPOLL, sPEND = 3, 56
sST = 60


NSPIN = [0]


class Em:
    def __init__(self, opt, parent=None):
        self.L = []
        self.lg = list(parent.lg) if parent else []
        self.vm = list(parent.vm) if parent else []
        self.opt = opt
        self.nst = parent.nst if parent else 0

    def I(self, s):
        self.L.append("    " + s)

    def label(self, s):
        self.L.append(s + ":")

    def lds(self, s, name=None):
        self.I(s)
        self.lg.append(name)

    def vmem(self, s, name=None):
        self.I(s)
        self.vm.append(name)

    def need(self, names):
        if isinstance(names, str):
            names = [names]
        w = []
        k = max([i for i, n in enumerate(self.vm) if n in names], default=-1)
        if k >= 0:
            n = min(len(self.vm) - 1 - k, 63)
            w.append(f"vmcnt({n})")
            self.vm = self.vm[len(self.vm) - n:] if n else []
        k = max([i for i, n in enumerate(self.lg) if n in names], default=-1)
        if k >= 0:
            n = min(len(self.lg) - 1 - k, 15)
            w.append(f"lgkmcnt({n})")
            self.lg = self.lg[len(self.lg) - n:] if n else []
        if w:
            self.I("s_waitcnt " + " ".join(w))

    def drain_lg(self):
        self.I("s_waitcnt lgkmcnt(0)")
        self.lg = []

    def drain_vm(self):
        self.I("s_waitcnt vmcnt(0)")
        self.vm = []

    def stamp(self):
        o = self.opt
        if o["stamp"] == 4 and self.nst != o["spinref"]:
            self.nst += 1
        elif o["stamp"]:
            r = sST + 2 * self.nst
            assert r + 1 < 100, "too many stamps"
            self.I(f"s_memrealtime s[{r}:{r+1}]" if o["stamp"] in (1, 4) else f"s_memtime s[{r}:{r+1}]")
            self.nst += 1

    def jit(self, k):
        if not self.opt["d_jit"]:
            return
        NSPIN[0] += 1
        n = NSPIN[0]
        self.I(f"s_mul_i32 s98, s2, {7 + 2*k}")
        self.I(f"s_mul_i32 s99, s{sWAVE}, {5 + 6*k}")
        self.I("s_add_u32 s98, s98, s99")
        self.I(f"s_add_u32 s98, s98, {self.opt['d_jit'] * 3 + k}")
        self.I("s_and_b32 s98, s98, 7")
        self.I("s_cmp_lt_u32 s98, 5")
        self.I(f"s_cbranch_scc1 L_JIT{n}")
        self.I(f"s_sleep {20 + 9*(k % 5)}")
        self.label(f"L_JIT{n}")

    def dump_stamps(self, role):
        o = self.opt
        if not o["stamp"]:
            return
        self.I("s_waitcnt vmcnt(0) lgkmcnt(0)")
        if o["stamp"] == 4:
            if o["spinref"] and role != "c":
                return
            NSPIN[0] += 1
            lab = f"L_SPIN{NSPIN[0]}"
            self.label(lab)
            self.I(f"s_memrealtime s[{sT1}:{sT1+1}]")
            self.I("s_waitcnt lgkmcnt(0)")
            self.I(f"s_sub_u32 s{sT0}, s{sT1}, s{sST + 2*o['spinref']}")
            if o["d_xcc"] == 2:
                self.I(f"s_getreg_b32 s{sT3}, hwreg(HW_REG_XCC_ID)")
                self.I(f"s_and_b32 s{sT3}, s{sT3}, 15")
                self.I(f"s_mul_i32 s{sT3}, s{sT3}, 300")
                self.I(f"s_add_u32 s{sT3}, s{sT3}, {o['spin']}")
                self.I(f"s_cmp_eq_u32 s2, 0")
                self.I(f"s_cselect_b32 s{sT3}, s{sT3}, 0")
                self.I(f"s_cmp_lt_u32 s{sT0}, s{sT3}")
            else:
                self.I(f"s_cmp_lt_u32 s{sT0}, {o['spin']}")
            self.I(f"s_cbranch_scc1 {lab}")
            return
        self.I(f"s_lshl_b32 s{sT0}, s2, 3")
        self.I(f"s_add_u32 s{sT0}, s{sT0}, s{sWAVE}")
        self.I(f"s_lshl_b32 s{sT0}, s{sT0}, 8")
        self.I(f"s_add_u32 s{sT0}, s{sT0}, 0x100000")
        self.I(f"v_mov_b32 v1, s{sT0}")
        for i in range(self.nst):
            self.I(f"v_mov_b32 v2, s{sST + 2*i}")
            self.I(f"global_store_dword v1, v2, s[{sWS}:{sWS+1}] offset:{4*i}")
        self.I(f"v_mov_b32 v2, {self.nst}")
        self.I(f"global_store_dword v1, v2, s[{sWS}:{sWS+1}] offset:252")
        self.I(f"s_getreg_b32 s{sT0}, hwreg(HW_REG_XCC_ID)")
        self.I(f"v_mov_b32 v2, s{sT0}")
        self.I(f"global_store_dword v1, v2, s[{sWS}:{sWS+1}] offset:248")


def vr(a, n=4):
    return f"v[{a}:{a+n-1}]"


def srd(e, s, lo, nbytes, bias=0):
    if bias:
        e.I(f"s_sub_u32 s{s}, s{lo}, {bias}")
        e.I(f"s_subb_u32 s{s+1}, s{lo+1}, 0")
    else:
        e.I(f"s_mov_b32 s{s}, s{lo}")
        e.I(f"s_mov_b32 s{s+1}, s{lo+1}")
    e.I(f"s_mov_b32 s{s+2}, {nbytes + bias}")
    e.I(f"s_mov_b32 s{s+3}, 0x20000")


def decode_main(e):
    I = e.I
    I(f"s_and_b32 s{sT0}, s2, 7")
    I(f"s_lshl_b32 s{sT0}, s{sT0}, 5")
    I(f"s_add_u32 s{sT0}, s{sT0}, s{sIDX}")
    I(f"s_mul_i32 s{sT0}, s{sT0}, 7")
    I(f"s_lshr_b32 s{sSTRIP}, s{sT0}, 8")
    I(f"s_and_b32 s{sT0}, s{sT0}, 255")
    I(f"s_mul_i32 s{sT0}, s{sT0}, 293")
    I(f"s_lshr_b32 s{sT0}, s{sT0}, 11")
    I(f"s_mul_i32 s{sROW0}, s{sT0}, 6")


def decode_extra(e):
    I = e.I
    if e.opt["par"]:
        I(f"s_bfe_u32 s{sT0}, s2, {1 | (2 << 16)}")
        I(f"s_mul_i32 s{sT0}, s{sT0}, 24")
        I(f"s_add_u32 s{sT0}, s{sT0}, s{sIDX}")
        I(f"s_sub_u32 s{sT0}, s{sT0}, 8")
    else:
        I(f"s_and_b32 s{sT0}, s2, 7")
        I(f"s_mul_i32 s{sT0}, s{sT0}, 12")
        I(f"s_add_u32 s{sT0}, s{sT0}, s{sIDX}")
        I(f"s_sub_u32 s{sT0}, s{sT0}, 7")
    I(f"s_mul_i32 s{sT1}, s{sT0}, 21846")
    I(f"s_lshr_b32 s{sT1}, s{sT1}, 16")
    I(f"s_mul_i32 s{sT2}, s{sT1}, 3")
    I(f"s_sub_u32 s{sF0}, s{sT0}, s{sT2}")
    I(f"s_cmp_eq_u32 s{sHASX}, 1")
    I(f"s_cselect_b32 s{sF0}, s{sF0}, 0")
    I(f"s_cselect_b32 s{sT1}, s{sT1}, 0")
    I(f"s_lshl_b32 s{sES}, s{sT1}, 1")
    I(f"s_and_b32 s{sES}, s{sES}, 12")
    I(f"s_lshr_b32 s{sES}, 0x5310, s{sES}")
    I(f"s_and_b32 s{sES}, s{sES}, 15")
    I(f"s_and_b32 s{sEROW}, s{sT1}, 1")
    I(f"s_add_u32 s{sEROW}, s{sEROW}, 222")
    I(f"s_lshr_b32 s{sT3}, s{sT1}, 3")
    I(f"s_lshl_b32 s{sT3}, s{sT3}, 1")
    I(f"s_and_b32 s{sT2}, s{sT1}, 7")
    I(f"s_add_u32 s{sT2}, s{sT2}, 216")
    I(f"s_cmp_lt_u32 s{sT1}, 8")
    I(f"s_cselect_b32 s{sES}, s{sES}, s{sT3}")
    I(f"s_cselect_b32 s{sEROW}, s{sEROW}, s{sT2}")


def consumer_pro(e, opt):
    I = e.I
    vV, vV2, vT = 1, 2, 3
    vD = [4, 5, 6]
    vU = [7, 253, 254]
    t0, t1, t2, t3, t4 = 8, 9, 10, 11, 12
    sF = [sF0, sF1, sF2]
    if opt["w8"] == 2:
        I(f"s_cmp_eq_u32 s{sL}, 0")
        I("s_cbranch_scc1 L_CW0")
        keep = list(e.vm)
        worker_pre(e, opt, cons=True)
        e.vm = keep
        e.label("L_CW0")
    decode_extra(e)
    I(f"s_add_u32 s{sF1}, s{sF0}, 1")
    I(f"s_cmp_eq_u32 s{sF1}, 3")
    I(f"s_cselect_b32 s{sF1}, 0, s{sF1}")
    I(f"s_add_u32 s{sF2}, s{sF1}, 1")
    I(f"s_cmp_eq_u32 s{sF2}, 3")
    I(f"s_cselect_b32 s{sF2}, 0, s{sF2}")
    I(f"v_lshrrev_b32 v{t0}, 4, v0")
    I(f"s_mul_i32 s{sT0}, s{sWAVE}, 96")
    I(f"v_lshlrev_b32 v{t4}, 3, v{t0}")
    I(f"v_add_u32 v{t4}, s{sT0}, v{t4}")
    for s in range(3):
        I(f"s_lshl_b32 s{sT1}, s{sF[s]}, 5")
        I(f"v_add_u32 v{13+s}, s{sT1}, v{t4}")
    if opt["w_pf"]:
        I(f"s_mul_i32 s{sT1}, s{sIDX}, 36")
        I(f"v_min_u32 v{t1}, 35, v0")
        I(f"v_add_u32 v{t1}, s{sT1}, v{t1}")
        I(f"v_mul_u32_u24 v{t2}, 10923, v{t1}")
        I(f"v_lshrrev_b32 v{t2}, 21, v{t2}")
        I(f"v_add_u32 v{t3}, 1, v{t2}")
        I(f"v_lshrrev_b32 v{t3}, 1, v{t3}")
        I(f"v_mul_u32_u24 v{t3}, 576, v{t3}")
        I(f"v_mul_u32_u24 v{t2}, 384, v{t2}")
        I(f"v_add3_u32 v{t1}, v{t1}, v{t2}, v{t3}")
        I(f"s_mul_i32 s{sT1}, s{sWAVE}, {192*128}")
        I(f"s_add_u32 s{sT1}, s{sT1}, 2048")
        I(f"v_lshl_add_u32 v252, v{t1}, 7, s{sT1}")
    I("s_waitcnt lgkmcnt(0)")
    srd(e, sB, sKA + 4, 384)
    srd(e, sW, sKA + 2, WBYTES, 2048)
    srd(e, sU, sWS, UBYTES)
    if opt["w_pf"]:
        I(f"s_cmp_ge_u32 s{sWAVE}, {1 if opt['nraw'] == 4 else 2}")
        I("s_cbranch_scc1 L_NOWPF")
        I(f"buffer_load_dword v255, v252, s[{sW}:{sW+3}], 0 offen")
        e.label("L_NOWPF")
    if opt["code_pf"]:
        I(f"s_cmp_eq_u32 s{sWAVE}, 2")
        I("s_cbranch_scc0 L_NOCPF")
        I(f"s_getpc_b64 s[{sPC}:{sPC+1}]")
        e.label("L_PC0")
        I(f"s_sub_u32 s{sPC}, s{sPC}, L_PC0-{KNAME}")
        I(f"s_subb_u32 s{sPC+1}, s{sPC+1}, 0")
        I(f"s_mul_i32 s{sT1}, s{sIDX}, {opt['code_pf_lines']*128}")
        I(f"v_min_u32 v252, {opt['code_pf_lines']-1}, v0")
        I(f"v_lshl_add_u32 v252, v252, 7, s{sT1}")
        I(f"v_min_u32 v252, L_END-{KNAME}, v252")
        I(f"global_load_dword v255, v252, s[{sPC}:{sPC+1}]")
        e.label("L_NOCPF")
    if opt["d_xcc"] == 1:
        I(f"s_cmp_lt_u32 s2, 12")
        I("s_cbranch_scc0 L_NOXCC")
        I(f"s_getreg_b32 s{sT1}, hwreg(HW_REG_XCC_ID)")
        I(f"s_lshl_b32 s{sT2}, s2, 2")
        I(f"v_mov_b32 v22, s{sT1}")
        I(f"v_mov_b32 v23, s{sT2}")
        I(f"global_store_dword v23, v22, s[{sDBG}:{sDBG+1}] offset:16")
        e.label("L_NOXCC")
    for s in range(3):
        e.vmem(f"buffer_load_dwordx2 {vr(16+2*s, 2)}, v{13+s}, s[{sB}:{sB+3}], 0 offen", "bias")
    I(f"v_and_b32 v{t1}, 15, v0")
    I(f"v_xor_b32 v{t2}, v{t0}, v{t1}")
    I(f"v_lshl_add_u32 v{t2}, v{t0}, 4, v{t2}")
    I(f"v_lshlrev_b32 v{vV}, 4, v{t2}")
    I(f"v_add_u32 v{vV2}, 0x8000, v{vV}")
    I(f"s_mul_i32 s{sRING}, s{sWAVE}, {WWAVE}")
    I(f"s_add_u32 s{sRING}, s{sRING}, {WRING}")
    I(f"v_lshrrev_b32 v{t2}, 2, v0")
    I(f"v_mul_u32_u24 v{t2}, 96, v{t2}")
    I(f"v_and_b32 v{t3}, 3, v0")
    I(f"v_lshl_add_u32 v{t2}, v{t3}, 3, v{t2}")
    I(f"v_add_u32 v{vT}, s{sRING}, v{t2}")
    for d in range(3):
        I(f"v_add_u32 v{t1}, {64*d}, v0")
        I(f"v_mul_u32_u24 v{t2}, 43691, v{t1}")
        I(f"v_lshrrev_b32 v{t2}, 18, v{t2}")
        I(f"v_mul_u32_u24 v{t3}, 6, v{t2}")
        I(f"v_sub_u32 v{t1}, v{t1}, v{t3}")
        I(f"v_bfe_u32 v{t3}, v{t2}, 2, 2")
        I(f"v_lshlrev_b32 v{t3}, 3, v{t3}")
        I(f"v_lshrrev_b32 v{t4}, 4, v{t2}")
        I(f"v_lshl_add_u32 v{t3}, v{t4}, 2, v{t3}")
        I(f"v_and_b32 v{t2}, 3, v{t2}")
        I(f"v_add_u32 v{t2}, v{t2}, v{t3}")
        I(f"v_mul_u32_u24 v{t2}, 384, v{t2}")
        I(f"v_lshrrev_b32 v{t3}, 1, v{t1}")
        I(f"v_add_u32 v{t3}, s{sF0}, v{t3}")
        I(f"v_subrev_u32 v{t4}, 3, v{t3}")
        I(f"v_min_u32 v{t3}, v{t3}, v{t4}")
        I(f"v_lshl_add_u32 v{t2}, v{t3}, 5, v{t2}")
        I(f"v_and_b32 v{t1}, 1, v{t1}")
        I(f"v_lshl_add_u32 v{t2}, v{t1}, 4, v{t2}")
        I(f"v_add_u32 v{t2}, s{sT0}, v{t2}")
        I(f"v_add_u32 v{vD[d]}, {2048 - 1024*d}, v{t2}")
    I(f"s_mul_i32 s{sT1}, s{sWAVE}, 9216")
    for s in range(3):
        I(f"s_mul_i32 s{sT0}, s{sF[s]}, 3072")
        I(f"s_add_u32 s{sT0}, s{sT0}, s{sT1}")
        I(f"v_lshl_add_u32 v{vU[s]}, v0, 4, s{sT0}")
    if opt["w8"] == 2:
        I(f"s_cmp_eq_u32 s{sL}, 0")
        I("s_cbranch_scc1 L_CW1")
        w = Em(opt, e)
        w.vm = ["pre0"] + ["x"] * 3
        w.I(f"v_lshrrev_b32 v98, 2, v0")
        w.I(f"v_lshlrev_b32 v98, 5, v98")
        w.I(f"v_and_b32 v99, 3, v0")
        w.I(f"v_lshl_add_u32 v98, v99, 3, v98")
        w.I(f"v_add_u32 v98, s{sPOLL}, v98")
        prepass(w, dict(opt, pst=0), 0, 100, 120, 97, 98)
        e.L += w.L
        e.label("L_CW1")
    I(f"s_cmp_eq_u32 s{sHASX}, 0")
    I("s_cbranch_scc1 L_CN")


def consumer(parent, opt, extra):
    e = Em(opt, parent)
    I = e.I
    vV, vV2, vT = 1, 2, 3
    vD = [4, 5, 6]
    vU = [7, 253, 254]
    vO = vD
    vOX, vFL, vONE, vCK = 3, 255, 252, 0
    VR = 8
    WB = [24, 60]
    ACC = 96
    acc = {}
    for m in range(6):
        for st in range(2):
            for s in range(3):
                acc[(m, st, s)] = ACC + 4 * ((m * 2 + st) * 3 + s)
    acc[("X", 0)] = 240
    acc[("X", 1)] = 244
    spare = [248]
    sF = [sF0, sF1, sF2]
    tag = "x" if extra else "n"

    def W(step, i, s):
        return WB[step & 1] + 4 * (i * 3 + s)

    def dma_ops(step, i):
        kind, st, c = step_info(step)
        slot = (step & 1) * 3 + i
        ops = [("S", lambda: I(f"s_add_u32 m0, s{sRING}, {slot*3072}")),
               ("S", lambda: I(f"s_mov_b32 s{sOFF2}, {(i*3+2*st)*73728 + c*12288}"))]
        for d in range(3):
            def f(d=d):
                e.need([f"w{step-2}_{i}"])
                e.vmem(f"buffer_load_dwordx4 v{vD[d]}, s[{sW}:{sW+3}], s{sOFF2} offen offset:{1024*d} lds", f"dma{step}_{i}")
            ops.append(("M", f))
        return ops

    def tr_ops(step, i):
        slot = (step & 1) * 3 + i
        ops = []
        for s in range(3):
            for h in range(2):
                def f(s=s, h=h):
                    e.need([f"dma{step}_{i}"])
                    e.lds(f"ds_read_b64_tr_b16 {vr(W(step, i, s) + 2*h, 2)}, v{vT} offset:{slot*3072 + h*1536 + s*32}", f"w{step}_{i}")
                ops.append(("WR" if s == 0 and h == 0 else "R", f))
        return ops

    def u_op(step, i, s):
        if opt["d_nou"] and step > 9:
            return ("S", lambda: I("s_nop 0"))
        return ("M", lambda: e.vmem(f"buffer_load_dwordx4 {vr(W(step, i, s))}, v{vU[s]}, s[{sU}:{sU+3}], s{sOFF} offen offset:{1024*i} {opt['uf']}", f"w{step}_{i}"))

    def u_off(step):
        kind, st, c = step_info(step)
        pos = st if kind == "B" else 2 + st
        return ("S", lambda: I(f"s_mov_b32 s{sOFF}, {(pos*6+c)*36864}"))

    I(f"v_lshlrev_b32 v8, 3, v0")
    I(f"v_add_u32 v8, {FLAGS}, v8")
    I(f"v_mov_b32 v10, 0")
    I(f"v_mov_b32 v11, 0")
    I(f"ds_write_b64 v8, v[10:11]")
    I("s_waitcnt lgkmcnt(0)")
    e.stamp()
    I("s_barrier")
    for i in range(3):
        for c, f in dma_ops(0, i):
            f()
    if opt["pro"] == "alpha":
        I("s_barrier")
    w1late = opt["w1late"] == 2 or (opt["w1late"] == 1 and not extra)
    if not w1late:
        for i in range(3):
            for c, f in dma_ops(1, i):
                f()
    e.need("bias")
    if opt["w8"] == 2 and not extra:
        I(f"s_cmp_eq_u32 s{sL}, 0")
        I("s_cbranch_scc1 L_CW2")
        I(f"v_mov_b32 v8, {FLAGS + 15*16 + 4}")
        I(f"v_mov_b32 v9, 1")
        I("s_mov_b64 exec, 1")
        I("ds_add_u32 v8, v9")
        I("s_mov_b64 exec, -1")
        e.label("L_CW2")
    for s in range(3):
        a, b = acc[(5, 0, s)], acc[(5, 1, s)]
        I(f"v_lshlrev_b32 v{a}, 16, v{16+2*s}")
        I(f"v_and_b32 v{a+1}, s{sMASK}, v{16+2*s}")
        I(f"v_lshlrev_b32 v{a+2}, 16, v{17+2*s}")
        I(f"v_and_b32 v{a+3}, s{sMASK}, v{17+2*s}")
        for k in range(4):
            I(f"v_xor_b32 v{b+k}, s{sINV}, v{a+k}")
    for i in range(3):
        for c, f in tr_ops(0, i):
            f()
    if w1late:
        for i in range(3):
            for c, f in dma_ops(1, i):
                f()
    if opt["w2pre"]:
        for i in range(3):
            for c, f in dma_ops(2, i):
                f()
    I(f"s_lshl_b32 s{sT0}, s{sWAVE}, 2")
    I(f"s_add_u32 s{sT0}, s{sT0}, {FLAGS}")
    I(f"v_mov_b32 v{vFL}, s{sT0}")
    I(f"v_mov_b32 v{vONE}, 1")
    if opt["prio"]:
        I(f"s_setprio {opt['prio']}")
    e.stamp()

    groups = []

    def g_row(step, r):
        st = step_info(step)[1]
        mf = []
        for i in (2, 1, 0):
            m = r - i
            if 0 <= m <= 5:
                for s in range(3):
                    mf.append(((m, st, s), i, s))
        return dict(step=step, row=r, mf=mf)

    def g_x(step, i):
        return dict(step=step, row=8 + i, mf=[(("X", step_info(step)[1]), i, 0)])

    for step in range(22):
        seq = [g_row(step, 0), g_row(step, 1), g_x(step, 0), g_row(step, 2), g_x(step, 1), g_row(step, 3),
               g_x(step, 2), g_row(step, 4), g_row(step, 5), g_row(step, 6), g_row(step, 7)]
        groups += [g for g in seq if extra or g["row"] < 8]
    lag = opt["lag"]
    if lag >= 0:
        seq = []
        for r in range(8 + lag):
            if r < 8:
                seq.append((22, r))
            if r >= lag:
                seq.append((23, r - lag))
    else:
        seq = [(22, 0), (22, 1), (22, 2), (23, 0), (22, 3), (23, 1), (23, 2), (23, 3),
               (22, 4), (23, 4), (22, 5), (23, 5), (22, 6), (23, 6), (22, 7), (23, 7)]
    for (st_, r) in seq:
        groups.append(g_row(st_, r))
        if extra and st_ == 22 and 1 <= r <= 3:
            groups.append(g_x(22, r - 1))
        if extra and st_ == 23 and 1 <= r <= 3 and lag < 0:
            groups.append(g_x(23, r - 1))
        if extra and st_ == 23 and 2 <= r <= 4 and lag >= 0:
            groups.append(g_x(23, r - 2))

    stream = []
    gstart = []
    for gi, g in enumerate(groups):
        gstart.append(len(stream))
        for (key, i, s) in g["mf"]:
            stream.append((gi, key, i, s))
    N = len(stream)
    gend = [gstart[k + 1] - 1 if k + 1 < len(groups) else N - 1 for k in range(len(groups))]
    step_start, step_end = {}, {}
    last_use, last_acc, first_acc, first_tap = {}, {}, {}, {}
    for gi, g in enumerate(groups):
        step_start.setdefault(g["step"], gstart[gi])
        step_end[g["step"]] = gend[gi]
    for n, (gi, key, i, s) in enumerate(stream):
        st = groups[gi]["step"]
        last_use[(st, i, s)] = n
        last_acc[(st, key)] = n
        first_acc.setdefault((st, key), n)
        first_tap.setdefault((st, i), n)
    SL = step_start[1] - step_start[0]

    fill = [[] for _ in range(N + 1)]
    cl = [""] * (N + 1)
    endw = [""] * (N + 1)
    for gi in range(1, len(groups)):
        endw[gstart[gi] - 1] = "W"
    for (st, i), n in first_tap.items():
        if n:
            endw[n - 1] = "W"

    def put(g, op):
        fill[g].append(op[1])
        cl[g] += op[0]

    def addcost(g, c, cur):
        base = cur.get(g, cl[g])
        return gapcost(base + c + endw[g]) - gapcost(base + endw[g])

    def place(g0, ops, deadline=None, per=2, strict=False):
        for budget in range(0, len(ops) + 1):
            cur = {}
            res = []
            g, n, left = g0, 0, budget
            for c, f in ops:
                free = 4 if c == "D" else 0
                while g < N:
                    if n < per:
                        ac = addcost(g, c, cur)
                        if ac <= free:
                            break
                        if left and ac <= free + 4:
                            left -= 1
                            break
                    g += 1
                    n = 0
                g = min(g, N)
                cur[g] = cur.get(g, cl[g]) + c
                res.append(g)
                n += 1
            if deadline is None or res[-1] <= deadline:
                break
        else:
            assert not strict, (g0, deadline, res[-1])
        for g, op in zip(res, ops):
            put(g, op)
        return res[-1]

    def vread(gi):
        g = groups[gi]
        u = g["step"] >> 1
        off = VS[u % 3] + (g["step"] & 1) * VHALF + g["row"] * 1024
        base = vV
        if off >= 0x8000:
            base, off = vV2, off - 0x8000
        r = VR + 4 * (gi % 4)
        return ("R", lambda: e.lds(f"ds_read_b128 {vr(r)}, v{base} offset:{off}", f"v{gi}"))

    first_of_unit = {}
    for gi, g in enumerate(groups):
        first_of_unit.setdefault(g["step"] >> 1, gi)
    def flag(k):
        return ("d", lambda: e.jit(70 + k) or e.lds(f"ds_write_b32 v{vFL}, v{vONE} offset:{k*16}"))

    def ckread(off, name):
        return ("R", lambda: e.lds(f"ds_read_b32 v{vCK}, v{vV2} offset:{FLAGS - 0x8000 + off}", name))

    def check1(name):
        def f():
            e.jit(len(name) + len(e.L) % 13)
            e.need(name)
            I(f"v_readfirstlane_b32 s{sT0}, v{vCK}")
        return f

    def check(off, val, name, st=False):
        def f():
            lab = f"L_CK{tag}{name}"
            I(f"s_cmp_eq_u32 s{sT0}, {val}")
            I(f"s_cbranch_scc0 {lab}_spin")
            e.label(lab)
            if st and opt["cst"] < 0:
                e.stamp()
            cold.append(f"{lab}_spin:")
            cold.append(f"    ds_read_b32 v{vCK}, v{vV2} offset:{FLAGS - 0x8000 + off}")
            cold.append("    s_waitcnt lgkmcnt(0)")
            cold.append(f"    v_readfirstlane_b32 s{sT0}, v{vCK}")
            cold.append(f"    s_cmp_eq_u32 s{sT0}, {val}")
            cold.append(f"    s_cbranch_scc0 {lab}_spin")
            cold.append(f"    s_branch {lab}")
        return f

    cold = []
    bar_gap = {}
    rpos = {}
    for gi in range(4, len(groups)):
        g = gend[gi - 4]
        if opt["rsh"] and len(groups[gi - 3]["mf"]) > 1 and g - 0 >= rpos.get(gi - 1, -1):
            g += 1
        g = max(g, rpos.get(gi - 1, -1) + 1)
        rpos[gi] = g
        put(g, vread(gi))
    for u in range(1, 12):
        gi = first_of_unit[u]
        gp = gend[gi - 4]
        bar_gap[u] = gp - 1
        put(gp - 2, ("WV", check1(f"rdy{u}")))
        put(gp - 1, ("SS", check(448 + 4 * u, 4, f"rdy{u}", True)))
        gq = gp - (7 if opt["rsh"] else 8)
        assert place(gq, [ckread(448 + 4 * u, f"rdy{u}")]) < gp - 4
        if u - 1 <= 8:
            place(gstart[gi - 1], [flag(16 + u - 1)])

    g = 0
    gtr1 = 0
    k = 0
    for step in ((3,) if opt["w2pre"] else (2, 3)):
        for i in range(3):
            if step == 3:
                gtr1 = place(max(gtr1, opt["tr1at"] + (14 if w1late else 0) + 8 * i), tr_ops(1, i), per=1) + 1
                g = max(g, gtr1 + opt['trd'])
            ops = dma_ops(step, i)
            g = place(max(g, int(k * opt["dsp"])), ops[:2])
            for d in range(3):
                g = place(max(g + 1, int(k * opt["dsp"]) + 1), [ops[2 + d]])
                k += 1
    place(g + 1, [flag(31)])
    NR = opt["nraw"]
    for step in range(2, NR):
        gt = step_start[step - 1] + SL - 24
        for i in range(3):
            gt = max(gt, max(last_use[(step - 2, i, s)] for s in range(3)))
            gt = place(gt, tr_ops(step, i), per=1, deadline=first_tap[(step, i)] - 4) + 1
            if step + 2 < NR:
                ops = dma_ops(step + 2, i)
                t0_ = step_start[step] + int(i * SL / 3)
                g = place(max(g, gt + opt["trd"], t0_), ops[:2])
                for d in range(3):
                    g = place(max(g + 1, t0_ + int(d * SL / 9) + 1), [ops[2 + d]])

    gchk = step_start[NR - 1] - opt["ulead0"] - 3

    place(gchk - 10, [ckread(240, "uflag")])
    put(gchk - 1, ("WV", check1("uflag")))
    put(gchk, ("SS", check(240, 1, "uflag")))
    g = gchk + 1
    go_gap = None
    early_go = []
    for step in range(NR, 24):
        base = step_start[step - 1] - opt["ulead"]
        stp = opt["ustep"] * SL / 57
        if step == NR:
            base, stp = gchk + 2, opt["ustep0"]
        if step == 23:
            base, stp = last_use[(21, 0, 0)], 2
        k = 0
        for i in range(3):
            for s in range(3):
                tgt = max(base + int(k * stp), last_use[(step - 2, i, s)], g)
                if k == 0:
                    g = place(max(g, tgt - 2), [u_off(step)])
                    tgt = max(tgt, g + 1)
                g = place(tgt, [u_op(step, i, s)]) + 1
                k += 1
        if step == opt["go"]:
            go_gap = g
        if opt["ego"] and step in (21, 22):
            early_go.append((g, 25 + step - 21))

    def bfly_ops(k0, k1, first):
        ops = []
        if first:
            o0, o1, md = "v_sub_f32_e64", "v_add_f32_e64", " div:2"
        else:
            o0, o1, md = "v_add_f32", "v_sub_f32", ""
        for k in range(4):
            ops.append(("V", lambda k=k: I(f"{o0} v{spare[0]+k}, v{acc[k0]+k}, v{acc[k1]+k}{md}")))
        for k in range(4):
            def f(k=k):
                I(f"{o1} v{acc[k1]+k}, v{acc[k0]+k}, v{acc[k1]+k}{md}")
                if k == 3:
                    acc[k0], spare[0] = spare[0], acc[k0]
            ops.append(("V", f))
        return ops

    order = [0, 1, "X", 2, 3, 4, 5] if extra else [0, 1, 2, 3, 4, 5]
    fb = [u for u in range(12) if UNITS[u][0] == "B"]
    y0last = 2 * max(u for u in range(12) if UNITS[u][1] == 0) + 1
    for last, first in ((2 * fb[0] - 1, True), (2 * fb[-1] + 1, False)):
        blocks = []
        for m in order:
            keys = [((m, 0, s), (m, 1, s)) for s in range(3)] if m != "X" else [(("X", 0), ("X", 1))]
            for (k0, k1) in keys:
                rdy = max(n for (st_, k_), n in last_acc.items() if st_ <= last and k_ in (k0, k1))
                blocks.append((rdy + 8, first_acc[(last + 1, k0)] - 3, k0, k1))
        dl = [b[1] for b in blocks]
        for k in range(len(dl) - 2, -1, -1):
            dl[k] = min(dl[k], dl[k + 1] - opt.get("bsp", 4))
        g = 0
        for (rdy, _, k0, k1), d in zip(blocks, dl):
            g = place(max(g, rdy), bfly_ops(k0, k1, first), deadline=d, per=3)
            assert g <= _, (last, k0, g, _)

    def oaddr():
        ops = []
        A = lambda s: ops.append((s[0].upper(), lambda: I(s)))
        t, q = vO[1], vO[2]
        A(f"v_lshrrev_b32 v{q}, 8, v{vV}")
        A(f"v_bfe_u32 v{t}, v{vV}, 4, 4")
        A(f"v_xor_b32 v{t}, v{t}, v{q}")
        A(f"v_lshlrev_b32 v{q}, 3, v{q}")
        A(f"s_lshl_b32 s{sT1}, s{sWAVE}, 5")
        A(f"s_add_u32 s{sT1}, s{sT1}, {XST}")
        A(f"v_mul_u32_u24 v{vOX}, 144, v{t}")
        A(f"v_add3_u32 v{vOX}, v{vOX}, v{q}, s{sT1}")
        A(f"v_mul_u32_u24 v{t}, 400, v{t}")
        A(f"v_add_u32 v{q}, v{t}, v{q}")
        A(f"s_mul_i32 s{sT1}, s{sWAVE}, 96")
        A(f"s_add_u32 s{sT1}, s{sT1}, {OUT}")
        for s in range(3):
            A(f"s_lshl_b32 s{sT2}, s{sF[s]}, 5")
            A(f"s_add_u32 s{sT2}, s{sT2}, s{sT1}")
            A(f"v_add_u32 v{vO[s]}, s{sT2}, v{q}")
        return ops
    place(step_start[10], oaddr())

    def epi_ops(key, addr, off):
        return [("V", lambda: I(f"v_cvt_pk_bf16_f32 v{acc[key]}, v{acc[key]}, v{acc[key]+1}")),
                ("V", lambda: I(f"v_cvt_pk_bf16_f32 v{acc[key]+1}, v{acc[key]+2}, v{acc[key]+3}")),
                ("D", lambda: e.lds(f"ds_write_b64 v{addr}, {vr(acc[key], 2)} offset:{off}"))]

    place(go_gap, [flag(14)])
    for g_, k_ in early_go:
        place(g_, [flag(k_)])
    def after(n):
        g, c = n, 0
        while g < N:
            c += sum(1 for ch in cl[g] if ch != "W")
            if c >= 8:
                return g
            g += 1
            c += 1
            if c >= 8:
                return g
        return None

    def epi2(key, addr, off):
        return [("V", lambda: I(f"v_cvt_pk_bf16_f32 v{acc[key]}, v{acc[key]}, v{acc[key]+1}")),
                ("V", lambda: I(f"v_cvt_pk_bf16_f32 v{acc[key]+1}, v{acc[key]+2}, v{acc[key]+3}")),
                ("d", lambda: e.lds(f"ds_write_b32 v{addr}, v{acc[key]} offset:{off}")),
                ("d", lambda: e.lds(f"ds_write_b32 v{addr}, v{acc[key]+1} offset:{off+4}"))]

    g = 0
    for st, last in ((0, y0last), (1, 23)):
        if st == 0:
            g = last_acc[(y0last, (0, 0, 0))] + opt["y0at"]
        if st == 1:
            g = place(g, [("V", lambda s=s: I(f"v_add_u32 v{vO[s]}, {6*OROW}, v{vO[s]}")) for s in range(3)])
        done = {m: (last_acc[(last, ("X", st))] if m == "X" else last_acc[(last, (m, st, 0))]) for m in order}
        ep = epi2 if (st == 0 and opt["dd"] >= 1) else epi_ops
        for m in sorted(order, key=lambda m: done[m]):
            if st == 1 and opt["dd"] >= 2:
                ep = epi2 if m in ("X", 0, 1, 2) else epi_ops
            if m == "X":
                g = place(max(g, after(done[m])), ep(("X", st), vOX, 2304 * st) + [flag(12 + st)])
                continue
            o3 = [ep((m, st, s), vO[s], m * OROW) for s in range(3)]
            g0 = after(done[m] + 2)
            if g0 is None or g >= N:
                have = (N - 1 - (done[m] + 2)) + sum(sum(1 for ch in cl[k] if ch != "W") for k in range(done[m] + 2, N + 1))
                if have < 8:
                    put(N, ("S", lambda n_=8 - have: I(f"s_nop {n_ - 1}")))
                for op in [o for t in o3 for o in t if o[0] == "V"] + [o for t in o3 for o in t if o[0] != "V"] + [flag(6 * st + m)]:
                    put(N, op)
                g = N
                continue
            g = max(g, after(done[m]))
            g = place(g, o3[0])
            g = place(max(g, after(done[m] + 1) or N), o3[1])
            g = place(max(g, g0), o3[2] + [flag(6 * st + m)])

    if opt["cst"] >= 0:
        for k in range(15):
            g = step_start[opt["cst"]] + k * opt["cev"]
            if g < N:
                fill[g].append(e.stamp)
    ckread(448, "rdy0")[1]()
    check1("rdy0")()
    check(448, 4, "rdy0")()
    e.stamp()
    if opt["d_skew"]:
        for k in range(1, 4):
            I(f"s_cmp_lt_u32 s{sWAVE}, {k}")
            I(f"s_cbranch_scc1 L_SK{tag}")
            for z in range(opt["d_skew"]):
                I("s_nop 3")
        e.label(f"L_SK{tag}")
    for gi in range(4):
        vread(gi)[1]()
    started = set()
    for n, (gi, key, i, s) in enumerate(stream):
        step = groups[gi]["step"]
        kind, st, c = step_info(step)
        e.need([f"v{gi}", f"w{step}_{i}"])
        d = acc[key]
        cc = d
        if step in (0, 2) and key not in started:
            started.add(key)
            cc = acc[(5, st, s)]
        I(f"v_mfma_f32_16x16x32_bf16 {vr(d)}, {vr(W(step, i, s))}, {vr(VR + 4*(gi % 4))}, {vr(cc)}")
        for f in fill[n]:
            f()
    e.stamp()
    for f in fill[N]:
        f()
    e.stamp()
    e.dump_stamps("c")
    I("s_endpgm")
    return e.L + cold


xA, xB, xC, eA, eB, eC = 1, 2, 3, 4, 5, 6
wE = [7, 8, 9, 10]
wX = [11, 12]
TMP = 13
OB = 26
RAW = 58
RAWX = 178


def PD(p, j):
    return RAW + 40 * p + 4 * j


def PX(p, j):
    return RAWX + 24 * p + 4 * j


sEM = 100


def masked(e, on):
    if on:
        e.I(f"s_mov_b64 exec, s[{sEM}:{sEM+1}]")


def unmask(e, on):
    if on:
        e.I("s_mov_b64 exec, -1")


def xload(e, p, j):
    a, off = (xA, 0) if j == 0 else ((xC, 0) if j == 9 else (xB, (j - 1) * 384))
    m = e.opt["dedup"] and j >= 8
    masked(e, m)
    e.vmem(f"buffer_load_dwordx4 {vr(PD(p, j))}, v{a}, s[{sX}:{sX+3}], 0 offen offset:{off + 128*p} {e.opt['xf']}", f"x{p}_{j&1}")
    unmask(e, m)


def eload(e, p, j):
    a, off = (eA, 0) if j == 0 else ((eC, 0) if j == 5 else (eB, (j - 1) * 384))
    m = e.opt["dedup"] and j >= 4
    masked(e, m)
    e.vmem(f"buffer_load_dwordx4 {vr(PX(p, j))}, v{a}, s[{sX}:{sX+3}], 0 offen offset:{off + 128*p} {e.opt['xf']}", f"e{p}_{j&1}")
    unmask(e, m)


sW0, sW1, sW2, sW3 = 41, 42, 43, 44


def worker_pre(e, opt, part=3, cons=False):
    I = e.I
    t1, t2, t3 = 18, 19, 20
    eA, eB = (96, 97) if cons else (4, 5)
    sPW = sWAVE if cons else 55
    sRING = sPOLL if cons else 52
    if part & 1:
        if opt["w8"]:
            I(f"s_bfe_u32 s{sW0}, s2, {1 | (2 << 16)}")
            I(f"s_mul_i32 s{sW0}, s{sW0}, 7")
            I(f"s_add_u32 s{sW2}, s{sW0}, s{sIDX}")
            I(f"s_mul_i32 s{sW0}, s{sW2}, 43")
            I(f"s_lshr_b32 s{sW0}, s{sW0}, 7")
            I(f"s_mul_i32 s{sW3}, s{sW0}, 3")
            I(f"s_sub_u32 s{sW2}, s{sW2}, s{sW3}")
            I(f"s_lshl_b32 s{sW2}, s{sW2}, 1")
            if cons:
                I(f"s_add_u32 s{sW2}, s{sW2}, 1")
            I(f"s_cmp_lt_u32 s{sW0}, 9")
            I(f"s_cselect_b32 s{sCNT}, 0, s{sINV}")
        else:
            I(f"s_and_b32 s{sW0}, s2, 7")
            I(f"s_cmp_lt_u32 s{sIDX}, 6")
            I(f"s_cselect_b32 s{sW2}, s{sIDX}, s{sW0}")
            I(f"s_cselect_b32 s{sW0}, s{sW0}, 8")
            I(f"s_cmp_lt_u32 s{sW2}, 6")
            I(f"s_cselect_b32 s{sCNT}, 0, s{sINV}")
        I(f"s_mul_i32 s{sW1}, s{sW0}, 11")
        I(f"s_lshr_b32 s{sW1}, s{sW1}, 5")
        I(f"s_mul_i32 s{sW3}, s{sW1}, 3")
        I(f"s_sub_u32 s{sW0}, s{sW0}, s{sW3}")
        I(f"s_lshl_b32 s{sW0}, s{sW0}, 2")
        I(f"s_add_u32 s{sW0}, s{sW0}, s{sPW}")
        I(f"s_mul_i32 s{sOFF}, s{sW1}, {3*73728}")
        I(f"s_mul_i32 s{sOFF2}, s{sW2}, 12288")
        I(f"s_add_u32 s{sOFF}, s{sOFF}, s{sOFF2}")
        I(f"s_lshl_b32 s{sOFF2}, s{sW0}, 5")
        I(f"s_add_u32 s{sOFF}, s{sOFF}, s{sOFF2}")
        I(f"v_bfe_u32 v{t1}, v0, 3, 2")
        I(f"v_lshlrev_b32 v{t1}, 3, v{t1}")
        I(f"v_lshrrev_b32 v{t2}, 5, v0")
        I(f"v_lshl_add_u32 v{t1}, v{t2}, 2, v{t1}")
        I(f"v_bfe_u32 v{t2}, v0, 1, 2")
        I(f"v_add_u32 v{t1}, v{t1}, v{t2}")
        I(f"v_mul_u32_u24 v{t1}, 384, v{t1}")
        I(f"v_and_b32 v{t2}, 1, v0")
        I(f"v_lshl_add_u32 v{eA}, v{t2}, 4, v{t1}")
        I(f"s_mul_i32 s{sRING}, s{sPW}, 6144")
        I(f"s_add_u32 s{sRING}, s{sRING}, {PRE + (3072 if cons else 0)}")
        I(f"s_mov_b32 m0, s{sRING}")
    if not part & 2:
        return
    if part & 1:
        I("s_waitcnt lgkmcnt(0)")
    srd(e, sW, sKA + 2, WBYTES)
    nu = 2 if opt["w8"] == 1 else 1
    for k in range(3 * nu):
        e.vmem(f"buffer_load_dwordx4 v{eA}, s[{sW}:{sW+3}], s{sOFF} offen lds", f"pre{k // 3}")
        if k < 3 * nu - 1:
            I(f"s_add_u32 m0, s{sRING}, {1024*(k+1)}")
            if k == 2:
                I(f"s_sub_u32 s{sOFF}, s{sOFF}, {2*73728 - 12288}")
            else:
                I(f"s_add_u32 s{sOFF}, s{sOFF}, 73728")
    I(f"s_mul_i32 s{sOFF}, s{sW2}, 36864")
    I(f"s_mul_i32 s{sW0}, s{sW0}, 3")
    I(f"s_add_u32 s{sW0}, s{sW0}, s{sW1}")
    I(f"s_lshl_b32 s{sW0}, s{sW0}, 10")
    I(f"s_add_u32 s{sOFF}, s{sOFF}, s{sW0}")
    I(f"s_or_b32 s{sOFF}, s{sOFF}, s{sCNT}")
    I(f"v_lshl_add_u32 v{eB}, v0, 4, s{sOFF}")


def prepass(e, opt, un, G, U, eB, eC):
    I = e.I
    e.need(f"pre{un}")
    if opt["pst"] == 2 and un == 0:
        e.stamp()
    for j in range(3):
        for h in range(2):
            e.lds(f"ds_read_b64_tr_b16 {vr(G + 4*j + 2*h, 2)}, v{eC} offset:{3072*un + 1024*j + 512*h}", f"pt{j}")
    for j in (0, 2, 1):
        e.need(f"pt{j}")
        for k in range(4):
            I(f"v_lshlrev_b32 v{U + 8*j + 2*k}, 16, v{G + 4*j + k}")
            I(f"v_and_b32 v{U + 8*j + 2*k + 1}, s{sMASK}, v{G + 4*j + k}")
        if j == 2:
            for kk in range(8):
                I(f"v_add_f32 v{U+kk}, v{U+kk}, v{U+16+kk}")
    for kk in range(8):
        I(f"v_sub_f32_e64 v{U+16+kk}, v{U+kk}, v{U+8+kk} div:2")
        I(f"v_add_f32_e64 v{U+kk}, v{U+kk}, v{U+8+kk} div:2")
    for k in range(4):
        I(f"v_cvt_pk_bf16_f32 v{G+12+k}, v{U+2*k}, v{U+2*k+1}")
        I(f"v_cvt_pk_bf16_f32 v{G+16+k}, v{U+16+2*k}, v{U+16+2*k+1}")
    for pos, r in ((0, G + 12), (1, G + 16), (2, G), (3, G + 8)):
        I(f"s_mov_b32 s{sOFF}, {(pos*6 + un)*36864}")
        e.vmem(f"buffer_store_dwordx4 {vr(r)}, v{eB}, s[{sU}:{sU+3}], s{sOFF} offen sc1", "ust")


def producer_main(e, opt, loads=True, mid=None):
    I = e.I
    t0, t1, t2, t3 = 13, 14, 15, 16
    decode_main(e)
    I(f"v_and_b32 v{t0}, 3, v0")
    I(f"v_bfe_u32 v{t1}, v0, 2, 2")
    I(f"v_bfe_u32 v{t2}, v0, 4, 1")
    I(f"v_lshrrev_b32 v{wE[0]}, 5, v0")
    I(f"s_lshl_b32 s{sT0}, s{sPW}, 1")
    I(f"s_add_u32 s{sT0}, s{sT0}, s{sROW0}")
    I(f"s_mul_i32 s{sT0}, s{sT0}, 86016")
    I(f"s_mul_i32 s{sT1}, s{sSTRIP}, 12288")
    I(f"s_add_u32 s{sT0}, s{sT0}, s{sT1}")
    I(f"s_sub_u32 s{sT0}, s{sT0}, 86016")
    I(f"v_mul_u32_u24 v{t3}, 86016, v{t2}")
    I(f"v_lshl_add_u32 v{t3}, v{t0}, 4, v{t3}")
    I(f"v_lshl_add_u32 v{t3}, v{wE[0]}, 6, v{t3}")
    I(f"v_mul_u32_u24 v{xB}, 3072, v{t1}")
    I(f"v_add3_u32 v{xB}, v{xB}, v{t3}, s{sT0}")
    I(f"v_cmp_gt_i32 vcc, 0, v{xB}")
    I(f"v_lshl_add_u32 v{t3}, s{sSTRIP}, 2, v{t1}")
    I(f"v_mov_b32 v{xC}, s{sINV}")
    I(f"v_cndmask_b32 v{xB}, v{xB}, v{xC}, vcc")
    I(f"v_cmp_ne_u32 vcc, 0, v{t3}")
    I(f"v_subrev_u32 v{xA}, 384, v{xB}")
    I(f"v_add_u32 v{wE[1]}, 3072, v{xB}")
    I(f"v_cndmask_b32 v{xA}, v{xC}, v{xA}, vcc")
    I(f"v_cmp_ne_u32 vcc, 27, v{t3}")
    if opt["dedup"]:
        I(f"s_mov_b32 s{sEM}, 0xf000f000")
        I(f"s_mov_b32 s{sEM+1}, 0xf000f000")
    I("s_waitcnt lgkmcnt(0)")
    srd(e, sX, sKA, XBYTES)
    I(f"v_cndmask_b32 v{xC}, v{xC}, v{wE[1]}, vcc")
    if opt["d_st"] and loads:
        I(f"s_sleep {opt['d_st']}")
    if mid:
        mid()
    for j in (0, 2, 4, 6, 8) if loads else ():
        xload(e, 0, j)


def producer(parent, opt, kind):
    e = Em(opt, parent)
    I = e.I
    t0, t1, t2, t3, t4 = 13, 14, 15, 16, 17
    X = kind == "x"
    G = RAWX
    if kind == "w":
        if opt["wo"] == -1:
            for j in (1, 3, 5, 7, 9):
                xload(e, 0, j)
        if opt["wp1"]:
            I("s_barrier")
        srd(e, sU, sWS, UBYTES)
        I(f"v_lshrrev_b32 v{eC}, 2, v0")
        I(f"v_lshlrev_b32 v{eC}, 5, v{eC}")
        I(f"v_lshl_add_u32 v{eC}, v{t0}, 3, v{eC}")
        I(f"v_add_u32 v{eC}, s{sRING}, v{eC}")
        if opt["pst"] == 2:
            e.stamp()
        for un in range(2 if opt["w8"] == 1 else 1):
            prepass(e, opt, un, RAWX + 20 * un, RAWX + 40, eB, eC)
        if opt["wo"] == -2:
            for j in (0, 2, 4, 6, 8, 1, 3, 5, 7, 9):
                xload(e, 0, j)
        if opt["pst"]:
            e.stamp()
    if kind == "n" and opt["xo"] and opt["pro"] != "alpha":
        for j in (1, 3, 5, 7, 9)[:opt["xon"]]:
            xload(e, 0, j)
    I(f"s_lshl_b32 s{sT0}, s{sPW}, 1")
    I(f"v_add_u32 v{t2}, s{sT0}, v{t2}")
    I(f"v_mul_u32_u24 v{wE[0]}, {VHALF}, v{wE[0]}")
    I(f"v_lshl_add_u32 v{wE[0]}, v{t2}, 10, v{wE[0]}")
    I(f"v_lshlrev_b32 v{t3}, 2, v{t1}")
    I(f"v_lshl_add_u32 v{t3}, v{t0}, 4, v{t3}")
    I(f"v_add_u32 v{t3}, v{t3}, v{t0}")
    I(f"v_lshl_add_u32 v{wE[0]}, v{t3}, 4, v{wE[0]}")
    for k in range(1, 4):
        I(f"v_xor_b32 v{wE[k]}, {16*k}, v{wE[0]}")
    decode_extra(e)
    srd(e, sO, sKA + 6, XBYTES)
    if X:
        if opt["dedup"]:
            I(f"v_bfe_u32 v{t1}, v0, 2, 3")
        else:
            I(f"v_bfe_u32 v{t1}, v0, 2, 1")
            I(f"v_lshlrev_b32 v{t1}, 1, v{t1}")
            I(f"v_bfe_u32 v{t2}, v0, 3, 1")
            I(f"v_bfe_u32 v{t3}, v0, 4, 1")
            I(f"v_lshlrev_b32 v{t3}, 2, v{t3}")
            I(f"v_or3_b32 v{t1}, v{t1}, v{t2}, v{t3}")
        I(f"s_add_u32 s{sT0}, s{sEROW}, s{sPW}")
        I(f"s_sub_u32 s{sT0}, s{sT0}, 1")
        I(f"s_mul_i32 s{sT1}, s{sT0}, 86016")
        I(f"s_cmp_lt_u32 s{sT0}, 224")
        I(f"s_cselect_b32 s{sT1}, s{sT1}, s{sINV}")
        I(f"s_lshl_b32 s{sT0}, s{sES}, 5")
        I(f"v_lshl_add_u32 v{t4}, v{t1}, 2, s{sT0}")
        I(f"v_mul_u32_u24 v{t2}, 384, v{t4}")
        I(f"v_lshl_add_u32 v{t2}, v{t0}, 4, v{t2}")
        I(f"v_lshrrev_b32 v{t3}, 5, v0")
        I(f"v_lshl_add_u32 v{t2}, v{t3}, 6, v{t2}")
        I(f"v_add_u32 v{eB}, s{sT1}, v{t2}")
        I(f"v_cmp_ne_u32 vcc, 0, v{t4}")
        I(f"v_subrev_u32 v{t2}, 384, v{eB}")
        I(f"v_mov_b32 v{eA}, s{sINV}")
        I(f"v_cndmask_b32 v{eA}, v{eA}, v{t2}, vcc")
        I(f"v_cmp_ne_u32 vcc, 220, v{t4}")
        I(f"v_add_u32 v{t2}, 1536, v{eB}")
        I(f"v_mov_b32 v{eC}, s{sINV}")
        I(f"v_cndmask_b32 v{eC}, v{eC}, v{t2}, vcc")
        for j in (0, 2, 4):
            eload(e, 0, j)
        if opt["pro"] != "alpha":
            if opt["xo"]:
                for j in (1, 3, 5, 7, 9)[:opt["xon"]]:
                    xload(e, 0, j)
            for j in (1, 3, 5) if not opt["p1x"] else ():
                eload(e, 0, j)
        I(f"v_lshlrev_b32 v{t1}, 1, v{t1}")
        I(f"v_xor_b32 v{t1}, v{t1}, v{t0}")
        I(f"v_lshl_add_u32 v{t1}, v{t0}, 4, v{t1}")
        I(f"v_lshlrev_b32 v{t1}, 4, v{t1}")
        I(f"v_mul_u32_u24 v{t3}, {VHALF}, v{t3}")
        I(f"s_add_u32 s{sT0}, s{sPW}, 8")
        I(f"s_lshl_b32 s{sT0}, s{sT0}, 10")
        I(f"v_add3_u32 v{wX[0]}, v{t1}, v{t3}, s{sT0}")
        I(f"v_xor_b32 v{wX[1]}, 16, v{wX[0]}")
    else:
        I(f"s_cmp_eq_u32 s{sPW}, 3")
        I(f"s_cselect_b32 s{sPEND}, 1, 0")
        if opt["rpf"] == 1:
            I(f"s_mul_i32 s{sT0}, s{sIDX}, {18*128}")
            I(f"v_min_u32 v253, 17, v0")
            I(f"v_lshl_add_u32 v253, v253, 7, s{sT0}")
        elif opt["rpf"] == 2:
            I(f"s_sub_u32 s{sT0}, s{sIDX}, 12")
            I(f"s_cmp_lt_u32 s{sIDX}, 7")
            I(f"s_cselect_b32 s{sT0}, s{sIDX}, s{sT0}")
            I(f"s_mul_i32 s{sT1}, s{sT0}, 13")
            I(f"s_lshr_b32 s{sT1}, s{sT1}, 6")
            I(f"s_mul_i32 s{sT2}, s{sT1}, 5")
            I(f"s_sub_u32 s{sL}, s{sT0}, s{sT2}")
            I(f"s_cmp_eq_u32 s{sHASX}, 0")
            I(f"s_cselect_b32 s{sL}, s{sL}, 9")
            I(f"s_cmp_eq_u32 s{sPW}, 3")
            I(f"s_cselect_b32 s{sL}, s{sL}, 9")
            I(f"s_mul_i32 s{sT1}, s{sT1}, {144*128}")
            I(f"v_min_u32 v253, 47, v0")
            I(f"v_lshl_add_u32 v253, v253, 7, s{sT1}")
        I(f"v_mov_b32 v250, {FLAGS + 15*16}")
        if kind == "n":
            srd(e, sU, sWS, UBYTES)
    I(f"v_mov_b32 v251, 1")
    I(f"v_mov_b32 v252, {FLAGS}")

    def pollflag(idx, lab, slp, r=16):
        e.label(lab)
        I(f"ds_read_b128 {vr(r)}, v252 offset:{idx*16}")
        I("s_waitcnt lgkmcnt(0)")
        e.lg = []
        I(f"v_and_b32 v{r}, v{r}, v{r+1}")
        I(f"v_and_b32 v{r+2}, v{r+2}, v{r+3}")
        I(f"v_and_b32 v{r}, v{r}, v{r+2}")
        I("s_nop 0")
        I(f"v_readfirstlane_b32 s{sT0}, v{r}")
        I(f"s_cmp_eq_u32 s{sT0}, 1")
        I(f"s_cbranch_scc1 {lab}_ok")
        if slp:
            I(f"s_sleep {slp}")
        I(f"s_branch {lab}")
        e.label(lab + "_ok")

    upf_from = [(3 if opt["order"] == 2 else opt["pollu"] + 1) + opt["rlead"]]
    upf_from[0] = max(upf_from[0], opt["nraw"] // 2)

    def upf(t, sfx=''):
        if X or not opt["rpf"]:
            return
        k, st, p = UNITS[t]
        base = ((st if k == "B" else 2 + st) * 6 + 2 * p) * 36864
        lab = f"L_UP{kind}{t}{sfx}"
        if opt["rpf"] == 1:
            I(f"s_cmp_eq_u32 s{sPW}, 3")
            I(f"s_cbranch_scc0 {lab}")
            I(f"s_mov_b32 s{sT1}, {base}")
            I(f"buffer_load_dword v254, v253, s[{sU}:{sU+3}], s{sT1} offen sc1")
        else:
            I(f"s_cmp_eq_u32 s{sL}, {t % 5}")
            I(f"s_cbranch_scc0 {lab}")
            for q in range(3):
                I(f"s_mov_b32 s{sT1}, {base + q*48*128}")
                I(f"buffer_load_dword v254, v253, s[{sU}:{sU+3}], s{sT1} offen sc1")
        e.label(lab)

    def waitfree(u, r=16):
        e.jit(20 + u)
        if u >= 3:
            pollflag(16 + u - 3, f"L_FR{kind}{u}", opt["psl"], r)
            if upf_from[0] <= u + opt["rlead"] <= 11:
                upf(u + opt["rlead"])

    def ready(u):
        e.jit(u)
        I("s_mov_b64 exec, 1")
        e.lds(f"ds_add_u32 v252, v251 offset:{448 + 4*u}")
        I("s_mov_b64 exec, -1")
        if not opt["pst"] or e.nst < 15:
            e.stamp()

    def xl(p, par):
        sl = opt["d_sl"] if p == 2 else 0
        for j in range(par, 10, 2):
            xload(e, p, j)
            if sl:
                I(f"s_sleep {sl if X else (sl * 8) // 5}")
        if X:
            for j in range(par, 6, 2):
                eload(e, p, j)
                if sl:
                    I(f"s_sleep {sl}")

    def parse(t):
        d = {}
        for item in t.split(","):
            when, what = item.split(":")
            d.setdefault(when, []).append((int(what[0]), 0 if what[1] == "e" else 1))
        return d
    xsX = parse(opt.get("xsx") or opt["xs"])
    xsN = parse(opt["xs"])
    xs = xsX if X else xsN
    seen = set()

    def xsched(when):
        if kind != "n":
            for p, par in xs.get(when, []):
                xl(p, par)
            return
        a, b = xsX.get(when, []), xsN.get(when, [])
        for it in a + [t for t in b if t not in a]:
            both = it in a and it in b
            if not both:
                lab = f"L_XS{when}_{it[0]}{it[1]}"
                I(f"s_cmp_eq_u32 s{sHASX}, {1 if it in a else 0}")
                I(f"s_cbranch_scc0 {lab}")
            keep = list(e.vm)
            xl(*it)
            if not both:
                e.label(lab)
                if it not in seen:
                    e.vm = keep
                seen.add(it)

    pend = []
    novalu = [False]
    pace = [0, 0]

    def xpace(per, nvalu):
        for p, par in xs.get(f"{per}p", []):
            pend.extend([lambda j=j, p=p: xload(e, p, j) for j in range(par, 10, 2)])
            if X:
                pend.extend([lambda j=j, p=p: eload(e, p, j) for j in range(par, 6, 2)])
        if pend:
            pace[0] = max(1, nvalu // len(pend))
            pace[1] = 0

    def V(s):
        if not (opt["d_nov"] and novalu[0]):
            I(s)
        pace[1] += 1
        if pend and pace[1] % pace[0] == 0:
            pend.pop(0)()

    def later(f):
        if not opt["wsp"]:
            return f()
        if not pend:
            pace[0], pace[1] = opt["wsp"], 0
        pend.append(f)

    def flush():
        while pend:
            pend.pop(0)()

    def unp(dst, src):
        V(f"v_lshlrev_b32 v{dst}, 16, v{src}")
        V(f"v_and_b32 v{dst+1}, s{sMASK}, v{src}")

    def vwrite(addr, src, u):
        if opt["d_now"] and u >= 2:
            return
        e.lds(f"ds_write_b128 v{addr}, {vr(src)} offset:{VS[u % 3]}")

    T16 = list(range(13, 26)) + [54, 55, 56]

    def chainA(D, n, par, neg, waddr, u, ob, wf=False):
        op = "v_subrev_f32" if neg else "v_sub_f32"
        A, B = T16[:8], T16[8:]

        def unp8(R, src):
            for k in range(4):
                V(f"v_lshlrev_b32 v{R[2*k]}, 16, v{src+k}")
                V(f"v_and_b32 v{R[2*k+1]}, s{sMASK}, v{src+k}")
        unp8(A, D(par))
        for j in range(n):
            unp8(B, D(par + 2 * j + 2))
            for k in range(8):
                V(f"{op} v{A[k]}, v{A[k]}, v{B[k]}")
            for k in range(4):
                V(f"v_cvt_pk_bf16_f32 v{ob + 4*(j & 1) + k}, v{A[2*k]}, v{A[2*k+1]}")
            if wf and j == 0:
                waitfree(u, 44)
            vwrite(waddr[j], ob + 4 * (j & 1), u)
            if kind == "w" and u == 1 and opt["wta"] == 10 + j:
                signal()
            if kind == "w" and u == 1 and opt["two"] == 10 + j:
                publish()
            A, B = B, A

    fixed = set()

    def needx(p, pars, ext):
        e.need([f"{'e' if ext else 'x'}{p}_{par}" for par in pars])
        for par in pars:
            if opt["dedup"] and (p, par, ext) not in fixed:
                fixed.add((p, par, ext))
                dst, src = (PX(p, 4 + par), PX(p, par)) if ext else (PD(p, 8 + par), PD(p, par))
                for k in range(4):
                    V(f"v_mov_b32_dpp v{dst+k}, v{src+k} row_shl:4 row_mask:0xf bank_mask:0x7")

    def tA(u, main=True, ext=True):
        kind_, st, p = UNITS[u]
        neg = (st == 1 and any(UNITS[t][0] == "B" for t in range(u)))
        if main:
            needx(p, [st], False)
            if opt["pst"] and u <= 1:
                e.stamp()
            chainA(lambda j: PD(p, j), 4, st, neg, wE, u, OB, True)
        if X and ext:
            needx(p, [st], True)
            chainA(lambda j: PX(p, j), 2, st, neg, wX, u, OB + 8)

    def pairB(d1, d2, o1, o2):
        for k0 in (0, 2):
            for k in (k0, k0 + 1):
                a = TMP + 6 * (k & 1)
                unp(a, d1 + k); unp(a + 2, d2 + k)
            for k in (k0, k0 + 1):
                a = TMP + 6 * (k & 1)
                b, s = a + 2, a + 4
                V(f"v_add_f32 v{s}, v{a}, v{b}"); V(f"v_add_f32 v{s+1}, v{a+1}, v{b+1}")
                V(f"v_sub_f32 v{a}, v{b}, v{a}"); V(f"v_sub_f32 v{a+1}, v{b+1}, v{a+1}")
            for k in (k0, k0 + 1):
                a = TMP + 6 * (k & 1)
                V(f"v_cvt_pk_bf16_f32 v{o1+k}, v{a+4}, v{a+5}")
                V(f"v_cvt_pk_bf16_f32 v{o2+k}, v{a}, v{a+1}")

    npoll = [0]

    def trypoll(final=False):
        if X:
            return
        n = npoll[0]
        npoll[0] += 1
        lab = f"L_PL{kind}{n}"
        I(f"s_cmp_eq_u32 s{sPEND}, 0")
        I(f"s_cbranch_scc1 {lab}_skip")
        if n == 0:
            if opt["pdel"]:
                I(f"s_sleep {opt['pdel']}")
            if opt["four"]:
                I(f"s_getreg_b32 s{sT0}, hwreg(HW_REG_HW_ID, 8, 1)")
                I(f"s_cmp_eq_u32 s{sT0}, 0")
                if opt["four"] == 2:
                    I(f"s_mov_b32 s57, 0x0080c040")
                    I(f"s_cselect_b32 s57, 0x40c08000, s57")
                else:
                    I(f"s_mov_b32 s57, 0x004080c0")
                    I(f"s_cselect_b32 s57, 0x0040c080, s57")
                I(f"s_and_b32 s{sT0}, s57, 255")
                I(f"s_load_dword s{sPOLL}, s[{sDBG}:{sDBG+1}], s{sT0}")
            else:
                I(f"s_load_dword s{sPOLL}, s[{sDBG}:{sDBG+1}], {128 if opt['two'] else 0}")
            e.label(lab + "_skip")
            return
        I("s_waitcnt lgkmcnt(0)")
        tgt = 0 if opt["noatom"] else NW[0]
        if final:
            I(f"s_mov_b32 s{sCNT}, {n}")
            I(f"v_mov_b32 v255, 0")
            e.label(lab)
            I(f"s_cmp_ge_u32 s{sPOLL}, {tgt}")
            I(f"s_cbranch_scc1 {lab}_ok")
            I(f"s_sleep {opt['pslp']}")
            I(f"s_cmp_ge_u32 s{sCNT}, {2 if opt['two'] and not opt['four'] else 4}")
            I(f"s_cbranch_scc1 {lab}_v")
            if opt["four"]:
                I(f"s_lshr_b32 s57, s57, 8")
                I(f"s_and_b32 s{sT0}, s57, 255")
            else:
                I(f"s_lshl_b32 s{sT0}, s{sCNT}, 6")
            if opt["two"] and not opt["four"]:
                I(f"s_add_u32 s{sT0}, s{sT0}, 128")
            I(f"s_load_dword s{sPOLL}, s[{sDBG}:{sDBG+1}], s{sT0}")
            I(f"s_add_u32 s{sCNT}, s{sCNT}, 1")
            I("s_waitcnt lgkmcnt(0)")
            I(f"s_branch {lab}")
            e.label(lab + "_v")
            I(f"global_load_dword v254, v255, s[{sDBG}:{sDBG+1}] offset:{128 if opt['two'] else 0} sc1")
            I(f"s_add_u32 s{sCNT}, s{sCNT}, 1")
            I("s_waitcnt vmcnt(0)")
            I(f"v_readfirstlane_b32 s{sPOLL}, v254")
            I(f"s_cmp_lt_u32 s{sCNT}, 20000")
            I(f"s_cbranch_scc1 {lab}")
        else:
            I(f"s_cmp_ge_u32 s{sPOLL}, {tgt}")
            I(f"s_cbranch_scc1 {lab}_ok")
            I(f"s_load_dword s{sPOLL}, s[{sDBG}:{sDBG+1}], {64*n + (128 if opt['two'] else 0)}")
            I(f"s_branch {lab}_skip")
        e.label(lab + "_ok")
        if opt["pst"]:
            I(f"s_memrealtime s[{sST + 2*pslot[0]}:{sST + 2*pslot[0] + 1}]")
            I(f"s_mov_b32 s{sST + 2*pslot[0] + 2}, " + (f"s{sCNT}" if final else f"{n}"))
        I("ds_write_b32 v250, v251")
        I(f"s_mov_b32 s{sPEND}, 0")
        for t in range(opt["nraw"] // 2, upf_from[0]):
            upf(t, f"_{n}")
        e.label(lab + "_skip")

    pslot = [0]

    def wpoint():
        pollflag(31, f"L_WI{kind}", opt["psl"], 20)
        if opt["otlb"] == 2 or (opt["otlb"] == 1 and kind == "w"):
            I("s_mov_b64 exec, 1")
            e.vmem(f"buffer_load_dword v254, v{xB}, s[{sO}:{sO+3}], 0 offen")
            I("s_mov_b64 exec, -1")
        xsched("w")

    def tB1(u):
        p = UNITS[u][2]
        e.need([f"x{p}_0", f"x{p}_1"] + ([f"e{p}_0", f"e{p}_1"] if X else []))
        needx(p, [0], False)
        if X:
            needx(p, [0], True)
        for ee in range(4):
            pairB(PD(p, 1 + 2 * ee), PD(p, 2 + 2 * ee), OB + 4 * (ee & 1), OB + 8 + 4 * ee)
            if ee == 0:
                waitfree(u)
                xpace(u, 200 if X else 120)
            vwrite(wE[ee], OB + 4 * (ee & 1), u)
            if u == 2 and ee == opt["wat"]:
                wpoint()
            if u == 2 and ee >= opt["pat"]:
                if ee == opt["pat"] and opt["pst"] and not X:
                    pslot[0] = e.nst
                    e.nst += 2
                trypoll()
                if ee == 3:
                    trypoll(final=True)
        if X:
            e.need([f"e{p}_0", f"e{p}_1"])
            for ee in range(2):
                pairB(PX(p, 1 + 2 * ee), PX(p, 2 + 2 * ee), OB + 4 * ee, OB + 24 + 4 * ee)
                vwrite(wX[ee], OB + 4 * ee, u)
        flush()
        ready(u)

    def tB2(u):
        waitfree(u + 1)
        xsched(f"f{u}")
        for ee in range(4):
            vwrite(wE[ee], OB + 8 + 4 * ee, u + 1)
        if X:
            for ee in range(2):
                vwrite(wX[ee], OB + 24 + 4 * ee, u + 1)
        ready(u + 1)

    n1 = 1 if X else opt["n1"]

    def bar():
        e.drain_lg()
        if not opt["pst"] or e.nst < 15:
            e.stamp()
        I("s_barrier")

    def atom_mark():
        assert not e.vm
        e.vm.append("atom")

    def signal():
        e.jit(60)
        e.need("ust")
        if opt["pst"]:
            e.stamp()
        I(f"v_mov_b32 v{eA}, {FLAGS + 15*16 + 4}")
        I("s_mov_b64 exec, 1")
        I(f"ds_add_rtn_u32 v{eC}, v{eA}, v251")
        I("s_waitcnt lgkmcnt(0)")
        e.lg = []
        I(f"v_readfirstlane_b32 s{sT0}, v{eC}")
        if opt["w8"] == 2:
            I(f"s_mov_b32 s{sT0}, 0")
            I(f"s_cmp_eq_u32 s{sPW}, 3")
            I("s_cbranch_scc0 L_W8B")
            e.label("L_W8A")
            I(f"ds_read_b32 v{eC}, v{eA}")
            I("s_waitcnt lgkmcnt(0)")
            I(f"v_readfirstlane_b32 s{sT0}, v{eC}")
            I(f"s_cmp_eq_u32 s{sT0}, 8")
            I("s_cbranch_scc0 L_W8A")
            I(f"s_mov_b32 s{sT0}, 3")
            e.label("L_W8B")
        if opt["two"] == 3:
            I("s_mov_b64 exec, -1")
            I(f"s_cmp_eq_u32 s{sT0}, 3")
            I("s_cbranch_scc0 L_NOATOM")
            I(f"s_mov_b32 s{sT0}, 1")
            I(f"s_atomic_add s{sT0}, s[{sDBG}:{sDBG+1}], 0 glc")
            I("s_waitcnt lgkmcnt(0)")
            I(f"s_cmp_eq_u32 s{sT0}, {NW[0] - 1}")
            I("s_cbranch_scc0 L_NOATOM")
            I(f"s_mov_b32 s{sT0}, {NW[0]}")
            I(f"s_mov_b32 s{sT1}, {NW[0]}")
            I(f"s_atomic_add s{sT0}, s[{sDBG}:{sDBG+1}], 128 glc")
            I(f"s_atomic_add s{sT1}, s[{sDBG}:{sDBG+1}], 192 glc")
            if opt["four"] == 1:
                I(f"s_mov_b32 s{sT2}, {NW[0]}")
                I(f"s_atomic_add s{sT2}, s[{sDBG}:{sDBG+1}], 64 glc")
            I("s_waitcnt lgkmcnt(0)")
            e.label("L_NOATOM")
            return
        if opt["two"]:
            I(f"v_mov_b32 v{eC}, 0")
        I(f"s_cmp_eq_u32 s{sT0}, 3")
        I("s_cbranch_scc0 L_NOATOM")
        if opt["two"]:
            if opt["four"] == 2:
                I("s_mov_b64 exec, 3")
            I(f"v_lshlrev_b32 v{eA}, 6, v0")
            I(f"v_mov_b32 v{eC}, 1")
            I(f"global_atomic_add v{eC}, v{eA}, v{eC}, s[{sDBG}:{sDBG+1}] sc0 sc1")
        else:
            I("s_mov_b64 exec, 15")
            I(f"v_lshlrev_b32 v{eA}, 6, v0")
            if not opt["noatom"]:
                I(f"global_atomic_add v{eA}, v251, s[{sDBG}:{sDBG+1}] sc1")
        e.label("L_NOATOM")
        I("s_mov_b64 exec, -1")
        atom_mark()

    def publish():
        if kind != "w" or not opt["two"]:
            return
        e.need("atom")
        I(f"v_readfirstlane_b32 s{sT0}, v{eC}")
        I(f"s_cmp_eq_u32 s{sT0}, {NW[0] - 1}")
        I("s_cbranch_scc0 L_NOPUB")
        I(f"s_mov_b64 exec, {7 if opt['four'] == 1 else 3}")
        I(f"v_lshlrev_b32 v{eA}, 6, v0")
        I(f"v_mov_b32 v{eC}, {NW[0]}")
        I(f"global_store_dword v{eA}, v{eC}, s[{sDBG}:{sDBG+1}] offset:{64 if opt['four'] == 1 else 128} sc1")
        I("s_mov_b64 exec, -1")
        e.label("L_NOPUB")

    if opt["otlb"] == 1 and kind != "w":
        I("s_mov_b64 exec, 1")
        e.vmem(f"buffer_load_dword v254, v{xB}, s[{sO}:{sO+3}], 0 offen")
        I("s_mov_b64 exec, -1")
    if kind == "w" and opt["wo"] == 0:
        xl(0, 1)
    e.drain_lg()
    e.stamp()
    if not (kind == "w" and opt["wp1"]):
        I("s_barrier")
    if X and opt["p1x"] == 1:
        for j in (1, 3, 5):
            eload(e, 0, j)
    if opt["pro"] == "alpha":
        I("s_barrier")
        if kind != "w" and opt["aord"] == 0:
            xl(0, 1)
    if kind == "w" and opt["wta"] == 0:
        signal()
        if opt["two"] == 1:
            publish()
        if opt["wo"] > 0:
            xl(0, 1)
    tA(0)
    ready(0)
    if kind != "w":
        for j in (1, 3, 5, 7, 9)[opt["xon"]:]:
            xload(e, 0, j)
    if X and opt["p1x"] == 2:
        for j in (1, 3, 5):
            eload(e, 0, j)
    if opt["two"] == 2:
        publish()
    if kind == "w" and opt["wta"] == 1:
        signal()
        if opt["two"] == 1:
            publish()
        if opt["wo"] > 0:
            xl(0, 1)
    if opt["pro"] == "alpha" and kind != "w" and opt["aord"] == 1:
        xl(0, 1)
    xsched("a0")
    tA(1)
    ready(1)
    if kind == "w" and opt["wta"] == 2:
        signal()
    xsched("a1")
    novalu[0] = True
    for u in range(2, 12):
        k, st, p = UNITS[u]
        if k == "A":
            if u == 2:
                wpoint()
            tA(u)
            ready(u)
            if u == opt["pollu"]:
                trypoll()
                trypoll(final=True)
            xsched(f"a{u}")
        elif st == 0:
            tB1(u)
            xsched(f"j{u}")
            tB2(u)
            xsched(f"k{u}")
    if True:
        if True:
            rA, rB, gA, gB, vXL, vXG = 1, 2, 3, 4, 5, 6
            I(f"s_mul_i32 s{sT0}, s{sROW0}, 86016")
            I(f"s_mul_i32 s{sT1}, s{sSTRIP}, 12288")
            I(f"s_add_u32 s{sT0}, s{sT0}, s{sT1}")
            I(f"s_mul_i32 s{sT1}, s{sPW}, 3072")
            I(f"s_add_u32 s{sT0}, s{sT0}, s{sT1}")
            I(f"s_mul_i32 s{sT1}, s{sPW}, 1600")
            I(f"s_add_u32 s{sT1}, s{sT1}, {OUT}")
            for j in range(3 if opt["st2"] else 0):
                I(f"v_add_u32 v{t0}, {64*j}, v0")
                I(f"v_mul_u32_u24 v{t1}, 1366, v{t0}")
                I(f"v_lshrrev_b32 v{t1}, 16, v{t1}")
                I(f"v_mul_u32_u24 v{t2}, 48, v{t1}")
                I(f"v_sub_u32 v{t2}, v{t0}, v{t2}")
                I(f"v_lshlrev_b32 v{t2}, 3, v{t2}")
                I(f"v_mul_u32_u24 v{t3}, 400, v{t1}")
                I(f"v_add3_u32 v{7+j}, v{t3}, v{t2}, s{sT1}")
                I(f"v_mul_u32_u24 v{t3}, 768, v{t1}")
                I(f"v_add3_u32 v{10+j}, v{t3}, v{t2}, s{sT0}")
                I(f"v_add_u32 v{20+j}, {6*OROW}, v{7+j}")
            for (r, gg, add) in ((rA, gA, 0), (rB, gB, 64)):
                I(f"v_add_u32 v{t0}, {add}, v0")
                I(f"v_min_u32 v{t0}, 95, v{t0}")
                I(f"v_mul_u32_u24 v{t1}, 10923, v{t0}")
                I(f"v_lshrrev_b32 v{t1}, 18, v{t1}")
                I(f"v_mul_u32_u24 v{t2}, 24, v{t1}")
                I(f"v_sub_u32 v{t2}, v{t0}, v{t2}")
                I(f"v_lshlrev_b32 v{t2}, 4, v{t2}")
                I(f"v_mul_u32_u24 v{t3}, 400, v{t1}")
                I(f"v_add3_u32 v{r}, v{t3}, v{t2}, s{sT1}")
                I(f"v_mul_u32_u24 v{t3}, 768, v{t1}")
                I(f"v_add3_u32 v{gg}, v{t3}, v{t2}, s{sT0}")
            I(f"v_cmp_gt_u32 vcc, 32, v0")
            I(f"v_mov_b32 v{t4}, s{sINV}")
            I(f"v_add_u32 v250, {6*OROW}, v{rA}")
            I(f"v_cndmask_b32 v{gB}, v{t4}, v{gB}, vcc")
            I(f"v_add_u32 v251, {6*OROW}, v{rB}")
            I(f"s_lshl_b32 s{sT0}, s{sPW}, 2")
            I(f"v_bfe_u32 v{t0}, v0, 3, 2")
            I(f"v_add_u32 v{t0}, s{sT0}, v{t0}")
            I(f"v_and_b32 v{t1}, 7, v0")
            I(f"v_mul_u32_u24 v{t2}, 144, v{t0}")
            I(f"v_lshl_add_u32 v{t2}, v{t1}, 4, v{t2}")
            I(f"v_add_u32 v{vXL}, {XST}, v{t2}")
            I(f"v_mul_u32_u24 v{t0}, 768, v{t0}")
            I(f"v_lshrrev_b32 v{t2}, 1, v{t1}")
            I(f"v_mul_u32_u24 v{t2}, 96, v{t2}")
            I(f"v_and_b32 v{t1}, 1, v{t1}")
            I(f"v_lshl_add_u32 v{t2}, v{t1}, 4, v{t2}")
            I(f"s_mul_i32 s{sT0}, s{sEROW}, 86016")
            I(f"s_mul_i32 s{sT1}, s{sES}, 12288")
            I(f"s_add_u32 s{sT0}, s{sT0}, s{sT1}")
            I(f"s_lshl_b32 s{sT1}, s{sF0}, 5")
            I(f"s_add_u32 s{sT0}, s{sT0}, s{sT1}")
            I(f"v_add3_u32 v{vXG}, v{t0}, v{t2}, s{sT0}")
            I(f"v_cndmask_b32 v{vXG}, v{t4}, v{vXG}, vcc")
    rA, rB, gA, gB, vXL, vXG = 1, 2, 3, 4, 5, 6
    sf = opt["sf"]
    nb = [0]

    def rowread(st, m, b):
        e.jit(40 + m + 6 * st)
        if opt["st2"]:
            for j in range(3):
                I(f"ds_read_b64 {vr(b + 2*j, 2)}, v{(7 if st == 0 else 20) + j} offset:{m*OROW}")
            return
        a0, a1 = (rA, rB) if st == 0 else (250, 251)
        I(f"ds_read_b128 {vr(b)}, v{a0} offset:{m*OROW}")
        I(f"ds_read_b128 {vr(b+4)}, v{a1} offset:{m*OROW}")

    def rowstore(st, m, b, w0=None, w1=None):
        sf = opt["sfl"] if st == 1 and m >= 6 - opt["nlast"] else opt["sf"]
        I(f"s_mov_b32 s{sOFF}, {m*86016}")
        if opt["st2"]:
            for j in range(3):
                if w0: I(f"s_waitcnt lgkmcnt({2-j})")
                I(f"buffer_store_dwordx2 {vr(b + 2*j, 2)}, v{10+j}, s[{sO}:{sO+3}], s{sOFF} offen offset:{384*st} {sf}")
            return
        if w0: I(w0)
        I(f"buffer_store_dwordx4 {vr(b)}, v{gA}, s[{sO}:{sO+3}], s{sOFF} offen offset:{384*st} {sf}")
        if w1: I(w1)
        I(f"buffer_store_dwordx4 {vr(b+4)}, v{gB}, s[{sO}:{sO+3}], s{sOFF} offen offset:{384*st} {sf}")

    def xpart(st, b):
        if kind == "w":
            return
        if kind == "n":
            I(f"s_cmp_eq_u32 s{sHASX}, 0")
            I(f"s_cbranch_scc1 L_NOX{st}")
        pollflag(12 + st, f"L_F{kind}X{st}", opt["slp"])
        I(f"ds_read_b128 {vr(b)}, v{vXL} offset:{2304*st}")
        I("s_waitcnt lgkmcnt(0)")
        I(f"buffer_store_dwordx4 {vr(b)}, v{vXG}, s[{sO}:{sO+3}], 0 offen offset:{384*st}")
        if kind == "n":
            e.label(f"L_NOX{st}")

    batches = [(14, range(6))]
    if opt["ego"]:
        a_, b_ = int(str(opt["ego"])[1]), int(str(opt["ego"])[2])
        batches = [(25, tuple(range(a_))), (26, tuple(range(a_, a_ + b_))), (14, tuple(range(a_ + b_, 6)))]
        batches = [t for t in batches if t[1] or t[0] == 14]
    for k_, rows in batches:
        if rows:
            pollflag(rows[-1], f"L_F{kind}0_{rows[-1]}", opt["psl"])
        for m in rows:
            rowread(0, m, 28 + 8 * m)
        pollflag(k_, f"L_F{kind}GO{k_}", opt["slp"])
        if k_ == 14 and not opt["pst"]:
            e.stamp()
        for m in rows:
            rowstore(0, m, 28 + 8 * m)
    xpart(0, 76)
    for m in [0, 1, "X", 2, 3, 4, 5]:
        if m == "X":
            xpart(1, 80)
            continue
        b = 84 + 8 * m
        pollflag(6 + m, f"L_F{kind}1_{m}", opt["slp"] if m < 4 else opt["slpl"])
        if m in (0, 5) and not opt["pst"]:
            e.stamp()
        rowread(1, m, b)
        rowstore(1, m, b, "s_waitcnt lgkmcnt(1)", "s_waitcnt lgkmcnt(0)")
    e.stamp()
    if opt["stamp"]:
        I("s_waitcnt vmcnt(0)")
        e.stamp()
    e.dump_stamps("p")
    I("s_endpgm")
    return e.L


def generate(**kw):
    opt = dict(DEF)
    opt.update(kw)
    opt["code_pf_lines"] = 20
    UNITS[:] = ORDERS[opt["order"]]
    NW[0] = 28 if opt["w8"] else 56
    assert not opt["wp1"]
    L = []
    L.append(f"; @launch grid=(256,1,1) block=(512,1,1) lds={LDS_BYTES}")
    for t in HEADER.strip("\n").split("\n"):
        L.append(("; " + t).rstrip())
    L.append('.amdgcn_target "amdgcn-amd-amdhsa--gfx950"')
    L.append(".text")
    L.append(f".globl {KNAME}")
    L.append(".p2align 8")
    L.append(f".type {KNAME},@function")
    L.append(f"{KNAME}:")
    e = Em(opt)
    I = e.I
    e.stamp()
    I(f"s_load_dwordx8 s[{sKA}:{sKA+7}], s[0:1], 0")
    I(f"s_load_dwordx4 s[{sDBG}:{sDBG+3}], s[0:1], 32")
    I("v_lshrrev_b32 v1, 6, v0")
    I("s_cmp_ge_u32 s2, 256")
    I("s_cbranch_scc1 L_END")
    I(f"v_readfirstlane_b32 s{sWAVE}, v1")
    I("v_and_b32 v0, 63, v0")
    if opt["epf"]:
        R = opt["epf"]
        I(f"s_getpc_b64 s[{sPC}:{sPC+1}]")
        I(f"s_bfe_u32 s{sT0}, s2, {3 | ((R.bit_length() - 1) << 16)}")
        I(f"v_min_u32 v2, {24 // R - 1}, v0")
        I(f"v_lshl_add_u32 v2, v2, {R.bit_length() - 1}, s{sT0}")
        I(f"v_mul_u32_u24 v1, {CS}, v1")
        I(f"v_lshl_add_u32 v2, v2, 7, v1")
        I(f"v_min_u32 v2, L_END-{KNAME}-256, v2")
        e.vmem(f"global_load_dword v255, v2, s[{sPC}:{sPC+1}]", "epf")
    I(f"s_mov_b32 s{sMASK}, 0xffff0000")
    I(f"s_mov_b32 s{sINV}, 0x80000000")
    I(f"s_lshr_b32 s{sIDX}, s2, 3")
    if opt["par"]:
        I(f"s_and_b32 s{sHASX}, s2, 1")
        I(f"s_xor_b32 s{sHASX}, s{sHASX}, {1 if opt['par'] == 1 else 0}")
        I(f"s_cmp_ge_u32 s{sIDX}, 8")
        I(f"s_cselect_b32 s{sHASX}, s{sHASX}, 0")
    else:
        I(f"s_sub_u32 s{sT0}, s{sIDX}, 7")
        I(f"s_cmp_lt_u32 s{sT0}, 12")
        I(f"s_cselect_b32 s{sHASX}, 1, 0")
    if opt["w8"] == 2:
        I(f"s_and_b32 s{sT0}, s2, 1")
        I(f"s_lshl_b32 s{sT0}, s{sT0}, 5")
        I(f"s_or_b32 s{sT0}, s{sT0}, s{sIDX}")
        I(f"s_cmp_lt_u32 s{sT0}, 7")
        I(f"s_cselect_b32 s{sL}, 1, 0")
    I(f"s_cmp_lt_u32 s{sWAVE}, 4")
    I("s_cbranch_scc1 L_CONS")
    I(f"s_sub_u32 s{sPW}, s{sWAVE}, 4")
    if opt["w8"] == 2:
        I(f"s_cmp_eq_u32 s{sL}, 1")
    elif opt["w8"]:
        I(f"s_and_b32 s{sT0}, s2, 1")
        I(f"s_lshl_b32 s{sT0}, s{sT0}, 5")
        I(f"s_or_b32 s{sT0}, s{sT0}, s{sIDX}")
        I(f"s_cmp_lt_u32 s{sT0}, 7")
    else:
        I(f"s_cmp_lt_u32 s{sIDX}, 7")
    if opt["wnear"] == 3:
        I(f"s_cselect_b32 s{sL}, 1, 0")
        L += e.L
        ep = Em(opt, e)
        worker_pre(ep, opt, 1)
        box = []

        def mid():
            ep.I(f"s_cmp_eq_u32 s{sL}, 0")
            ep.I("s_cbranch_scc1 L_PMAIN")
            w = Em(opt, ep)
            worker_pre(w, opt, 2)
            ep.L += w.L + ["    s_branch L_PW", "L_PMAIN:"]
            w.L = []
            if opt["wo"] != -2:
                for j in (0, 2, 4, 6, 8):
                    xload(w, 0, j)
            box.append(w)
        producer_main(ep, opt, mid=mid)
        epw = box[0]
    else:
        I({0: "s_cbranch_scc1 L_PW", 1: "s_cbranch_scc0 L_PMAIN", 2: "s_cbranch_scc1 L_WPRE"}[opt["wnear"]])
        L += e.L
        epw = Em(opt, e)
        worker_pre(epw, opt)
        wpre = []
        if opt["wnear"]:
            wpre, epw.L = epw.L + ["    s_branch L_PW"], []
        if opt["wnear"] == 1:
            L += wpre + ["L_PMAIN:"]
        producer_main(epw, opt, loads=opt["wo"] != -2)
        ep = Em(opt, e)
        producer_main(ep, opt)
    if not opt["xo"]:
        for j in (1, 3, 5, 7, 9):
            xload(ep, 0, j)
    ep.I(f"s_cmp_eq_u32 s{sHASX}, 0")
    ep.I("s_cbranch_scc1 L_PN")
    ep.I(f"s_cmp_eq_u32 s{sPW}, 3")
    ep.I("s_cbranch_scc1 L_PN")
    L += ep.L
    if opt["wnear"] == 2:
        L += ["    s_branch L_PX", "L_WPRE:"] + wpre + ["L_PX:"]
    L += producer(ep, opt, "x")
    L.append(f".org {KNAME} + {1 * CS}, 0" if opt["epf"] else ".p2align 6")
    L.append("L_PN:")
    L += producer(ep, opt, "n")
    L.append(f".org {KNAME} + {2 * CS}, 0" if opt["epf"] else ".p2align 6")
    L.append("L_PW:")
    L += epw.L
    L += producer(epw, opt, "w")
    L.append(f".org {KNAME} + {3 * CS}, 0" if opt["epf"] else ".p2align 6")
    L.append("L_CONS:")
    ec = Em(opt, e)
    consumer_pro(ec, opt)
    L += ec.L
    L += consumer(ec, opt, True)
    L.append(f".org {KNAME} + {5 * CS}, 0" if opt["epf"] else ".p2align 6")
    L.append("L_CN:")
    L += consumer(ec, opt, False)
    L.append("L_END:")
    L.append("    s_endpgm")
    L.append('.section .rodata,"a"')
    L.append(".p2align 6")
    L.append(f".amdhsa_kernel {KNAME}")
    for d in ("next_free_vgpr 256", "next_free_sgpr 102", "accum_offset 256", "group_segment_fixed_size 0",
              "kernarg_size 48", "user_sgpr_count 2", "user_sgpr_kernarg_segment_ptr 1",
              "system_sgpr_workgroup_id_x 1", "ieee_mode 0", "float_denorm_mode_32 1"):
        L.append("  .amdhsa_" + d)
    L.append(".end_amdhsa_kernel")
    return "\n".join(L) + "\n"


if __name__ == "__main__":
    out = sys.argv[1]
    kw = {}
    for a in sys.argv[2:]:
        k, v = a.split("=", 1)
        try:
            kw[k] = int(v)
        except ValueError:
            try:
                kw[k] = float(v)
            except ValueError:
                kw[k] = v.replace("+", " ")
    open(out, "w").write(generate(**kw))
```
